```python
import torch

def _softmax(x, axis=-1):
    return torch.softmax(x, dim=axis)
def _gelu(x):
    return torch.nn.functional.gelu(x, approximate="tanh")
def _silu(x):
    return torch.nn.functional.silu(x)
def _sigmoid(x):
    return torch.sigmoid(x)
def _layernorm(x, axis=-1, eps=1e-5):
    m = x.mean(dim=axis, keepdim=True)
    v = x.var(dim=axis, keepdim=True, unbiased=False)
    return (x - m) / torch.sqrt(v + eps)
def _scatter_add(tgt, idx, src, axis=0):
    return tgt.clone().index_add_(axis, idx, src)
def _segment_sum(src, seg, n):
    out = torch.zeros((n,) + src.shape[1:], dtype=src.dtype)
    return out.index_add_(0, seg, src)
def _pad(x, pw):
    flat = tuple(v for pair in reversed(pw) for v in pair)
    return torch.nn.functional.pad(x, flat)

kernel_name = 'parallel_sum__ssm_conv_h3__glu_gated_bilinear__prompt'

def setup_inputs():

    _w = (lambda a: (lambda t: t.to(torch.bfloat16) if t.is_floating_point() else t)(torch.as_tensor(a)))
    def _A_setup():
        B, S, D = 1, 2048, 640
        ks = 4
        return {
            "q": _w((lambda *s: torch.randn(*s, dtype=torch.bfloat16) * 0.05)(B, S, D)),
            "k": _w((lambda *s: torch.randn(*s, dtype=torch.bfloat16) * 0.2)(B, S, D)),
            "v": _w((lambda *s: torch.randn(*s, dtype=torch.bfloat16) * 0.2)(B, S, D)),
            "shift_k": _w((lambda *s: torch.randn(*s, dtype=torch.bfloat16) * 0.2)(D, ks) * 0.5),
            "ssm_k": _w((lambda *s: torch.randn(*s, dtype=torch.bfloat16) * 0.4)(D, S) * (1.0 / S ** 0.5)),
            "ssm_D": _w((lambda *s: torch.randn(*s, dtype=torch.bfloat16) * 0.2)(D)),
        }
    _A_in = _A_setup()

    def _B_setup():
        B, S, D, F = 1, 2048, 640, 1728
        return {
            "x": _w((lambda *s: torch.randn(*s, dtype=torch.bfloat16) * 0.05)(B, S, D)),
            "w_gate": _w((lambda *s: torch.randn(*s, dtype=torch.bfloat16) * 0.2)(D, F) * (D ** -0.5)),
            "w_up": _w((lambda *s: torch.randn(*s, dtype=torch.bfloat16) * 0.2)(D, F) * (D ** -0.5)),
            "w_down": _w((lambda *s: torch.randn(*s, dtype=torch.bfloat16) * 0.2)(F, D) * (F ** -0.5)),
        }
    _B_in = _B_setup()

    return {
        "A_q": _A_in["q"],
        "A_k": _A_in["k"],
        "A_v": _A_in["v"],
        "A_shift_k": _A_in["shift_k"],
        "A_ssm_k": _A_in["ssm_k"],
        "A_ssm_D": _A_in["ssm_D"],
        "B_x": _B_in["x"],
        "B_w_gate": _B_in["w_gate"],
        "B_w_up": _B_in["w_up"],
        "B_w_down": _B_in["w_down"],
    }

def reference(A_q, A_k, A_v, A_shift_k, A_ssm_k, A_ssm_D, B_x, B_w_gate, B_w_up, B_w_down):
    def _A_ref(q, k, v, shift_k, ssm_k, ssm_D):
        B, S, D = q.shape
        ks = shift_k.shape[-1]
        k_pad = _pad(k, ((0, 0), (ks - 1, 0), (0, 0)))
        k_shift = torch.zeros_like(k)
        for t in range(ks):
            k_shift = k_shift + k_pad[:, t:t + S, :] * shift_k[:, ks - 1 - t][None, None, :]
        kv = k_shift * v
        L = 2 * S
        kv_pad = _pad(kv, ((0, 0), (0, S), (0, 0)))
        kf_pad = _pad(ssm_k, ((0, 0), (0, S)))
        kv_f = (lambda x, axes=(-2,-1): torch.fft.rfft2(x.float(), dim=axes))(kv_pad[:, None, :, :], axes=(1, 2))
        kf_f = (lambda x, axes=(-2,-1): torch.fft.rfft2(x.float(), dim=axes))(kf_pad[:, None, :], axes=(1, 2))
        kf_f = (lambda x, *d: x.permute(*d))(kf_f, 1, 2, 0)
        y_f = kv_f * kf_f[None, :, :, :]
        y = (lambda x, s, axes=(-2,-1): torch.fft.irfft2(x, s=s, dim=axes).to(torch.bfloat16))(y_f, (1, L), axes=(1, 2))[:, 0, :S, :]
        y = y + kv * ssm_D[None, None, :]
        return q * y

    def _B_ref(x, w_gate, w_up, w_down):
        g = torch.einsum("bsd,df->bsf", x, w_gate)
        u = torch.einsum("bsd,df->bsf", x, w_up)
        h = g * u
        return torch.einsum("bsf,fd->bsd", h, w_down)

    x = A_q
    xn = _layernorm(x, axis=-1)
    return x + _A_ref(xn, A_k, A_v, A_shift_k, A_ssm_k, A_ssm_D) + _B_ref(xn, B_w_gate, B_w_up, B_w_down)
```

```python
import sys
NAME = "parallel_sum__ssm_conv_h3__glu_gated_bilinear__prompt"
S, D, F = 2048, 640, 1728
WS_XN  = 0
WS_KVT = 0x280000
WS_H   = 0x500000
WS_Y2T = 0xC00000
SZ_SD = S*D*2
SZ_H = S*F*2

class E:
    def __init__(self):
        self.l = []
    def __call__(self, s):
        for line in s.strip("\n").split("\n"):
            self.l.append("    " + line.strip() if not line.strip().endswith(":") else line.strip())
    def label(self, n):
        self.l.append(n + ":")
    def text(self):
        return "\n".join(self.l) + "\n"

def srd(e, d, blo, bhi, nbytes):
    e(f"s_mov_b32 s{d}, s{blo}")
    e(f"s_mov_b32 s{d+1}, s{bhi}")
    e(f"s_mov_b32 s{d+2}, {nbytes}")
    e(f"s_mov_b32 s{d+3}, 0x00020000")

def srd_off(e, d, blo, bhi, off, nbytes):
    e(f"s_add_u32 s{d}, s{blo}, {off}")
    e(f"s_addc_u32 s{d+1}, s{bhi}, 0")
    e(f"s_mov_b32 s{d+2}, {nbytes}")
    e(f"s_mov_b32 s{d+3}, 0x00020000")

def kdesc(name, vgpr, sgpr=102):
    acc = (vgpr + 3)//4*4
    return f""".amdhsa_kernel {name}
  .amdhsa_next_free_vgpr {vgpr}
  .amdhsa_next_free_sgpr {sgpr}
  .amdhsa_accum_offset {acc}
  .amdhsa_group_segment_fixed_size 0
  .amdhsa_kernarg_size 104
  .amdhsa_user_sgpr_count 2
  .amdhsa_user_sgpr_kernarg_segment_ptr 1
  .amdhsa_system_sgpr_workgroup_id_x 1
.end_amdhsa_kernel
"""

def khead(name):
    return f""".globl {name}
.p2align 8
.type {name},@function
{name}:
"""

N_LN = 128
N_KV = 160
def k1():
    e = E()
    e(f"s_cmp_ge_u32 s2, {N_LN+N_KV}")
    e("s_cbranch_scc1 K1_END")
    e("s_load_dwordx4 s[4:7], s[0:1], 0")
    e("s_load_dwordx4 s[8:11], s[0:1], 16")
    e("s_load_dwordx2 s[12:13], s[0:1], 96")
    e(f"s_cmp_ge_u32 s2, {N_LN}")
    e("s_cbranch_scc1 K1_KV")
    e("s_waitcnt lgkmcnt(0)")
    srd(e, 16, 4, 5, SZ_SD)
    srd_off(e, 20, 12, 13, WS_XN, SZ_SD)
    e("s_lshl_b32 s3, s2, 4")
    e("v_lshrrev_b32 v1, 4, v0")
    e("v_add_u32 v1, s3, v1")
    e("v_mul_u32_u24 v1, 1280, v1")
    e("v_and_b32 v2, 15, v0")
    e("v_lshlrev_b32 v2, 4, v2")
    e("v_add_u32 v1, v1, v2")
    for j in range(5):
        e(f"buffer_load_dwordx4 v[{4+4*j}:{7+4*j}], v1, s[16:19], 0 offen offset:{256*j}")
    e("s_waitcnt vmcnt(0)")
    for i in range(20):
        e(f"v_lshlrev_b32 v{32+2*i}, 16, v{4+i}")
        e(f"v_and_b32 v{33+2*i}, 0xffff0000, v{4+i}")
    e("v_add_f32 v24, v32, v33")
    e("v_add_f32 v25, v34, v35")
    for i in range(4, 40, 2):
        e(f"v_add_f32 v24, v24, v{32+i}")
        e(f"v_add_f32 v25, v25, v{33+i}")
    e("v_add_f32 v24, v24, v25")
    def red16(r):
        for sh in (8, 4, 2, 1):
            e("s_nop 1")
            e(f"v_add_f32_dpp v{r}, v{r}, v{r} row_ror:{sh} row_mask:0xf bank_mask:0xf")
    red16(24)
    e("s_mov_b32 s24, 0x3acccccd")
    e("v_mul_f32 v24, s24, v24")
    e("v_sub_f32 v26, v32, v24")
    e("v_mul_f32 v25, v26, v26")
    for i in range(1, 40):
        e(f"v_sub_f32 v26, v{32+i}, v24")
        e("v_fmac_f32 v25, v26, v26")
    red16(25)
    e("v_mul_f32 v25, s24, v25")
    e("v_cvt_pk_bf16_f32 v26, v24, v25")
    e("v_and_b32 v27, 0xffff0000, v26")
    e("v_lshlrev_b32 v26, 16, v26")
    e("v_add_f32 v27, 0x3727c5ac, v27")
    e("v_cvt_pk_bf16_f32 v27, v27, v27")
    e("v_lshlrev_b32 v27, 16, v27")
    e("v_sqrt_f32 v27, v27")
    e("s_nop 0")
    e("v_cvt_pk_bf16_f32 v27, v27, v27")
    e("v_lshlrev_b32 v27, 16, v27")
    e("v_rcp_f32 v28, v27")
    e("s_nop 0")
    for i in range(20):
        a, b = 32+2*i, 33+2*i
        e(f"v_sub_f32 v{a}, v{a}, v26")
        e(f"v_sub_f32 v{b}, v{b}, v26")
        e(f"v_cvt_pk_bf16_f32 v29, v{a}, v{b}")
        e(f"v_lshlrev_b32 v{a}, 16, v29")
        e(f"v_and_b32 v{b}, 0xffff0000, v29")
        e(f"v_mul_f32 v30, v{a}, v28")
        e(f"v_mul_f32 v31, v{b}, v28")
        e(f"v_fma_f32 v{a}, -v30, v27, v{a}")
        e(f"v_fma_f32 v{b}, -v31, v27, v{b}")
        e(f"v_fmac_f32 v30, v{a}, v28")
        e(f"v_fmac_f32 v31, v{b}, v28")
        e(f"v_cvt_pk_bf16_f32 v{4+i}, v30, v31")
    for j in range(5):
        e(f"buffer_store_dwordx4 v[{4+4*j}:{7+4*j}], v1, s[20:23], 0 offen offset:{256*j}")
    e("s_endpgm")
    e.label("K1_KV")
    e(f"s_sub_u32 s3, s2, {N_LN}")
    e("s_mul_hi_u32 s14, s3, 0x33333334")
    e("s_mul_i32 s15, s14, 5")
    e("s_sub_u32 s15, s3, s15")
    e("s_waitcnt lgkmcnt(0)")
    srd(e, 16, 6, 7, SZ_SD)
    srd(e, 20, 8, 9, SZ_SD)
    srd(e, 24, 10, 11, D*4*2)
    srd_off(e, 28, 12, 13, WS_KVT, SZ_SD)
    e("v_and_b32 v1, 15, v0")
    e("v_lshrrev_b32 v2, 4, v0")
    e("s_lshl_b32 s32, s14, 6")
    e("v_lshlrev_b32 v3, 2, v2")
    e("v_add_u32 v3, s32, v3")
    e("v_mul_u32_u24 v4, 1280, v3")
    e("s_lshl_b32 s33, s15, 8")
    e("v_lshlrev_b32 v5, 4, v1")
    e("v_add_u32 v5, s33, v5")
    e("v_add_u32 v4, v4, v5")
    e("v_subrev_u32 v6, 3840, v4")
    for r in range(3):
        e(f"buffer_load_dwordx4 v[{16+4*r}:{19+4*r}], v6, s[16:19], 0 offen offset:{1280*r}")
    for r in range(3):
        e(f"buffer_load_dwordx4 v[{28+4*r}:{31+4*r}], v4, s[16:19], 0 offen offset:{1280*r}")
    e("buffer_load_dwordx4 v[40:43], v4, s[16:19], 0 offen offset:3840")
    for r in range(4):
        e(f"buffer_load_dwordx4 v[{44+4*r}:{47+4*r}], v4, s[20:23], 0 offen offset:{1280*r}")
    e("v_lshlrev_b32 v7, 2, v5")
    for j in range(4):
        e(f"buffer_load_dwordx4 v[{60+4*j}:{63+4*j}], v7, s[24:27], 0 offen offset:{16*j}")
    e("s_mov_b32 s34, 0x05040100")
    e("s_mov_b32 s35, 0x07060302")
    e("v_lshlrev_b32 v8, 3, v1")
    e("v_mul_u32_u24 v8, 144, v8")
    e("v_lshrrev_b32 v9, 1, v2")
    e("v_lshlrev_b32 v9, 4, v9")
    e("v_add_u32 v8, v8, v9")
    e("v_and_b32 v9, 1, v2")
    e("v_lshlrev_b32 v9, 3, v9")
    e("v_xor_b32 v9, 8, v9")
    e("v_add_u32 v8, v8, v9")
    e("s_waitcnt vmcnt(0)")
    for p in range(4):
        for h in range(2):
            c = 2*p+h
            e(f"v_lshlrev_b32 v{80+4*h}, 16, v{60+2*c}")
            e(f"v_and_b32 v{81+4*h}, 0xffff0000, v{60+2*c}")
            e(f"v_lshlrev_b32 v{82+4*h}, 16, v{61+2*c}")
            e(f"v_and_b32 v{83+4*h}, 0xffff0000, v{61+2*c}")
        for r in range(7):
            e(f"v_lshlrev_b32 v{88+2*r}, 16, v{16+4*r+p}")
            e(f"v_and_b32 v{89+2*r}, 0xffff0000, v{16+4*r+p}")
        for i in range(4):
            for t in range(4):
                r = i + t
                w = 3 - t
                e(f"v_mul_f32 v104, v{88+2*r}, v{80+w}")
                e(f"v_mul_f32 v105, v{89+2*r}, v{84+w}")
                e("v_cvt_pk_bf16_f32 v106, v104, v105")
                if t == 0:
                    e("v_lshlrev_b32 v102, 16, v106")
                    e("v_and_b32 v103, 0xffff0000, v106")
                else:
                    e("v_lshlrev_b32 v104, 16, v106")
                    e("v_and_b32 v105, 0xffff0000, v106")
                    e("v_add_f32 v102, v102, v104")
                    e("v_add_f32 v103, v103, v105")
                    e("v_cvt_pk_bf16_f32 v106, v102, v103")
                    e("v_lshlrev_b32 v102, 16, v106")
                    e("v_and_b32 v103, 0xffff0000, v106")
            e(f"v_lshlrev_b32 v104, 16, v{44+4*i+p}")
            e(f"v_and_b32 v105, 0xffff0000, v{44+4*i+p}")
            e("v_mul_f32 v102, v102, v104")
            e("v_mul_f32 v103, v103, v105")
            e(f"v_cvt_pk_bf16_f32 v{108+i}, v102, v103")
        e("v_perm_b32 v112, v110, v111, s34")
        e("v_perm_b32 v113, v108, v109, s34")
        e(f"ds_write_b64 v8, v[112:113] offset:{(2*p)*144}")
        e("v_perm_b32 v114, v110, v111, s35")
        e("v_perm_b32 v115, v108, v109, s35")
        e(f"ds_write_b64 v8, v[114:115] offset:{(2*p+1)*144}")
    e("s_waitcnt lgkmcnt(0)")
    e("s_barrier")
    e("v_lshrrev_b32 v1, 1, v0")
    e("v_and_b32 v2, 1, v0")
    e("v_mul_u32_u24 v3, 144, v1")
    e("v_lshlrev_b32 v4, 6, v2")
    e("v_add_u32 v3, v3, v4")
    for j in range(4):
        e(f"ds_read_b128 v[{16+4*j}:{19+4*j}], v3 offset:{16*j}")
    e("s_lshl_b32 s33, s15, 7")
    e("v_add_u32 v5, s33, v1")
    e("v_lshlrev_b32 v5, 12, v5")
    e("s_lshl_b32 s32, s14, 7")
    e("v_add_u32 v5, s32, v5")
    e("v_add_u32 v5, v5, v4")
    e("s_waitcnt lgkmcnt(0)")
    for j in range(4):
        e(f"buffer_store_dwordx4 v[{16+4*j}:{19+4*j}], v5, s[28:31], 0 offen offset:{16*j}")
    e.label("K1_END")
    e("s_endpgm")
    return e.text()


N_CONV = 320
N_G1 = 432
CH_STRIDE = 38032
COPY = 4160
KV_OFF = 33280
K2_LDS = 76800

def k2_conv(e):
    srd(e, 16, 4, 5, SZ_SD)
    srd_off(e, 20, 12, 13, WS_KVT, SZ_SD)
    srd_off(e, 24, 12, 13, WS_Y2T, SZ_SD)
    e("s_lshl_b32 s28, s2, 2")
    e("s_load_dword s29, s[6:7], s28")
    e("v_and_b32 v1, 63, v0")
    e("v_lshlrev_b32 v2, 4, v1")
    e("s_lshl_b32 s30, s2, 13")
    e("s_lshl_b32 s31, s3, 1")
    for ch in range(2):
        for rs in range(2):
            e("s_lshl_b32 s32, s31, 1")
            e(f"s_add_u32 s32, s32, {ch*4096 + 2*(rs-7) + 65536}")
            e("s_add_u32 s32, s32, s30")
            e("s_sub_u32 s32, s32, 65536")
            e(f"v_add_u32 v{4+2*ch+rs}, s32, v2")
            e(f"s_mul_i32 s33, s31, {COPY}")
            e(f"s_add_u32 s33, s33, {ch*CH_STRIDE + rs*COPY + 64}")
            e("s_mov_b32 m0, s33")
            e("s_nop 0")
            for qd in range(4):
                e(f"buffer_load_dwordx4 v{4+2*ch+rs}, s[16:19], 0 offen offset:{qd*1024} lds")
    e("v_lshlrev_b32 v8, 4, v0")
    e("v_add_u32 v8, s30, v8")
    e("buffer_load_dwordx4 v[12:15], v8, s[20:23], 0 offen")
    e("v_add_u32 v8, 4096, v8")
    e("buffer_load_dwordx4 v[16:19], v8, s[20:23], 0 offen")
    e("v_lshrrev_b32 v20, 4, v1")
    e("v_lshlrev_b32 v21, 12, v20")
    e("v_and_b32 v22, 7, v1")
    e("v_lshlrev_b32 v23, 1, v22")
    e("v_add_u32 v21, v21, v23")
    e("v_add_u32 v21, s30, v21")
    e("buffer_load_ushort v24, v21, s[16:19], 0 offen")
    e("v_mov_b32 v28, 0")
    e("v_mov_b32 v29, 0")
    e("v_mov_b32 v30, 0")
    e("v_mov_b32 v31, 0")
    e("v_lshrrev_b32 v25, 3, v1")
    e(f"v_mul_u32_u24 v25, {CH_STRIDE}, v25")
    e("v_bfe_u32 v26, v1, 2, 1")
    e("v_add_u32 v26, s31, v26")
    e(f"v_mul_u32_u24 v26, {COPY}, v26")
    e("v_add_u32 v25, v25, v26")
    e("v_and_b32 v26, 3, v1")
    e("v_lshlrev_b32 v26, 4, v26")
    e("v_add_u32 v25, v25, v26")
    e("s_and_b32 s34, s3, 1")
    e(f"s_mul_i32 s34, s34, {CH_STRIDE}")
    e(f"s_add_u32 s34, s34, {KV_OFF - 256}")
    e("v_add_u32 v26, s34, v2")
    e("v_cmp_gt_u32 vcc, 16, v1")
    e("s_nop 1")
    e("v_cndmask_b32 v25, v26, v25, vcc")
    e("v_cmp_gt_u32 vcc, 25, v1")
    e("s_and_saveexec_b64 s[36:37], vcc")
    e("ds_write_b128 v25, v[28:31]")
    e("s_mov_b64 exec, s[36:37]")
    e("v_lshrrev_b32 v25, 3, v0")
    e("v_mul_u32_u24 v25, 144, v25")
    e("v_and_b32 v26, 7, v0")
    e("v_lshlrev_b32 v26, 4, v26")
    e("v_add_u32 v25, v25, v26")
    e(f"v_add_u32 v25, {KV_OFF + 144}, v25")
    e("s_waitcnt vmcnt(0)")
    e("ds_write_b128 v25, v[12:15]")
    e(f"ds_write_b128 v25, v[16:19] offset:{CH_STRIDE}")
    e("v_bfe_u32 v26, v1, 3, 1")
    e("v_add_u32 v26, s31, v26")
    e("v_cmp_le_u32 vcc, v22, v26")
    e("s_nop 1")
    e("v_cndmask_b32 v24, 0, v24, vcc")
    e("v_sub_u32 v27, v22, v26")
    e("v_add_u32 v27, 7, v27")
    e("v_and_b32 v27, 7, v27")
    e("v_lshlrev_b32 v27, 1, v27")
    e(f"v_mul_u32_u24 v26, {COPY}, v26")
    e("v_add_u32 v27, v27, v26")
    e(f"v_mul_u32_u24 v26, {CH_STRIDE}, v20")
    e("v_add_u32 v27, v27, v26")
    e("v_add_u32 v27, 64, v27")
    e("v_cmp_gt_u32 vcc, 32, v1")
    e("s_and_saveexec_b64 s[36:37], vcc")
    e("ds_write_b16 v27, v24")
    e("s_mov_b64 exec, s[36:37]")
    e("s_waitcnt lgkmcnt(0)")
    e("s_barrier")
    e("s_lshr_b32 s38, s3, 1")
    e("s_and_b32 s39, s3, 1")
    e(f"s_mul_i32 s40, s38, {CH_STRIDE}")
    e("v_and_b32 v3, 31, v1")
    e("v_lshrrev_b32 v4, 5, v1")
    e("v_and_b32 v5, 7, v3")
    e("v_lshrrev_b32 v6, 3, v3")
    e(f"v_mul_u32_u24 v7, {COPY}, v5")
    e("v_sub_u32 v8, v6, v4")
    e("v_lshlrev_b32 v8, 4, v8")
    e("v_add_u32 v7, v7, v8")
    e("s_lshl_b32 s41, s39, 11")
    e("s_add_u32 s41, s41, s40")
    e("s_add_u32 s41, s41, 32")
    e("v_add_u32 v7, s41, v7")
    e("v_subrev_u32 v8, 64, v7")
    e("v_mul_u32_u24 v9, 144, v3")
    e("v_lshlrev_b32 v10, 4, v4")
    e(f"s_add_u32 s42, s40, {KV_OFF}")
    e("v_add_u32 v10, s42, v10")
    e("v_add_u32 v9, v9, v10")
    e("s_mul_i32 s43, s39, 2304")
    e("s_sub_u32 s43, 144, s43")
    e("v_add_u32 v9, s43, v9")
    ACC0, ACC1 = 64, 80
    EV = [96, 104]; OD = [112, 120, 128]; BB = [136, 152]
    for i in range(32):
        e(f"v_mov_b32 v{64+i}, 0")
    def loads(dp):
        p = dp & 1
        ev = EV[p]; od = OD[dp % 3]; bb = BB[p]
        e(f"v_subrev_u32 v11, {144*dp}, v9")
        e("v_max_i32 v11, v11, v10")
        for kh in range(2):
            e(f"ds_read_b128 v[{ev+4*kh}:{ev+4*kh+3}], v7 offset:{64*(2*dp) + 32*(1-kh)}")
        for ks in range(4):
            e(f"ds_read_b128 v[{bb+4*ks}:{bb+4*ks+3}], v11 offset:{32*ks}")
        for kh in range(2):
            e(f"ds_read_b128 v[{od+4*kh}:{od+4*kh+3}], v7 offset:{64*(2*dp+1) + 32*(1-kh)}")
    odp = OD[2]
    e("s_cmp_eq_u32 s39, 0")
    e("s_cbranch_scc1 CV_ZERO")
    for kh in range(2):
        e(f"ds_read_b128 v[{odp+4*kh}:{odp+4*kh+3}], v8 offset:{32*(1-kh)}")
    e("s_branch CV_INIT")
    e.label("CV_ZERO")
    for i in range(8):
        e(f"v_mov_b32 v{odp+i}, 0")
    e.label("CV_INIT")
    loads(0)
    for dp in range(16):
        p = dp & 1
        ev = EV[p]; od = OD[dp % 3]; op = OD[(dp-1) % 3]; bb = BB[p]
        e("s_waitcnt lgkmcnt(0)")
        if dp < 15:
            loads(dp+1)
        def mf(acc, a, b):
            e(f"v_mfma_f32_32x32x16_bf16 v[{acc}:{acc+15}], v[{a}:{a+3}], v[{b}:{b+3}], v[{acc}:{acc+15}]")
        mf(ACC0, ev, bb); mf(ACC1, od, bb)
        mf(ACC0, ev+4, bb+4); mf(ACC1, od+4, bb+4)
        mf(ACC0, op, bb+8); mf(ACC1, ev, bb+8)
        mf(ACC0, op+4, bb+12); mf(ACC1, ev+4, bb+12)
    e("s_nop 15")
    e("s_nop 3")
    e("s_barrier")
    e("s_lshl_b32 s44, s39, 12")
    e("s_add_u32 s44, s44, s40")
    e("v_add_u32 v11, s44, v2")
    e("s_xor_b32 s45, s39, 1")
    e("s_lshl_b32 s45, s45, 12")
    e("s_add_u32 s45, s45, s40")
    e("v_add_u32 v12, s45, v2")
    e("s_cmp_eq_u32 s39, 0")
    e("s_cbranch_scc1 CV_X0")
    for i in range(4):
        e(f"ds_write_b128 v11, v[{ACC0+4*i}:{ACC0+4*i+3}] offset:{1024*i}")
    for i in range(16):
        e(f"v_mov_b32 v{96+i}, v{ACC1+i}")
    e("s_branch CV_X1")
    e.label("CV_X0")
    for i in range(4):
        e(f"ds_write_b128 v11, v[{ACC1+4*i}:{ACC1+4*i+3}] offset:{1024*i}")
    for i in range(16):
        e(f"v_mov_b32 v{96+i}, v{ACC0+i}")
    e.label("CV_X1")
    e("s_waitcnt lgkmcnt(0)")
    e("s_barrier")
    for i in range(4):
        e(f"ds_read_b128 v[{112+4*i}:{115+4*i}], v12 offset:{1024*i}")
    e("v_mul_u32_u24 v13, 144, v3")
    e("v_lshlrev_b32 v14, 3, v4")
    e("v_xor_b32 v14, 8, v14")
    e("v_add_u32 v13, v13, v14")
    e("s_lshl_b32 s46, s39, 6")
    e("s_add_u32 s46, s46, s42")
    e("s_add_u32 s46, s46, 144")
    e("v_add_u32 v13, s46, v13")
    for i in range(4):
        e(f"ds_read_b64 v[{128+2*i}:{129+2*i}], v13 offset:{16*i}")
    e("s_lshl_b32 s47, s38, 4")
    e("s_lshr_b32 s47, s29, s47")
    e("s_lshl_b32 s47, s47, 16")
    e("s_lshl_b32 s48, s38, 12")
    e("s_add_u32 s48, s48, s30")
    e("s_lshl_b32 s49, s39, 6")
    e("s_add_u32 s48, s48, s49")
    e("v_lshlrev_b32 v15, 7, v3")
    e("v_lshlrev_b32 v14, 3, v4")
    e("v_add_u32 v15, v15, v14")
    e("v_add_u32 v15, s48, v15")
    e("s_waitcnt lgkmcnt(0)")
    for i in range(4):
        for j in range(4):
            e(f"v_add_f32 v{96+4*i+j}, v{96+4*i+j}, v{112+4*i+j}")
        k0, k1 = 128+2*i, 129+2*i
        e(f"v_and_b32 v16, 0xffff0000, v{k1}")
        e(f"v_lshlrev_b32 v17, 16, v{k1}")
        e(f"v_and_b32 v18, 0xffff0000, v{k0}")
        e(f"v_lshlrev_b32 v19, 16, v{k0}")
        for j in range(4):
            e(f"v_mul_f32 v{16+j}, s47, v{16+j}")
        e("v_cvt_pk_bf16_f32 v20, v16, v17")
        e("v_cvt_pk_bf16_f32 v21, v18, v19")
        e(f"v_cvt_pk_bf16_f32 v22, v{96+4*i}, v{97+4*i}")
        e(f"v_cvt_pk_bf16_f32 v23, v{98+4*i}, v{99+4*i}")
        for (src, dst) in ((20, 16), (21, 18), (22, 24), (23, 26)):
            e(f"v_lshlrev_b32 v{dst}, 16, v{src}")
            e(f"v_and_b32 v{dst+1}, 0xffff0000, v{src}")
        for j in range(4):
            e(f"v_add_f32 v{16+j}, v{16+j}, v{24+j}")
        e(f"v_cvt_pk_bf16_f32 v{140+2*i}, v16, v17")
        e(f"v_cvt_pk_bf16_f32 v{141+2*i}, v18, v19")
        e(f"buffer_store_dwordx2 v[{140+2*i}:{141+2*i}], v15, s[24:27], 0 offen offset:{16*i}")
    e("s_endpgm")

def k2_gemm1(e):
    e(f"s_sub_u32 s14, s2, {N_CONV}")
    e("s_mul_hi_u32 s15, s14, 0x097B425F")
    e("s_mul_i32 s28, s15, 27")
    e("s_sub_u32 s28, s14, s28")
    srd_off(e, 16, 12, 13, WS_XN, SZ_SD)
    srd(e, 20, 8, 9, D*F*2)
    srd(e, 24, 10, 11, D*F*2)
    srd_off(e, 32, 12, 13, WS_H, SZ_H)
    e("v_and_b32 v1, 63, v0")
    e("v_lshrrev_b32 v2, 4, v1")
    e("v_and_b32 v3, 15, v1")
    for par in range(2):
        e(f"v_xor_b32 v4, {4*par}, v2")
        e("v_xor_b32 v4, v4, v3")
        e("v_lshrrev_b32 v5, 3, v4")
        e("v_lshl_add_u32 v5, v2, 1, v5")
        e("v_mul_u32_u24 v5, 1280, v5")
        e("v_and_b32 v4, 7, v4")
        e(f"v_lshl_add_u32 v{8+par}, v4, 4, v5")
    e("v_lshrrev_b32 v2, 3, v1")
    e("v_and_b32 v3, 7, v1")
    e("v_bfe_u32 v4, v2, 1, 1")
    e("v_lshlrev_b32 v4, 2, v4")
    e("v_xor_b32 v3, v3, v4")
    e("v_mul_u32_u24 v2, 3456, v2")
    e("v_lshl_add_u32 v10, v3, 4, v2")
    e("s_lshl_b32 s36, s15, 7")
    e("s_lshl_b32 s37, s3, 5")
    e("s_add_u32 s37, s37, s36")
    e("s_mul_i32 s37, s37, 1280")
    e("s_lshl_b32 s38, s3, 4")
    e("s_mul_i32 s38, s38, 3456")
    e("s_lshl_b32 s39, s28, 7")
    e("s_add_u32 s38, s38, s39")
    e("s_lshl_b32 s40, s3, 12")
    e("s_lshl_b32 s41, s3, 11")
    def dma(stage_sgpr_add):
        for i in range(4):
            e(f"s_add_u32 s45, s44, s40")
            e(f"s_add_u32 s45, s45, {i*1024}")
            e("s_mov_b32 m0, s45")
            e(f"s_add_u32 s46, s42, {i*8*1280}")
            e(f"buffer_load_dwordx4 v{8+(i&1)}, s[16:19], s46 offen lds")
        for mat in range(2):
            for jj in range(2):
                e(f"s_add_u32 s45, s44, s41")
                e(f"s_add_u32 s45, s45, {16384 + mat*8192 + jj*1024}")
                e("s_mov_b32 m0, s45")
                e(f"s_add_u32 s46, s43, {jj*8*3456}")
                e(f"buffer_load_dwordx4 v10, s[{20+4*mat}:{23+4*mat}], s46 offen lds")
    e("s_lshr_b32 s47, s3, 1")
    e("s_and_b32 s48, s3, 1")
    e("v_and_b32 v2, 31, v1")
    e("v_lshrrev_b32 v3, 5, v1")
    e("s_lshl_b32 s49, s47, 6")
    e("v_add_u32 v2, s49, v2")
    e("v_lshrrev_b32 v4, 1, v2")
    e("v_and_b32 v5, 1, v2")
    e("v_lshl_add_u32 v5, v5, 3, v3")
    e("v_and_b32 v6, 7, v4")
    e("v_xor_b32 v5, v5, v6")
    e("v_lshlrev_b32 v5, 4, v5")
    e("v_lshl_add_u32 v12, v4, 8, v5")
    for ks in range(1, 4):
        e(f"v_xor_b32 v{12+ks}, {ks<<5}, v12")
    e("v_lshrrev_b32 v2, 4, v1")
    e("v_bfe_u32 v3, v1, 2, 2")
    e("v_and_b32 v4, 3, v1")
    e("v_lshrrev_b32 v5, 1, v2")
    e("v_lshl_add_u32 v5, v5, 3, v3")
    e("v_lshlrev_b32 v5, 7, v5")
    e("v_and_b32 v6, 1, v2")
    e("v_lshlrev_b32 v6, 1, v6")
    e("v_lshrrev_b32 v7, 1, v4")
    e("v_add_u32 v6, v6, v7")
    e("s_lshl_b32 s49, s48, 2")
    e("v_add_u32 v6, s49, v6")
    e("v_bfe_u32 v7, v3, 1, 1")
    e("v_lshlrev_b32 v7, 2, v7")
    e("v_xor_b32 v6, v6, v7")
    e("v_lshl_add_u32 v5, v6, 4, v5")
    e("v_and_b32 v7, 1, v4")
    e("v_lshl_add_u32 v5, v7, 3, v5")
    e("v_add_u32 v16, 16384, v5")
    G0, U0 = 64, 96
    for i in range(64):
        e(f"v_mov_b32 v{64+i}, 0")
    XF = [32, 40]; WF = [48, 56]
    e("s_mov_b32 s42, s37")
    e("s_mov_b32 s43, s38")
    e("s_mov_b32 s44, 0")
    dma(0)
    def frag_loads(st, ks, buf):
        so = st*32768
        for mi in range(2):
            e(f"ds_read_b128 v[{XF[buf]+4*mi}:{XF[buf]+4*mi+3}], v{12+ks} offset:{so + mi*4096}")
        for mat in range(2):
            for hi in range(2):
                r = WF[buf] + 4*mat + 2*hi
                e(f"ds_read_b64_tr_b16 v[{r}:{r+1}], v16 offset:{so + mat*8192 + ks*2048 + hi*512}")
    NT = 10
    for t in range(NT):
        st = t & 1
        e("s_waitcnt vmcnt(0)")
        e("s_barrier")
        if t+1 < NT:
            e("s_add_u32 s42, s42, 128")
            e(f"s_add_u32 s43, s43, {64*3456}")
            e(f"s_mov_b32 s44, {(1-st)*32768}")
            dma(0)
        frag_loads(st, 0, 0)
        for ks in range(4):
            buf = ks & 1
            e("s_waitcnt lgkmcnt(0)")
            if ks < 3:
                frag_loads(st, ks+1, 1-buf)
            for mi in range(2):
                x = XF[buf]+4*mi
                e(f"v_mfma_f32_32x32x16_bf16 v[{G0+16*mi}:{G0+16*mi+15}], v[{WF[buf]}:{WF[buf]+3}], v[{x}:{x+3}], v[{G0+16*mi}:{G0+16*mi+15}]")
                e(f"v_mfma_f32_32x32x16_bf16 v[{U0+16*mi}:{U0+16*mi+15}], v[{WF[buf]+4}:{WF[buf]+7}], v[{x}:{x+3}], v[{U0+16*mi}:{U0+16*mi+15}]")
    e("s_nop 15")
    e("s_nop 3")
    e("v_and_b32 v2, 31, v1")
    e("v_lshrrev_b32 v3, 5, v1")
    e("s_lshl_b32 s49, s47, 6")
    e("s_add_u32 s49, s49, s36")
    e("v_add_u32 v2, s49, v2")
    e("s_movk_i32 s50, 3456")
    e("v_mul_lo_u32 v2, v2, s50")
    e("s_lshl_b32 s49, s48, 6")
    e("s_add_u32 s49, s49, s39")
    e("v_lshl_add_u32 v2, v3, 3, v2")
    e("v_add_u32 v2, s49, v2")
    e(f"v_add_u32 v3, {32*3456}, v2")
    for mi in range(2):
        for i in range(4):
            g = G0+16*mi+4*i; u = U0+16*mi+4*i
            o = 40 + 2*((mi*4+i) % 4)
            for pr in range(2):
                e(f"v_cvt_pk_bf16_f32 v20, v{g+2*pr}, v{g+2*pr+1}")
                e(f"v_cvt_pk_bf16_f32 v21, v{u+2*pr}, v{u+2*pr+1}")
                e("v_lshlrev_b32 v22, 16, v20")
                e("v_and_b32 v23, 0xffff0000, v20")
                e("v_lshlrev_b32 v24, 16, v21")
                e("v_and_b32 v25, 0xffff0000, v21")
                e("v_mul_f32 v22, v22, v24")
                e("v_mul_f32 v23, v23, v25")
                e(f"v_cvt_pk_bf16_f32 v{o+pr}, v22, v23")
            e(f"buffer_store_dwordx2 v[{o}:{o+1}], v{2+mi}, s[32:35], 0 offen offset:{16*i}")
    e("s_endpgm")

def k2():
    e = E()
    e(f"s_cmp_ge_u32 s2, {N_CONV+N_G1}")
    e("s_cbranch_scc1 K2_END")
    e("s_load_dwordx4 s[4:7], s[0:1], 32")
    e("s_load_dwordx4 s[8:11], s[0:1], 56")
    e("s_load_dwordx2 s[12:13], s[0:1], 96")
    e("v_lshrrev_b32 v1, 6, v0")
    e("s_nop 0")
    e("v_readfirstlane_b32 s3, v1")
    e("s_waitcnt lgkmcnt(0)")
    e(f"s_cmp_ge_u32 s2, {N_CONV}")
    e("s_cbranch_scc1 K2_G1")
    k2_conv(e)
    e.label("K2_G1")
    k2_gemm1(e)
    e.label("K2_END")
    e("s_endpgm")
    return e.text()


N_G2 = 160
K3_LDS = 65536
def k3():
    e = E()
    e(f"s_cmp_ge_u32 s2, {N_G2}")
    e("s_cbranch_scc1 K3_END")
    e("s_load_dwordx2 s[4:5], s[0:1], 0")
    e("s_load_dwordx4 s[8:11], s[0:1], 72")
    e("s_load_dwordx2 s[12:13], s[0:1], 96")
    e("v_lshrrev_b32 v1, 6, v0")
    e("s_nop 0")
    e("v_readfirstlane_b32 s3, v1")
    e("s_mul_hi_u32 s15, s2, 0x1999999A")
    e("s_mul_i32 s28, s15, 10")
    e("s_sub_u32 s28, s2, s28")
    e("s_waitcnt lgkmcnt(0)")
    srd_off(e, 16, 12, 13, WS_H, SZ_H)
    srd(e, 20, 8, 9, D*F*2)
    srd_off(e, 24, 12, 13, WS_Y2T, SZ_SD)
    srd(e, 32, 10, 11, SZ_SD)
    srd(e, 52, 4, 5, SZ_SD)
    srd_off(e, 56, 12, 13, WS_XN, SZ_SD)
    e("v_and_b32 v1, 63, v0")
    e("v_lshrrev_b32 v2, 4, v1")
    e("v_and_b32 v3, 15, v1")
    for par in range(2):
        e(f"v_xor_b32 v4, {4*par}, v2")
        e("v_xor_b32 v4, v4, v3")
        e("v_lshrrev_b32 v5, 3, v4")
        e("v_lshl_add_u32 v5, v2, 1, v5")
        e("v_mul_u32_u24 v5, 3456, v5")
        e("v_and_b32 v4, 7, v4")
        e(f"v_lshl_add_u32 v{8+par}, v4, 4, v5")
    e("v_lshrrev_b32 v2, 3, v1")
    e("v_and_b32 v3, 7, v1")
    e("v_bfe_u32 v4, v2, 1, 1")
    e("v_lshlrev_b32 v4, 2, v4")
    e("v_xor_b32 v3, v3, v4")
    e("v_mul_u32_u24 v2, 1280, v2")
    e("v_lshl_add_u32 v10, v3, 4, v2")
    e("s_lshl_b32 s36, s15, 7")
    e("s_lshl_b32 s37, s3, 5")
    e("s_add_u32 s37, s37, s36")
    e("s_mul_i32 s37, s37, 3456")
    e("s_lshl_b32 s38, s3, 4")
    e("s_mul_i32 s38, s38, 1280")
    e("s_lshl_b32 s39, s28, 7")
    e("s_add_u32 s38, s38, s39")
    e("s_lshl_b32 s40, s3, 12")
    e("s_lshl_b32 s41, s3, 11")
    e("v_lshrrev_b32 v2, 4, v1")
    e("v_lshlrev_b32 v2, 12, v2")
    e("v_and_b32 v3, 15, v1")
    e("v_lshl_add_u32 v11, v3, 4, v2")
    e("s_lshl_b32 s45, s28, 6")
    e("s_lshl_b32 s46, s3, 4")
    e("s_add_u32 s45, s45, s46")
    e("s_lshl_b32 s45, s45, 12")
    e("s_lshl_b32 s46, s36, 1")
    e("s_add_u32 s45, s45, s46")
    for i in range(4):
        e(f"s_add_u32 s46, s40, {49152 + i*1024}")
        e("s_mov_b32 m0, s46")
        e(f"s_add_u32 s47, s45, {i*4*4096}")
        e("buffer_load_dwordx4 v11, s[24:27], s47 offen lds")
    def dma():
        for i in range(4):
            e(f"s_add_u32 s45, s44, s40")
            e(f"s_add_u32 s45, s45, {i*1024}")
            e("s_mov_b32 m0, s45")
            e(f"s_add_u32 s46, s42, {i*8*3456}")
            e(f"buffer_load_dwordx4 v{8+(i&1)}, s[16:19], s46 offen lds")
        for jj in range(2):
            e(f"s_add_u32 s45, s44, s41")
            e(f"s_add_u32 s45, s45, {16384 + jj*1024}")
            e("s_mov_b32 m0, s45")
            e(f"s_add_u32 s46, s43, {jj*8*1280}")
            e(f"buffer_load_dwordx4 v10, s[20:23], s46 offen lds")
    e("s_lshr_b32 s47, s3, 1")
    e("s_and_b32 s48, s3, 1")
    e("v_and_b32 v2, 31, v1")
    e("v_lshrrev_b32 v3, 5, v1")
    e("s_lshl_b32 s49, s47, 6")
    e("v_add_u32 v2, s49, v2")
    e("v_lshrrev_b32 v4, 1, v2")
    e("v_and_b32 v5, 1, v2")
    e("v_lshl_add_u32 v5, v5, 3, v3")
    e("v_and_b32 v6, 7, v4")
    e("v_xor_b32 v5, v5, v6")
    e("v_lshlrev_b32 v5, 4, v5")
    e("v_lshl_add_u32 v12, v4, 8, v5")
    e("s_lshl_b32 s49, s48, 5")
    e("v_xor_b32 v12, s49, v12")
    e("v_xor_b32 v13, 64, v12")
    e("v_lshrrev_b32 v2, 4, v1")
    e("v_bfe_u32 v3, v1, 2, 2")
    e("v_and_b32 v4, 3, v1")
    e("v_lshrrev_b32 v5, 1, v2")
    e("v_lshl_add_u32 v5, v5, 3, v3")
    e("v_lshlrev_b32 v5, 7, v5")
    e("v_and_b32 v6, 1, v2")
    e("v_lshlrev_b32 v6, 1, v6")
    e("v_lshrrev_b32 v7, 1, v4")
    e("v_add_u32 v6, v6, v7")
    e("v_bfe_u32 v7, v3, 1, 1")
    e("v_lshlrev_b32 v7, 2, v7")
    e("v_xor_b32 v6, v6, v7")
    e("v_lshl_add_u32 v5, v6, 4, v5")
    e("v_and_b32 v7, 1, v4")
    e("v_lshl_add_u32 v5, v7, 3, v5")
    e("s_lshl_b32 s49, s48, 11")
    e("s_add_u32 s49, s49, 16384")
    e("v_add_u32 v16, s49, v5")
    e("v_xor_b32 v17, 64, v16")
    ACC = 64
    for i in range(64):
        e(f"v_mov_b32 v{64+i}, 0")
    XF = [32, 40]; WF = [48, 56]
    e("s_mov_b32 s42, s37")
    e("s_mov_b32 s43, s38")
    e("s_mov_b32 s44, 0")
    dma()
    def frag_loads(st, j, buf):
        so = st*24576
        for mi in range(2):
            e(f"ds_read_b128 v[{XF[buf]+4*mi}:{XF[buf]+4*mi+3}], v{12+j} offset:{so + mi*4096}")
        for ni in range(2):
            for hi in range(2):
                r = WF[buf] + 4*ni + 2*hi
                e(f"ds_read_b64_tr_b16 v[{r}:{r+1}], v{16+ni} offset:{so + j*4096 + hi*512}")
    NT = 27
    for t in range(NT):
        st = t & 1
        e("s_waitcnt vmcnt(0)")
        e("s_barrier")
        if t+1 < NT:
            e("s_add_u32 s42, s42, 128")
            e(f"s_add_u32 s43, s43, {64*1280}")
            e(f"s_mov_b32 s44, {(1-st)*24576}")
            dma()
        frag_loads(st, 0, 0)
        for j in range(2):
            buf = j
            e("s_waitcnt lgkmcnt(0)")
            if j < 1:
                frag_loads(st, 1, 1)
            for ni in range(2):
                for mi in range(2):
                    a = ACC+32*ni+16*mi
                    x = XF[buf]+4*mi; w = WF[buf]+4*ni
                    e(f"v_mfma_f32_32x32x16_bf16 v[{a}:{a+15}], v[{w}:{w+3}], v[{x}:{x+3}], v[{a}:{a+15}]")
    e("v_and_b32 v2, 31, v1")
    e("v_lshrrev_b32 v3, 5, v1")
    e("s_lshl_b32 s49, s47, 6")
    e("s_add_u32 s49, s49, s36")
    e("v_add_u32 v2, s49, v2")
    e("v_mul_u32_u24 v2, 1280, v2")
    e("s_lshl_b32 s49, s48, 6")
    e("s_add_u32 s49, s49, s39")
    e("v_lshl_add_u32 v2, v3, 3, v2")
    e("v_add_u32 v2, s49, v2")
    e(f"v_add_u32 v3, {32*1280}, v2")
    XR, XNR = 128, 144
    for mi in range(2):
        for i in range(4):
            r = 2*(mi*4+i)
            e(f"buffer_load_dwordx2 v[{XR+r}:{XR+r+1}], v{2+mi}, s[52:55], 0 offen offset:{16*i}")
            e(f"buffer_load_dwordx2 v[{XNR+r}:{XNR+r+1}], v{2+mi}, s[56:59], 0 offen offset:{16*i}")
    e("s_nop 15")
    e("s_barrier")
    e("v_lshlrev_b32 v4, 4, v1")
    e("s_lshl_b32 s49, s3, 13")
    e("v_add_u32 v5, s49, v4")
    e("s_xor_b32 s49, s3, 1")
    e("s_lshl_b32 s49, s49, 13")
    e("v_add_u32 v6, s49, v4")
    e("s_cmp_eq_u32 s48, 0")
    e("s_cbranch_scc1 K3_X0")
    for i in range(8):
        e(f"ds_write_b128 v5, v[{ACC+4*i}:{ACC+4*i+3}] offset:{1024*i}")
    for i in range(32):
        e(f"v_mov_b32 v{ACC+i}, v{ACC+32+i}")
    e("s_branch K3_X1")
    e.label("K3_X0")
    for i in range(8):
        e(f"ds_write_b128 v5, v[{ACC+32+4*i}:{ACC+32+4*i+3}] offset:{1024*i}")
    e.label("K3_X1")
    e("s_waitcnt lgkmcnt(0)")
    e("s_barrier")
    for i in range(8):
        e(f"ds_read_b128 v[{ACC+32+4*i}:{ACC+32+4*i+3}], v6 offset:{1024*i}")
    e("v_lshrrev_b32 v7, 4, v1")
    e("v_bfe_u32 v8, v1, 2, 2")
    e("v_and_b32 v9, 3, v1")
    e("v_lshrrev_b32 v10, 1, v7")
    e("v_lshl_add_u32 v10, v10, 2, v8")
    e("v_lshlrev_b32 v10, 8, v10")
    e("v_and_b32 v7, 1, v7")
    e("v_lshlrev_b32 v7, 5, v7")
    e("v_lshl_add_u32 v7, v9, 3, v7")
    e("v_add_u32 v10, v10, v7")
    e("s_lshl_b32 s49, s48, 13")
    e("s_lshl_b32 s50, s47, 7")
    e("s_add_u32 s49, s49, s50")
    e("s_add_u32 s49, s49, 49152")
    e("v_add_u32 v10, s49, v10")
    YR = 160
    for mi in range(2):
        for i in range(4):
            r = YR + 2*(mi*4+i)
            e(f"ds_read_b64_tr_b16 v[{r}:{r+1}], v10 offset:{i*2048 + mi*64}")
    e("s_waitcnt vmcnt(0) lgkmcnt(0)")
    for mi in range(2):
        for i in range(4):
            a = ACC + 16*mi + 4*i
            r = 2*(mi*4+i)
            for j in range(4):
                e(f"v_add_f32 v{a+j}, v{a+j}, v{a+32+j}")
            for pr in range(2):
                e(f"v_cvt_pk_bf16_f32 v20, v{a+2*pr}, v{a+2*pr+1}")
                e(f"v_lshlrev_b32 v22, 16, v{XNR+r+pr}")
                e(f"v_and_b32 v23, 0xffff0000, v{XNR+r+pr}")
                e(f"v_lshlrev_b32 v24, 16, v{YR+r+pr}")
                e(f"v_and_b32 v25, 0xffff0000, v{YR+r+pr}")
                e("v_mul_f32 v22, v22, v24")
                e("v_mul_f32 v23, v23, v25")
                e("v_cvt_pk_bf16_f32 v21, v22, v23")
                e("v_lshlrev_b32 v22, 16, v21")
                e("v_and_b32 v23, 0xffff0000, v21")
                e(f"v_lshlrev_b32 v24, 16, v{XR+r+pr}")
                e(f"v_and_b32 v25, 0xffff0000, v{XR+r+pr}")
                e("v_add_f32 v22, v22, v24")
                e("v_add_f32 v23, v23, v25")
                e("v_cvt_pk_bf16_f32 v21, v22, v23")
                e("v_lshlrev_b32 v22, 16, v21")
                e("v_and_b32 v23, 0xffff0000, v21")
                e("v_lshlrev_b32 v24, 16, v20")
                e("v_and_b32 v25, 0xffff0000, v20")
                e("v_add_f32 v22, v22, v24")
                e("v_add_f32 v23, v23, v25")
                e(f"v_cvt_pk_bf16_f32 v{XR+r+pr}, v22, v23")
            e(f"buffer_store_dwordx2 v[{XR+r}:{XR+r+1}], v{2+mi}, s[32:35], 0 offen offset:{16*i}")
    e.label("K3_END")
    e("s_endpgm")
    return e.text()

def build(kernels):
    out = []
    out.append(open("cdna_kernels/%s.s.ref" % NAME).read().split("; Override launch")[0])
    for (name, grid, block, lds, body, vgpr) in kernels:
        out.append(f"; @launch kernel={name} grid=({grid},1,1) block=({block},1,1) lds={lds}\n")
    out.append('.amdgcn_target "amdgcn-amd-amdhsa--gfx950"\n.text\n')
    for (name, grid, block, lds, body, vgpr) in kernels:
        out.append(khead(name))
        out.append(body)
    out.append('.section .rodata,"a"\n')
    for (name, grid, block, lds, body, vgpr) in kernels:
        out.append(".p2align 6\n")
        out.append(kdesc(name, vgpr))
    return "".join(out)

if __name__ == "__main__":
    ks = [("prep_kernel", N_LN+N_KV, 256, 128*144, k1(), 120),
          ("mid_kernel", N_CONV+N_G1, 256, K2_LDS, k2(), 168),
          ("fin_kernel", N_G2, 256, K3_LDS, k3(), 176)]
    open(sys.argv[1] if len(sys.argv) > 1 else "cdna_kernels/%s.s" % NAME, "w").write(build(ks))
```

```python
import sys
NAME = "parallel_sum__ssm_conv_h3__glu_gated_bilinear__prompt"
S, D, F = 2048, 640, 1728
WS_XN  = 0
WS_KVT = 0x280000
WS_H   = 0x500000
WS_Y2T = 0xC00000
SZ_SD = S*D*2
SZ_H = S*F*2

class E:
    def __init__(self):
        self.l = []
    def __call__(self, s):
        for line in s.strip("\n").split("\n"):
            self.l.append("    " + line.strip() if not line.strip().endswith(":") else line.strip())
    def label(self, n):
        self.l.append(n + ":")
    def text(self):
        return "\n".join(self.l) + "\n"

def srd(e, d, blo, bhi, nbytes):
    e(f"s_mov_b32 s{d}, s{blo}")
    e(f"s_mov_b32 s{d+1}, s{bhi}")
    e(f"s_mov_b32 s{d+2}, {nbytes}")
    e(f"s_mov_b32 s{d+3}, 0x00020000")

def srd_off(e, d, blo, bhi, off, nbytes):
    e(f"s_add_u32 s{d}, s{blo}, {off}")
    e(f"s_addc_u32 s{d+1}, s{bhi}, 0")
    e(f"s_mov_b32 s{d+2}, {nbytes}")
    e(f"s_mov_b32 s{d+3}, 0x00020000")

def kdesc(name, vgpr, sgpr=102):
    acc = (vgpr + 3)//4*4
    return f""".amdhsa_kernel {name}
  .amdhsa_next_free_vgpr {vgpr}
  .amdhsa_next_free_sgpr {sgpr}
  .amdhsa_accum_offset {acc}
  .amdhsa_group_segment_fixed_size 0
  .amdhsa_kernarg_size 104
  .amdhsa_user_sgpr_count 2
  .amdhsa_user_sgpr_kernarg_segment_ptr 1
  .amdhsa_system_sgpr_workgroup_id_x 1
.end_amdhsa_kernel
"""

import os
STAMP = os.environ.get("STAMP")
def stamp(e, idx):
    if not STAMP: return
    e(f"s_memtime s[88:89]")
    e("s_waitcnt lgkmcnt(0)")
    e(f"s_mov_b32 s{90+idx}, s88")
def stamp_dump(e, n, wg):
    if not STAMP: return
    e("s_load_dwordx2 s[84:85], s[0:1], 88")
    e("s_waitcnt lgkmcnt(0)")
    e("s_mov_b32 s86, 256")
    e("s_mov_b32 s87, 0x00020000")
    e(f"s_cmp_lg_u32 s2, {wg}")
    e("s_cbranch_scc1 9f")
    e("s_cmp_lg_u32 s3, 0")
    e("s_cbranch_scc1 9f")
    e("v_mov_b32 v120, 0")
    for i in range(1, n):
        e(f"s_sub_u32 s83, s{90+i}, s90")
        e("v_mov_b32 v121, s83")
        e(f"buffer_store_dword v121, v120, s[84:87], 0 offen offset:{4*i}")
    e("9:")

TRACE = os.environ.get("TRACE")
def trace_start(e):
    if not TRACE: return
    e("s_memrealtime s[96:97]")
    e("s_memtime s[98:99]")
    e("s_mov_b32 s82, s2")
def trace_end(e, kidx):
    if not TRACE: return
    e("s_waitcnt vmcnt(0) lgkmcnt(0)")
    e("s_memrealtime s[92:93]")
    e("s_memtime s[94:95]")
    e("s_load_dwordx2 s[84:85], s[0:1], 96")
    e("s_getreg_b32 s90, hwreg(HW_REG_HW_ID)")
    e("s_getreg_b32 s91, hwreg(HW_REG_XCC_ID)")
    e("s_waitcnt lgkmcnt(0)")
    e(f"s_add_u32 s84, s84, {(64<<20) + kidx*65536}")
    e("s_addc_u32 s85, s85, 0")
    e("s_mov_b32 s86, 65536")
    e("s_mov_b32 s87, 0x00020000")
    e("s_lshl_b32 s91, s91, 24")
    e("s_and_b32 s90, s90, 0xffffff")
    e("s_or_b32 s90, s90, s91")
    e("s_sub_u32 s94, s94, s98")
    e("v_mov_b32 v124, s96")
    e("v_mov_b32 v125, s92")
    e("v_mov_b32 v126, s90")
    e("v_mov_b32 v127, s94")
    e("s_lshl_b32 s83, s82, 4")
    e("v_mov_b32 v121, s83")
    e("v_cmp_eq_u32 vcc, 0, v0")
    e("s_and_saveexec_b64 s[80:81], vcc")
    e("s_cbranch_execz 8f")
    e("buffer_store_dwordx4 v[124:127], v121, s[84:87], 0 offen")
    e("s_waitcnt vmcnt(0)")
    e("8:")

def khead(name):
    return f""".globl {name}
.p2align 8
.type {name},@function
{name}:
"""

N_LN = 128
N_KV = 160
def k1():
    e = E()
    e(f"s_cmp_ge_u32 s2, {N_LN+N_KV}")
    e("s_cbranch_scc1 K1_END")
    e("s_load_dwordx4 s[4:7], s[0:1], 0")
    e("s_load_dwordx4 s[8:11], s[0:1], 16")
    e("s_load_dwordx2 s[12:13], s[0:1], 96")
    e(f"s_cmp_ge_u32 s2, {N_LN}")
    e("s_cbranch_scc1 K1_KV")
    e("s_waitcnt lgkmcnt(0)")
    srd(e, 16, 4, 5, SZ_SD)
    srd_off(e, 20, 12, 13, WS_XN, SZ_SD)
    e("s_lshl_b32 s3, s2, 4")
    e("v_lshrrev_b32 v1, 4, v0")
    e("v_add_u32 v1, s3, v1")
    e("v_mul_u32_u24 v1, 1280, v1")
    e("v_and_b32 v2, 15, v0")
    e("v_lshlrev_b32 v2, 4, v2")
    e("v_add_u32 v1, v1, v2")
    for j in range(5):
        e(f"buffer_load_dwordx4 v[{4+4*j}:{7+4*j}], v1, s[16:19], 0 offen offset:{256*j}")
    e("s_waitcnt vmcnt(0)")
    for i in range(20):
        e(f"v_lshlrev_b32 v{32+2*i}, 16, v{4+i}")
        e(f"v_and_b32 v{33+2*i}, 0xffff0000, v{4+i}")
    e("v_add_f32 v24, v32, v33")
    e("v_add_f32 v25, v34, v35")
    for i in range(4, 40, 2):
        e(f"v_add_f32 v24, v24, v{32+i}")
        e(f"v_add_f32 v25, v25, v{33+i}")
    e("v_add_f32 v24, v24, v25")
    def red16(r):
        for sh in (8, 4, 2, 1):
            e("s_nop 1")
            e(f"v_add_f32_dpp v{r}, v{r}, v{r} row_ror:{sh} row_mask:0xf bank_mask:0xf")
    red16(24)
    e("s_mov_b32 s24, 0x3acccccd")
    e("v_mul_f32 v24, s24, v24")
    e("v_sub_f32 v26, v32, v24")
    e("v_mul_f32 v25, v26, v26")
    for i in range(1, 40):
        e(f"v_sub_f32 v26, v{32+i}, v24")
        e("v_fmac_f32 v25, v26, v26")
    red16(25)
    e("v_mul_f32 v25, s24, v25")
    e("v_cvt_pk_bf16_f32 v26, v24, v25")
    e("v_and_b32 v27, 0xffff0000, v26")
    e("v_lshlrev_b32 v26, 16, v26")
    e("v_add_f32 v27, 0x3727c5ac, v27")
    e("v_cvt_pk_bf16_f32 v27, v27, v27")
    e("v_lshlrev_b32 v27, 16, v27")
    e("v_sqrt_f32 v27, v27")
    e("s_nop 0")
    e("v_cvt_pk_bf16_f32 v27, v27, v27")
    e("v_lshlrev_b32 v27, 16, v27")
    e("v_rcp_f32 v28, v27")
    e("s_nop 0")
    for i in range(20):
        a, b = 32+2*i, 33+2*i
        e(f"v_sub_f32 v{a}, v{a}, v26")
        e(f"v_sub_f32 v{b}, v{b}, v26")
        e(f"v_cvt_pk_bf16_f32 v29, v{a}, v{b}")
        e(f"v_lshlrev_b32 v{a}, 16, v29")
        e(f"v_and_b32 v{b}, 0xffff0000, v29")
        e(f"v_mul_f32 v30, v{a}, v28")
        e(f"v_mul_f32 v31, v{b}, v28")
        e(f"v_fma_f32 v{a}, -v30, v27, v{a}")
        e(f"v_fma_f32 v{b}, -v31, v27, v{b}")
        e(f"v_fmac_f32 v30, v{a}, v28")
        e(f"v_fmac_f32 v31, v{b}, v28")
        e(f"v_cvt_pk_bf16_f32 v{4+i}, v30, v31")
    for j in range(5):
        e(f"buffer_store_dwordx4 v[{4+4*j}:{7+4*j}], v1, s[20:23], 0 offen offset:{256*j}")
    e("s_endpgm")
    e.label("K1_KV")
    e(f"s_sub_u32 s3, s2, {N_LN}")
    e("s_mul_hi_u32 s14, s3, 0x33333334")
    e("s_mul_i32 s15, s14, 5")
    e("s_sub_u32 s15, s3, s15")
    e("s_waitcnt lgkmcnt(0)")
    srd(e, 16, 6, 7, SZ_SD)
    srd(e, 20, 8, 9, SZ_SD)
    srd(e, 24, 10, 11, D*4*2)
    srd_off(e, 28, 12, 13, WS_KVT, SZ_SD)
    e("v_and_b32 v1, 15, v0")
    e("v_lshrrev_b32 v2, 4, v0")
    e("s_lshl_b32 s32, s14, 6")
    e("v_lshlrev_b32 v3, 2, v2")
    e("v_add_u32 v3, s32, v3")
    e("v_mul_u32_u24 v4, 1280, v3")
    e("s_lshl_b32 s33, s15, 8")
    e("v_lshlrev_b32 v5, 4, v1")
    e("v_add_u32 v5, s33, v5")
    e("v_add_u32 v4, v4, v5")
    e("v_subrev_u32 v6, 3840, v4")
    for r in range(3):
        e(f"buffer_load_dwordx4 v[{16+4*r}:{19+4*r}], v6, s[16:19], 0 offen offset:{1280*r}")
    for r in range(3):
        e(f"buffer_load_dwordx4 v[{28+4*r}:{31+4*r}], v4, s[16:19], 0 offen offset:{1280*r}")
    e("buffer_load_dwordx4 v[40:43], v4, s[16:19], 0 offen offset:3840")
    for r in range(4):
        e(f"buffer_load_dwordx4 v[{44+4*r}:{47+4*r}], v4, s[20:23], 0 offen offset:{1280*r}")
    e("v_lshlrev_b32 v7, 2, v5")
    for j in range(4):
        e(f"buffer_load_dwordx4 v[{60+4*j}:{63+4*j}], v7, s[24:27], 0 offen offset:{16*j}")
    e("s_mov_b32 s34, 0x05040100")
    e("s_mov_b32 s35, 0x07060302")
    e("v_lshlrev_b32 v8, 3, v1")
    e("v_mul_u32_u24 v8, 144, v8")
    e("v_lshrrev_b32 v9, 1, v2")
    e("v_lshlrev_b32 v9, 4, v9")
    e("v_add_u32 v8, v8, v9")
    e("v_and_b32 v9, 1, v2")
    e("v_lshlrev_b32 v9, 3, v9")
    e("v_xor_b32 v9, 8, v9")
    e("v_add_u32 v8, v8, v9")
    e("s_waitcnt vmcnt(0)")
    for p in range(4):
        for h in range(2):
            c = 2*p+h
            e(f"v_lshlrev_b32 v{80+4*h}, 16, v{60+2*c}")
            e(f"v_and_b32 v{81+4*h}, 0xffff0000, v{60+2*c}")
            e(f"v_lshlrev_b32 v{82+4*h}, 16, v{61+2*c}")
            e(f"v_and_b32 v{83+4*h}, 0xffff0000, v{61+2*c}")
        for r in range(7):
            e(f"v_lshlrev_b32 v{88+2*r}, 16, v{16+4*r+p}")
            e(f"v_and_b32 v{89+2*r}, 0xffff0000, v{16+4*r+p}")
        for i in range(4):
            for t in range(4):
                r = i + t
                w = 3 - t
                e(f"v_mul_f32 v104, v{88+2*r}, v{80+w}")
                e(f"v_mul_f32 v105, v{89+2*r}, v{84+w}")
                e("v_cvt_pk_bf16_f32 v106, v104, v105")
                if t == 0:
                    e("v_lshlrev_b32 v102, 16, v106")
                    e("v_and_b32 v103, 0xffff0000, v106")
                else:
                    e("v_lshlrev_b32 v104, 16, v106")
                    e("v_and_b32 v105, 0xffff0000, v106")
                    e("v_add_f32 v102, v102, v104")
                    e("v_add_f32 v103, v103, v105")
                    e("v_cvt_pk_bf16_f32 v106, v102, v103")
                    e("v_lshlrev_b32 v102, 16, v106")
                    e("v_and_b32 v103, 0xffff0000, v106")
            e(f"v_lshlrev_b32 v104, 16, v{44+4*i+p}")
            e(f"v_and_b32 v105, 0xffff0000, v{44+4*i+p}")
            e("v_mul_f32 v102, v102, v104")
            e("v_mul_f32 v103, v103, v105")
            e(f"v_cvt_pk_bf16_f32 v{108+i}, v102, v103")
        e("v_perm_b32 v112, v110, v111, s34")
        e("v_perm_b32 v113, v108, v109, s34")
        e(f"ds_write_b64 v8, v[112:113] offset:{(2*p)*144}")
        e("v_perm_b32 v114, v110, v111, s35")
        e("v_perm_b32 v115, v108, v109, s35")
        e(f"ds_write_b64 v8, v[114:115] offset:{(2*p+1)*144}")
    e("s_waitcnt lgkmcnt(0)")
    e("s_barrier")
    e("v_lshrrev_b32 v1, 1, v0")
    e("v_and_b32 v2, 1, v0")
    e("v_mul_u32_u24 v3, 144, v1")
    e("v_lshlrev_b32 v4, 6, v2")
    e("v_add_u32 v3, v3, v4")
    for j in range(4):
        e(f"ds_read_b128 v[{16+4*j}:{19+4*j}], v3 offset:{16*j}")
    e("s_lshl_b32 s33, s15, 7")
    e("v_add_u32 v5, s33, v1")
    e("v_lshlrev_b32 v5, 12, v5")
    e("s_lshl_b32 s32, s14, 7")
    e("v_add_u32 v5, s32, v5")
    e("v_add_u32 v5, v5, v4")
    e("s_waitcnt lgkmcnt(0)")
    for j in range(4):
        e(f"buffer_store_dwordx4 v[{16+4*j}:{19+4*j}], v5, s[28:31], 0 offen offset:{16*j}")
    e.label("K1_END")
    e("s_endpgm")
    return e.text()


N_CONV = 320
N_G1 = 224
CH_STRIDE = 38032
COPY = 4160
KV_OFF = 33280
K2_LDS = 76800

def k2_conv(e):
    stamp(e, 0)
    srd(e, 16, 4, 5, SZ_SD)
    srd_off(e, 20, 12, 13, WS_KVT, SZ_SD)
    srd_off(e, 24, 12, 13, WS_Y2T, SZ_SD)
    e("s_lshl_b32 s28, s2, 2")
    e("s_load_dword s29, s[6:7], s28")
    e("v_and_b32 v1, 63, v0")
    e("v_lshlrev_b32 v2, 4, v1")
    e("s_lshl_b32 s30, s2, 13")
    for ch in range(2):
        e("s_lshl_b32 s32, s3, 1")
        e(f"s_add_u32 s32, s32, {ch*4096 - 14 + 65536}")
        e("s_add_u32 s32, s32, s30")
        e("s_sub_u32 s32, s32, 65536")
        e(f"v_add_u32 v{4+ch}, s32, v2")
        e(f"s_mul_i32 s33, s3, {COPY}")
        e(f"s_add_u32 s33, s33, {ch*CH_STRIDE + 64}")
        e("s_mov_b32 m0, s33")
        e("s_nop 0")
        for qd in range(4):
            e(f"buffer_load_dwordx4 v{4+ch}, s[16:19], 0 offen offset:{qd*1024} lds")
    e("v_lshlrev_b32 v8, 4, v0")
    e("v_add_u32 v8, s30, v8")
    e("buffer_load_dwordx4 v[12:15], v8, s[20:23], 0 offen")
    e("v_bfe_u32 v20, v1, 3, 1")
    e("v_lshlrev_b32 v21, 12, v20")
    e("v_and_b32 v22, 7, v1")
    e("v_lshlrev_b32 v23, 1, v22")
    e("v_add_u32 v21, v21, v23")
    e("v_add_u32 v21, s30, v21")
    e("buffer_load_ushort v24, v21, s[16:19], 0 offen")
    e("v_mov_b32 v28, 0")
    e("v_mov_b32 v29, 0")
    e("v_mov_b32 v30, 0")
    e("v_mov_b32 v31, 0")
    e("v_bfe_u32 v25, v1, 2, 1")
    e(f"v_mul_u32_u24 v25, {CH_STRIDE}, v25")
    e(f"s_mul_i32 s33, s3, {COPY}")
    e("v_add_u32 v25, s33, v25")
    e("v_and_b32 v26, 3, v1")
    e("v_lshlrev_b32 v26, 4, v26")
    e("v_add_u32 v25, v25, v26")
    e("s_and_b32 s34, s3, 1")
    e(f"s_mul_i32 s34, s34, {CH_STRIDE}")
    e(f"s_add_u32 s34, s34, {KV_OFF - 128}")
    e("v_add_u32 v26, s34, v2")
    e("v_cmp_gt_u32 vcc, 8, v1")
    e("s_nop 1")
    e("v_cndmask_b32 v25, v26, v25, vcc")
    e("v_cmp_gt_u32 vcc, 17, v1")
    e("s_and_saveexec_b64 s[36:37], vcc")
    e("ds_write_b128 v25, v[28:31]")
    e("s_mov_b64 exec, s[36:37]")
    e("v_bfe_u32 v25, v0, 3, 5")
    e("v_mul_u32_u24 v25, 144, v25")
    e("v_and_b32 v26, 7, v0")
    e("v_lshlrev_b32 v26, 4, v26")
    e("v_add_u32 v25, v25, v26")
    e("v_lshrrev_b32 v26, 8, v0")
    e(f"v_mul_u32_u24 v26, {CH_STRIDE}, v26")
    e("v_add_u32 v25, v25, v26")
    e(f"v_add_u32 v25, {KV_OFF + 144}, v25")
    e("s_waitcnt vmcnt(0)")
    e("ds_write_b128 v25, v[12:15]")
    e("v_cmp_ge_u32 vcc, s3, v22")
    e("s_nop 1")
    e("v_cndmask_b32 v24, 0, v24, vcc")
    e("v_subrev_u32 v27, s3, v22")
    e("v_add_u32 v27, 7, v27")
    e("v_and_b32 v27, 7, v27")
    e("v_lshlrev_b32 v27, 1, v27")
    e("v_add_u32 v27, s33, v27")
    e(f"v_mul_u32_u24 v26, {CH_STRIDE}, v20")
    e("v_add_u32 v27, v27, v26")
    e("v_add_u32 v27, 64, v27")
    e("v_cmp_gt_u32 vcc, 16, v1")
    e("s_and_saveexec_b64 s[36:37], vcc")
    e("ds_write_b16 v27, v24")
    e("s_mov_b64 exec, s[36:37]")
    e("s_waitcnt lgkmcnt(0)")
    stamp(e, 1)
    e("s_barrier")
    stamp(e, 2)
    e("s_lshr_b32 s38, s3, 2")
    e("s_and_b32 s39, s3, 3")
    e(f"s_mul_i32 s40, s38, {CH_STRIDE}")
    e("v_and_b32 v3, 31, v1")
    e("v_lshrrev_b32 v4, 5, v1")
    e("v_and_b32 v5, 7, v3")
    e("v_lshrrev_b32 v6, 3, v3")
    e(f"v_mul_u32_u24 v7, {COPY}, v5")
    e("v_sub_u32 v8, v6, v4")
    e("v_lshlrev_b32 v8, 4, v8")
    e("v_add_u32 v7, v7, v8")
    e("s_lshl_b32 s41, s39, 10")
    e("s_add_u32 s41, s41, s40")
    e("s_add_u32 s41, s41, 32")
    e("v_add_u32 v7, s41, v7")
    e("v_subrev_u32 v8, 64, v7")
    e("v_mul_u32_u24 v9, 144, v3")
    e("v_lshlrev_b32 v10, 4, v4")
    e(f"s_add_u32 s42, s40, {KV_OFF}")
    e("v_add_u32 v10, s42, v10")
    e("v_add_u32 v9, v9, v10")
    e("s_mul_i32 s43, s39, 1152")
    e("s_sub_u32 s43, 144, s43")
    e("v_add_u32 v9, s43, v9")
    ACC0, ACC1 = 16, 32
    EV = [48, 56]; OD = [64, 72, 80]; BB = [88, 104]
    for i in range(32):
        e(f"v_mov_b32 v{16+i}, 0")
    ND = 8
    def loads(dp):
        p = dp & 1
        ev = EV[p]; od = OD[dp % 3]; bb = BB[p]
        e(f"v_subrev_u32 v11, {144*dp}, v9")
        e("v_max_i32 v11, v11, v10")
        for kh in range(2):
            e(f"ds_read_b128 v[{ev+4*kh}:{ev+4*kh+3}], v7 offset:{64*(2*dp) + 32*(1-kh)}")
        for ks in range(4):
            e(f"ds_read_b128 v[{bb+4*ks}:{bb+4*ks+3}], v11 offset:{32*ks}")
        for kh in range(2):
            e(f"ds_read_b128 v[{od+4*kh}:{od+4*kh+3}], v7 offset:{64*(2*dp+1) + 32*(1-kh)}")
    odp = OD[2]
    e("s_cmp_eq_u32 s39, 0")
    e("s_cbranch_scc1 CV_ZERO")
    for kh in range(2):
        e(f"ds_read_b128 v[{odp+4*kh}:{odp+4*kh+3}], v8 offset:{32*(1-kh)}")
    e("s_branch CV_INIT")
    e.label("CV_ZERO")
    for i in range(8):
        e(f"v_mov_b32 v{odp+i}, 0")
    e.label("CV_INIT")
    loads(0)
    for dp in range(ND):
        p = dp & 1
        ev = EV[p]; od = OD[dp % 3]; op = OD[(dp-1) % 3]; bb = BB[p]
        e("s_waitcnt lgkmcnt(0)")
        if dp < ND-1:
            loads(dp+1)
        def mf(acc, a, b):
            e(f"v_mfma_f32_32x32x16_bf16 v[{acc}:{acc+15}], v[{a}:{a+3}], v[{b}:{b+3}], v[{acc}:{acc+15}]")
        mf(ACC0, ev, bb); mf(ACC1, od, bb)
        mf(ACC0, ev+4, bb+4); mf(ACC1, od+4, bb+4)
        mf(ACC0, op, bb+8); mf(ACC1, ev, bb+8)
        mf(ACC0, op+4, bb+12); mf(ACC1, ev+4, bb+12)
    e("s_nop 15")
    e("s_nop 3")
    stamp(e, 3)
    e("s_barrier")
    e("s_lshl_b32 s44, s39, 13")
    e("s_add_u32 s44, s44, s40")
    e("v_add_u32 v11, s44, v2")
    for i in range(8):
        e(f"ds_write_b128 v11, v[{16+4*i}:{19+4*i}] offset:{1024*i}")
    e("s_lshl_b32 s45, s39, 11")
    e("s_add_u32 s45, s45, s40")
    e("v_add_u32 v12, s45, v2")
    e("s_waitcnt lgkmcnt(0)")
    e("s_barrier")
    for sd in range(4):
        for h in range(2):
            r = 48 + 8*sd + 4*h
            e(f"ds_read_b128 v[{r}:{r+3}], v12 offset:{8192*sd + 1024*h}")
    e("v_mul_u32_u24 v13, 144, v3")
    e("v_lshlrev_b32 v14, 3, v4")
    e("v_xor_b32 v14, 8, v14")
    e("v_add_u32 v13, v13, v14")
    e("s_lshl_b32 s46, s39, 5")
    e("s_add_u32 s46, s46, s42")
    e("s_add_u32 s46, s46, 144")
    e("v_add_u32 v13, s46, v13")
    for h in range(2):
        e(f"ds_read_b64 v[{88+2*h}:{89+2*h}], v13 offset:{16*h}")
    e("s_lshl_b32 s47, s38, 4")
    e("s_lshr_b32 s47, s29, s47")
    e("s_lshl_b32 s47, s47, 16")
    e("s_lshl_b32 s48, s38, 12")
    e("s_add_u32 s48, s48, s30")
    e("s_lshl_b32 s49, s39, 5")
    e("s_add_u32 s48, s48, s49")
    e("v_lshlrev_b32 v15, 7, v3")
    e("v_lshlrev_b32 v14, 3, v4")
    e("v_add_u32 v15, v15, v14")
    e("v_add_u32 v15, s48, v15")
    e("s_waitcnt lgkmcnt(0)")
    for h in range(2):
        for j in range(4):
            r = 48 + 4*h + j
            e(f"v_add_f32 v{r}, v{r}, v{r+8}")
            e(f"v_add_f32 v{r+16}, v{r+16}, v{r+24}")
            e(f"v_add_f32 v{r}, v{r}, v{r+16}")
        k0, k1 = 88+2*h, 89+2*h
        e(f"v_and_b32 v16, 0xffff0000, v{k1}")
        e(f"v_lshlrev_b32 v17, 16, v{k1}")
        e(f"v_and_b32 v18, 0xffff0000, v{k0}")
        e(f"v_lshlrev_b32 v19, 16, v{k0}")
        for j in range(4):
            e(f"v_mul_f32 v{16+j}, s47, v{16+j}")
        e("v_cvt_pk_bf16_f32 v20, v16, v17")
        e("v_cvt_pk_bf16_f32 v21, v18, v19")
        e(f"v_cvt_pk_bf16_f32 v22, v{48+4*h}, v{49+4*h}")
        e(f"v_cvt_pk_bf16_f32 v23, v{50+4*h}, v{51+4*h}")
        for (sr, dst) in ((20, 16), (21, 18), (22, 24), (23, 26)):
            e(f"v_lshlrev_b32 v{dst}, 16, v{sr}")
            e(f"v_and_b32 v{dst+1}, 0xffff0000, v{sr}")
        for j in range(4):
            e(f"v_add_f32 v{16+j}, v{16+j}, v{24+j}")
        e(f"v_cvt_pk_bf16_f32 v{96+2*h}, v16, v17")
        e(f"v_cvt_pk_bf16_f32 v{97+2*h}, v18, v19")
        e(f"buffer_store_dwordx2 v[{96+2*h}:{97+2*h}], v15, s[24:27], 0 offen offset:{16*h}")
    stamp(e, 4)
    e("s_waitcnt vmcnt(0)")
    stamp(e, 5)
    stamp_dump(e, 6, int(STAMP or 0))
    trace_end(e, 1)
    e("s_endpgm")

def k2_gemm1(e):
    NS = 3; STG = 24576; NT = 40 if os.environ.get("TWICE") else 20
    stamp(e, 0)
    e("s_and_b32 s15, s14, 7")
    e("s_lshr_b32 s14, s14, 3")
    e("s_lshr_b32 s28, s15, 2")
    e("s_mul_i32 s28, s28, 14")
    e("s_lshr_b32 s29, s14, 1")
    e("s_add_u32 s28, s28, s29")
    e("s_and_b32 s15, s15, 3")
    e("s_lshl_b32 s15, s15, 1")
    e("s_and_b32 s14, s14, 1")
    e("s_add_u32 s15, s15, s14")
    e("s_cmp_ge_u32 s28, 27")
    e("s_cbranch_scc1 K2_END")
    e("s_setprio 3")
    srd_off(e, 16, 12, 13, WS_XN, SZ_SD)
    e("s_cmp_lt_u32 s3, 4")
    e("s_cselect_b32 s20, s8, s10")
    e("s_cselect_b32 s21, s9, s11")
    e(f"s_mov_b32 s22, {D*F*2}")
    e("s_mov_b32 s23, 0x00020000")
    srd_off(e, 32, 12, 13, WS_H, SZ_H)
    e("v_and_b32 v1, 63, v0")
    e("v_lshrrev_b32 v2, 4, v1")
    e("v_and_b32 v3, 15, v1")
    e("v_xor_b32 v4, v2, v3")
    e("v_lshrrev_b32 v5, 2, v4")
    e("v_lshl_add_u32 v5, v2, 2, v5")
    e("v_mul_u32_u24 v5, 1280, v5")
    e("v_and_b32 v4, 3, v4")
    e("v_lshl_add_u32 v8, v4, 4, v5")
    e("v_lshrrev_b32 v2, 3, v1")
    e("v_and_b32 v3, 7, v1")
    e("v_bfe_u32 v4, v2, 1, 1")
    e("v_lshlrev_b32 v4, 2, v4")
    e("v_xor_b32 v3, v3, v4")
    e("v_mul_u32_u24 v2, 3456, v2")
    e("v_lshl_add_u32 v10, v3, 4, v2")
    e("s_lshl_b32 s36, s15, 8")
    e("s_lshl_b32 s37, s3, 5")
    e("s_add_u32 s37, s37, s36")
    e("s_mul_i32 s37, s37, 1280")
    e("s_and_b32 s38, s3, 3")
    e("s_lshl_b32 s38, s38, 3")
    e("s_mul_i32 s38, s38, 3456")
    e("s_lshl_b32 s39, s28, 7")
    e("s_add_u32 s38, s38, s39")
    e("s_lshl_b32 s40, s3, 11")
    e("s_lshl_b32 s41, s3, 10")
    def dma(stage):
        sb = stage*STG
        for i in range(2):
            e(f"s_add_u32 s45, s40, {sb + i*1024}")
            e("s_mov_b32 m0, s45")
            e(f"s_add_u32 s46, s42, {i*16*1280}")
            e(f"buffer_load_dwordx4 v8, s[16:19], s46 offen lds")
        e(f"s_add_u32 s45, s41, {sb + 16384}")
        e("s_mov_b32 m0, s45")
        e("s_add_u32 s42, s42, 64")
        e(f"buffer_load_dwordx4 v10, s[20:23], s43 offen lds")
        e(f"s_add_u32 s43, s43, {32*3456}")
    def dma_list(stage):
        sb = stage*STG
        L = []
        for i in range(2):
            L.append(f"""s_add_u32 s45, s40, {sb + i*1024}
s_mov_b32 m0, s45
s_add_u32 s46, s42, {i*16*1280}
buffer_load_dwordx4 v8, s[16:19], s46 offen lds""")
        L.append(f"""s_add_u32 s45, s41, {sb + 16384}
s_mov_b32 m0, s45
s_add_u32 s42, s42, 64
buffer_load_dwordx4 v10, s[20:23], s43 offen lds
s_add_u32 s43, s43, {32*3456}""")
        return L
    e("s_mov_b32 s42, s37")
    e("s_mov_b32 s43, s38")
    for st in range(NS-1):
        dma(st)
    e("s_lshr_b32 s47, s3, 1")
    e("s_and_b32 s48, s3, 1")
    e("v_and_b32 v2, 31, v1")
    e("v_lshrrev_b32 v3, 5, v1")
    e("s_lshl_b32 s49, s47, 6")
    e("v_add_u32 v2, s49, v2")
    e("v_lshrrev_b32 v4, 2, v2")
    e("v_and_b32 v5, 3, v2")
    e("v_lshl_add_u32 v5, v5, 2, v3")
    e("v_and_b32 v6, 3, v4")
    e("v_xor_b32 v5, v5, v6")
    e("v_lshlrev_b32 v5, 4, v5")
    e("v_lshl_add_u32 v12, v4, 8, v5")
    e("v_xor_b32 v13, 32, v12")
    e("v_lshrrev_b32 v2, 4, v1")
    e("v_bfe_u32 v3, v1, 2, 2")
    e("v_and_b32 v4, 3, v1")
    e("v_lshrrev_b32 v5, 1, v2")
    e("v_lshl_add_u32 v5, v5, 3, v3")
    e("v_lshlrev_b32 v5, 7, v5")
    e("v_and_b32 v6, 1, v2")
    e("v_lshlrev_b32 v6, 1, v6")
    e("v_lshrrev_b32 v7, 1, v4")
    e("v_add_u32 v6, v6, v7")
    e("s_lshl_b32 s49, s48, 2")
    e("v_add_u32 v6, s49, v6")
    e("v_bfe_u32 v7, v3, 1, 1")
    e("v_lshlrev_b32 v7, 2, v7")
    e("v_xor_b32 v6, v6, v7")
    e("v_lshl_add_u32 v5, v6, 4, v5")
    e("v_and_b32 v7, 1, v4")
    e("v_lshl_add_u32 v5, v7, 3, v5")
    e("v_add_u32 v16, 16384, v5")
    G0, U0 = 64, 96
    for i in range(64):
        e(f"v_mov_b32 v{64+i}, 0")
    XF = [32, 40]; WF = [48, 56]
    def frag_loads(st, ks, buf):
        so = st*STG
        for mat in range(2):
            for hi in range(2):
                r = WF[buf] + 4*mat + 2*hi
                e(f"ds_read_b64_tr_b16 v[{r}:{r+1}], v16 offset:{so + mat*4096 + ks*2048 + hi*512}")
        for mi in range(2):
            e(f"ds_read_b128 v[{XF[buf]+4*mi}:{XF[buf]+4*mi+3}], v{12+ks} offset:{so + mi*2048}")
    for t in range(NT):
        st = t % NS
        rem = min(NS-2, NT-1-t)
        e(f"s_waitcnt vmcnt({3*rem})")
        SL = [0,5,20,25,39] if NT == 40 else [0,1,5,10,19]
        if t in SL: stamp(e, 1 + 2*SL.index(t))
        e("s_barrier")
        if t in SL[:4]: stamp(e, 2 + 2*SL.index(t))
        frag_loads(st, 0, 0)
        frag_loads(st, 1, 1)
        if t+NS-1 == 20 and NT == 40:
            e("s_mov_b32 s42, s37")
            e("s_mov_b32 s43, s38")
        dl = dma_list((t+NS-1) % NS) if t+NS-1 < NT else []
        for ks in range(2):
            buf = ks & 1
            e(f"s_waitcnt lgkmcnt({6 if ks == 0 else 0})")
            for mi in range(2):
                x = XF[buf]+4*mi
                e(f"v_mfma_f32_32x32x16_bf16 v[{G0+16*mi}:{G0+16*mi+15}], v[{WF[buf]}:{WF[buf]+3}], v[{x}:{x+3}], v[{G0+16*mi}:{G0+16*mi+15}]")
                if dl: e(dl.pop(0))
                e(f"v_mfma_f32_32x32x16_bf16 v[{U0+16*mi}:{U0+16*mi+15}], v[{WF[buf]+4}:{WF[buf]+7}], v[{x}:{x+3}], v[{U0+16*mi}:{U0+16*mi+15}]")
                if dl: e(dl.pop(0))
    e("s_nop 15")
    e("s_nop 3")
    e("s_barrier")
    e("v_and_b32 v2, 31, v1")
    e("v_lshrrev_b32 v3, 5, v1")
    e("s_lshl_b32 s49, s47, 6")
    e("v_add_u32 v2, s49, v2")
    e("v_mul_u32_u24 v2, 144, v2")
    e("s_lshl_b32 s49, s48, 6")
    e("v_lshl_add_u32 v2, v3, 3, v2")
    e("v_add_u32 v2, s49, v2")
    for mi in range(2):
        for i in range(4):
            g = G0+16*mi+4*i; u = U0+16*mi+4*i
            o = 40 + 2*((mi*4+i) % 4)
            for pr in range(2):
                e(f"v_cvt_pk_bf16_f32 v20, v{g+2*pr}, v{g+2*pr+1}")
                e(f"v_cvt_pk_bf16_f32 v21, v{u+2*pr}, v{u+2*pr+1}")
                e("v_lshlrev_b32 v22, 16, v20")
                e("v_and_b32 v23, 0xffff0000, v20")
                e("v_lshlrev_b32 v24, 16, v21")
                e("v_and_b32 v25, 0xffff0000, v21")
                e("v_mul_f32 v22, v22, v24")
                e("v_mul_f32 v23, v23, v25")
                e(f"v_cvt_pk_bf16_f32 v{o+pr}, v22, v23")
            e(f"ds_write_b64 v2, v[{o}:{o+1}] offset:{mi*32*144 + 16*i}")
    e("s_waitcnt lgkmcnt(0)")
    e("s_barrier")
    e("v_lshrrev_b32 v2, 3, v0")
    e("v_and_b32 v3, 7, v0")
    e("v_mul_u32_u24 v4, 144, v2")
    e("v_lshl_add_u32 v4, v3, 4, v4")
    for j in range(4):
        e(f"ds_read_b128 v[{64+4*j}:{67+4*j}], v4 offset:{j*64*144}")
    e("v_add_u32 v2, s36, v2")
    e("s_movk_i32 s50, 3456")
    e("v_mul_lo_u32 v2, v2, s50")
    e("v_lshl_add_u32 v2, v3, 4, v2")
    e("v_add_u32 v2, s39, v2")
    for j in range(4):
        e(f"s_mov_b32 s50, {j*64*3456}")
        e(f"s_waitcnt lgkmcnt({3-j})")
        e(f"buffer_store_dwordx4 v[{64+4*j}:{67+4*j}], v2, s[32:35], s50 offen")
    stamp(e, 10)
    e("s_waitcnt vmcnt(0)")
    stamp(e, 11)
    stamp_dump(e, 12, int(STAMP or 0))
    trace_end(e, 1)
    e("s_endpgm")

def k2():
    e = E()
    e(f"s_cmp_ge_u32 s2, {N_CONV+N_G1}")
    e("s_cbranch_scc1 K2_END")
    trace_start(e)
    e("s_load_dwordx4 s[4:7], s[0:1], 32")
    e("s_load_dwordx4 s[8:11], s[0:1], 56")
    e("s_load_dwordx2 s[12:13], s[0:1], 96")
    e("v_lshrrev_b32 v1, 6, v0")
    e("s_nop 0")
    e("v_readfirstlane_b32 s3, v1")
    e("s_waitcnt lgkmcnt(0)")
    e("s_mov_b32 s14, s2")
    e(f"s_cmp_lt_u32 s2, {N_G1}")
    e("s_cbranch_scc1 K2_G1")
    e(f"s_sub_u32 s2, s2, {N_G1}")
    import os
    if os.environ.get("SKIP") == "conv": e("s_endpgm")
    k2_conv(e)
    e.label("K2_G1")
    if os.environ.get("SKIP") == "g1": e("s_endpgm")
    k2_gemm1(e)
    e.label("K2_END")
    e("s_endpgm")
    return e.text()


N_G2 = 160
K3_LDS = 24576*4 + 16384
def k3():
    e = E()
    e(f"s_cmp_ge_u32 s2, {N_G2}")
    e("s_cbranch_scc1 K3_END")
    trace_start(e)
    e("s_load_dwordx2 s[4:5], s[0:1], 0")
    e("s_load_dwordx4 s[8:11], s[0:1], 72")
    e("s_load_dwordx2 s[12:13], s[0:1], 96")
    e("v_lshrrev_b32 v1, 6, v0")
    e("s_nop 0")
    e("v_readfirstlane_b32 s3, v1")
    e("s_and_b32 s15, s2, 7")
    e("s_lshl_b32 s15, s15, 1")
    e("s_lshr_b32 s28, s2, 3")
    e("s_and_b32 s29, s28, 1")
    e("s_add_u32 s15, s15, s29")
    e("s_lshr_b32 s28, s28, 1")
    e("s_waitcnt lgkmcnt(0)")
    srd_off(e, 16, 12, 13, WS_H, SZ_H)
    srd(e, 20, 8, 9, D*F*2)
    srd_off(e, 24, 12, 13, WS_Y2T, SZ_SD)
    srd(e, 32, 10, 11, SZ_SD)
    srd(e, 52, 4, 5, SZ_SD)
    srd_off(e, 56, 12, 13, WS_XN, SZ_SD)
    e("v_and_b32 v1, 63, v0")
    e("v_lshrrev_b32 v2, 4, v1")
    e("v_and_b32 v3, 15, v1")
    for par in range(2):
        e(f"v_xor_b32 v4, {4*par}, v2")
        e("v_xor_b32 v4, v4, v3")
        e("v_lshrrev_b32 v5, 3, v4")
        e("v_lshl_add_u32 v5, v2, 1, v5")
        e("v_mul_u32_u24 v5, 3456, v5")
        e("v_and_b32 v4, 7, v4")
        e(f"v_lshl_add_u32 v{8+par}, v4, 4, v5")
    e("v_lshrrev_b32 v2, 3, v1")
    e("v_and_b32 v3, 7, v1")
    e("v_bfe_u32 v4, v2, 1, 1")
    e("v_lshlrev_b32 v4, 2, v4")
    e("v_xor_b32 v3, v3, v4")
    e("v_mul_u32_u24 v2, 1280, v2")
    e("v_lshl_add_u32 v10, v3, 4, v2")
    e("s_lshl_b32 s36, s15, 7")
    e("s_lshl_b32 s37, s3, 5")
    e("s_add_u32 s37, s37, s36")
    e("s_mul_i32 s37, s37, 3456")
    e("s_lshl_b32 s38, s3, 4")
    e("s_mul_i32 s38, s38, 1280")
    e("s_lshl_b32 s39, s28, 7")
    e("s_add_u32 s38, s38, s39")
    e("s_lshl_b32 s40, s3, 12")
    e("s_lshl_b32 s41, s3, 11")
    e("v_lshrrev_b32 v2, 4, v1")
    e("v_lshlrev_b32 v2, 12, v2")
    e("v_and_b32 v3, 15, v1")
    e("v_lshl_add_u32 v11, v3, 4, v2")
    e("s_lshl_b32 s45, s28, 6")
    e("s_lshl_b32 s46, s3, 4")
    e("s_add_u32 s45, s45, s46")
    e("s_lshl_b32 s45, s45, 12")
    e("s_lshl_b32 s46, s36, 1")
    e("s_add_u32 s45, s45, s46")
    for i in range(4):
        e(f"s_add_u32 s46, s40, {98304 + i*1024}")
        e("s_mov_b32 m0, s46")
        e(f"s_add_u32 s47, s45, {i*4*4096}")
        e("buffer_load_dwordx4 v11, s[24:27], s47 offen lds")
    def dma():
        for i in range(4):
            e(f"s_add_u32 s45, s44, s40")
            e(f"s_add_u32 s45, s45, {i*1024}")
            e("s_mov_b32 m0, s45")
            e(f"s_add_u32 s46, s42, {i*8*3456}")
            e(f"buffer_load_dwordx4 v{8+(i&1)}, s[16:19], s46 offen lds")
        for jj in range(2):
            e(f"s_add_u32 s45, s44, s41")
            e(f"s_add_u32 s45, s45, {16384 + jj*1024}")
            e("s_mov_b32 m0, s45")
            e(f"s_add_u32 s46, s43, {jj*8*1280}")
            e(f"buffer_load_dwordx4 v10, s[20:23], s46 offen lds")
    e("s_lshr_b32 s47, s3, 1")
    e("s_and_b32 s48, s3, 1")
    e("v_and_b32 v2, 31, v1")
    e("v_lshrrev_b32 v3, 5, v1")
    e("s_lshl_b32 s49, s47, 6")
    e("v_add_u32 v2, s49, v2")
    e("v_lshrrev_b32 v4, 1, v2")
    e("v_and_b32 v5, 1, v2")
    e("v_lshl_add_u32 v5, v5, 3, v3")
    e("v_and_b32 v6, 7, v4")
    e("v_xor_b32 v5, v5, v6")
    e("v_lshlrev_b32 v5, 4, v5")
    e("v_lshl_add_u32 v12, v4, 8, v5")
    e("s_lshl_b32 s49, s48, 5")
    e("v_xor_b32 v12, s49, v12")
    e("v_xor_b32 v13, 64, v12")
    e("v_lshrrev_b32 v2, 4, v1")
    e("v_bfe_u32 v3, v1, 2, 2")
    e("v_and_b32 v4, 3, v1")
    e("v_lshrrev_b32 v5, 1, v2")
    e("v_lshl_add_u32 v5, v5, 3, v3")
    e("v_lshlrev_b32 v5, 7, v5")
    e("v_and_b32 v6, 1, v2")
    e("v_lshlrev_b32 v6, 1, v6")
    e("v_lshrrev_b32 v7, 1, v4")
    e("v_add_u32 v6, v6, v7")
    e("v_bfe_u32 v7, v3, 1, 1")
    e("v_lshlrev_b32 v7, 2, v7")
    e("v_xor_b32 v6, v6, v7")
    e("v_lshl_add_u32 v5, v6, 4, v5")
    e("v_and_b32 v7, 1, v4")
    e("v_lshl_add_u32 v5, v7, 3, v5")
    e("s_lshl_b32 s49, s48, 11")
    e("s_add_u32 s49, s49, 16384")
    e("v_add_u32 v16, s49, v5")
    e("v_xor_b32 v17, 64, v16")
    for (a, b) in ((18, 12), (19, 13), (26, 16), (27, 17)):
        e(f"v_add_u32 v{a}, 49152, v{b}")
    ACC = 64
    for i in range(64):
        e(f"v_mov_b32 v{64+i}, 0")
    XF = [32, 40]; WF = [48, 56]
    e("s_mov_b32 s42, s37")
    e("s_mov_b32 s43, s38")
    NS = 4
    def dma2(stage):
        e(f"s_mov_b32 s44, {stage*24576}")
        dma()
        e("s_add_u32 s42, s42, 128")
        e(f"s_add_u32 s43, s43, {64*1280}")
    for st in range(NS-1):
        dma2(st)
    def frag_loads(st, j, buf):
        so = (st&1)*24576
        xa = (12 if st < 2 else 18) + j
        wa = (16 if st < 2 else 26)
        for mi in range(2):
            e(f"ds_read_b128 v[{XF[buf]+4*mi}:{XF[buf]+4*mi+3}], v{xa} offset:{so + mi*4096}")
        for ni in range(2):
            for hi in range(2):
                r = WF[buf] + 4*ni + 2*hi
                e(f"ds_read_b64_tr_b16 v[{r}:{r+1}], v{wa+ni} offset:{so + j*4096 + hi*512}")
    NT = 27
    for t in range(NT):
        st = t % NS
        rem = min(NS-2, NT-1-t)
        e(f"s_waitcnt vmcnt({6*rem})")
        e("s_barrier")
        frag_loads(st, 0, 0)
        if t+NS-1 < NT:
            dma2((t+NS-1) % NS)
        for j in range(2):
            buf = j
            e("s_waitcnt lgkmcnt(0)")
            if j < 1:
                frag_loads(st, 1, 1)
            for ni in range(2):
                for mi in range(2):
                    a = ACC+32*ni+16*mi
                    x = XF[buf]+4*mi; w = WF[buf]+4*ni
                    e(f"v_mfma_f32_32x32x16_bf16 v[{a}:{a+15}], v[{w}:{w+3}], v[{x}:{x+3}], v[{a}:{a+15}]")
    e("v_and_b32 v2, 31, v1")
    e("v_lshrrev_b32 v3, 5, v1")
    e("s_lshl_b32 s49, s47, 6")
    e("s_add_u32 s49, s49, s36")
    e("v_add_u32 v2, s49, v2")
    e("v_mul_u32_u24 v2, 1280, v2")
    e("s_lshl_b32 s49, s48, 6")
    e("s_add_u32 s49, s49, s39")
    e("v_lshl_add_u32 v2, v3, 3, v2")
    e("v_add_u32 v2, s49, v2")
    e(f"v_add_u32 v3, {32*1280}, v2")
    XR, XNR = 128, 144
    for mi in range(2):
        for i in range(4):
            r = 2*(mi*4+i)
            e(f"buffer_load_dwordx2 v[{XR+r}:{XR+r+1}], v{2+mi}, s[52:55], 0 offen offset:{16*i}")
            e(f"buffer_load_dwordx2 v[{XNR+r}:{XNR+r+1}], v{2+mi}, s[56:59], 0 offen offset:{16*i}")
    e("s_nop 15")
    e("s_barrier")
    e("v_lshlrev_b32 v4, 4, v1")
    e("s_lshl_b32 s49, s3, 13")
    e("v_add_u32 v5, s49, v4")
    e("s_xor_b32 s49, s3, 1")
    e("s_lshl_b32 s49, s49, 13")
    e("v_add_u32 v6, s49, v4")
    e("s_cmp_eq_u32 s48, 0")
    e("s_cbranch_scc1 K3_X0")
    for i in range(8):
        e(f"ds_write_b128 v5, v[{ACC+4*i}:{ACC+4*i+3}] offset:{1024*i}")
    for i in range(32):
        e(f"v_mov_b32 v{ACC+i}, v{ACC+32+i}")
    e("s_branch K3_X1")
    e.label("K3_X0")
    for i in range(8):
        e(f"ds_write_b128 v5, v[{ACC+32+4*i}:{ACC+32+4*i+3}] offset:{1024*i}")
    e.label("K3_X1")
    e("s_waitcnt lgkmcnt(0)")
    e("s_barrier")
    for i in range(8):
        e(f"ds_read_b128 v[{ACC+32+4*i}:{ACC+32+4*i+3}], v6 offset:{1024*i}")
    e("v_lshrrev_b32 v7, 4, v1")
    e("v_bfe_u32 v8, v1, 2, 2")
    e("v_and_b32 v9, 3, v1")
    e("v_lshrrev_b32 v10, 1, v7")
    e("v_lshl_add_u32 v10, v10, 2, v8")
    e("v_lshlrev_b32 v10, 8, v10")
    e("v_and_b32 v7, 1, v7")
    e("v_lshlrev_b32 v7, 5, v7")
    e("v_lshl_add_u32 v7, v9, 3, v7")
    e("v_add_u32 v10, v10, v7")
    e("s_lshl_b32 s49, s48, 13")
    e("s_lshl_b32 s50, s47, 7")
    e("s_add_u32 s49, s49, s50")
    e("s_add_u32 s49, s49, 98304")
    e("v_add_u32 v10, s49, v10")
    YR = 160
    for mi in range(2):
        for i in range(4):
            r = YR + 2*(mi*4+i)
            e(f"ds_read_b64_tr_b16 v[{r}:{r+1}], v10 offset:{i*2048 + mi*64}")
    e("s_waitcnt vmcnt(0) lgkmcnt(0)")
    for mi in range(2):
        for i in range(4):
            a = ACC + 16*mi + 4*i
            r = 2*(mi*4+i)
            for j in range(4):
                e(f"v_add_f32 v{a+j}, v{a+j}, v{a+32+j}")
            for pr in range(2):
                e(f"v_cvt_pk_bf16_f32 v20, v{a+2*pr}, v{a+2*pr+1}")
                e(f"v_lshlrev_b32 v22, 16, v{XNR+r+pr}")
                e(f"v_and_b32 v23, 0xffff0000, v{XNR+r+pr}")
                e(f"v_lshlrev_b32 v24, 16, v{YR+r+pr}")
                e(f"v_and_b32 v25, 0xffff0000, v{YR+r+pr}")
                e("v_mul_f32 v22, v22, v24")
                e("v_mul_f32 v23, v23, v25")
                e("v_cvt_pk_bf16_f32 v21, v22, v23")
                e("v_lshlrev_b32 v22, 16, v21")
                e("v_and_b32 v23, 0xffff0000, v21")
                e(f"v_lshlrev_b32 v24, 16, v{XR+r+pr}")
                e(f"v_and_b32 v25, 0xffff0000, v{XR+r+pr}")
                e("v_add_f32 v22, v22, v24")
                e("v_add_f32 v23, v23, v25")
                e("v_cvt_pk_bf16_f32 v21, v22, v23")
                e("v_lshlrev_b32 v22, 16, v21")
                e("v_and_b32 v23, 0xffff0000, v21")
                e("v_lshlrev_b32 v24, 16, v20")
                e("v_and_b32 v25, 0xffff0000, v20")
                e("v_add_f32 v22, v22, v24")
                e("v_add_f32 v23, v23, v25")
                e(f"v_cvt_pk_bf16_f32 v{XR+r+pr}, v22, v23")
            e(f"buffer_store_dwordx2 v[{XR+r}:{XR+r+1}], v{2+mi}, s[32:35], 0 offen offset:{16*i}")
    trace_end(e, 2)
    e.label("K3_END")
    e("s_endpgm")
    return e.text()

def build(kernels):
    out = []
    out.append(open("cdna_kernels/%s.s.ref" % NAME).read().split("; Override launch")[0])
    for (name, grid, block, lds, body, vgpr) in kernels:
        out.append(f"; @launch kernel={name} grid=({grid},1,1) block=({block},1,1) lds={lds}\n")
    out.append('.amdgcn_target "amdgcn-amd-amdhsa--gfx950"\n.text\n')
    for (name, grid, block, lds, body, vgpr) in kernels:
        out.append(khead(name))
        out.append(body)
    out.append('.section .rodata,"a"\n')
    for (name, grid, block, lds, body, vgpr) in kernels:
        out.append(".p2align 6\n")
        out.append(kdesc(name, vgpr))
    return "".join(out)

if __name__ == "__main__":
    ks = [("prep_kernel", N_LN+N_KV, 256, 128*144, k1(), 120),
          ("mid_kernel", N_CONV+N_G1, 512, K2_LDS, k2(), 128),
          ("fin_kernel", N_G2, 256, K3_LDS, k3(), 176)]
    open(sys.argv[1] if len(sys.argv) > 1 else "cdna_kernels/%s.s" % NAME, "w").write(build(ks))
```

```python
import sys
NAME = "parallel_sum__ssm_conv_h3__glu_gated_bilinear__prompt"
S, D, F = 2048, 640, 1728
WS_XN  = 0
WS_KVT = 0x280000
WS_H   = 0x500000
WS_Y2T = 0xC00000
SZ_SD = S*D*2
SZ_H = S*F*2

class E:
    def __init__(self):
        self.l = []
    def __call__(self, s):
        for line in s.strip("\n").split("\n"):
            self.l.append("    " + line.strip() if not line.strip().endswith(":") else line.strip())
    def label(self, n):
        self.l.append(n + ":")
    def text(self):
        return "\n".join(self.l) + "\n"

def srd(e, d, blo, bhi, nbytes):
    e(f"s_mov_b32 s{d}, s{blo}")
    e(f"s_mov_b32 s{d+1}, s{bhi}")
    e(f"s_mov_b32 s{d+2}, {nbytes}")
    e(f"s_mov_b32 s{d+3}, 0x00020000")

def srd_off(e, d, blo, bhi, off, nbytes):
    e(f"s_add_u32 s{d}, s{blo}, {off}")
    e(f"s_addc_u32 s{d+1}, s{bhi}, 0")
    e(f"s_mov_b32 s{d+2}, {nbytes}")
    e(f"s_mov_b32 s{d+3}, 0x00020000")

def kdesc(name, vgpr, sgpr=102):
    acc = (vgpr + 3)//4*4
    return f""".amdhsa_kernel {name}
  .amdhsa_next_free_vgpr {vgpr}
  .amdhsa_next_free_sgpr {sgpr}
  .amdhsa_accum_offset {acc}
  .amdhsa_group_segment_fixed_size 0
  .amdhsa_kernarg_size 104
  .amdhsa_user_sgpr_count 2
  .amdhsa_user_sgpr_kernarg_segment_ptr 1
  .amdhsa_system_sgpr_workgroup_id_x 1
.end_amdhsa_kernel
"""

import os
STAMP = os.environ.get("STAMP")
def stamp(e, idx):
    if not STAMP: return
    e(f"s_memtime s[88:89]")
    e("s_waitcnt lgkmcnt(0)")
    e(f"s_mov_b32 s{90+idx}, s88")
def stamp_dump(e, n, wg):
    if not STAMP: return
    e("s_load_dwordx2 s[84:85], s[0:1], 88")
    e("s_waitcnt lgkmcnt(0)")
    e("s_mov_b32 s86, 256")
    e("s_mov_b32 s87, 0x00020000")
    e(f"s_cmp_lg_u32 s2, {wg}")
    e("s_cbranch_scc1 9f")
    e("s_cmp_lg_u32 s3, 0")
    e("s_cbranch_scc1 9f")
    e("v_mov_b32 v120, 0")
    for i in range(1, n):
        e(f"s_sub_u32 s83, s{90+i}, s90")
        e("v_mov_b32 v121, s83")
        e(f"buffer_store_dword v121, v120, s[84:87], 0 offen offset:{4*i}")
    e("9:")

TRACE = os.environ.get("TRACE")
def trace_start(e):
    if not TRACE: return
    e("s_memrealtime s[96:97]")
    e("s_memtime s[98:99]")
    e("s_mov_b32 s82, s2")
def trace_end(e, kidx):
    if not TRACE: return
    e("s_waitcnt vmcnt(0) lgkmcnt(0)")
    e("s_memrealtime s[92:93]")
    e("s_memtime s[94:95]")
    e("s_load_dwordx2 s[84:85], s[0:1], 96")
    e("s_getreg_b32 s90, hwreg(HW_REG_HW_ID)")
    e("s_getreg_b32 s91, hwreg(HW_REG_XCC_ID)")
    e("s_waitcnt lgkmcnt(0)")
    e(f"s_add_u32 s84, s84, {(64<<20) + kidx*65536}")
    e("s_addc_u32 s85, s85, 0")
    e("s_mov_b32 s86, 65536")
    e("s_mov_b32 s87, 0x00020000")
    e("s_lshl_b32 s91, s91, 24")
    e("s_and_b32 s90, s90, 0xffffff")
    e("s_or_b32 s90, s90, s91")
    e("s_sub_u32 s94, s94, s98")
    e("v_mov_b32 v124, s96")
    e("v_mov_b32 v125, s92")
    e("v_mov_b32 v126, s90")
    e("v_mov_b32 v127, s94")
    e("s_lshl_b32 s83, s82, 4")
    e("v_mov_b32 v121, s83")
    e("v_cmp_eq_u32 vcc, 0, v0")
    e("s_and_saveexec_b64 s[80:81], vcc")
    e("s_cbranch_execz 8f")
    e("buffer_store_dwordx4 v[124:127], v121, s[84:87], 0 offen")
    e("s_waitcnt vmcnt(0)")
    e("8:")

def khead(name):
    return f""".globl {name}
.p2align 8
.type {name},@function
{name}:
"""

N_LN = 128
N_KV = 160
def k1():
    e = E()
    e(f"s_cmp_ge_u32 s2, {N_LN+N_KV}")
    e("s_cbranch_scc1 K1_END")
    e("s_load_dwordx4 s[4:7], s[0:1], 0")
    e("s_load_dwordx4 s[8:11], s[0:1], 16")
    e("s_load_dwordx2 s[12:13], s[0:1], 96")
    e(f"s_cmp_ge_u32 s2, {N_LN}")
    e("s_cbranch_scc1 K1_KV")
    e("s_waitcnt lgkmcnt(0)")
    srd(e, 16, 4, 5, SZ_SD)
    srd_off(e, 20, 12, 13, WS_XN, SZ_SD)
    e("s_lshl_b32 s3, s2, 4")
    e("v_lshrrev_b32 v1, 4, v0")
    e("v_add_u32 v1, s3, v1")
    e("v_mul_u32_u24 v1, 1280, v1")
    e("v_and_b32 v2, 15, v0")
    e("v_lshlrev_b32 v2, 4, v2")
    e("v_add_u32 v1, v1, v2")
    for j in range(5):
        e(f"buffer_load_dwordx4 v[{4+4*j}:{7+4*j}], v1, s[16:19], 0 offen offset:{256*j}")
    e("s_waitcnt vmcnt(0)")
    for i in range(20):
        e(f"v_lshlrev_b32 v{32+2*i}, 16, v{4+i}")
        e(f"v_and_b32 v{33+2*i}, 0xffff0000, v{4+i}")
    e("v_add_f32 v24, v32, v33")
    e("v_add_f32 v25, v34, v35")
    for i in range(4, 40, 2):
        e(f"v_add_f32 v24, v24, v{32+i}")
        e(f"v_add_f32 v25, v25, v{33+i}")
    e("v_add_f32 v24, v24, v25")
    def red16(r):
        for sh in (8, 4, 2, 1):
            e("s_nop 1")
            e(f"v_add_f32_dpp v{r}, v{r}, v{r} row_ror:{sh} row_mask:0xf bank_mask:0xf")
    red16(24)
    e("s_mov_b32 s24, 0x3acccccd")
    e("v_mul_f32 v24, s24, v24")
    e("v_sub_f32 v26, v32, v24")
    e("v_mul_f32 v25, v26, v26")
    for i in range(1, 40):
        e(f"v_sub_f32 v26, v{32+i}, v24")
        e("v_fmac_f32 v25, v26, v26")
    red16(25)
    e("v_mul_f32 v25, s24, v25")
    e("v_cvt_pk_bf16_f32 v26, v24, v25")
    e("v_and_b32 v27, 0xffff0000, v26")
    e("v_lshlrev_b32 v26, 16, v26")
    e("v_add_f32 v27, 0x3727c5ac, v27")
    e("v_cvt_pk_bf16_f32 v27, v27, v27")
    e("v_lshlrev_b32 v27, 16, v27")
    e("v_sqrt_f32 v27, v27")
    e("s_nop 0")
    e("v_cvt_pk_bf16_f32 v27, v27, v27")
    e("v_lshlrev_b32 v27, 16, v27")
    e("v_rcp_f32 v28, v27")
    e("s_nop 0")
    for i in range(20):
        a, b = 32+2*i, 33+2*i
        e(f"v_sub_f32 v{a}, v{a}, v26")
        e(f"v_sub_f32 v{b}, v{b}, v26")
        e(f"v_cvt_pk_bf16_f32 v29, v{a}, v{b}")
        e(f"v_lshlrev_b32 v{a}, 16, v29")
        e(f"v_and_b32 v{b}, 0xffff0000, v29")
        e(f"v_mul_f32 v30, v{a}, v28")
        e(f"v_mul_f32 v31, v{b}, v28")
        e(f"v_fma_f32 v{a}, -v30, v27, v{a}")
        e(f"v_fma_f32 v{b}, -v31, v27, v{b}")
        e(f"v_fmac_f32 v30, v{a}, v28")
        e(f"v_fmac_f32 v31, v{b}, v28")
        e(f"v_cvt_pk_bf16_f32 v{4+i}, v30, v31")
    for j in range(5):
        e(f"buffer_store_dwordx4 v[{4+4*j}:{7+4*j}], v1, s[20:23], 0 offen offset:{256*j}")
    e("s_endpgm")
    e.label("K1_KV")
    e(f"s_sub_u32 s3, s2, {N_LN}")
    e("s_mul_hi_u32 s14, s3, 0x33333334")
    e("s_mul_i32 s15, s14, 5")
    e("s_sub_u32 s15, s3, s15")
    e("s_waitcnt lgkmcnt(0)")
    srd(e, 16, 6, 7, SZ_SD)
    srd(e, 20, 8, 9, SZ_SD)
    srd(e, 24, 10, 11, D*4*2)
    srd_off(e, 28, 12, 13, WS_KVT, SZ_SD)
    e("v_and_b32 v1, 15, v0")
    e("v_lshrrev_b32 v2, 4, v0")
    e("s_lshl_b32 s32, s14, 6")
    e("v_lshlrev_b32 v3, 2, v2")
    e("v_add_u32 v3, s32, v3")
    e("v_mul_u32_u24 v4, 1280, v3")
    e("s_lshl_b32 s33, s15, 8")
    e("v_lshlrev_b32 v5, 4, v1")
    e("v_add_u32 v5, s33, v5")
    e("v_add_u32 v4, v4, v5")
    e("v_subrev_u32 v6, 3840, v4")
    for r in range(3):
        e(f"buffer_load_dwordx4 v[{16+4*r}:{19+4*r}], v6, s[16:19], 0 offen offset:{1280*r}")
    for r in range(3):
        e(f"buffer_load_dwordx4 v[{28+4*r}:{31+4*r}], v4, s[16:19], 0 offen offset:{1280*r}")
    e("buffer_load_dwordx4 v[40:43], v4, s[16:19], 0 offen offset:3840")
    for r in range(4):
        e(f"buffer_load_dwordx4 v[{44+4*r}:{47+4*r}], v4, s[20:23], 0 offen offset:{1280*r}")
    e("v_lshlrev_b32 v7, 2, v5")
    for j in range(4):
        e(f"buffer_load_dwordx4 v[{60+4*j}:{63+4*j}], v7, s[24:27], 0 offen offset:{16*j}")
    e("s_mov_b32 s34, 0x05040100")
    e("s_mov_b32 s35, 0x07060302")
    e("v_lshlrev_b32 v8, 3, v1")
    e("v_mul_u32_u24 v8, 144, v8")
    e("v_lshrrev_b32 v9, 1, v2")
    e("v_lshlrev_b32 v9, 4, v9")
    e("v_add_u32 v8, v8, v9")
    e("v_and_b32 v9, 1, v2")
    e("v_lshlrev_b32 v9, 3, v9")
    e("v_xor_b32 v9, 8, v9")
    e("v_add_u32 v8, v8, v9")
    e("s_waitcnt vmcnt(0)")
    for p in range(4):
        for h in range(2):
            c = 2*p+h
            e(f"v_lshlrev_b32 v{80+4*h}, 16, v{60+2*c}")
            e(f"v_and_b32 v{81+4*h}, 0xffff0000, v{60+2*c}")
            e(f"v_lshlrev_b32 v{82+4*h}, 16, v{61+2*c}")
            e(f"v_and_b32 v{83+4*h}, 0xffff0000, v{61+2*c}")
        for r in range(7):
            e(f"v_lshlrev_b32 v{88+2*r}, 16, v{16+4*r+p}")
            e(f"v_and_b32 v{89+2*r}, 0xffff0000, v{16+4*r+p}")
        for i in range(4):
            for t in range(4):
                r = i + t
                w = 3 - t
                e(f"v_mul_f32 v104, v{88+2*r}, v{80+w}")
                e(f"v_mul_f32 v105, v{89+2*r}, v{84+w}")
                e("v_cvt_pk_bf16_f32 v106, v104, v105")
                if t == 0:
                    e("v_lshlrev_b32 v102, 16, v106")
                    e("v_and_b32 v103, 0xffff0000, v106")
                else:
                    e("v_lshlrev_b32 v104, 16, v106")
                    e("v_and_b32 v105, 0xffff0000, v106")
                    e("v_add_f32 v102, v102, v104")
                    e("v_add_f32 v103, v103, v105")
                    e("v_cvt_pk_bf16_f32 v106, v102, v103")
                    e("v_lshlrev_b32 v102, 16, v106")
                    e("v_and_b32 v103, 0xffff0000, v106")
            e(f"v_lshlrev_b32 v104, 16, v{44+4*i+p}")
            e(f"v_and_b32 v105, 0xffff0000, v{44+4*i+p}")
            e("v_mul_f32 v102, v102, v104")
            e("v_mul_f32 v103, v103, v105")
            e(f"v_cvt_pk_bf16_f32 v{108+i}, v102, v103")
        e("v_perm_b32 v112, v110, v111, s34")
        e("v_perm_b32 v113, v108, v109, s34")
        e(f"ds_write_b64 v8, v[112:113] offset:{(2*p)*144}")
        e("v_perm_b32 v114, v110, v111, s35")
        e("v_perm_b32 v115, v108, v109, s35")
        e(f"ds_write_b64 v8, v[114:115] offset:{(2*p+1)*144}")
    e("s_waitcnt lgkmcnt(0)")
    e("s_barrier")
    e("v_lshrrev_b32 v1, 1, v0")
    e("v_and_b32 v2, 1, v0")
    e("v_mul_u32_u24 v3, 144, v1")
    e("v_lshlrev_b32 v4, 6, v2")
    e("v_add_u32 v3, v3, v4")
    for j in range(4):
        e(f"ds_read_b128 v[{16+4*j}:{19+4*j}], v3 offset:{16*j}")
    e("s_lshl_b32 s33, s15, 7")
    e("v_add_u32 v5, s33, v1")
    e("v_lshlrev_b32 v5, 12, v5")
    e("s_lshl_b32 s32, s14, 7")
    e("v_add_u32 v5, s32, v5")
    e("v_add_u32 v5, v5, v4")
    e("s_waitcnt lgkmcnt(0)")
    for j in range(4):
        e(f"buffer_store_dwordx4 v[{16+4*j}:{19+4*j}], v5, s[28:31], 0 offen offset:{16*j}")
    e.label("K1_END")
    e("s_endpgm")
    return e.text()


N_CONV = 320
N_G1 = 224
CH_STRIDE = 38032
COPY = 4160
KV_OFF = 33280
K2_LDS = 76800

def k2_conv(e):
    stamp(e, 0)
    srd(e, 16, 4, 5, SZ_SD)
    srd_off(e, 20, 12, 13, WS_KVT, SZ_SD)
    srd_off(e, 24, 12, 13, WS_Y2T, SZ_SD)
    e("s_lshl_b32 s28, s2, 2")
    e("s_load_dword s29, s[6:7], s28")
    e("v_and_b32 v1, 63, v0")
    e("v_lshlrev_b32 v2, 4, v1")
    e("s_lshl_b32 s30, s2, 13")
    for ch in range(2):
        e("s_lshl_b32 s32, s3, 1")
        e(f"s_add_u32 s32, s32, {ch*4096 - 14 + 65536}")
        e("s_add_u32 s32, s32, s30")
        e("s_sub_u32 s32, s32, 65536")
        e(f"v_add_u32 v{4+ch}, s32, v2")
        e(f"s_mul_i32 s33, s3, {COPY}")
        e(f"s_add_u32 s33, s33, {ch*CH_STRIDE + 64}")
        e("s_mov_b32 m0, s33")
        e("s_nop 0")
        for qd in range(4):
            e(f"buffer_load_dwordx4 v{4+ch}, s[16:19], 0 offen offset:{qd*1024} lds")
    e("v_lshlrev_b32 v8, 4, v0")
    e("v_add_u32 v8, s30, v8")
    e("buffer_load_dwordx4 v[12:15], v8, s[20:23], 0 offen")
    e("v_bfe_u32 v20, v1, 3, 1")
    e("v_lshlrev_b32 v21, 12, v20")
    e("v_and_b32 v22, 7, v1")
    e("v_lshlrev_b32 v23, 1, v22")
    e("v_add_u32 v21, v21, v23")
    e("v_add_u32 v21, s30, v21")
    e("buffer_load_ushort v24, v21, s[16:19], 0 offen")
    e("v_mov_b32 v28, 0")
    e("v_mov_b32 v29, 0")
    e("v_mov_b32 v30, 0")
    e("v_mov_b32 v31, 0")
    e("v_bfe_u32 v25, v1, 2, 1")
    e(f"v_mul_u32_u24 v25, {CH_STRIDE}, v25")
    e(f"s_mul_i32 s33, s3, {COPY}")
    e("v_add_u32 v25, s33, v25")
    e("v_and_b32 v26, 3, v1")
    e("v_lshlrev_b32 v26, 4, v26")
    e("v_add_u32 v25, v25, v26")
    e("s_and_b32 s34, s3, 1")
    e(f"s_mul_i32 s34, s34, {CH_STRIDE}")
    e(f"s_add_u32 s34, s34, {KV_OFF - 128}")
    e("v_add_u32 v26, s34, v2")
    e("v_cmp_gt_u32 vcc, 8, v1")
    e("s_nop 1")
    e("v_cndmask_b32 v25, v26, v25, vcc")
    e("v_cmp_gt_u32 vcc, 17, v1")
    e("s_and_saveexec_b64 s[36:37], vcc")
    e("ds_write_b128 v25, v[28:31]")
    e("s_mov_b64 exec, s[36:37]")
    e("v_bfe_u32 v25, v0, 3, 5")
    e("v_mul_u32_u24 v25, 144, v25")
    e("v_and_b32 v26, 7, v0")
    e("v_lshlrev_b32 v26, 4, v26")
    e("v_add_u32 v25, v25, v26")
    e("v_lshrrev_b32 v26, 8, v0")
    e(f"v_mul_u32_u24 v26, {CH_STRIDE}, v26")
    e("v_add_u32 v25, v25, v26")
    e(f"v_add_u32 v25, {KV_OFF + 144}, v25")
    e("s_waitcnt vmcnt(0)")
    e("ds_write_b128 v25, v[12:15]")
    e("v_cmp_ge_u32 vcc, s3, v22")
    e("s_nop 1")
    e("v_cndmask_b32 v24, 0, v24, vcc")
    e("v_subrev_u32 v27, s3, v22")
    e("v_add_u32 v27, 7, v27")
    e("v_and_b32 v27, 7, v27")
    e("v_lshlrev_b32 v27, 1, v27")
    e("v_add_u32 v27, s33, v27")
    e(f"v_mul_u32_u24 v26, {CH_STRIDE}, v20")
    e("v_add_u32 v27, v27, v26")
    e("v_add_u32 v27, 64, v27")
    e("v_cmp_gt_u32 vcc, 16, v1")
    e("s_and_saveexec_b64 s[36:37], vcc")
    e("ds_write_b16 v27, v24")
    e("s_mov_b64 exec, s[36:37]")
    e("s_waitcnt lgkmcnt(0)")
    stamp(e, 1)
    e("s_barrier")
    stamp(e, 2)
    e("s_lshr_b32 s38, s3, 2")
    e("s_and_b32 s39, s3, 3")
    e(f"s_mul_i32 s40, s38, {CH_STRIDE}")
    e("v_and_b32 v3, 31, v1")
    e("v_lshrrev_b32 v4, 5, v1")
    e("v_and_b32 v5, 7, v3")
    e("v_lshrrev_b32 v6, 3, v3")
    e(f"v_mul_u32_u24 v7, {COPY}, v5")
    e("v_sub_u32 v8, v6, v4")
    e("v_lshlrev_b32 v8, 4, v8")
    e("v_add_u32 v7, v7, v8")
    e("s_lshl_b32 s41, s39, 10")
    e("s_add_u32 s41, s41, s40")
    e("s_add_u32 s41, s41, 32")
    e("v_add_u32 v7, s41, v7")
    e("v_subrev_u32 v8, 64, v7")
    e("v_mul_u32_u24 v9, 144, v3")
    e("v_lshlrev_b32 v10, 4, v4")
    e(f"s_add_u32 s42, s40, {KV_OFF}")
    e("v_add_u32 v10, s42, v10")
    e("v_add_u32 v9, v9, v10")
    e("s_mul_i32 s43, s39, 1152")
    e("s_sub_u32 s43, 144, s43")
    e("v_add_u32 v9, s43, v9")
    ACC0, ACC1 = 16, 32
    EV = [48, 56]; OD = [64, 72, 80]; BB = [88, 104]
    for i in range(32):
        e(f"v_mov_b32 v{16+i}, 0")
    ND = 8
    def loads(dp):
        p = dp & 1
        ev = EV[p]; od = OD[dp % 3]; bb = BB[p]
        e(f"v_subrev_u32 v11, {144*dp}, v9")
        e("v_max_i32 v11, v11, v10")
        for kh in range(2):
            e(f"ds_read_b128 v[{ev+4*kh}:{ev+4*kh+3}], v7 offset:{64*(2*dp) + 32*(1-kh)}")
        for ks in range(4):
            e(f"ds_read_b128 v[{bb+4*ks}:{bb+4*ks+3}], v11 offset:{32*ks}")
        for kh in range(2):
            e(f"ds_read_b128 v[{od+4*kh}:{od+4*kh+3}], v7 offset:{64*(2*dp+1) + 32*(1-kh)}")
    odp = OD[2]
    e("s_cmp_eq_u32 s39, 0")
    e("s_cbranch_scc1 CV_ZERO")
    for kh in range(2):
        e(f"ds_read_b128 v[{odp+4*kh}:{odp+4*kh+3}], v8 offset:{32*(1-kh)}")
    e("s_branch CV_INIT")
    e.label("CV_ZERO")
    for i in range(8):
        e(f"v_mov_b32 v{odp+i}, 0")
    e.label("CV_INIT")
    loads(0)
    for dp in range(ND):
        p = dp & 1
        ev = EV[p]; od = OD[dp % 3]; op = OD[(dp-1) % 3]; bb = BB[p]
        e("s_waitcnt lgkmcnt(0)")
        if dp < ND-1:
            loads(dp+1)
        def mf(acc, a, b):
            e(f"v_mfma_f32_32x32x16_bf16 v[{acc}:{acc+15}], v[{a}:{a+3}], v[{b}:{b+3}], v[{acc}:{acc+15}]")
        mf(ACC0, ev, bb); mf(ACC1, od, bb)
        mf(ACC0, ev+4, bb+4); mf(ACC1, od+4, bb+4)
        mf(ACC0, op, bb+8); mf(ACC1, ev, bb+8)
        mf(ACC0, op+4, bb+12); mf(ACC1, ev+4, bb+12)
    e("s_nop 15")
    e("s_nop 3")
    stamp(e, 3)
    e("s_barrier")
    e("s_lshl_b32 s44, s39, 13")
    e("s_add_u32 s44, s44, s40")
    e("v_add_u32 v11, s44, v2")
    for i in range(8):
        e(f"ds_write_b128 v11, v[{16+4*i}:{19+4*i}] offset:{1024*i}")
    e("s_lshl_b32 s45, s39, 11")
    e("s_add_u32 s45, s45, s40")
    e("v_add_u32 v12, s45, v2")
    e("s_waitcnt lgkmcnt(0)")
    e("s_barrier")
    for sd in range(4):
        for h in range(2):
            r = 48 + 8*sd + 4*h
            e(f"ds_read_b128 v[{r}:{r+3}], v12 offset:{8192*sd + 1024*h}")
    e("v_mul_u32_u24 v13, 144, v3")
    e("v_lshlrev_b32 v14, 3, v4")
    e("v_xor_b32 v14, 8, v14")
    e("v_add_u32 v13, v13, v14")
    e("s_lshl_b32 s46, s39, 5")
    e("s_add_u32 s46, s46, s42")
    e("s_add_u32 s46, s46, 144")
    e("v_add_u32 v13, s46, v13")
    for h in range(2):
        e(f"ds_read_b64 v[{88+2*h}:{89+2*h}], v13 offset:{16*h}")
    e("s_lshl_b32 s47, s38, 4")
    e("s_lshr_b32 s47, s29, s47")
    e("s_lshl_b32 s47, s47, 16")
    e("s_lshl_b32 s48, s38, 12")
    e("s_add_u32 s48, s48, s30")
    e("s_lshl_b32 s49, s39, 5")
    e("s_add_u32 s48, s48, s49")
    e("v_lshlrev_b32 v15, 7, v3")
    e("v_lshlrev_b32 v14, 3, v4")
    e("v_add_u32 v15, v15, v14")
    e("v_add_u32 v15, s48, v15")
    e("s_waitcnt lgkmcnt(0)")
    for h in range(2):
        for j in range(4):
            r = 48 + 4*h + j
            e(f"v_add_f32 v{r}, v{r}, v{r+8}")
            e(f"v_add_f32 v{r+16}, v{r+16}, v{r+24}")
            e(f"v_add_f32 v{r}, v{r}, v{r+16}")
        k0, k1 = 88+2*h, 89+2*h
        e(f"v_and_b32 v16, 0xffff0000, v{k1}")
        e(f"v_lshlrev_b32 v17, 16, v{k1}")
        e(f"v_and_b32 v18, 0xffff0000, v{k0}")
        e(f"v_lshlrev_b32 v19, 16, v{k0}")
        for j in range(4):
            e(f"v_mul_f32 v{16+j}, s47, v{16+j}")
        e("v_cvt_pk_bf16_f32 v20, v16, v17")
        e("v_cvt_pk_bf16_f32 v21, v18, v19")
        e(f"v_cvt_pk_bf16_f32 v22, v{48+4*h}, v{49+4*h}")
        e(f"v_cvt_pk_bf16_f32 v23, v{50+4*h}, v{51+4*h}")
        for (sr, dst) in ((20, 16), (21, 18), (22, 24), (23, 26)):
            e(f"v_lshlrev_b32 v{dst}, 16, v{sr}")
            e(f"v_and_b32 v{dst+1}, 0xffff0000, v{sr}")
        for j in range(4):
            e(f"v_add_f32 v{16+j}, v{16+j}, v{24+j}")
        e(f"v_cvt_pk_bf16_f32 v{96+2*h}, v16, v17")
        e(f"v_cvt_pk_bf16_f32 v{97+2*h}, v18, v19")
        e(f"buffer_store_dwordx2 v[{96+2*h}:{97+2*h}], v15, s[24:27], 0 offen offset:{16*h}")
    stamp(e, 4)
    e("s_waitcnt vmcnt(0)")
    stamp(e, 5)
    stamp_dump(e, 6, int(STAMP or 0))
    trace_end(e, 1)
    e("s_endpgm")

def k2_gemm1(e):
    NS = 3; STG = 24576; NT = 40 if os.environ.get("TWICE") else 20
    stamp(e, 0)
    e("s_and_b32 s15, s14, 7")
    e("s_lshr_b32 s14, s14, 3")
    e("s_lshr_b32 s28, s15, 2")
    e("s_mul_i32 s28, s28, 14")
    e("s_lshr_b32 s29, s14, 1")
    e("s_add_u32 s28, s28, s29")
    e("s_and_b32 s15, s15, 3")
    e("s_lshl_b32 s15, s15, 1")
    e("s_and_b32 s14, s14, 1")
    e("s_add_u32 s15, s15, s14")
    e("s_cmp_ge_u32 s28, 27")
    e("s_cbranch_scc1 K2_END")
    e("s_setprio 3")
    srd_off(e, 16, 12, 13, WS_XN, SZ_SD)
    e("s_cmp_lt_u32 s3, 4")
    e("s_cselect_b32 s20, s8, s10")
    e("s_cselect_b32 s21, s9, s11")
    e(f"s_mov_b32 s22, {D*F*2}")
    e("s_mov_b32 s23, 0x00020000")
    srd_off(e, 32, 12, 13, WS_H, SZ_H)
    e("v_and_b32 v1, 63, v0")
    e("v_lshrrev_b32 v2, 4, v1")
    e("v_and_b32 v3, 15, v1")
    e("v_xor_b32 v4, v2, v3")
    e("v_lshrrev_b32 v5, 2, v4")
    e("v_lshl_add_u32 v5, v2, 2, v5")
    e("v_mul_u32_u24 v5, 1280, v5")
    e("v_and_b32 v4, 3, v4")
    e("v_lshl_add_u32 v8, v4, 4, v5")
    e("v_lshrrev_b32 v2, 3, v1")
    e("v_and_b32 v3, 7, v1")
    e("v_bfe_u32 v4, v2, 1, 1")
    e("v_lshlrev_b32 v4, 2, v4")
    e("v_xor_b32 v3, v3, v4")
    e("v_mul_u32_u24 v2, 3456, v2")
    e("v_lshl_add_u32 v10, v3, 4, v2")
    e("s_lshl_b32 s36, s15, 8")
    e("s_lshl_b32 s37, s3, 5")
    e("s_add_u32 s37, s37, s36")
    e("s_mul_i32 s37, s37, 1280")
    e("s_and_b32 s38, s3, 3")
    e("s_lshl_b32 s38, s38, 3")
    e("s_mul_i32 s38, s38, 3456")
    e("s_lshl_b32 s39, s28, 7")
    e("s_add_u32 s38, s38, s39")
    e("s_lshl_b32 s40, s3, 11")
    e("s_lshl_b32 s41, s3, 10")
    def dma(stage):
        sb = stage*STG
        for i in range(2):
            e(f"s_add_u32 s45, s40, {sb + i*1024}")
            e("s_mov_b32 m0, s45")
            e(f"s_add_u32 s46, s42, {i*16*1280}")
            e(f"buffer_load_dwordx4 v8, s[16:19], s46 offen lds")
        e(f"s_add_u32 s45, s41, {sb + 16384}")
        e("s_mov_b32 m0, s45")
        e("s_add_u32 s42, s42, 64")
        e(f"buffer_load_dwordx4 v10, s[20:23], s43 offen lds")
        e(f"s_add_u32 s43, s43, {32*3456}")
    def dma_list(stage):
        sb = stage*STG
        L = []
        for i in range(2):
            L.append(f"""s_add_u32 s45, s40, {sb + i*1024}
s_mov_b32 m0, s45
s_add_u32 s46, s42, {i*16*1280}
buffer_load_dwordx4 v8, s[16:19], s46 offen lds""")
        L.append(f"""s_add_u32 s45, s41, {sb + 16384}
s_mov_b32 m0, s45
s_add_u32 s42, s42, 64
buffer_load_dwordx4 v10, s[20:23], s43 offen lds
s_add_u32 s43, s43, {32*3456}""")
        return L
    e("s_mov_b32 s42, s37")
    e("s_mov_b32 s43, s38")
    for st in range(NS-1):
        dma(st)
    e("s_lshr_b32 s47, s3, 1")
    e("s_and_b32 s48, s3, 1")
    e("v_and_b32 v2, 31, v1")
    e("v_lshrrev_b32 v3, 5, v1")
    e("s_lshl_b32 s49, s47, 6")
    e("v_add_u32 v2, s49, v2")
    e("v_lshrrev_b32 v4, 2, v2")
    e("v_and_b32 v5, 3, v2")
    e("v_lshl_add_u32 v5, v5, 2, v3")
    e("v_and_b32 v6, 3, v4")
    e("v_xor_b32 v5, v5, v6")
    e("v_lshlrev_b32 v5, 4, v5")
    e("v_lshl_add_u32 v12, v4, 8, v5")
    e("v_xor_b32 v13, 32, v12")
    e("v_lshrrev_b32 v2, 4, v1")
    e("v_bfe_u32 v3, v1, 2, 2")
    e("v_and_b32 v4, 3, v1")
    e("v_lshrrev_b32 v5, 1, v2")
    e("v_lshl_add_u32 v5, v5, 3, v3")
    e("v_lshlrev_b32 v5, 7, v5")
    e("v_and_b32 v6, 1, v2")
    e("v_lshlrev_b32 v6, 1, v6")
    e("v_lshrrev_b32 v7, 1, v4")
    e("v_add_u32 v6, v6, v7")
    e("s_lshl_b32 s49, s48, 2")
    e("v_add_u32 v6, s49, v6")
    e("v_bfe_u32 v7, v3, 1, 1")
    e("v_lshlrev_b32 v7, 2, v7")
    e("v_xor_b32 v6, v6, v7")
    e("v_lshl_add_u32 v5, v6, 4, v5")
    e("v_and_b32 v7, 1, v4")
    e("v_lshl_add_u32 v5, v7, 3, v5")
    e("v_add_u32 v16, 16384, v5")
    G0, U0 = 64, 96
    for i in range(64):
        e(f"v_mov_b32 v{64+i}, 0")
    XF = [32, 40]; WF = [48, 56]
    def frag_loads(st, ks, buf):
        so = st*STG
        for mat in range(2):
            for hi in range(2):
                r = WF[buf] + 4*mat + 2*hi
                e(f"ds_read_b64_tr_b16 v[{r}:{r+1}], v16 offset:{so + mat*4096 + ks*2048 + hi*512}")
        for mi in range(2):
            e(f"ds_read_b128 v[{XF[buf]+4*mi}:{XF[buf]+4*mi+3}], v{12+ks} offset:{so + mi*2048}")
    for t in range(NT):
        st = t % NS
        rem = min(NS-2, NT-1-t)
        e(f"s_waitcnt vmcnt({3*rem})")
        SL = [0,5,20,25,39] if NT == 40 else [0,1,5,10,19]
        if t in SL: stamp(e, 1 + 2*SL.index(t))
        e("s_barrier")
        if t in SL[:4]: stamp(e, 2 + 2*SL.index(t))
        frag_loads(st, 0, 0)
        frag_loads(st, 1, 1)
        if t+NS-1 == 20 and NT == 40:
            e("s_mov_b32 s42, s37")
            e("s_mov_b32 s43, s38")
        dl = dma_list((t+NS-1) % NS) if t+NS-1 < NT else []
        for ks in range(2):
            buf = ks & 1
            e(f"s_waitcnt lgkmcnt({6 if ks == 0 else 0})")
            for mi in range(2):
                x = XF[buf]+4*mi
                e(f"v_mfma_f32_32x32x16_bf16 v[{G0+16*mi}:{G0+16*mi+15}], v[{WF[buf]}:{WF[buf]+3}], v[{x}:{x+3}], v[{G0+16*mi}:{G0+16*mi+15}]")
                if dl: e(dl.pop(0))
                e(f"v_mfma_f32_32x32x16_bf16 v[{U0+16*mi}:{U0+16*mi+15}], v[{WF[buf]+4}:{WF[buf]+7}], v[{x}:{x+3}], v[{U0+16*mi}:{U0+16*mi+15}]")
                if dl: e(dl.pop(0))
    e("s_nop 15")
    e("s_nop 3")
    e("s_barrier")
    e("v_and_b32 v2, 31, v1")
    e("v_lshrrev_b32 v3, 5, v1")
    e("s_lshl_b32 s49, s47, 6")
    e("v_add_u32 v2, s49, v2")
    e("v_mul_u32_u24 v2, 144, v2")
    e("s_lshl_b32 s49, s48, 6")
    e("v_lshl_add_u32 v2, v3, 3, v2")
    e("v_add_u32 v2, s49, v2")
    for mi in range(2):
        for i in range(4):
            g = G0+16*mi+4*i; u = U0+16*mi+4*i
            o = 40 + 2*((mi*4+i) % 4)
            for pr in range(2):
                e(f"v_cvt_pk_bf16_f32 v20, v{g+2*pr}, v{g+2*pr+1}")
                e(f"v_cvt_pk_bf16_f32 v21, v{u+2*pr}, v{u+2*pr+1}")
                e("v_lshlrev_b32 v22, 16, v20")
                e("v_and_b32 v23, 0xffff0000, v20")
                e("v_lshlrev_b32 v24, 16, v21")
                e("v_and_b32 v25, 0xffff0000, v21")
                e("v_mul_f32 v22, v22, v24")
                e("v_mul_f32 v23, v23, v25")
                e(f"v_cvt_pk_bf16_f32 v{o+pr}, v22, v23")
            e(f"ds_write_b64 v2, v[{o}:{o+1}] offset:{mi*32*144 + 16*i}")
    e("s_waitcnt lgkmcnt(0)")
    e("s_barrier")
    e("v_lshrrev_b32 v2, 3, v0")
    e("v_and_b32 v3, 7, v0")
    e("v_mul_u32_u24 v4, 144, v2")
    e("v_lshl_add_u32 v4, v3, 4, v4")
    for j in range(4):
        e(f"ds_read_b128 v[{64+4*j}:{67+4*j}], v4 offset:{j*64*144}")
    e("v_add_u32 v2, s36, v2")
    e("s_movk_i32 s50, 3456")
    e("v_mul_lo_u32 v2, v2, s50")
    e("v_lshl_add_u32 v2, v3, 4, v2")
    e("v_add_u32 v2, s39, v2")
    for j in range(4):
        e(f"s_mov_b32 s50, {j*64*3456}")
        e(f"s_waitcnt lgkmcnt({3-j})")
        e(f"buffer_store_dwordx4 v[{64+4*j}:{67+4*j}], v2, s[32:35], s50 offen")
    stamp(e, 10)
    e("s_waitcnt vmcnt(0)")
    stamp(e, 11)
    stamp_dump(e, 12, int(STAMP or 0))
    trace_end(e, 1)
    e("s_endpgm")

def k2():
    e = E()
    e(f"s_cmp_ge_u32 s2, {N_CONV+N_G1}")
    e("s_cbranch_scc1 K2_END")
    trace_start(e)
    e("s_load_dwordx4 s[4:7], s[0:1], 32")
    e("s_load_dwordx4 s[8:11], s[0:1], 56")
    e("s_load_dwordx2 s[12:13], s[0:1], 96")
    e("v_lshrrev_b32 v1, 6, v0")
    e("s_nop 0")
    e("v_readfirstlane_b32 s3, v1")
    e("s_waitcnt lgkmcnt(0)")
    e("s_mov_b32 s14, s2")
    e(f"s_cmp_lt_u32 s2, {N_G1}")
    e("s_cbranch_scc1 K2_G1")
    e(f"s_sub_u32 s2, s2, {N_G1}")
    import os
    if os.environ.get("SKIP") == "conv": e("s_endpgm")
    k2_conv(e)
    e.label("K2_G1")
    if os.environ.get("SKIP") == "g1": e("s_endpgm")
    k2_gemm1(e)
    e.label("K2_END")
    e("s_endpgm")
    return e.text()


N_G2 = 160
K3_NS = 5
K3_Y2 = 24576*K3_NS
K3_LDS = K3_Y2 + 16384
def k3():
    e = E()
    NS = K3_NS; NT = 27; STG = 24576
    e(f"s_cmp_ge_u32 s2, {N_G2}")
    e("s_cbranch_scc1 K3_END")
    trace_start(e)
    e("s_load_dwordx2 s[4:5], s[0:1], 0")
    e("s_load_dwordx4 s[8:11], s[0:1], 72")
    e("s_load_dwordx2 s[12:13], s[0:1], 96")
    e("v_lshrrev_b32 v1, 6, v0")
    e("s_nop 0")
    e("v_readfirstlane_b32 s3, v1")
    e("s_and_b32 s15, s2, 7")
    e("s_lshl_b32 s15, s15, 1")
    e("s_lshr_b32 s28, s2, 3")
    e("s_and_b32 s29, s28, 1")
    e("s_add_u32 s15, s15, s29")
    e("s_lshr_b32 s28, s28, 1")
    e("s_lshl_b32 s36, s15, 7")
    e("s_lshl_b32 s39, s28, 7")
    e("v_and_b32 v1, 63, v0")
    e("s_waitcnt lgkmcnt(0)")
    e("s_cmp_lt_u32 s3, 4")
    e("s_cbranch_scc1 K3_COMP")
    e("s_sub_u32 s3, s3, 4")
    srd_off(e, 16, 12, 13, WS_H, SZ_H)
    srd(e, 20, 8, 9, D*F*2)
    srd_off(e, 24, 12, 13, WS_Y2T, SZ_SD)
    e("v_lshrrev_b32 v2, 4, v1")
    e("v_and_b32 v3, 15, v1")
    for par in range(2):
        e(f"v_xor_b32 v4, {4*par}, v2")
        e("v_xor_b32 v4, v4, v3")
        e("v_lshrrev_b32 v5, 3, v4")
        e("v_lshl_add_u32 v5, v2, 1, v5")
        e("v_mul_u32_u24 v5, 3456, v5")
        e("v_and_b32 v4, 7, v4")
        e(f"v_lshl_add_u32 v{8+par}, v4, 4, v5")
    e("v_lshrrev_b32 v2, 3, v1")
    e("v_and_b32 v3, 7, v1")
    e("v_bfe_u32 v4, v2, 1, 1")
    e("v_lshlrev_b32 v4, 2, v4")
    e("v_xor_b32 v3, v3, v4")
    e("v_mul_u32_u24 v2, 1280, v2")
    e("v_lshl_add_u32 v10, v3, 4, v2")
    e("s_lshl_b32 s37, s3, 5")
    e("s_add_u32 s37, s37, s36")
    e("s_mul_i32 s42, s37, 3456")
    e("s_lshl_b32 s38, s3, 4")
    e("s_mul_i32 s38, s38, 1280")
    e("s_add_u32 s43, s38, s39")
    e("s_lshl_b32 s40, s3, 12")
    e("s_lshl_b32 s41, s3, 11")
    def dma(stage):
        sb = stage*STG
        for i in range(4):
            e(f"s_add_u32 s45, s40, {sb + i*1024}")
            e("s_mov_b32 m0, s45")
            e(f"s_add_u32 s46, s42, {i*8*3456}")
            e(f"buffer_load_dwordx4 v{8+(i&1)}, s[16:19], s46 offen lds")
        for jj in range(2):
            e(f"s_add_u32 s45, s41, {sb + 16384 + jj*1024}")
            e("s_mov_b32 m0, s45")
            e(f"s_add_u32 s46, s43, {jj*8*1280}")
            e(f"buffer_load_dwordx4 v10, s[20:23], s46 offen lds")
        e("s_add_u32 s42, s42, 128")
        e(f"s_add_u32 s43, s43, {64*1280}")
    for st in range(NS-1):
        dma(st)
    e("v_lshrrev_b32 v2, 4, v1")
    e("v_lshlrev_b32 v2, 12, v2")
    e("v_and_b32 v3, 15, v1")
    e("v_lshl_add_u32 v11, v3, 4, v2")
    e("s_lshl_b32 s47, s28, 6")
    e("s_lshl_b32 s46, s3, 4")
    e("s_add_u32 s47, s47, s46")
    e("s_lshl_b32 s47, s47, 12")
    e("s_lshl_b32 s46, s36, 1")
    e("s_add_u32 s47, s47, s46")
    for i in range(4):
        e(f"s_add_u32 s46, s40, {K3_Y2 + i*1024}")
        e("s_mov_b32 m0, s46")
        e(f"s_add_u32 s48, s47, {i*4*4096}")
        e("buffer_load_dwordx4 v11, s[24:27], s48 offen lds")
    for t in range(NT):
        after = 6*(min(t+NS-2, NT-1) - t) + (4 if t <= NS-2 else 0)
        e(f"s_waitcnt vmcnt({after})")
        e("s_barrier")
        if t+NS-1 < NT:
            dma((t+NS-1) % NS)
    e("s_barrier")
    e("s_barrier")
    e("s_endpgm")
    e.label("K3_COMP")
    srd(e, 32, 10, 11, SZ_SD)
    srd(e, 52, 4, 5, SZ_SD)
    srd_off(e, 56, 12, 13, WS_XN, SZ_SD)
    e("s_lshr_b32 s47, s3, 1")
    e("s_and_b32 s48, s3, 1")
    e("v_and_b32 v2, 31, v1")
    e("v_lshrrev_b32 v3, 5, v1")
    e("s_lshl_b32 s49, s47, 6")
    e("v_add_u32 v2, s49, v2")
    e("v_lshrrev_b32 v4, 1, v2")
    e("v_and_b32 v5, 1, v2")
    e("v_lshl_add_u32 v5, v5, 3, v3")
    e("v_and_b32 v6, 7, v4")
    e("v_xor_b32 v5, v5, v6")
    e("v_lshlrev_b32 v5, 4, v5")
    e("v_lshl_add_u32 v12, v4, 8, v5")
    e("s_lshl_b32 s49, s48, 5")
    e("v_xor_b32 v12, s49, v12")
    e("v_xor_b32 v13, 64, v12")
    e("v_lshrrev_b32 v2, 4, v1")
    e("v_bfe_u32 v3, v1, 2, 2")
    e("v_and_b32 v4, 3, v1")
    e("v_lshrrev_b32 v5, 1, v2")
    e("v_lshl_add_u32 v5, v5, 3, v3")
    e("v_lshlrev_b32 v5, 7, v5")
    e("v_and_b32 v6, 1, v2")
    e("v_lshlrev_b32 v6, 1, v6")
    e("v_lshrrev_b32 v7, 1, v4")
    e("v_add_u32 v6, v6, v7")
    e("v_bfe_u32 v7, v3, 1, 1")
    e("v_lshlrev_b32 v7, 2, v7")
    e("v_xor_b32 v6, v6, v7")
    e("v_lshl_add_u32 v5, v6, 4, v5")
    e("v_and_b32 v7, 1, v4")
    e("v_lshl_add_u32 v5, v7, 3, v5")
    e("s_lshl_b32 s49, s48, 11")
    e("s_add_u32 s49, s49, 16384")
    e("v_add_u32 v16, s49, v5")
    e("v_xor_b32 v17, 64, v16")
    for (a, b) in ((18, 12), (19, 13), (26, 16), (27, 17)):
        e(f"v_add_u32 v{a}, {2*STG}, v{b}")
    for (a, b) in ((28, 12), (29, 13), (30, 16), (31, 17)):
        e(f"v_add_u32 v{a}, {4*STG}, v{b}")
    ACC = 64
    for i in range(64):
        e(f"v_mov_b32 v{64+i}, 0")
    XF = [32, 40]; WF = [48, 56]
    def frag_loads(st, j, buf):
        so = (st&1)*STG
        xa = [12, 18, 28][st>>1] + j
        wa = [16, 26, 30][st>>1]
        for mi in range(2):
            e(f"ds_read_b128 v[{XF[buf]+4*mi}:{XF[buf]+4*mi+3}], v{xa} offset:{so + mi*4096}")
        for ni in range(2):
            for hi in range(2):
                r = WF[buf] + 4*ni + 2*hi
                e(f"ds_read_b64_tr_b16 v[{r}:{r+1}], v{wa+ni} offset:{so + j*4096 + hi*512}")
    e("v_and_b32 v2, 31, v1")
    e("v_lshrrev_b32 v3, 5, v1")
    e("s_lshl_b32 s49, s47, 6")
    e("s_add_u32 s49, s49, s36")
    e("v_add_u32 v2, s49, v2")
    e("v_mul_u32_u24 v2, 1280, v2")
    e("s_lshl_b32 s49, s48, 6")
    e("s_add_u32 s49, s49, s39")
    e("v_lshl_add_u32 v2, v3, 3, v2")
    e("v_add_u32 v2, s49, v2")
    e(f"v_add_u32 v3, {32*1280}, v2")
    XR, XNR = 128, 144
    for mi in range(2):
        for i in range(4):
            r = 2*(mi*4+i)
            e(f"buffer_load_dwordx2 v[{XR+r}:{XR+r+1}], v{2+mi}, s[52:55], 0 offen offset:{16*i}")
            e(f"buffer_load_dwordx2 v[{XNR+r}:{XNR+r+1}], v{2+mi}, s[56:59], 0 offen offset:{16*i}")
    for t in range(NT):
        st = t % NS
        e("s_barrier")
        frag_loads(st, 0, 0)
        frag_loads(st, 1, 1)
        for j in range(2):
            buf = j
            e(f"s_waitcnt lgkmcnt({6 if j == 0 else 0})")
            for ni in range(2):
                for mi in range(2):
                    a = ACC+32*ni+16*mi
                    x = XF[buf]+4*mi; w = WF[buf]+4*ni
                    e(f"v_mfma_f32_32x32x16_bf16 v[{a}:{a+15}], v[{w}:{w+3}], v[{x}:{x+3}], v[{a}:{a+15}]")
    e("s_nop 15")
    e("s_barrier")
    e("v_lshlrev_b32 v4, 4, v1")
    e("s_lshl_b32 s49, s3, 13")
    e("v_add_u32 v5, s49, v4")
    e("s_xor_b32 s49, s3, 1")
    e("s_lshl_b32 s49, s49, 13")
    e("v_add_u32 v6, s49, v4")
    e("s_cmp_eq_u32 s48, 0")
    e("s_cbranch_scc1 K3_X0")
    for i in range(8):
        e(f"ds_write_b128 v5, v[{ACC+4*i}:{ACC+4*i+3}] offset:{1024*i}")
    for i in range(32):
        e(f"v_mov_b32 v{ACC+i}, v{ACC+32+i}")
    e("s_branch K3_X1")
    e.label("K3_X0")
    for i in range(8):
        e(f"ds_write_b128 v5, v[{ACC+32+4*i}:{ACC+32+4*i+3}] offset:{1024*i}")
    e.label("K3_X1")
    e("s_waitcnt lgkmcnt(0)")
    e("s_barrier")
    for i in range(8):
        e(f"ds_read_b128 v[{ACC+32+4*i}:{ACC+32+4*i+3}], v6 offset:{1024*i}")
    e("v_lshrrev_b32 v7, 4, v1")
    e("v_bfe_u32 v8, v1, 2, 2")
    e("v_and_b32 v9, 3, v1")
    e("v_lshrrev_b32 v10, 1, v7")
    e("v_lshl_add_u32 v10, v10, 2, v8")
    e("v_lshlrev_b32 v10, 8, v10")
    e("v_and_b32 v7, 1, v7")
    e("v_lshlrev_b32 v7, 5, v7")
    e("v_lshl_add_u32 v7, v9, 3, v7")
    e("v_add_u32 v10, v10, v7")
    e("s_lshl_b32 s49, s48, 13")
    e("s_lshl_b32 s50, s47, 7")
    e("s_add_u32 s49, s49, s50")
    e(f"s_add_u32 s49, s49, {K3_Y2}")
    e("v_add_u32 v10, s49, v10")
    YR = 160
    for mi in range(2):
        for i in range(4):
            r = YR + 2*(mi*4+i)
            e(f"ds_read_b64_tr_b16 v[{r}:{r+1}], v10 offset:{i*2048 + mi*64}")
    e("s_waitcnt vmcnt(0) lgkmcnt(0)")
    for mi in range(2):
        for i in range(4):
            a = ACC + 16*mi + 4*i
            r = 2*(mi*4+i)
            for j in range(4):
                e(f"v_add_f32 v{a+j}, v{a+j}, v{a+32+j}")
            for pr in range(2):
                e(f"v_cvt_pk_bf16_f32 v20, v{a+2*pr}, v{a+2*pr+1}")
                e(f"v_lshlrev_b32 v22, 16, v{XNR+r+pr}")
                e(f"v_and_b32 v23, 0xffff0000, v{XNR+r+pr}")
                e(f"v_lshlrev_b32 v24, 16, v{YR+r+pr}")
                e(f"v_and_b32 v25, 0xffff0000, v{YR+r+pr}")
                e("v_mul_f32 v22, v22, v24")
                e("v_mul_f32 v23, v23, v25")
                e("v_cvt_pk_bf16_f32 v21, v22, v23")
                e("v_lshlrev_b32 v22, 16, v21")
                e("v_and_b32 v23, 0xffff0000, v21")
                e(f"v_lshlrev_b32 v24, 16, v{XR+r+pr}")
                e(f"v_and_b32 v25, 0xffff0000, v{XR+r+pr}")
                e("v_add_f32 v22, v22, v24")
                e("v_add_f32 v23, v23, v25")
                e("v_cvt_pk_bf16_f32 v21, v22, v23")
                e("v_lshlrev_b32 v22, 16, v21")
                e("v_and_b32 v23, 0xffff0000, v21")
                e("v_lshlrev_b32 v24, 16, v20")
                e("v_and_b32 v25, 0xffff0000, v20")
                e("v_add_f32 v22, v22, v24")
                e("v_add_f32 v23, v23, v25")
                e(f"v_cvt_pk_bf16_f32 v{XR+r+pr}, v22, v23")
            e(f"buffer_store_dwordx2 v[{XR+r}:{XR+r+1}], v{2+mi}, s[32:35], 0 offen offset:{16*i}")
    trace_end(e, 2)
    e.label("K3_END")
    e("s_endpgm")
    return e.text()

def build(kernels):
    out = []
    out.append(open("cdna_kernels/%s.s.ref" % NAME).read().split("; Override launch")[0])
    for (name, grid, block, lds, body, vgpr) in kernels:
        out.append(f"; @launch kernel={name} grid=({grid},1,1) block=({block},1,1) lds={lds}\n")
    out.append('.amdgcn_target "amdgcn-amd-amdhsa--gfx950"\n.text\n')
    for (name, grid, block, lds, body, vgpr) in kernels:
        out.append(khead(name))
        out.append(body)
    out.append('.section .rodata,"a"\n')
    for (name, grid, block, lds, body, vgpr) in kernels:
        out.append(".p2align 6\n")
        out.append(kdesc(name, vgpr))
    return "".join(out)

if __name__ == "__main__":
    ks = [("prep_kernel", N_LN+N_KV, 256, 128*144, k1(), 120),
          ("mid_kernel", N_CONV+N_G1, 512, K2_LDS, k2(), 128),
          ("fin_kernel", N_G2, 512, K3_LDS, k3(), 176)]
    open(sys.argv[1] if len(sys.argv) > 1 else "cdna_kernels/%s.s" % NAME, "w").write(build(ks))
```

```python
import sys
NAME = "parallel_sum__ssm_conv_h3__glu_gated_bilinear__prompt"
S, D, F = 2048, 640, 1728
WS_XN  = 0
WS_KVT = 0x280000
WS_H   = 0x500000
WS_Y2T = 0xC00000
WS_XNP = 0xF00000
WS_WP1 = 0x1200000
WS_WP2 = 0x1700000
SZ_SD = S*D*2
SZ_H = S*F*2

class E:
    def __init__(self):
        self.l = []
    def __call__(self, s):
        for line in s.strip("\n").split("\n"):
            self.l.append("    " + line.strip() if not line.strip().endswith(":") else line.strip())
    def label(self, n):
        self.l.append(n + ":")
    def text(self):
        return "\n".join(self.l) + "\n"

def srd(e, d, blo, bhi, nbytes):
    e(f"s_mov_b32 s{d}, s{blo}")
    e(f"s_mov_b32 s{d+1}, s{bhi}")
    e(f"s_mov_b32 s{d+2}, {nbytes}")
    e(f"s_mov_b32 s{d+3}, 0x00020000")

def srd_off(e, d, blo, bhi, off, nbytes):
    e(f"s_add_u32 s{d}, s{blo}, {off}")
    e(f"s_addc_u32 s{d+1}, s{bhi}, 0")
    e(f"s_mov_b32 s{d+2}, {nbytes}")
    e(f"s_mov_b32 s{d+3}, 0x00020000")

def kdesc(name, vgpr, sgpr=102):
    acc = (vgpr + 3)//4*4
    return f""".amdhsa_kernel {name}
  .amdhsa_next_free_vgpr {vgpr}
  .amdhsa_next_free_sgpr {sgpr}
  .amdhsa_accum_offset {acc}
  .amdhsa_group_segment_fixed_size 0
  .amdhsa_kernarg_size 104
  .amdhsa_user_sgpr_count 2
  .amdhsa_user_sgpr_kernarg_segment_ptr 1
  .amdhsa_system_sgpr_workgroup_id_x 1
.end_amdhsa_kernel
"""

import os
STAMP = os.environ.get("STAMP")
X3 = os.environ.get("X3", "").split(",")
X2 = os.environ.get("X2", "").split(",")
def stamp(e, idx):
    if not STAMP: return
    e(f"s_memtime s[88:89]")
    e("s_waitcnt lgkmcnt(0)")
    e(f"s_mov_b32 s{90+idx}, s88")
def stamp_dump(e, n, wg):
    if not STAMP: return
    e("s_load_dwordx2 s[84:85], s[0:1], 88")
    e("s_waitcnt lgkmcnt(0)")
    e("s_mov_b32 s86, 256")
    e("s_mov_b32 s87, 0x00020000")
    e(f"s_cmp_lg_u32 s2, {wg}")
    e("s_cbranch_scc1 9f")
    e("s_cmp_lg_u32 s3, 0")
    e("s_cbranch_scc1 9f")
    e("v_mov_b32 v120, 0")
    for i in range(1, n):
        e(f"s_sub_u32 s83, s{90+i}, s90")
        e("v_mov_b32 v121, s83")
        e(f"buffer_store_dword v121, v120, s[84:87], 0 offen offset:{4*i}")
    e("9:")

TRACE = os.environ.get("TRACE")
def trace_start(e):
    if not TRACE: return
    e("s_memrealtime s[96:97]")
    e("s_memtime s[98:99]")
    e("s_mov_b32 s82, s2")
def trace_end(e, kidx):
    if not TRACE: return
    e("s_waitcnt vmcnt(0) lgkmcnt(0)")
    e("s_memrealtime s[92:93]")
    e("s_memtime s[94:95]")
    e("s_load_dwordx2 s[84:85], s[0:1], 96")
    e("s_getreg_b32 s90, hwreg(HW_REG_HW_ID)")
    e("s_getreg_b32 s91, hwreg(HW_REG_XCC_ID)")
    e("s_waitcnt lgkmcnt(0)")
    e(f"s_add_u32 s84, s84, {(64<<20) + kidx*65536}")
    e("s_addc_u32 s85, s85, 0")
    e("s_mov_b32 s86, 65536")
    e("s_mov_b32 s87, 0x00020000")
    e("s_lshl_b32 s91, s91, 24")
    e("s_and_b32 s90, s90, 0xffffff")
    e("s_or_b32 s90, s90, s91")
    e("s_sub_u32 s94, s94, s98")
    e("v_mov_b32 v124, s96")
    e("v_mov_b32 v125, s92")
    e("v_mov_b32 v126, s90")
    e("v_mov_b32 v127, s94")
    e("s_lshl_b32 s83, s82, 4")
    e("v_mov_b32 v121, s83")
    e("v_cmp_eq_u32 vcc, 0, v0")
    e("s_and_saveexec_b64 s[80:81], vcc")
    e("s_cbranch_execz 8f")
    e("buffer_store_dwordx4 v[124:127], v121, s[84:87], 0 offen")
    e("s_waitcnt vmcnt(0)")
    e("8:")

PROF = os.environ.get("PROF")
def pt(e, acc):
    if not PROF: return
    e("s_memtime s[88:89]")
    e("s_waitcnt lgkmcnt(0)")
    e("s_sub_u32 s90, s88, s87")
    e(f"s_add_u32 s{acc}, s{acc}, s90")
    e("s_mov_b32 s87, s88")
def pinit(e):
    if not PROF: return
    for i in range(80, 87): e(f"s_mov_b32 s{i}, 0")
    e("s_memtime s[88:89]")
    e("s_waitcnt lgkmcnt(0)")
    e("s_mov_b32 s87, s88")
def pdump(e, wave_off):
    if not PROF: return
    e("s_load_dwordx2 s[92:93], s[0:1], 88")
    e("s_waitcnt lgkmcnt(0)")
    e("s_mov_b32 s94, 256")
    e("s_mov_b32 s95, 0x00020000")
    e(f"s_cmp_lg_u32 s2, {PROF}")
    e("s_cbranch_scc1 7f")
    e("s_cmp_lg_u32 s3, 0")
    e("s_cbranch_scc1 7f")
    e("v_mov_b32 v120, 0")
    for i in range(7):
        e(f"v_mov_b32 v121, s{80+i}")
        e(f"buffer_store_dword v121, v120, s[92:95], 0 offen offset:{wave_off + 4*i}")
    e("s_waitcnt vmcnt(0)")
    e("7:")

PROF2 = os.environ.get("PROF2")
def q(e, idx):
    if not PROF2: return
    e("s_memtime s[88:89]")
    e("s_waitcnt lgkmcnt(0)")
    e(f"s_mov_b32 s{90+idx}, s88")
def qdump(e, n):
    if not PROF2: return
    e("s_load_dwordx2 s[84:85], s[0:1], 88")
    e("s_waitcnt lgkmcnt(0)")
    e("s_mov_b32 s86, 256")
    e("s_mov_b32 s87, 0x00020000")
    e(f"s_cmp_lg_u32 s2, {PROF2}")
    e("s_cbranch_scc1 6f")
    e("s_cmp_lg_u32 s3, 0")
    e("s_cbranch_scc1 6f")
    e("v_mov_b32 v120, 0")
    for i in range(1, n):
        e(f"s_sub_u32 s83, s{90+i}, s90")
        e("v_mov_b32 v121, s83")
        e(f"buffer_store_dword v121, v120, s[84:87], 0 offen offset:{4*i}")
    e("6:")

def khead(name):
    return f""".globl {name}
.p2align 8
.type {name},@function
{name}:
"""

N_LN = 128
N_KV = 160
N_R1 = 135
N_R2 = 68
N_K1 = N_LN+N_KV+N_R1+N_R2
def k1():
    e = E()
    e(f"s_cmp_ge_u32 s2, {N_K1}")
    e("s_cbranch_scc1 K1_END")
    e(f"s_cmp_ge_u32 s2, {N_LN+N_KV}")
    e("s_cbranch_scc1 K1_RP")
    e("s_load_dwordx4 s[4:7], s[0:1], 0")
    e("s_load_dwordx4 s[8:11], s[0:1], 16")
    e("s_load_dwordx2 s[12:13], s[0:1], 96")
    e(f"s_cmp_ge_u32 s2, {N_LN}")
    e("s_cbranch_scc1 K1_KV")
    e("s_waitcnt lgkmcnt(0)")
    srd(e, 16, 4, 5, SZ_SD)
    srd_off(e, 20, 12, 13, WS_XN, SZ_SD)
    e("s_lshl_b32 s3, s2, 4")
    e("v_lshrrev_b32 v1, 4, v0")
    e("v_add_u32 v1, s3, v1")
    e("v_mul_u32_u24 v1, 1280, v1")
    e("v_and_b32 v2, 15, v0")
    e("v_lshlrev_b32 v2, 4, v2")
    e("v_add_u32 v1, v1, v2")
    for j in range(5):
        e(f"buffer_load_dwordx4 v[{4+4*j}:{7+4*j}], v1, s[16:19], 0 offen offset:{256*j}")
    e("s_waitcnt vmcnt(0)")
    for i in range(20):
        e(f"v_lshlrev_b32 v{32+2*i}, 16, v{4+i}")
        e(f"v_and_b32 v{33+2*i}, 0xffff0000, v{4+i}")
    e("v_add_f32 v24, v32, v33")
    e("v_add_f32 v25, v34, v35")
    for i in range(4, 40, 2):
        e(f"v_add_f32 v24, v24, v{32+i}")
        e(f"v_add_f32 v25, v25, v{33+i}")
    e("v_add_f32 v24, v24, v25")
    def red16(r):
        for sh in (8, 4, 2, 1):
            e("s_nop 1")
            e(f"v_add_f32_dpp v{r}, v{r}, v{r} row_ror:{sh} row_mask:0xf bank_mask:0xf")
    red16(24)
    e("s_mov_b32 s24, 0x3acccccd")
    e("v_mul_f32 v24, s24, v24")
    e("v_sub_f32 v26, v32, v24")
    e("v_mul_f32 v25, v26, v26")
    for i in range(1, 40):
        e(f"v_sub_f32 v26, v{32+i}, v24")
        e("v_fmac_f32 v25, v26, v26")
    red16(25)
    e("v_mul_f32 v25, s24, v25")
    e("v_cvt_pk_bf16_f32 v26, v24, v25")
    e("v_and_b32 v27, 0xffff0000, v26")
    e("v_lshlrev_b32 v26, 16, v26")
    e("v_add_f32 v27, 0x3727c5ac, v27")
    e("v_cvt_pk_bf16_f32 v27, v27, v27")
    e("v_lshlrev_b32 v27, 16, v27")
    e("v_sqrt_f32 v27, v27")
    e("s_nop 0")
    e("v_cvt_pk_bf16_f32 v27, v27, v27")
    e("v_lshlrev_b32 v27, 16, v27")
    e("v_rcp_f32 v28, v27")
    e("s_nop 0")
    for i in range(20):
        a, b = 32+2*i, 33+2*i
        e(f"v_sub_f32 v{a}, v{a}, v26")
        e(f"v_sub_f32 v{b}, v{b}, v26")
        e(f"v_cvt_pk_bf16_f32 v29, v{a}, v{b}")
        e(f"v_lshlrev_b32 v{a}, 16, v29")
        e(f"v_and_b32 v{b}, 0xffff0000, v29")
        e(f"v_mul_f32 v30, v{a}, v28")
        e(f"v_mul_f32 v31, v{b}, v28")
        e(f"v_fma_f32 v{a}, -v30, v27, v{a}")
        e(f"v_fma_f32 v{b}, -v31, v27, v{b}")
        e(f"v_fmac_f32 v30, v{a}, v28")
        e(f"v_fmac_f32 v31, v{b}, v28")
        e(f"v_cvt_pk_bf16_f32 v{4+i}, v30, v31")
    for j in range(5):
        e(f"buffer_store_dwordx4 v[{4+4*j}:{7+4*j}], v1, s[20:23], 0 offen offset:{256*j}")
    srd_off(e, 28, 12, 13, WS_XNP, SZ_SD)
    e("v_lshrrev_b32 v1, 4, v0")
    e("v_and_b32 v2, 15, v0")
    e("v_lshrrev_b32 v3, 2, v1")
    e("v_and_b32 v24, 3, v1")
    e("v_and_b32 v25, 3, v2")
    e("v_lshl_add_u32 v24, v24, 2, v25")
    e("v_xor_b32 v24, v24, v3")
    e("v_lshlrev_b32 v24, 4, v24")
    e("v_lshl_add_u32 v24, v3, 8, v24")
    e("v_lshrrev_b32 v2, 2, v2")
    e("v_lshl_add_u32 v24, v2, 14, v24")
    e("s_lshr_b32 s25, s2, 4")
    e("s_mul_i32 s25, s25, 327680")
    e("s_and_b32 s26, s2, 15")
    e("s_lshl_b32 s26, s26, 10")
    e("s_add_u32 s25, s25, s26")
    for j in range(5):
        e(f"buffer_store_dwordx4 v[{4+4*j}:{7+4*j}], v24, s[28:31], s25 offen")
        e("s_add_u32 s25, s25, 65536")
    e("s_endpgm")
    e.label("K1_RP")
    e("s_load_dwordx4 s[4:7], s[0:1], 56")
    e("s_load_dwordx2 s[8:9], s[0:1], 72")
    e("s_load_dwordx2 s[12:13], s[0:1], 96")
    e(f"s_sub_u32 s3, s2, {N_LN+N_KV}")
    e(f"s_cmp_ge_u32 s3, {N_R1}")
    e("s_cbranch_scc1 K1_RP2")
    e("s_waitcnt lgkmcnt(0)")
    srd(e, 16, 4, 5, D*F*2)
    srd(e, 20, 6, 7, D*F*2)
    srd_off(e, 24, 12, 13, WS_WP1, 2*D*F*2)
    e("v_lshrrev_b32 v1, 3, v0")
    e("v_and_b32 v2, 7, v0")
    e("v_bfe_u32 v3, v1, 1, 1")
    e("v_lshlrev_b32 v3, 2, v3")
    e("v_xor_b32 v2, v2, v3")
    e("v_mul_u32_u24 v1, 3456, v1")
    e("v_lshl_add_u32 v1, v2, 4, v1")
    e("v_lshlrev_b32 v2, 4, v0")
    e("s_lshl_b32 s28, s3, 15")
    for bq in range(4):
        e(f"s_lshl_b32 s29, s3, 2")
        e(f"s_add_u32 s29, s29, {bq}")
        e("s_mul_hi_u32 s30, s29, 0xcccccccd")
        e("s_lshr_b32 s30, s30, 4")
        e("s_mul_i32 s31, s30, 20")
        e("s_sub_u32 s31, s29, s31")
        e(f"s_mul_i32 s31, s31, {32*3456}")
        e("s_lshl_b32 s30, s30, 7")
        e("s_add_u32 s31, s31, s30")
        e(f"buffer_load_dwordx4 v[{8+8*bq}:{11+8*bq}], v1, s[16:19], s31 offen")
        e(f"buffer_load_dwordx4 v[{12+8*bq}:{15+8*bq}], v1, s[20:23], s31 offen")
    for q in range(8):
        e(f"s_waitcnt vmcnt({7-q})" if q < 7 else "s_waitcnt vmcnt(0)")
        e(f"buffer_store_dwordx4 v[{8+4*q}:{11+4*q}], v2, s[24:27], s28 offen")
        e("s_add_u32 s28, s28, 4096")
    e("s_endpgm")
    e.label("K1_RP2")
    e(f"s_sub_u32 s3, s3, {N_R1}")
    e("s_waitcnt lgkmcnt(0)")
    srd(e, 16, 8, 9, D*F*2)
    srd_off(e, 24, 12, 13, WS_WP2, D*F*2)
    e("s_lshl_b32 s28, s3, 11")
    e("v_add_u32 v1, s28, v0")
    e("v_lshlrev_b32 v2, 4, v1")
    for q in range(8):
        e(f"s_movk_i32 s29, {q*4096}" if q < 8 else "")
        e(f"buffer_load_dwordx4 v[{8+4*q}:{11+4*q}], v2, s[16:19], s29 offen")
    e("s_mov_b32 s30, 0xcccccccd")
    e(f"s_mov_b32 s31, {F*D//8}")
    for q in range(8):
        e(f"v_add_u32 v3, {256*q}, v1")
        e("v_mul_hi_u32 v4, v3, s30")
        e("v_lshrrev_b32 v4, 6, v4")
        e("v_mul_u32_u24 v5, 80, v4")
        e("v_sub_u32 v5, v3, v5")
        e("v_mul_u32_u24 v6, 6554, v5")
        e("v_lshrrev_b32 v6, 16, v6")
        e("v_mul_u32_u24 v7, 10, v6")
        e("v_sub_u32 v7, v5, v7")
        e("v_mul_u32_u24 v6, 1728, v6")
        e("v_add_u32 v6, v6, v4")
        e("v_mul_u32_u24 v6, 160, v6")
        e("v_lshl_add_u32 v6, v7, 4, v6")
        e("v_cmp_gt_u32 vcc, s31, v3")
        e("v_mov_b32 v7, 0x7fffffff")
        e(f"v_cndmask_b32 v{40+q}, v7, v6, vcc")
    for q in range(8):
        e(f"s_waitcnt vmcnt({7-q})")
        e(f"buffer_store_dwordx4 v[{8+4*q}:{11+4*q}], v{40+q}, s[24:27], 0 offen")
    e("s_endpgm")
    e.label("K1_KV")
    e(f"s_sub_u32 s3, s2, {N_LN}")
    e("s_mul_hi_u32 s14, s3, 0x33333334")
    e("s_mul_i32 s15, s14, 5")
    e("s_sub_u32 s15, s3, s15")
    e("s_waitcnt lgkmcnt(0)")
    srd(e, 16, 6, 7, SZ_SD)
    srd(e, 20, 8, 9, SZ_SD)
    srd(e, 24, 10, 11, D*4*2)
    srd_off(e, 28, 12, 13, WS_KVT, SZ_SD)
    e("v_and_b32 v1, 15, v0")
    e("v_lshrrev_b32 v2, 4, v0")
    e("s_lshl_b32 s32, s14, 6")
    e("v_lshlrev_b32 v3, 2, v2")
    e("v_add_u32 v3, s32, v3")
    e("v_mul_u32_u24 v4, 1280, v3")
    e("s_lshl_b32 s33, s15, 8")
    e("v_lshlrev_b32 v5, 4, v1")
    e("v_add_u32 v5, s33, v5")
    e("v_add_u32 v4, v4, v5")
    e("v_subrev_u32 v6, 3840, v4")
    for r in range(3):
        e(f"buffer_load_dwordx4 v[{16+4*r}:{19+4*r}], v6, s[16:19], 0 offen offset:{1280*r}")
    for r in range(3):
        e(f"buffer_load_dwordx4 v[{28+4*r}:{31+4*r}], v4, s[16:19], 0 offen offset:{1280*r}")
    e("buffer_load_dwordx4 v[40:43], v4, s[16:19], 0 offen offset:3840")
    for r in range(4):
        e(f"buffer_load_dwordx4 v[{44+4*r}:{47+4*r}], v4, s[20:23], 0 offen offset:{1280*r}")
    e("v_lshlrev_b32 v7, 2, v5")
    for j in range(4):
        e(f"buffer_load_dwordx4 v[{60+4*j}:{63+4*j}], v7, s[24:27], 0 offen offset:{16*j}")
    e("s_mov_b32 s34, 0x05040100")
    e("s_mov_b32 s35, 0x07060302")
    e("v_lshlrev_b32 v8, 3, v1")
    e("v_mul_u32_u24 v8, 144, v8")
    e("v_lshrrev_b32 v9, 1, v2")
    e("v_lshlrev_b32 v9, 4, v9")
    e("v_add_u32 v8, v8, v9")
    e("v_and_b32 v9, 1, v2")
    e("v_lshlrev_b32 v9, 3, v9")
    e("v_xor_b32 v9, 8, v9")
    e("v_add_u32 v8, v8, v9")
    e("s_waitcnt vmcnt(0)")
    for p in range(4):
        for h in range(2):
            c = 2*p+h
            e(f"v_lshlrev_b32 v{80+4*h}, 16, v{60+2*c}")
            e(f"v_and_b32 v{81+4*h}, 0xffff0000, v{60+2*c}")
            e(f"v_lshlrev_b32 v{82+4*h}, 16, v{61+2*c}")
            e(f"v_and_b32 v{83+4*h}, 0xffff0000, v{61+2*c}")
        for r in range(7):
            e(f"v_lshlrev_b32 v{88+2*r}, 16, v{16+4*r+p}")
            e(f"v_and_b32 v{89+2*r}, 0xffff0000, v{16+4*r+p}")
        for i in range(4):
            for t in range(4):
                r = i + t
                w = 3 - t
                e(f"v_mul_f32 v104, v{88+2*r}, v{80+w}")
                e(f"v_mul_f32 v105, v{89+2*r}, v{84+w}")
                e("v_cvt_pk_bf16_f32 v106, v104, v105")
                if t == 0:
                    e("v_lshlrev_b32 v102, 16, v106")
                    e("v_and_b32 v103, 0xffff0000, v106")
                else:
                    e("v_lshlrev_b32 v104, 16, v106")
                    e("v_and_b32 v105, 0xffff0000, v106")
                    e("v_add_f32 v102, v102, v104")
                    e("v_add_f32 v103, v103, v105")
                    e("v_cvt_pk_bf16_f32 v106, v102, v103")
                    e("v_lshlrev_b32 v102, 16, v106")
                    e("v_and_b32 v103, 0xffff0000, v106")
            e(f"v_lshlrev_b32 v104, 16, v{44+4*i+p}")
            e(f"v_and_b32 v105, 0xffff0000, v{44+4*i+p}")
            e("v_mul_f32 v102, v102, v104")
            e("v_mul_f32 v103, v103, v105")
            e(f"v_cvt_pk_bf16_f32 v{108+i}, v102, v103")
        e("v_perm_b32 v112, v110, v111, s34")
        e("v_perm_b32 v113, v108, v109, s34")
        e(f"ds_write_b64 v8, v[112:113] offset:{(2*p)*144}")
        e("v_perm_b32 v114, v110, v111, s35")
        e("v_perm_b32 v115, v108, v109, s35")
        e(f"ds_write_b64 v8, v[114:115] offset:{(2*p+1)*144}")
    e("s_waitcnt lgkmcnt(0)")
    e("s_barrier")
    e("v_lshrrev_b32 v1, 1, v0")
    e("v_and_b32 v2, 1, v0")
    e("v_mul_u32_u24 v3, 144, v1")
    e("v_lshlrev_b32 v4, 6, v2")
    e("v_add_u32 v3, v3, v4")
    for j in range(4):
        e(f"ds_read_b128 v[{16+4*j}:{19+4*j}], v3 offset:{16*j}")
    e("s_lshl_b32 s33, s15, 7")
    e("v_add_u32 v5, s33, v1")
    e("v_lshlrev_b32 v5, 12, v5")
    e("s_lshl_b32 s32, s14, 7")
    e("v_add_u32 v5, s32, v5")
    e("v_add_u32 v5, v5, v4")
    e("s_waitcnt lgkmcnt(0)")
    for j in range(4):
        e(f"buffer_store_dwordx4 v[{16+4*j}:{19+4*j}], v5, s[28:31], 0 offen offset:{16*j}")
    e.label("K1_END")
    e("s_endpgm")
    return e.text()


N_K2 = 256
COPY = 4288
KV_OFF = 4*COPY
CH_STRIDE = KV_OFF + 33*144
K2_NS = 6
K2_STG = 24576
CV_A = 2*K2_STG
CV_RB = 4*K2_STG
K2_LDS = 163840

def conv_issue_dma(e):
    e("s_lshl_b32 s71, s69, 13")
    e("s_lshl_b32 s32, s3, 12")
    e("s_add_u32 s32, s32, s71")
    e(f"s_mul_i32 s33, s3, {CH_STRIDE}")
    e("s_add_u32 s33, s33, s68")
    for r in range(4):
        e(f"s_add_u32 m0, s33, {r*COPY + 128}")
        e(f"s_add_u32 s34, s32, {2*r}")
        for qd in range(4):
            e(f"buffer_load_dwordx4 v2, s[16:19], s34 offen offset:{qd*1024} lds")

def conv_issue(e):
    e("s_lshl_b32 s28, s69, 2")
    e("s_load_dword s70, s[6:7], s28")
    e("s_lshl_b32 s71, s69, 13")
    e("v_lshlrev_b32 v165, 4, v0")
    e("buffer_load_dwordx4 v[160:163], v165, s[20:23], s71 offen")
    e("v_bfe_u32 v165, v1, 4, 1")
    e("v_lshlrev_b32 v165, 12, v165")
    e("v_and_b32 v166, 3, v1")
    e("v_lshl_add_u32 v165, v166, 1, v165")
    e("buffer_load_ushort v164, v165, s[16:19], s71 offen")

def conv_fix(e):
    e("s_lshl_b32 s30, s65, 13")
    e("v_mov_b32 v28, 0")
    e("v_mov_b32 v29, 0")
    e("v_mov_b32 v30, 0")
    e("v_mov_b32 v31, 0")
    e("v_lshrrev_b32 v20, 5, v1")
    e(f"v_mul_u32_u24 v20, {CH_STRIDE}, v20")
    e("v_bfe_u32 v21, v1, 3, 2")
    e(f"v_mul_u32_u24 v21, {COPY}, v21")
    e("v_add_u32 v20, v20, v21")
    e("v_and_b32 v21, 7, v1")
    e("v_lshl_add_u32 v20, v21, 4, v20")
    e("v_add_u32 v20, s66, v20")
    e("v_bfe_u32 v25, v0, 3, 5")
    e("v_mul_u32_u24 v25, 144, v25")
    e("v_and_b32 v26, 7, v0")
    e("v_lshl_add_u32 v25, v26, 4, v25")
    e("v_lshrrev_b32 v26, 8, v0")
    e(f"v_mul_u32_u24 v26, {CH_STRIDE}, v26")
    e("v_add_u32 v25, v25, v26")
    e(f"s_add_u32 s34, s66, {KV_OFF + 144}")
    e("v_add_u32 v25, s34, v25")
    e("s_waitcnt lgkmcnt(0)")
    e("s_mov_b32 s29, s70")
    e("ds_write_b128 v25, v[160:163]")
    e("s_cmp_eq_u32 s3, 0")
    e("s_cbranch_scc0 CF_1")
    e("ds_write_b128 v20, v[28:31]")
    e("v_bfe_u32 v21, v1, 4, 1")
    e(f"v_mul_u32_u24 v21, {CH_STRIDE}, v21")
    e("v_bfe_u32 v22, v1, 2, 2")
    e(f"v_mul_u32_u24 v23, {COPY - 2}, v22")
    e("v_add_u32 v21, v21, v23")
    e("v_and_b32 v23, 3, v1")
    e("v_lshl_add_u32 v21, v23, 1, v21")
    e("s_add_u32 s34, s66, 128")
    e("v_add_u32 v21, s34, v21")
    e("v_cmp_gt_u32 vcc, v22, v23")
    e("s_and_b32 vcc_hi, vcc_hi, 0")
    e("s_and_saveexec_b64 s[36:37], vcc")
    e("ds_write_b16 v21, v164")
    e("s_mov_b64 exec, s[36:37]")
    e.label("CF_1")
    e("s_cmp_eq_u32 s3, 1")
    e("s_cbranch_scc0 CF_2")
    e("v_bfe_u32 v21, v1, 4, 1")
    e(f"v_mul_u32_u24 v21, {CH_STRIDE}, v21")
    e("v_and_b32 v22, 15, v1")
    e("v_lshl_add_u32 v21, v22, 4, v21")
    e(f"s_add_u32 s34, s66, {KV_OFF}")
    e("v_add_u32 v21, s34, v21")
    e("v_cmp_gt_u32 vcc, 9, v22")
    e("s_and_b32 vcc_hi, vcc_hi, 0")
    e("s_and_saveexec_b64 s[36:37], vcc")
    e("ds_write_b128 v21, v[28:31]")
    e("s_mov_b64 exec, s[36:37]")
    e.label("CF_2")
    e("s_waitcnt lgkmcnt(0)")
    e("s_barrier")

def conv_compute(e):
    e("s_lshr_b32 s38, s3, 2")
    e("s_and_b32 s39, s3, 3")
    e(f"s_mul_i32 s40, s38, {CH_STRIDE}")
    e("s_add_u32 s40, s40, s66")
    e("v_and_b32 v3, 15, v1")
    e("v_lshrrev_b32 v4, 4, v1")
    e("v_add_u32 v5, 1, v3")
    e("v_and_b32 v5, 3, v5")
    e(f"v_mul_u32_u24 v7, {COPY - 2}, v5")
    e("v_lshl_add_u32 v7, v3, 1, v7")
    e("v_lshlrev_b32 v8, 4, v4")
    e("v_sub_u32 v7, v7, v8")
    e("s_lshl_b32 s41, s39, 9")
    e("s_add_u32 s41, s41, s40")
    e(f"s_add_u32 s41, s41, {2*(64-7) - 64}")
    e("v_add_u32 v7, s41, v7")
    e("v_add_u32 v8, 2048, v7")
    e("v_mul_u32_u24 v9, 144, v3")
    e("v_lshlrev_b32 v10, 4, v4")
    e(f"s_add_u32 s42, s40, {KV_OFF}")
    e("v_add_u32 v10, s42, v10")
    e("v_add_u32 v9, v9, v10")
    e("s_mul_i32 s43, s39, 576")
    e("s_sub_u32 s43, 144, s43")
    e("v_add_u32 v9, s43, v9")
    ACC, FL, FH, BB = 16, 48, 88, 128
    for i in range(32):
        e(f"v_mov_b32 v{ACC+i}, 0")
    def lda(k):
        sl = k % 10
        for (F, va) in ((FL, 7), (FH, 8)):
            e(f"ds_read_b64 v[{F+4*sl}:{F+4*sl+1}], v{va} offset:{32*k}")
            e(f"ds_read_b64 v[{F+4*sl+2}:{F+4*sl+3}], v{va} offset:{32*k+8}")
    def ldb(st):
        bb = BB + 16*(st & 1)
        e(f"v_subrev_u32 v11, {144*st}, v9")
        e("v_max_i32 v12, v11, v10")
        for kk in range(2):
            e(f"ds_read_b128 v[{bb+4*kk}:{bb+4*kk+3}], v12 offset:{64*kk}")
        for kk in range(2):
            e(f"ds_read_b128 v[{bb+8+4*kk}:{bb+8+4*kk+3}], v11 offset:{16*144 + 64*kk}")
    ldb(0)
    for k in range(6): lda(k)
    for st in range(4):
        bb = BB + 16*(st & 1)
        for kk in range(2):
            if st < 3:
                if kk == 0:
                    ldb(st+1)
                    lda(4*st+6); lda(4*st+7)
                    e("s_waitcnt lgkmcnt(12)")
                else:
                    lda(4*st+8); lda(4*st+9)
            elif kk == 0:
                e("s_waitcnt lgkmcnt(0)")
            for m in range(4):
                sl = (4*st + m - 2*kk + 2) % 10
                fl = FL + 4*sl; fh = FH + 4*sl
                a0 = ACC + 8*m; a1 = a0 + 4
                b0 = bb + 4*kk; b1 = bb + 8 + 4*kk
                e(f"v_mfma_f32_16x16x32_bf16 v[{a0}:{a0+3}], v[{fl}:{fl+3}], v[{b0}:{b0+3}], v[{a0}:{a0+3}]")
                e(f"v_mfma_f32_16x16x32_bf16 v[{a1}:{a1+3}], v[{fl}:{fl+3}], v[{b1}:{b1+3}], v[{a1}:{a1+3}]")
            for m in range(4):
                sl = (4*st + m - 2*kk + 2) % 10
                fh = FH + 4*sl
                a1 = ACC + 8*m + 4
                b0 = bb + 4*kk
                e(f"v_mfma_f32_16x16x32_bf16 v[{a1}:{a1+3}], v[{fh}:{fh+3}], v[{b0}:{b0+3}], v[{a1}:{a1+3}]")
    q(e, 8)
    e("s_nop 7")
    e("s_barrier")
    q(e, 9)
    e("s_lshl_b32 s44, s3, 13")
    e(f"s_add_u32 s44, s44, {CV_RB}")
    e("v_add_u32 v11, s44, v2")
    for i in range(8):
        e(f"ds_write_b128 v11, v[{ACC+4*i}:{ACC+4*i+3}] offset:{1024*i}")
    e("s_lshl_b32 s45, s38, 15")
    e("s_lshl_b32 s46, s39, 11")
    e("s_add_u32 s45, s45, s46")
    e(f"s_add_u32 s45, s45, {CV_RB}")
    e("v_add_u32 v12, s45, v2")
    e("v_mul_u32_u24 v13, 144, v3")
    e("v_lshrrev_b32 v14, 1, v4")
    e("v_lshl_add_u32 v13, v14, 4, v13")
    e("v_and_b32 v14, 1, v4")
    e("v_lshlrev_b32 v14, 3, v14")
    e("v_xor_b32 v14, 8, v14")
    e("v_add_u32 v13, v13, v14")
    e("s_lshl_b32 s46, s39, 5")
    e("s_add_u32 s46, s46, s42")
    e("s_add_u32 s46, s46, 144")
    e("v_add_u32 v13, s46, v13")
    for h in range(2):
        e(f"ds_read_b64 v[{88+2*h}:{89+2*h}], v13 offset:{16*144*h}")
    e("s_lshl_b32 s47, s38, 4")
    e("s_lshr_b32 s47, s29, s47")
    e("s_lshl_b32 s47, s47, 16")
    e("s_lshl_b32 s48, s38, 12")
    e("s_add_u32 s48, s48, s30")
    e("s_lshl_b32 s49, s39, 5")
    e("s_add_u32 s48, s48, s49")
    e("v_lshlrev_b32 v15, 7, v3")
    e("v_lshl_add_u32 v15, v4, 3, v15")
    e("v_add_u32 v15, s48, v15")
    e("s_waitcnt lgkmcnt(0)")
    q(e, 10)
    e("s_barrier")
    q(e, 11)
    for sd in range(4):
        for h in range(2):
            r = 48 + 8*sd + 4*h
            e(f"ds_read_b128 v[{r}:{r+3}], v12 offset:{8192*sd + 1024*h}")
    for h in range(2):
        k0, k1 = 88+2*h, 89+2*h
        o = 100 + 4*h
        e(f"v_and_b32 v16, 0xffff0000, v{k1}")
        e(f"v_lshlrev_b32 v17, 16, v{k1}")
        e(f"v_and_b32 v18, 0xffff0000, v{k0}")
        e(f"v_lshlrev_b32 v19, 16, v{k0}")
        for j in range(4):
            e(f"v_mul_f32 v{16+j}, s47, v{16+j}")
        e("v_cvt_pk_bf16_f32 v20, v16, v17")
        e("v_cvt_pk_bf16_f32 v21, v18, v19")
        e(f"v_lshlrev_b32 v{o}, 16, v20")
        e(f"v_and_b32 v{o+1}, 0xffff0000, v20")
        e(f"v_lshlrev_b32 v{o+2}, 16, v21")
        e(f"v_and_b32 v{o+3}, 0xffff0000, v21")
    e("s_waitcnt lgkmcnt(0)")
    for h in range(2):
        o = 100 + 4*h
        for j in range(4):
            r = 48 + 4*h + j
            e(f"v_add_f32 v{r}, v{r}, v{r+8}")
            e(f"v_add_f32 v{r+16}, v{r+16}, v{r+24}")
            e(f"v_add_f32 v{r}, v{r}, v{r+16}")
        e(f"v_cvt_pk_bf16_f32 v22, v{48+4*h}, v{49+4*h}")
        e(f"v_cvt_pk_bf16_f32 v23, v{50+4*h}, v{51+4*h}")
        for (sr, dst) in ((22, 24), (23, 26)):
            e(f"v_lshlrev_b32 v{dst}, 16, v{sr}")
            e(f"v_and_b32 v{dst+1}, 0xffff0000, v{sr}")
        for j in range(4):
            e(f"v_add_f32 v{16+j}, v{o+j}, v{24+j}")
        e(f"v_cvt_pk_bf16_f32 v{96+2*h}, v16, v17")
        e(f"v_cvt_pk_bf16_f32 v{97+2*h}, v18, v19")
        e(f"buffer_store_dwordx2 v[{96+2*h}:{97+2*h}], v15, s[24:27], 0 offen offset:{2048*h}")

def g1_dma(e):
    e("s_mov_b32 m0, s72")
    e("s_add_u32 s34, s74, 4096")
    for i in range(4):
        e(f"buffer_load_dwordx4 v2, s[52:55], s74 offen offset:{i*1024} lds")
    e("s_add_u32 m0, s72, 4096")
    e("s_add_u32 s74, s74, 16384")
    for i in range(4):
        e(f"buffer_load_dwordx4 v2, s[52:55], s34 offen offset:{i*1024} lds")
    e("s_mov_b32 m0, s73")
    e(f"s_add_u32 s72, s72, {K2_STG}")
    for i in range(4):
        e(f"buffer_load_dwordx4 v2, s[56:59], s75 offen offset:{i*1024} lds")
    e("s_add_u32 s75, s75, 8192")
    e(f"s_add_u32 s73, s73, {K2_STG}")

def k2():
    e = E()
    NS = K2_NS; STG = K2_STG; NT = 20
    e(f"s_cmp_ge_u32 s2, {N_K2}")
    e("s_cbranch_scc1 K2_END")
    trace_start(e)
    e("s_load_dwordx4 s[4:7], s[0:1], 32")
    e("s_load_dwordx2 s[12:13], s[0:1], 96")
    e("v_lshrrev_b32 v1, 6, v0")
    e("s_nop 0")
    e("v_readfirstlane_b32 s3, v1")
    e("v_and_b32 v1, 63, v0")
    e("v_lshlrev_b32 v2, 4, v1")
    e("s_and_b32 s14, s2, 7")
    e("s_lshr_b32 s15, s2, 3")
    e("s_lshr_b32 s28, s14, 2")
    e("s_lshl_b32 s29, s28, 1")
    e("s_sub_u32 s29, 28, s29")
    e("s_and_b32 s31, s14, 3")
    e("s_mul_i32 s32, s31, s29")
    e("s_mul_i32 s33, s28, 112")
    e("s_add_u32 s32, s32, s33")
    e("s_add_u32 s65, s32, s15")
    e("s_cmp_lt_u32 s15, s29")
    e("s_cselect_b32 s64, 1, 0")
    e("s_cbranch_scc1 K2_R")
    e("s_sub_u32 s32, 32, s29")
    e("s_mul_i32 s32, s32, s31")
    e("s_lshl_b32 s33, s28, 4")
    e("s_add_u32 s32, s32, s33")
    e("s_add_u32 s32, s32, s15")
    e("s_sub_u32 s32, s32, s29")
    e("s_add_u32 s65, s32, 216")
    e.label("K2_R")
    e("s_mul_i32 s76, s28, 14")
    e("s_lshr_b32 s33, s15, 1")
    e("s_add_u32 s76, s76, s33")
    e("s_lshl_b32 s77, s31, 1")
    e("s_and_b32 s33, s15, 1")
    e("s_add_u32 s77, s77, s33")
    e("s_waitcnt lgkmcnt(0)")
    srd(e, 16, 4, 5, SZ_SD)
    srd_off(e, 20, 12, 13, WS_KVT, SZ_SD)
    srd_off(e, 24, 12, 13, WS_Y2T, SZ_SD)
    srd_off(e, 52, 12, 13, WS_XNP, SZ_SD)
    srd_off(e, 56, 12, 13, WS_WP1, 2*D*F*2)
    srd_off(e, 60, 12, 13, WS_H, SZ_H)
    e(f"s_mov_b32 s66, {CV_A}")
    e("s_mov_b32 s68, s66")
    e("s_mov_b32 s69, s65")
    e("s_cmp_lt_u32 s3, 8")
    e("s_cbranch_scc1 K2_CW")
    e("s_sub_u32 s3, s3, 8")
    e("s_cmp_eq_u32 s64, 0")
    e("s_cbranch_scc1 K2_LC0")
    e("s_lshl_b32 s72, s3, 13")
    e("s_lshl_b32 s73, s3, 12")
    e("s_mul_i32 s74, s77, 327680")
    e("s_add_u32 s74, s74, s72")
    e("s_mul_i32 s75, s76, 163840")
    e("s_add_u32 s75, s75, s73")
    e("s_add_u32 s73, s73, 16384")
    e("s_mov_b32 s79, 0")
    e.label("K2_LP")
    g1_dma(e)
    e("s_add_u32 s79, s79, 1")
    e("s_cmp_lt_u32 s79, 5")
    e("s_cbranch_scc1 K2_LP")
    e(f"s_mov_b32 s80, {NS*STG}")
    e("s_mov_b32 s79, 0")
    e("s_waitcnt vmcnt(48)")
    e("s_barrier")
    e.label("K2_LGL")
    e("s_waitcnt vmcnt(36)")
    e("s_barrier")
    g1_dma(e)
    e("s_cmp_ge_u32 s72, s80")
    e("s_cselect_b32 s33, s80, 0")
    e("s_sub_u32 s72, s72, s33")
    e("s_sub_u32 s73, s73, s33")
    e("s_add_u32 s79, s79, 1")
    e(f"s_cmp_lt_u32 s79, {NT-5}")
    e("s_cbranch_scc1 K2_LGL")
    for t in range(NT-5, NT):
        e(f"s_waitcnt vmcnt({12*max(NT-1-(t+1), 0) + (16 if t > 16 else 0)})")
        e("s_barrier")
        if t == 16:
            conv_issue_dma(e)
    e("s_barrier")
    e("s_barrier")
    e("s_waitcnt vmcnt(0)")
    e("s_barrier")
    e("s_endpgm")
    e.label("K2_LC0")
    conv_issue_dma(e)
    e.label("K2_LCL")
    e("s_waitcnt vmcnt(0)")
    e("s_barrier")
    e("s_add_u32 s69, s69, 40")
    e(f"s_sub_u32 s68, {CV_A}, s68")
    e("s_cmp_ge_u32 s69, 320")
    e("s_cbranch_scc1 K2_END")
    conv_issue_dma(e)
    e("s_barrier")
    e("s_barrier")
    e("s_branch K2_LCL")
    e.label("K2_CW")
    q(e, 0)
    conv_issue(e)
    e("s_cmp_eq_u32 s64, 0")
    e("s_cbranch_scc1 K2_CL")
    e("s_lshr_b32 s47, s3, 1")
    e("s_and_b32 s48, s3, 1")
    e("v_and_b32 v4, 31, v1")
    e("v_lshrrev_b32 v3, 5, v1")
    e("s_lshl_b32 s49, s47, 6")
    e("v_add_u32 v4, s49, v4")
    e("v_lshrrev_b32 v7, 2, v4")
    e("v_and_b32 v5, 3, v4")
    e("v_lshl_add_u32 v5, v5, 2, v3")
    e("v_and_b32 v6, 3, v7")
    e("v_xor_b32 v5, v5, v6")
    e("v_lshlrev_b32 v5, 4, v5")
    e("v_lshl_add_u32 v12, v7, 8, v5")
    e("v_xor_b32 v13, 32, v12")
    e("v_lshrrev_b32 v8, 4, v1")
    e("v_bfe_u32 v3, v1, 2, 2")
    e("v_and_b32 v4, 3, v1")
    e("v_lshrrev_b32 v5, 1, v8")
    e("v_lshl_add_u32 v5, v5, 3, v3")
    e("v_lshlrev_b32 v5, 7, v5")
    e("v_and_b32 v6, 1, v8")
    e("v_lshlrev_b32 v6, 1, v6")
    e("v_lshrrev_b32 v7, 1, v4")
    e("v_add_u32 v6, v6, v7")
    e("s_lshl_b32 s49, s48, 2")
    e("v_add_u32 v6, s49, v6")
    e("v_bfe_u32 v7, v3, 1, 1")
    e("v_lshlrev_b32 v7, 2, v7")
    e("v_xor_b32 v6, v6, v7")
    e("v_lshl_add_u32 v5, v6, 4, v5")
    e("v_and_b32 v7, 1, v4")
    e("v_lshl_add_u32 v5, v7, 3, v5")
    e("v_add_u32 v14, 16384, v5")
    G0, U0 = 64, 96
    for i in range(64):
        e(f"v_mov_b32 v{64+i}, 0")
    XF = [32, 40]; WF = [48, 56]
    def frag_loads(xa, wa, ks, buf):
        if "nofr" in X2: return
        for mat in range(2):
            for hi in range(2):
                r = WF[buf] + 4*mat + 2*hi
                e(f"ds_read_b64_tr_b16 v[{r}:{r+1}], v{wa} offset:{mat*4096 + ks*2048 + hi*512}")
        for mi in range(2):
            e(f"ds_read_b128 v[{XF[buf]+4*mi}:{XF[buf]+4*mi+3}], v{xa} offset:{mi*2048}")
    def mf(buf):
        if "nomf" in X2: return
        for mi in range(2):
            x = XF[buf]+4*mi
            e(f"v_mfma_f32_32x32x16_bf16 v[{G0+16*mi}:{G0+16*mi+15}], v[{WF[buf]}:{WF[buf]+3}], v[{x}:{x+3}], v[{G0+16*mi}:{G0+16*mi+15}]")
            e(f"v_mfma_f32_32x32x16_bf16 v[{U0+16*mi}:{U0+16*mi+15}], v[{WF[buf]+4}:{WF[buf]+7}], v[{x}:{x+3}], v[{U0+16*mi}:{U0+16*mi+15}]")
    e("s_mov_b32 s78, 0")
    e("s_mov_b32 s79, 0")
    e(f"s_mov_b32 s80, {NS*STG}")
    q(e, 1)
    e("s_barrier")
    q(e, 2)
    frag_loads(12, 14, 0, 0)
    e.label("K2_GL")
    e("v_add_u32 v16, s78, v13")
    e("v_add_u32 v17, s78, v14")
    frag_loads(16, 17, 1, 1)
    e(f"s_add_u32 s78, s78, {STG}")
    e("s_cmp_ge_u32 s78, s80")
    e("s_cselect_b32 s78, 0, s78")
    e("s_add_u32 s79, s79, 1")
    e("v_add_u32 v18, s78, v12")
    e("v_add_u32 v19, s78, v14")
    e("s_waitcnt lgkmcnt(6)")
    mf(0)
    e("s_barrier")
    frag_loads(18, 19, 0, 0)
    e("s_waitcnt lgkmcnt(6)")
    mf(1)
    e(f"s_cmp_lt_u32 s79, {NT}")
    e("s_cbranch_scc1 K2_GL")
    e("s_waitcnt vmcnt(0) lgkmcnt(0)")
    q(e, 3)
    e("s_nop 15")
    e("s_barrier")
    e("v_and_b32 v4, 31, v1")
    e("v_lshrrev_b32 v3, 5, v1")
    e("s_lshl_b32 s49, s47, 6")
    e("v_add_u32 v4, s49, v4")
    e("v_mul_u32_u24 v4, 144, v4")
    e("s_lshl_b32 s49, s48, 6")
    e("v_lshl_add_u32 v4, v3, 3, v4")
    e("v_add_u32 v4, s49, v4")
    for mi in range(2):
        for i in range(4):
            g = G0+16*mi+4*i; u = U0+16*mi+4*i
            o = 40 + 2*((mi*4+i) % 4)
            for pr in range(2):
                e(f"v_cvt_pk_bf16_f32 v20, v{g+2*pr}, v{g+2*pr+1}")
                e(f"v_cvt_pk_bf16_f32 v21, v{u+2*pr}, v{u+2*pr+1}")
                e("v_lshlrev_b32 v22, 16, v20")
                e("v_and_b32 v23, 0xffff0000, v20")
                e("v_lshlrev_b32 v24, 16, v21")
                e("v_and_b32 v25, 0xffff0000, v21")
                e("v_mul_f32 v22, v22, v24")
                e("v_mul_f32 v23, v23, v25")
                e(f"v_cvt_pk_bf16_f32 v{o+pr}, v22, v23")
            e(f"ds_write_b64 v4, v[{o}:{o+1}] offset:{mi*32*144 + 16*i}")
    e("s_waitcnt lgkmcnt(0)")
    e("s_barrier")
    e("v_lshrrev_b32 v4, 3, v0")
    e("v_and_b32 v3, 7, v0")
    e("v_bfe_u32 v5, v4, 1, 3")
    e("v_xor_b32 v3, v3, v5")
    e("v_mul_u32_u24 v4, 144, v4")
    e("v_lshl_add_u32 v4, v3, 4, v4")
    for j in range(4):
        e(f"ds_read_b128 v[{64+4*j}:{67+4*j}], v4 offset:{j*64*144}")
    e("v_lshlrev_b32 v4, 4, v0")
    e(f"s_mul_i32 s50, s77, {4*27*8192}")
    e("s_lshl_b32 s49, s76, 13")
    e("s_add_u32 s50, s50, s49")
    for j in range(4):
        e(f"s_waitcnt lgkmcnt({3-j})")
        e(f"buffer_store_dwordx4 v[{64+4*j}:{67+4*j}], v4, s[60:63], s50 offen")
        e(f"s_add_u32 s50, s50, {27*8192}")
    q(e, 4)
    e("s_branch K2_CL1")
    e.label("K2_CL")
    e("s_waitcnt vmcnt(0)")
    e.label("K2_CL1")
    conv_fix(e)
    q(e, 5)
    e("s_add_u32 s69, s65, 40")
    e(f"s_sub_u32 s68, {CV_A}, s66")
    e("s_cmp_eq_u32 s64, 1")
    e("s_cselect_b32 s69, 320, s69")
    e("s_cmp_ge_u32 s69, 320")
    e("s_cbranch_scc1 K2_C2")
    conv_issue(e)
    e.label("K2_C2")
    conv_compute(e)
    e("s_mov_b32 s65, s69")
    e("s_mov_b32 s66, s68")
    e("s_cmp_lt_u32 s65, 320")
    e("s_cbranch_scc1 K2_CL")
    q(e, 6)
    e("s_waitcnt vmcnt(0)")
    q(e, 7)
    qdump(e, 12)
    trace_end(e, 1)
    e.label("K2_END")
    e("s_endpgm")
    return e.text()


N_G2 = 256
K3_NS = 8
K3_STG = 18432
K3_LDS = K3_STG*K3_NS
def k3():
    e = E()
    NS = K3_NS; NT = 27; STG = K3_STG
    Y2_L = 3*STG; X_L = 4*STG; XN_L = 5*STG
    e(f"s_cmp_ge_u32 s2, {N_G2}")
    e("s_cbranch_scc1 K3_END")
    trace_start(e)
    e("s_load_dwordx2 s[4:5], s[0:1], 0")
    e("s_load_dwordx2 s[10:11], s[0:1], 80")
    e("s_load_dwordx2 s[12:13], s[0:1], 96")
    e("v_lshrrev_b32 v1, 6, v0")
    e("s_nop 0")
    e("v_readfirstlane_b32 s3, v1")
    e("s_and_b32 s15, s2, 7")
    e("s_lshl_b32 s15, s15, 2")
    e("s_lshr_b32 s28, s2, 3")
    e("s_and_b32 s29, s28, 3")
    e("s_add_u32 s15, s15, s29")
    e("s_lshr_b32 s28, s28, 2")
    e("s_lshl_b32 s36, s15, 6")
    e("s_mul_i32 s39, s28, 160")
    e("v_and_b32 v1, 63, v0")
    e("s_waitcnt lgkmcnt(0)")
    e("s_cmp_lt_u32 s3, 4")
    e("s_cbranch_scc1 K3_COMP")
    e("s_sub_u32 s3, s3, 4")
    srd_off(e, 16, 12, 13, WS_H, SZ_H)
    srd_off(e, 20, 12, 13, WS_WP2, D*F*2)
    e("v_lshlrev_b32 v2, 4, v1")
    e("s_lshl_b32 s40, s3, 12")
    e("s_mul_i32 s41, s3, 5120")
    e(f"s_mul_i32 s42, s15, {27*8192}")
    e("s_add_u32 s42, s42, s40")
    e(f"s_mul_i32 s43, s28, {1728*160}")
    e("s_add_u32 s43, s43, s41")
    e("s_add_u32 s41, s41, 8192")
    def dma():
        e("s_mov_b32 m0, s40")
        e("s_add_u32 s46, s43, 4096")
        for i in range(4):
            e(f"buffer_load_dwordx4 v2, s[16:19], s42 offen offset:{i*1024} lds")
        e("s_mov_b32 m0, s41")
        e("s_add_u32 s42, s42, 8192")
        for i in range(4):
            e(f"buffer_load_dwordx4 v2, s[20:23], s43 offen offset:{i*1024} lds")
        e("s_add_u32 m0, s41, 4096")
        e("s_add_u32 s43, s43, 10240")
        e(f"buffer_load_dwordx4 v2, s[20:23], s46 offen lds")
    e("s_mov_b32 s44, 0")
    e.label("K3_LP")
    dma()
    e(f"s_add_u32 s40, s40, {STG}")
    e(f"s_add_u32 s41, s41, {STG}")
    e("s_add_u32 s44, s44, 1")
    e(f"s_cmp_lt_u32 s44, {NS-1}")
    e("s_cbranch_scc1 K3_LP")
    srd_off(e, 24, 12, 13, WS_Y2T, SZ_SD)
    srd(e, 52, 4, 5, SZ_SD)
    srd_off(e, 56, 12, 13, WS_XN, SZ_SD)
    e("v_lshrrev_b32 v3, 3, v1")
    e("v_lshlrev_b32 v3, 12, v3")
    e("v_and_b32 v4, 7, v1")
    e("v_lshl_add_u32 v15, v4, 4, v3")
    e("s_mul_i32 s47, s28, 80")
    e("s_mul_i32 s46, s3, 40")
    e("s_add_u32 s47, s47, s46")
    e("s_lshl_b32 s47, s47, 12")
    e("s_lshl_b32 s46, s36, 1")
    e("s_add_u32 s47, s47, s46")
    for i in range(5):
        e(f"v_add_u32 v3, {64*i}, v1")
        e("v_mul_u32_u24 v4, 6554, v3")
        e("v_lshrrev_b32 v4, 16, v4")
        e("v_mul_u32_u24 v5, 10, v4")
        e("v_sub_u32 v5, v3, v5")
        e("v_mul_u32_u24 v4, 1280, v4")
        e(f"v_lshl_add_u32 v{10+i}, v5, 4, v4")
    e("s_lshl_b32 s48, s3, 5")
    e("s_add_u32 s48, s48, s36")
    e("s_mul_i32 s48, s48, 1280")
    e("s_add_u32 s48, s48, s39")
    e("s_mul_i32 s49, s3, 5120")
    e(f"s_mov_b32 s45, {NS*STG}")
    e.label("K3_LL")
    e(f"s_waitcnt vmcnt({9*(NS-2)})")
    e("s_barrier")
    dma()
    e(f"s_add_u32 s40, s40, {STG}")
    e(f"s_add_u32 s41, s41, {STG}")
    e("s_cmp_ge_u32 s40, s45")
    e("s_cselect_b32 s46, s45, 0")
    e("s_sub_u32 s40, s40, s46")
    e("s_sub_u32 s41, s41, s46")
    e("s_add_u32 s44, s44, 1")
    e(f"s_cmp_lt_u32 s44, {NT}")
    e("s_cbranch_scc1 K3_LL")
    nx = 0
    for t in range(NT-NS+1, NT):
        e(f"s_waitcnt vmcnt({9*(NT-1-t) + 5*nx})")
        e("s_barrier")
        if nx == 0:
            for i in range(5):
                e(f"s_add_u32 m0, s49, {Y2_L + i*1024}")
                e(f"s_add_u32 s46, s47, {i*8*4096}")
                e("buffer_load_dwordx4 v15, s[24:27], s46 offen lds")
        elif nx < 3:
            for i in range(5):
                e(f"s_add_u32 m0, s49, {(X_L if nx == 1 else XN_L) + i*1024}")
                e("s_nop 0")
                e(f"buffer_load_dwordx4 v{10+i}, s[{52 if nx == 1 else 56}:{55 if nx == 1 else 59}], s48 offen lds")
        if nx < 3: nx += 1
    e("s_waitcnt vmcnt(0)")
    e("s_barrier")
    e("s_barrier")
    e("s_endpgm")
    e.label("K3_COMP")
    srd(e, 32, 10, 11, SZ_SD)
    e("s_lshr_b32 s47, s3, 1")
    e("s_and_b32 s48, s3, 1")
    e("v_and_b32 v2, 15, v1")
    e("v_lshrrev_b32 v3, 4, v1")
    e("v_and_b32 v4, 1, v3")
    e("s_lshl_b32 s49, s3, 4")
    e("v_add_u32 v5, s49, v2")
    e("v_mul_u32_u24 v31, 160, v5")
    e("v_lshl_add_u32 v31, v3, 3, v31")
    e("v_add_u32 v5, s36, v5")
    e("v_mul_u32_u24 v5, 1280, v5")
    e("v_lshl_add_u32 v5, v3, 3, v5")
    e("v_add_u32 v30, s39, v5")
    e("s_lshl_b32 s49, s48, 2")
    e("v_add_u32 v5, s49, v3")
    e("v_lshrrev_b32 v6, 1, v2")
    e("v_xor_b32 v5, v5, v6")
    e("v_lshlrev_b32 v5, 4, v5")
    e("v_lshl_add_u32 v5, v2, 7, v5")
    e("v_lshl_add_u32 v5, v4, 3, v5")
    e("s_lshl_b32 s49, s47, 12")
    e("v_add_u32 v12, s49, v5")
    e("v_xor_b32 v13, 8, v12")
    e("v_bfe_u32 v5, v1, 2, 2")
    e("v_lshl_add_u32 v5, v3, 3, v5")
    e("s_lshl_b32 s49, s48, 5")
    e("v_add_u32 v5, s49, v5")
    e("v_lshl_add_u32 v6, v4, 2, v5")
    e("v_xor_b32 v7, 1, v4")
    e("v_lshl_add_u32 v7, v7, 2, v5")
    e("v_and_b32 v5, 3, v1")
    e("v_lshlrev_b32 v5, 3, v5")
    e("v_add_u32 v5, 8192, v5")
    e("s_movk_i32 s49, 160")
    e("v_mad_u32_u24 v14, v6, s49, v5")
    e("v_mad_u32_u24 v15, v7, s49, v5")
    ACC = 32
    for i in range(40):
        e(f"v_mov_b32 v{ACC+i}, 0")
    HF = [72, 100]; WF = [80, 108]
    def frag_loads(buf):
        for k in range(4):
            e(f"v_add_u32 v{16+k}, s44, v{12+k}")
        e(f"s_add_u32 s44, s44, {STG}")
        e("s_cmp_ge_u32 s44, s45")
        e("s_cselect_b32 s44, 0, s44")
        for si in range(2):
            for hf in range(2):
                r = HF[buf] + 4*si + 2*hf
                e(f"ds_read_b64 v[{r}:{r+1}], v{16+hf} offset:{si*2048}")
        for t in range(5):
            for hf in range(2):
                r = WF[buf] + 4*t + 2*hf
                e(f"ds_read_b64_tr_b16 v[{r}:{r+1}], v{18+hf} offset:{32*t}")
    def mfmas(buf):
        for t in range(5):
            for si in range(2):
                a = ACC + 8*t + 4*si
                w = WF[buf] + 4*t; h = HF[buf] + 4*si
                e(f"v_mfma_f32_16x16x32_bf16 v[{a}:{a+3}], v[{w}:{w+3}], v[{h}:{h+3}], v[{a}:{a+3}]")
    e("s_mov_b32 s44, 0")
    e(f"s_mov_b32 s45, {NS*STG}")
    e("s_mov_b32 s46, 0")
    e("s_barrier")
    frag_loads(0)
    e("s_waitcnt lgkmcnt(0)")
    e.label("K3_CL")
    for hb in range(2):
        e("s_barrier")
        frag_loads(1-hb)
        mfmas(hb)
        e("s_waitcnt lgkmcnt(0)")
    e("s_add_u32 s46, s46, 1")
    e(f"s_cmp_lt_u32 s46, {(NT-1)//2}")
    e("s_cbranch_scc1 K3_CL")
    mfmas(0)
    e("s_nop 7")
    e("s_barrier")
    e("v_lshlrev_b32 v4, 4, v1")
    e("s_mul_i32 s49, s3, 5120")
    e("v_add_u32 v5, s49, v4")
    e("s_xor_b32 s49, s3, 1")
    e("s_mul_i32 s49, s49, 5120")
    e("v_add_u32 v6, s49, v4")
    e("s_cmp_eq_u32 s48, 0")
    e("s_cbranch_scc1 K3_X0")
    for t in range(5):
        e(f"ds_write_b128 v5, v[{ACC+8*t}:{ACC+8*t+3}] offset:{1024*t}")
    for t in range(5):
        for j in range(4):
            e(f"v_mov_b32 v{ACC+8*t+j}, v{ACC+8*t+4+j}")
    e("s_branch K3_X1")
    e.label("K3_X0")
    for t in range(5):
        e(f"ds_write_b128 v5, v[{ACC+8*t+4}:{ACC+8*t+7}] offset:{1024*t}")
    e.label("K3_X1")
    e("v_lshrrev_b32 v7, 2, v1")
    e("v_lshlrev_b32 v7, 7, v7")
    e("v_and_b32 v8, 3, v1")
    e("v_lshl_add_u32 v7, v8, 3, v7")
    e("s_lshl_b32 s49, s3, 5")
    e(f"s_add_u32 s49, s49, {Y2_L}")
    e("v_add_u32 v7, s49, v7")
    e(f"v_add_u32 v31, {X_L}, v31")
    XR, XNR, YR = 128, 138, 148
    for t in range(5):
        e(f"ds_read_b64_tr_b16 v[{YR+2*t}:{YR+2*t+1}], v7 offset:{2048*t}")
        e(f"ds_read_b64 v[{XR+2*t}:{XR+2*t+1}], v31 offset:{32*t}")
        e(f"ds_read_b64 v[{XNR+2*t}:{XNR+2*t+1}], v31 offset:{STG + 32*t}")
    e("s_waitcnt lgkmcnt(0)")
    e("s_barrier")
    for t in range(5):
        e(f"ds_read_b128 v[{ACC+8*t+4}:{ACC+8*t+7}], v6 offset:{1024*t}")
    for t in range(5):
        r = 2*t
        for pr in range(2):
            e(f"v_lshlrev_b32 v22, 16, v{XNR+r+pr}")
            e(f"v_and_b32 v23, 0xffff0000, v{XNR+r+pr}")
            e(f"v_lshlrev_b32 v24, 16, v{YR+r+pr}")
            e(f"v_and_b32 v25, 0xffff0000, v{YR+r+pr}")
            e("v_mul_f32 v22, v22, v24")
            e("v_mul_f32 v23, v23, v25")
            e("v_cvt_pk_bf16_f32 v21, v22, v23")
            e("v_lshlrev_b32 v22, 16, v21")
            e("v_and_b32 v23, 0xffff0000, v21")
            e(f"v_lshlrev_b32 v24, 16, v{XR+r+pr}")
            e(f"v_and_b32 v25, 0xffff0000, v{XR+r+pr}")
            e("v_add_f32 v22, v22, v24")
            e("v_add_f32 v23, v23, v25")
            e(f"v_cvt_pk_bf16_f32 v{XR+r+pr}, v22, v23")
    for t in range(5):
        a = ACC + 8*t
        r = 2*t
        e(f"s_waitcnt lgkmcnt({4-t})")
        for j in range(4):
            e(f"v_add_f32 v{a+j}, v{a+j}, v{a+4+j}")
        for pr in range(2):
            e(f"v_cvt_pk_bf16_f32 v20, v{a+2*pr}, v{a+2*pr+1}")
            e(f"v_lshlrev_b32 v22, 16, v{XR+r+pr}")
            e(f"v_and_b32 v23, 0xffff0000, v{XR+r+pr}")
            e("v_lshlrev_b32 v24, 16, v20")
            e("v_and_b32 v25, 0xffff0000, v20")
            e("v_add_f32 v22, v22, v24")
            e("v_add_f32 v23, v23, v25")
            e(f"v_cvt_pk_bf16_f32 v{XR+r+pr}, v22, v23")
        e(f"buffer_store_dwordx2 v[{XR+r}:{XR+r+1}], v30, s[32:35], 0 offen offset:{32*t}")
    trace_end(e, 2)
    e.label("K3_END")
    e("s_endpgm")
    return e.text()

def build(kernels):
    out = []
    out.append(open("cdna_kernels/%s.s.ref" % NAME).read().split("; Override launch")[0])
    for (name, grid, block, lds, body, vgpr) in kernels:
        out.append(f"; @launch kernel={name} grid=({grid},1,1) block=({block},1,1) lds={lds}\n")
    out.append('.amdgcn_target "amdgcn-amd-amdhsa--gfx950"\n.text\n')
    for (name, grid, block, lds, body, vgpr) in kernels:
        out.append(khead(name))
        out.append(body)
    out.append('.section .rodata,"a"\n')
    for (name, grid, block, lds, body, vgpr) in kernels:
        out.append(".p2align 6\n")
        out.append(kdesc(name, vgpr))
    return "".join(out)

if __name__ == "__main__":
    ks = [("prep_kernel", N_K1, 256, 128*144, k1(), 120),
          ("mid_kernel", N_K2, 640, K2_LDS, k2(), 168),
          ("fin_kernel", N_G2, 384, K3_LDS, k3(), 160)]
    open(sys.argv[1] if len(sys.argv) > 1 else "cdna_kernels/%s.s" % NAME, "w").write(build(ks))
```

```python
import sys
NAME = "parallel_sum__ssm_conv_h3__glu_gated_bilinear__prompt"
S, D, F = 2048, 640, 1728
WS_XN  = 0
WS_KVT = 0x280000
WS_H   = 0x500000
WS_Y2T = 0xC00000
WS_XNP = 0xF00000
WS_WP1 = 0x1200000
WS_WP2 = 0x1700000
WS_XCH = 0x1A00000
SZ_SD = S*D*2
SZ_H = S*F*2

class E:
    def __init__(self):
        self.l = []
    def __call__(self, s):
        for line in s.strip("\n").split("\n"):
            self.l.append("    " + line.strip() if not line.strip().endswith(":") else line.strip())
    def label(self, n):
        self.l.append(n + ":")
    def text(self):
        return "\n".join(self.l) + "\n"

def srd(e, d, blo, bhi, nbytes):
    e(f"s_mov_b32 s{d}, s{blo}")
    e(f"s_mov_b32 s{d+1}, s{bhi}")
    e(f"s_mov_b32 s{d+2}, {nbytes}")
    e(f"s_mov_b32 s{d+3}, 0x00020000")

def srd_off(e, d, blo, bhi, off, nbytes):
    e(f"s_add_u32 s{d}, s{blo}, {off}")
    e(f"s_addc_u32 s{d+1}, s{bhi}, 0")
    e(f"s_mov_b32 s{d+2}, {nbytes}")
    e(f"s_mov_b32 s{d+3}, 0x00020000")

def kdesc(name, vgpr, sgpr=102):
    acc = (vgpr + 3)//4*4
    return f""".amdhsa_kernel {name}
  .amdhsa_next_free_vgpr {vgpr}
  .amdhsa_next_free_sgpr {sgpr}
  .amdhsa_accum_offset {acc}
  .amdhsa_group_segment_fixed_size 0
  .amdhsa_kernarg_size 104
  .amdhsa_user_sgpr_count 2
  .amdhsa_user_sgpr_kernarg_segment_ptr 1
  .amdhsa_system_sgpr_workgroup_id_x 1
.end_amdhsa_kernel
"""

import os
STAMP = os.environ.get("STAMP")
X3 = os.environ.get("X3", "").split(",")
X2 = os.environ.get("X2", "").split(",")
def stamp(e, idx):
    if not STAMP: return
    e(f"s_memtime s[88:89]")
    e("s_waitcnt lgkmcnt(0)")
    e(f"s_mov_b32 s{90+idx}, s88")
def stamp_dump(e, n, wg):
    if not STAMP: return
    e("s_load_dwordx2 s[84:85], s[0:1], 88")
    e("s_waitcnt lgkmcnt(0)")
    e("s_mov_b32 s86, 256")
    e("s_mov_b32 s87, 0x00020000")
    e(f"s_cmp_lg_u32 s2, {wg}")
    e("s_cbranch_scc1 9f")
    e("s_cmp_lg_u32 s3, 0")
    e("s_cbranch_scc1 9f")
    e("v_mov_b32 v120, 0")
    for i in range(1, n):
        e(f"s_sub_u32 s83, s{90+i}, s90")
        e("v_mov_b32 v121, s83")
        e(f"buffer_store_dword v121, v120, s[84:87], 0 offen offset:{4*i}")
    e("9:")

TRACE = os.environ.get("TRACE")
def trace_start(e):
    if not TRACE: return
    e("s_memrealtime s[96:97]")
    e("s_memtime s[98:99]")
    e("s_mov_b32 s82, s2")
def trace_end(e, kidx, tid=0):
    if not TRACE: return
    e("s_waitcnt vmcnt(0) lgkmcnt(0)")
    e("s_memrealtime s[92:93]")
    e("s_memtime s[94:95]")
    e("s_load_dwordx2 s[84:85], s[0:1], 96")
    e("s_getreg_b32 s90, hwreg(HW_REG_HW_ID)")
    e("s_getreg_b32 s91, hwreg(HW_REG_XCC_ID)")
    e("s_waitcnt lgkmcnt(0)")
    e(f"s_add_u32 s84, s84, {(64<<20) + kidx*65536}")
    e("s_addc_u32 s85, s85, 0")
    e("s_mov_b32 s86, 65536")
    e("s_mov_b32 s87, 0x00020000")
    e("s_lshl_b32 s91, s91, 24")
    e("s_and_b32 s90, s90, 0xffffff")
    e("s_or_b32 s90, s90, s91")
    e("s_sub_u32 s94, s94, s98")
    e("v_mov_b32 v124, s96")
    e("v_mov_b32 v125, s92")
    e("v_mov_b32 v126, s90")
    e("v_mov_b32 v127, s94")
    e("s_lshl_b32 s83, s82, 4")
    e("v_mov_b32 v121, s83")
    e(f"v_cmp_eq_u32 vcc, {tid}, v0")
    e("s_and_saveexec_b64 s[80:81], vcc")
    e("s_cbranch_execz 8f")
    e("buffer_store_dwordx4 v[124:127], v121, s[84:87], 0 offen")
    e("s_waitcnt vmcnt(0)")
    e("8:")

PROF = os.environ.get("PROF")
def pt(e, acc):
    if not PROF: return
    e("s_memtime s[88:89]")
    e("s_waitcnt lgkmcnt(0)")
    e("s_sub_u32 s90, s88, s87")
    e(f"s_add_u32 s{acc}, s{acc}, s90")
    e("s_mov_b32 s87, s88")
def pinit(e):
    if not PROF: return
    for i in range(80, 87): e(f"s_mov_b32 s{i}, 0")
    e("s_memtime s[88:89]")
    e("s_waitcnt lgkmcnt(0)")
    e("s_mov_b32 s87, s88")
def pdump(e, wave_off):
    if not PROF: return
    e("s_load_dwordx2 s[92:93], s[0:1], 88")
    e("s_waitcnt lgkmcnt(0)")
    e("s_mov_b32 s94, 256")
    e("s_mov_b32 s95, 0x00020000")
    e(f"s_cmp_lg_u32 s2, {PROF}")
    e("s_cbranch_scc1 7f")
    e("s_cmp_lg_u32 s3, 0")
    e("s_cbranch_scc1 7f")
    e("v_mov_b32 v120, 0")
    for i in range(7):
        e(f"v_mov_b32 v121, s{80+i}")
        e(f"buffer_store_dword v121, v120, s[92:95], 0 offen offset:{wave_off + 4*i}")
    e("s_waitcnt vmcnt(0)")
    e("7:")

PROF2 = os.environ.get("PROF2")
def q(e, idx, wv=0):
    if not PROF2: return
    e("s_memtime s[88:89]")
    e("s_waitcnt lgkmcnt(0)")
    e(f"s_mov_b32 s{90+idx}, s88")
def qdump(e, n, wv=0):
    if not PROF2: return
    e("s_load_dwordx2 s[84:85], s[0:1], 88")
    e("s_waitcnt lgkmcnt(0)")
    e("s_mov_b32 s86, 256")
    e("s_mov_b32 s87, 0x00020000")
    e(f"s_cmp_lg_u32 s2, {PROF2}")
    e("s_cbranch_scc1 6f")
    e(f"s_cmp_lg_u32 s3, {wv}")
    e("s_cbranch_scc1 6f")
    e(f"v_mov_b32 v120, {64 if wv else 0}")
    for i in range(1, n):
        e(f"s_sub_u32 s83, s{90+i}, s90")
        e("v_mov_b32 v121, s83")
        e(f"buffer_store_dword v121, v120, s[84:87], 0 offen offset:{4*i}")
    e("6:")

PROF4 = os.environ.get("PROF4")
P4_REGS = [50,52,54,56,58,72,74,76,78,80,82,84,86]
P4_LO = int(os.environ.get('P4LO', '4'))
def bar(e, b):
    k = b - P4_LO
    if PROF4 and 0 <= k < 6:
        e(f"s_memtime s[{P4_REGS[2*k]}:{P4_REGS[2*k]+1}]")
    e("s_barrier")
    if PROF4 and 0 <= k < 6:
        e(f"s_memtime s[{P4_REGS[2*k+1]}:{P4_REGS[2*k+1]+1}]")
def p4dump(e, lab):
    if not PROF4: return
    e("s_load_dwordx2 s[92:93], s[0:1], 88")
    e("s_waitcnt lgkmcnt(0)")
    e("s_mov_b32 s94, 4096")
    e("s_mov_b32 s95, 0x00020000")
    e(f"s_cmp_lg_u32 s2, {PROF4}")
    e(f"s_cbranch_scc1 {lab}")
    e("v_lshrrev_b32 v120, 6, v0")
    e("v_lshlrev_b32 v120, 6, v120")
    for i in range(12):
        e(f"v_mov_b32 v121, s{P4_REGS[i]}")
        e(f"buffer_store_dword v121, v120, s[92:95], 0 offen offset:{512 + 4*i}")
    e.label(lab)

def khead(name):
    return f""".globl {name}
.p2align 8
.type {name},@function
{name}:
"""

N_LN = 128
N_KV = 160
N_R1 = 135
N_R2 = 68
N_TC = 0 if "notc" in X2 else 80
N_K1 = N_LN+N_KV+N_R1+N_R2+N_TC
def k1():
    e = E()
    e(f"s_cmp_ge_u32 s2, {N_K1}")
    e("s_cbranch_scc1 K1_END")
    e(f"s_cmp_ge_u32 s2, {N_K1-N_TC}")
    e("s_cbranch_scc1 K1_TC")
    e(f"s_cmp_ge_u32 s2, {N_LN+N_KV}")
    e("s_cbranch_scc1 K1_RP")
    e("s_load_dwordx4 s[4:7], s[0:1], 0")
    e("s_load_dwordx4 s[8:11], s[0:1], 16")
    e("s_load_dwordx2 s[12:13], s[0:1], 96")
    e(f"s_cmp_ge_u32 s2, {N_LN}")
    e("s_cbranch_scc1 K1_KV")
    e("s_waitcnt lgkmcnt(0)")
    srd(e, 16, 4, 5, SZ_SD)
    srd_off(e, 20, 12, 13, WS_XN, SZ_SD)
    e("s_lshl_b32 s3, s2, 4")
    e("v_lshrrev_b32 v1, 4, v0")
    e("v_add_u32 v1, s3, v1")
    e("v_mul_u32_u24 v1, 1280, v1")
    e("v_and_b32 v2, 15, v0")
    e("v_lshlrev_b32 v2, 4, v2")
    e("v_add_u32 v1, v1, v2")
    for j in range(5):
        e(f"buffer_load_dwordx4 v[{4+4*j}:{7+4*j}], v1, s[16:19], 0 offen offset:{256*j}")
    e("s_waitcnt vmcnt(0)")
    for i in range(20):
        e(f"v_lshlrev_b32 v{32+2*i}, 16, v{4+i}")
        e(f"v_and_b32 v{33+2*i}, 0xffff0000, v{4+i}")
    e("v_add_f32 v24, v32, v33")
    e("v_add_f32 v25, v34, v35")
    for i in range(4, 40, 2):
        e(f"v_add_f32 v24, v24, v{32+i}")
        e(f"v_add_f32 v25, v25, v{33+i}")
    e("v_add_f32 v24, v24, v25")
    def red16(r):
        for sh in (8, 4, 2, 1):
            e("s_nop 1")
            e(f"v_add_f32_dpp v{r}, v{r}, v{r} row_ror:{sh} row_mask:0xf bank_mask:0xf")
    red16(24)
    e("s_mov_b32 s24, 0x3acccccd")
    e("v_mul_f32 v24, s24, v24")
    e("v_sub_f32 v26, v32, v24")
    e("v_mul_f32 v25, v26, v26")
    for i in range(1, 40):
        e(f"v_sub_f32 v26, v{32+i}, v24")
        e("v_fmac_f32 v25, v26, v26")
    red16(25)
    e("v_mul_f32 v25, s24, v25")
    e("v_cvt_pk_bf16_f32 v26, v24, v25")
    e("v_and_b32 v27, 0xffff0000, v26")
    e("v_lshlrev_b32 v26, 16, v26")
    e("v_add_f32 v27, 0x3727c5ac, v27")
    e("v_cvt_pk_bf16_f32 v27, v27, v27")
    e("v_lshlrev_b32 v27, 16, v27")
    e("v_sqrt_f32 v27, v27")
    e("s_nop 0")
    e("v_cvt_pk_bf16_f32 v27, v27, v27")
    e("v_lshlrev_b32 v27, 16, v27")
    e("v_rcp_f32 v28, v27")
    e("s_nop 0")
    for i in range(20):
        a, b = 32+2*i, 33+2*i
        e(f"v_sub_f32 v{a}, v{a}, v26")
        e(f"v_sub_f32 v{b}, v{b}, v26")
        e(f"v_cvt_pk_bf16_f32 v29, v{a}, v{b}")
        e(f"v_lshlrev_b32 v{a}, 16, v29")
        e(f"v_and_b32 v{b}, 0xffff0000, v29")
        e(f"v_mul_f32 v30, v{a}, v28")
        e(f"v_mul_f32 v31, v{b}, v28")
        e(f"v_fma_f32 v{a}, -v30, v27, v{a}")
        e(f"v_fma_f32 v{b}, -v31, v27, v{b}")
        e(f"v_fmac_f32 v30, v{a}, v28")
        e(f"v_fmac_f32 v31, v{b}, v28")
        e(f"v_cvt_pk_bf16_f32 v{4+i}, v30, v31")
    for j in range(5):
        e(f"buffer_store_dwordx4 v[{4+4*j}:{7+4*j}], v1, s[20:23], 0 offen offset:{256*j}")
    srd_off(e, 28, 12, 13, WS_XNP, SZ_SD)
    e("v_lshrrev_b32 v1, 4, v0")
    e("v_and_b32 v2, 15, v0")
    e("v_lshrrev_b32 v3, 2, v1")
    e("v_and_b32 v24, 3, v1")
    e("v_and_b32 v25, 3, v2")
    e("v_lshl_add_u32 v24, v24, 2, v25")
    e("v_xor_b32 v24, v24, v3")
    e("v_lshlrev_b32 v24, 4, v24")
    e("v_lshl_add_u32 v24, v3, 8, v24")
    e("v_lshrrev_b32 v2, 2, v2")
    e("v_lshl_add_u32 v24, v2, 14, v24")
    e("s_lshr_b32 s25, s2, 4")
    e("s_mul_i32 s25, s25, 327680")
    e("s_and_b32 s26, s2, 15")
    e("s_lshl_b32 s26, s26, 10")
    e("s_add_u32 s25, s25, s26")
    for j in range(5):
        e(f"buffer_store_dwordx4 v[{4+4*j}:{7+4*j}], v24, s[28:31], s25 offen")
        e("s_add_u32 s25, s25, 65536")
    e("s_endpgm")
    e.label("K1_TC")
    e("s_load_dwordx2 s[4:5], s[0:1], 32")
    e(f"s_sub_u32 s3, s2, {N_K1-N_TC}")
    e("s_lshl_b32 s3, s3, 15")
    e("v_lshlrev_b32 v1, 4, v0")
    e("s_waitcnt lgkmcnt(0)")
    srd(e, 16, 4, 5, SZ_SD)
    for i in range(8):
        e(f"buffer_load_dwordx4 v[{4+4*i}:{7+4*i}], v1, s[16:19], s3 offen")
        e("s_add_u32 s3, s3, 4096")
    e("s_waitcnt vmcnt(0)")
    e("s_endpgm")
    e.label("K1_RP")
    e("s_load_dwordx4 s[4:7], s[0:1], 56")
    e("s_load_dwordx2 s[8:9], s[0:1], 72")
    e("s_load_dwordx2 s[12:13], s[0:1], 96")
    e(f"s_sub_u32 s3, s2, {N_LN+N_KV}")
    e(f"s_cmp_ge_u32 s3, {N_R1}")
    e("s_cbranch_scc1 K1_RP2")
    e("s_waitcnt lgkmcnt(0)")
    srd(e, 16, 4, 5, D*F*2)
    srd(e, 20, 6, 7, D*F*2)
    srd_off(e, 24, 12, 13, WS_WP1, 2*D*F*2)
    e("v_lshrrev_b32 v1, 3, v0")
    e("v_and_b32 v2, 7, v0")
    e("v_bfe_u32 v3, v1, 1, 1")
    e("v_lshlrev_b32 v3, 2, v3")
    e("v_xor_b32 v2, v2, v3")
    e("v_mul_u32_u24 v1, 3456, v1")
    e("v_lshl_add_u32 v1, v2, 4, v1")
    e("v_lshlrev_b32 v2, 4, v0")
    e("s_lshl_b32 s28, s3, 15")
    for bq in range(4):
        e(f"s_lshl_b32 s29, s3, 2")
        e(f"s_add_u32 s29, s29, {bq}")
        e("s_mul_hi_u32 s30, s29, 0xcccccccd")
        e("s_lshr_b32 s30, s30, 4")
        e("s_mul_i32 s31, s30, 20")
        e("s_sub_u32 s31, s29, s31")
        e(f"s_mul_i32 s31, s31, {32*3456}")
        e("s_lshl_b32 s30, s30, 7")
        e("s_add_u32 s31, s31, s30")
        e(f"buffer_load_dwordx4 v[{8+8*bq}:{11+8*bq}], v1, s[16:19], s31 offen")
        e(f"buffer_load_dwordx4 v[{12+8*bq}:{15+8*bq}], v1, s[20:23], s31 offen")
    for q in range(8):
        e(f"s_waitcnt vmcnt({7-q})" if q < 7 else "s_waitcnt vmcnt(0)")
        e(f"buffer_store_dwordx4 v[{8+4*q}:{11+4*q}], v2, s[24:27], s28 offen")
        e("s_add_u32 s28, s28, 4096")
    e("s_endpgm")
    e.label("K1_RP2")
    e(f"s_sub_u32 s3, s3, {N_R1}")
    e("s_waitcnt lgkmcnt(0)")
    srd(e, 16, 8, 9, D*F*2)
    srd_off(e, 24, 12, 13, WS_WP2, D*F*2)
    e("s_lshl_b32 s28, s3, 11")
    e("v_add_u32 v1, s28, v0")
    e("v_lshlrev_b32 v2, 4, v1")
    for q in range(8):
        e(f"s_movk_i32 s29, {q*4096}" if q < 8 else "")
        e(f"buffer_load_dwordx4 v[{8+4*q}:{11+4*q}], v2, s[16:19], s29 offen")
    e("s_mov_b32 s30, 0xcccccccd")
    e(f"s_mov_b32 s31, {F*D//8}")
    for q in range(8):
        e(f"v_add_u32 v3, {256*q}, v1")
        e("v_mul_hi_u32 v4, v3, s30")
        e("v_lshrrev_b32 v4, 6, v4")
        e("v_mul_u32_u24 v5, 80, v4")
        e("v_sub_u32 v5, v3, v5")
        e("v_mul_u32_u24 v6, 6554, v5")
        e("v_lshrrev_b32 v6, 16, v6")
        e("v_mul_u32_u24 v7, 10, v6")
        e("v_sub_u32 v7, v5, v7")
        e("v_mul_u32_u24 v6, 1728, v6")
        e("v_add_u32 v6, v6, v4")
        e("v_mul_u32_u24 v6, 160, v6")
        e("v_lshl_add_u32 v6, v7, 4, v6")
        e("v_cmp_gt_u32 vcc, s31, v3")
        e("v_mov_b32 v7, 0x7fffffff")
        e(f"v_cndmask_b32 v{40+q}, v7, v6, vcc")
    for q in range(8):
        e(f"s_waitcnt vmcnt({7-q})")
        e(f"buffer_store_dwordx4 v[{8+4*q}:{11+4*q}], v{40+q}, s[24:27], 0 offen")
    e("s_endpgm")
    e.label("K1_KV")
    e(f"s_sub_u32 s3, s2, {N_LN}")
    e("s_mul_hi_u32 s14, s3, 0x33333334")
    e("s_mul_i32 s15, s14, 5")
    e("s_sub_u32 s15, s3, s15")
    e("s_waitcnt lgkmcnt(0)")
    srd(e, 16, 6, 7, SZ_SD)
    srd(e, 20, 8, 9, SZ_SD)
    srd(e, 24, 10, 11, D*4*2)
    srd_off(e, 28, 12, 13, WS_KVT, SZ_SD)
    e("v_and_b32 v1, 15, v0")
    e("v_lshrrev_b32 v2, 4, v0")
    e("s_lshl_b32 s32, s14, 6")
    e("v_lshlrev_b32 v3, 2, v2")
    e("v_add_u32 v3, s32, v3")
    e("v_mul_u32_u24 v4, 1280, v3")
    e("s_lshl_b32 s33, s15, 8")
    e("v_lshlrev_b32 v5, 4, v1")
    e("v_add_u32 v5, s33, v5")
    e("v_add_u32 v4, v4, v5")
    e("v_subrev_u32 v6, 3840, v4")
    for r in range(3):
        e(f"buffer_load_dwordx4 v[{16+4*r}:{19+4*r}], v6, s[16:19], 0 offen offset:{1280*r}")
    for r in range(3):
        e(f"buffer_load_dwordx4 v[{28+4*r}:{31+4*r}], v4, s[16:19], 0 offen offset:{1280*r}")
    e("buffer_load_dwordx4 v[40:43], v4, s[16:19], 0 offen offset:3840")
    for r in range(4):
        e(f"buffer_load_dwordx4 v[{44+4*r}:{47+4*r}], v4, s[20:23], 0 offen offset:{1280*r}")
    e("v_lshlrev_b32 v7, 2, v5")
    for j in range(4):
        e(f"buffer_load_dwordx4 v[{60+4*j}:{63+4*j}], v7, s[24:27], 0 offen offset:{16*j}")
    e("s_mov_b32 s34, 0x05040100")
    e("s_mov_b32 s35, 0x07060302")
    e("v_lshlrev_b32 v8, 3, v1")
    e("v_mul_u32_u24 v8, 144, v8")
    e("v_lshrrev_b32 v9, 1, v2")
    e("v_lshlrev_b32 v9, 4, v9")
    e("v_add_u32 v8, v8, v9")
    e("v_and_b32 v9, 1, v2")
    e("v_lshlrev_b32 v9, 3, v9")
    e("v_xor_b32 v9, 8, v9")
    e("v_add_u32 v8, v8, v9")
    e("s_waitcnt vmcnt(0)")
    for p in range(4):
        for h in range(2):
            c = 2*p+h
            e(f"v_lshlrev_b32 v{80+4*h}, 16, v{60+2*c}")
            e(f"v_and_b32 v{81+4*h}, 0xffff0000, v{60+2*c}")
            e(f"v_lshlrev_b32 v{82+4*h}, 16, v{61+2*c}")
            e(f"v_and_b32 v{83+4*h}, 0xffff0000, v{61+2*c}")
        for r in range(7):
            e(f"v_lshlrev_b32 v{88+2*r}, 16, v{16+4*r+p}")
            e(f"v_and_b32 v{89+2*r}, 0xffff0000, v{16+4*r+p}")
        for i in range(4):
            for t in range(4):
                r = i + t
                w = 3 - t
                e(f"v_mul_f32 v104, v{88+2*r}, v{80+w}")
                e(f"v_mul_f32 v105, v{89+2*r}, v{84+w}")
                e("v_cvt_pk_bf16_f32 v106, v104, v105")
                if t == 0:
                    e("v_lshlrev_b32 v102, 16, v106")
                    e("v_and_b32 v103, 0xffff0000, v106")
                else:
                    e("v_lshlrev_b32 v104, 16, v106")
                    e("v_and_b32 v105, 0xffff0000, v106")
                    e("v_add_f32 v102, v102, v104")
                    e("v_add_f32 v103, v103, v105")
                    e("v_cvt_pk_bf16_f32 v106, v102, v103")
                    e("v_lshlrev_b32 v102, 16, v106")
                    e("v_and_b32 v103, 0xffff0000, v106")
            e(f"v_lshlrev_b32 v104, 16, v{44+4*i+p}")
            e(f"v_and_b32 v105, 0xffff0000, v{44+4*i+p}")
            e("v_mul_f32 v102, v102, v104")
            e("v_mul_f32 v103, v103, v105")
            e(f"v_cvt_pk_bf16_f32 v{108+i}, v102, v103")
        e("v_perm_b32 v112, v110, v111, s34")
        e("v_perm_b32 v113, v108, v109, s34")
        e(f"ds_write_b64 v8, v[112:113] offset:{(2*p)*144}")
        e("v_perm_b32 v114, v110, v111, s35")
        e("v_perm_b32 v115, v108, v109, s35")
        e(f"ds_write_b64 v8, v[114:115] offset:{(2*p+1)*144}")
    e("s_waitcnt lgkmcnt(0)")
    e("s_barrier")
    e("v_lshrrev_b32 v1, 1, v0")
    e("v_and_b32 v2, 1, v0")
    e("v_mul_u32_u24 v3, 144, v1")
    e("v_lshlrev_b32 v4, 6, v2")
    e("v_add_u32 v3, v3, v4")
    for j in range(4):
        e(f"ds_read_b128 v[{16+4*j}:{19+4*j}], v3 offset:{16*j}")
    e("s_lshl_b32 s33, s15, 7")
    e("v_add_u32 v5, s33, v1")
    e("v_lshlrev_b32 v5, 12, v5")
    e("s_lshl_b32 s32, s14, 7")
    e("v_add_u32 v5, s32, v5")
    e("v_add_u32 v5, v5, v4")
    e("s_waitcnt lgkmcnt(0)")
    for j in range(4):
        e(f"buffer_store_dwordx4 v[{16+4*j}:{19+4*j}], v5, s[28:31], 0 offen offset:{16*j}")
    e.label("K1_END")
    e("s_endpgm")
    return e.text()


N_K2 = 256
COPY = 4288
KVSZ = 33*144
CP_OFF = 2*KVSZ
SC_OFF = CP_OFF + 8*COPY
CV_SZ = SC_OFF
K2_NS = 4
K2_STG = 24576
CV_A = K2_NS*K2_STG
K2_LDS = max(CV_A + CV_SZ, 3*CV_SZ)
PB0 = 1
LB0 = 2
if os.environ.get("CS"):
    exec(os.environ["CS"])
C1_E = PB0 + 16

class VQ:
    def __init__(self, e): self.q = []; self.e = e
    def issue(self, tag, n): self.q += [tag]*n
    def wait(self, tags):
        idx = max([i for i, t in enumerate(self.q) if t in tags], default=-1)
        if idx < 0: return
        n = len(self.q) - 1 - idx
        self.e(f"s_waitcnt vmcnt({min(n, 63)})")
        self.q = self.q[idx+1:]

def write_copies(e, d, lab, ro):
    e(f"ds_write_b128 v117, v[{d}:{d+3}] offset:{ro}")
    for i in range(4):
        e(f"v_alignbit_b32 v{16+i}, v{d+i+1}, v{d+i}, 16")
    e(f"ds_write_b128 v117, v[16:19] offset:{ro + COPY}")
    for i in range(4):
        e(f"v_mov_b32 v{20+i}, v{d+i+1}")
    e(f"ds_write_b128 v117, v[20:23] offset:{ro + 2*COPY}")
    for i in range(4):
        e(f"v_alignbit_b32 v{24+i}, v{d+i+2}, v{d+i+1}, 16")
    e(f"ds_write_b128 v117, v[24:27] offset:{ro + 3*COPY}")
    e("s_cmp_eq_u32 s39, 0")
    e(f"s_cbranch_scc0 {lab}")
    e("v_mov_b32 v28, 0")
    e(f"v_lshlrev_b32 v29, 16, v{d}")
    e("v_mov_b32 v32, 0")
    e(f"v_mov_b32 v33, v{d}")
    e("v_mov_b32 v34, v29")
    e("v_mov_b32 v35, v16")
    e("s_mov_b64 exec, 1")
    e(f"ds_write_b64 v117, v[28:29] offset:{ro + COPY - 8}")
    e(f"ds_write_b64 v117, v[32:33] offset:{ro + 2*COPY - 8}")
    e(f"ds_write_b64 v117, v[34:35] offset:{ro + 3*COPY - 8}")
    e("s_mov_b64 exec, -1")
    e.label(lab)

def conv_main(e):
    ACCS = [16, 112]; FL, FH, BB = 32, 56, 80
    lq = []
    def wait(tags):
        idx = max((i for i, t in enumerate(lq) if t in tags), default=-1)
        if idx >= 0: e(f"s_waitcnt lgkmcnt({min(len(lq) - 1 - idx, 15)})")
    def put(it):
        if it[0] is None: wait(it[1]); return
        e(it[0])
        for _ in range(it[2] if len(it) > 2 else 1):
            if it[1] is not None: lq.append(it[1])
    def lda(F):
        c, f = divmod(F, 17)
        sl = F % 6
        r = []
        for (R, va) in ((FL, 8), (FH, 9)):
            o = 4*COPY*c + 64*f
            r.append((f"ds_read_b64 v[{R+4*sl}:{R+4*sl+1}], v{va} offset:{o}", ("a", F)))
            r.append((f"ds_read_b64 v[{R+4*sl+2}:{R+4*sl+3}], v{va} offset:{o+8}", ("a", F)))
        return r
    def ldb(P):
        c, p = divmod(P, 16)
        st = p >> 1; kk = 1 - (p & 1)
        bb = BB + 8*(P & 3)
        pre = ""
        if p & 1 == 0:
            pre = f"v_subrev_u32 v12, {144*st}, v10\nv_max_i32 v3, v12, v11\n"
        return [(pre + f"ds_read_b128 v[{bb}:{bb+3}], v3 offset:{KVSZ*c + 64*kk}", ("b", P)),
                (f"ds_read_b128 v[{bb+4}:{bb+7}], v12 offset:{KVSZ*c + 16*144 + 64*kk}", ("b", P))]
    def dterm_ld(c):
        return [(f"ds_read_b64 v[{4+2*h}:{5+2*h}], v13 offset:{KVSZ*c + 16*144*h}", ("k", c)) for h in range(2)]
    def dterm(c, T):
        sch = 65 if c == 0 else 69
        r = [(f"s_and_b32 s29, s{sch}, 1\ns_lshl_b32 s29, s29, 4\ns_lshr_b32 s29, s{70+c}, s29\ns_lshl_b32 s29, s29, 16", None), (None, [("k", c)])]
        for h in range(2):
            k0, k1 = 4+2*h, 5+2*h
            r += [(f"v_and_b32 v{T}, 0xffff0000, v{k1}", None), (f"v_lshlrev_b32 v{T+1}, 16, v{k1}", None),
                  (f"v_and_b32 v{T+2}, 0xffff0000, v{k0}", None), (f"v_lshlrev_b32 v{T+3}, 16, v{k0}", None)]
            r += [(f"v_mul_f32 v{T+j}, s29, v{T+j}", None) for j in range(4)]
            r += [(f"v_cvt_pk_bf16_f32 v{k0}, v{T}, v{T+1}", None), (f"v_cvt_pk_bf16_f32 v{k1}, v{T+2}, v{T+3}", None)]
        return r
    def exch(c):
        A = ACCS[c]
        t = ["s_cmp_eq_u32 s38, 0", f"s_cbranch_scc1 CX0_{c}"]
        t += [f"buffer_store_dwordx4 v[{A+4*h}:{A+4*h+3}], v14, s[60:63], 0 offen offset:{2048*c + 1024*h}" for h in range(2)]
        t += [f"v_mov_b32 v{A+i}, v{A+8+i}" for i in range(8)]
        t += [f"s_branch CX1_{c}", f"CX0_{c}:"]
        t += [f"buffer_store_dwordx4 v[{A+8+4*h}:{A+8+4*h+3}], v14, s[60:63], 0 offen offset:{2048*c + 1024*h}" for h in range(2)]
        t += [f"CX1_{c}:"]
        return [("\n".join(t), None)]
    def xread(c):
        A = ACCS[c]
        return [(f"buffer_load_dwordx4 v[{A+8+4*h}:{A+11+4*h}], v15, s[60:63], 0 offen offset:{2048*c + 1024*h}", None) for h in range(2)]
    def fin(c, h):
        sch = 65 if c == 0 else 69
        o = ACCS[c] + 4*h; p = ACCS[c] + 8 + 4*h
        r = [("s_waitcnt vmcnt(0)", None)] if h == 0 else []
        r += [(f"v_add_f32 v{o+j}, v{o+j}, v{p+j}", None) for j in range(4)]
        r += [(f"v_cvt_pk_bf16_f32 v{p}, v{o}, v{o+1}", None), (f"v_cvt_pk_bf16_f32 v{p+1}, v{o+2}, v{o+3}", None)]
        r += [(f"v_lshlrev_b32 v{o}, 16, v{p}", None), (f"v_and_b32 v{o+1}, 0xffff0000, v{p}", None),
              (f"v_lshlrev_b32 v{o+2}, 16, v{p+1}", None), (f"v_and_b32 v{o+3}, 0xffff0000, v{p+1}", None)]
        for k in range(2):
            r += [(f"v_lshlrev_b32 v{p+2}, 16, v{4+2*h+k}", None), (f"v_and_b32 v{p+3}, 0xffff0000, v{4+2*h+k}", None),
                  (f"v_add_f32 v{o+2*k}, v{o+2*k}, v{p+2}", None), (f"v_add_f32 v{o+2*k+1}, v{o+2*k+1}, v{p+3}", None)]
        r += [(f"v_cvt_pk_bf16_f32 v{p}, v{o}, v{o+1}", None), (f"v_cvt_pk_bf16_f32 v{p+1}, v{o+2}, v{o+3}", None)]
        r += [(f"s_lshl_b32 s48, s{sch}, 12\nbuffer_store_dwordx2 v[{p}:{p+1}], v2, s[24:27], s48 offen offset:{2048*h}", None)]
        return r
    extra = {P: [] for P in range(32)}
    tail = {P: [] for P in range(32)}
    tail[16] = exch(0)
    tail[19] = [("s_waitcnt vmcnt(0)", None)]
    extra[20] = xread(0)
    extra[24] = fin(0, 0)
    extra[25] = fin(0, 1)
    tail[25] = [("s_cmp_ge_u32 s69, 640\ns_cbranch_scc1 K2_END", None)]
    extra[26] = dterm_ld(1)
    d1 = dterm(1, 16)
    extra[27] = d1[:12]; extra[28] = d1[12:]
    bcur = 0
    while bcur < PB0:
        bar(e, bcur); bcur += 1
    for it in dterm_ld(0) + lda(0) + lda(1) + ldb(0) + lda(2) + ldb(1) + lda(3) + ldb(2) + dterm(0, 16): put(it)
    nfa = 4; nfb = 3
    for P in range(32):
        c, p = divmod(P, 16)
        if P & 1 == 0:
            bar(e, bcur); bcur += 1
        if P == 0: e("s_setprio 3")
        F0 = 17*c + p
        ops = []
        while nfa <= F0 + 4 and nfa < 34:
            ops += lda(nfa); nfa += 1
        while nfb <= P + 3 and nfb < 32:
            ops += ldb(nfb); nfb += 1
        ops = extra[P][:0] + ops
        ex = list(extra[P])
        wait([("a", F0), ("a", F0+1), ("b", P)])
        bb = BB + 8*(P & 3)
        A = ACCS[c]
        mfs = []
        for mu in range(2):
            fl = FL + 4*((F0+mu) % 6)
            a0 = A + 8*mu; a1 = a0 + 4
            c0 = "0" if p == 0 else f"v[{a0}:{a0+3}]"
            c1 = "0" if p == 0 else f"v[{a1}:{a1+3}]"
            mfs.append(f"v_mfma_f32_16x16x32_bf16 v[{a0}:{a0+3}], v[{fl}:{fl+3}], v[{bb}:{bb+3}], {c0}")
            mfs.append(f"v_mfma_f32_16x16x32_bf16 v[{a1}:{a1+3}], v[{fl}:{fl+3}], v[{bb+4}:{bb+7}], {c1}")
        for mu in range(2):
            fh = FH + 4*((F0+mu) % 6)
            a1 = A + 8*mu + 4
            mfs.append(f"v_mfma_f32_16x16x32_bf16 v[{a1}:{a1+3}], v[{fh}:{fh+3}], v[{bb}:{bb+3}], v[{a1}:{a1+3}]")
        for i in range(6):
            e(mfs[i])
            no = (len(ops) + 5 - i) // (6 - i)
            for it in ops[:no]: put(it)
            ops = ops[no:]
            ne = (len(ex) + 5 - i) // (6 - i)
            for it in ex[:ne]: put(it)
            ex = ex[ne:]
        for it in tail[P]: put(it)
        if P == 15: q(e, 8, 8)
    q(e, 10, 8)
    e("s_setprio 0")
    e("s_nop 7")
    for it in exch(1): put(it)
    e("s_waitcnt vmcnt(0)")
    bar(e, bcur); bcur += 1
    assert bcur == C1_E + 1
    for it in xread(1): put(it)
    while bcur < 20:
        bar(e, bcur); bcur += 1
    for it in fin(1, 0) + fin(1, 1): put(it)

def k2():
    e = E()
    NS = K2_NS; STG = K2_STG; NT = 20
    e(f"s_cmp_ge_u32 s2, {N_K2}")
    e("s_cbranch_scc1 K2_END")
    trace_start(e)
    e("s_load_dwordx4 s[4:7], s[0:1], 32")
    e("s_load_dwordx2 s[12:13], s[0:1], 96")
    e("v_lshrrev_b32 v1, 6, v0")
    e("s_nop 0")
    e("v_readfirstlane_b32 s3, v1")
    e("v_and_b32 v1, 63, v0")
    e("v_lshlrev_b32 v2, 4, v1")
    e("s_and_b32 s14, s2, 7")
    e("s_lshr_b32 s15, s2, 3")
    e("s_lshr_b32 s28, s14, 2")
    e("s_lshl_b32 s29, s28, 1")
    e("s_sub_u32 s29, 28, s29")
    e("s_and_b32 s31, s14, 3")
    e("s_mul_i32 s32, s31, s29")
    e("s_mul_i32 s33, s28, 112")
    e("s_add_u32 s32, s32, s33")
    e("s_add_u32 s65, s32, s15")
    e("s_lshl_b32 s65, s65, 1")
    e("s_add_u32 s69, s65, 1")
    e(f"s_mov_b32 s66, {CV_A}")
    e("s_cmp_lt_u32 s15, s29")
    e("s_cselect_b32 s64, 1, 0")
    e("s_cbranch_scc1 K2_R")
    e("s_sub_u32 s32, 32, s29")
    e("s_mul_i32 s32, s32, s31")
    e("s_lshl_b32 s33, s28, 4")
    e("s_add_u32 s32, s32, s33")
    e("s_add_u32 s32, s32, s15")
    e("s_sub_u32 s32, s32, s29")
    e("s_add_u32 s65, s32, 432")
    e("s_add_u32 s69, s65, 120")
    e("s_mov_b32 s66, 0")
    e.label("K2_R")
    e("s_mul_i32 s76, s28, 14")
    e("s_lshr_b32 s33, s15, 1")
    e("s_add_u32 s76, s76, s33")
    e("s_lshl_b32 s77, s31, 1")
    e("s_and_b32 s33, s15, 1")
    e("s_add_u32 s77, s77, s33")
    e("s_waitcnt lgkmcnt(0)")
    srd(e, 16, 4, 5, SZ_SD)
    e("s_cmp_lt_u32 s3, 12")
    e("s_cbranch_scc1 K2_CW")
    e("s_sub_u32 s3, s3, 12")
    e("s_cmp_eq_u32 s64, 0")
    e("s_cbranch_scc1 K2_END")
    srd_off(e, 52, 12, 13, WS_XNP, SZ_SD)
    srd_off(e, 56, 12, 13, WS_WP1, 2*D*F*2)
    e("s_lshl_b32 s72, s3, 13")
    e("s_lshl_b32 s73, s3, 12")
    e("s_mul_i32 s74, s77, 327680")
    e("s_add_u32 s74, s74, s72")
    e("s_mul_i32 s75, s76, 163840")
    e("s_add_u32 s75, s75, s73")
    e("s_add_u32 s73, s73, 16384")
    def g1_dma():
        e("s_mov_b32 m0, s72")
        e("s_add_u32 s34, s74, 4096")
        for i in range(4):
            e(f"buffer_load_dwordx4 v2, s[52:55], s74 offen offset:{i*1024} lds")
        e("s_add_u32 m0, s72, 4096")
        e("s_add_u32 s74, s74, 16384")
        for i in range(4):
            e(f"buffer_load_dwordx4 v2, s[52:55], s34 offen offset:{i*1024} lds")
        e("s_mov_b32 m0, s73")
        e(f"s_add_u32 s72, s72, {STG}")
        for i in range(4):
            e(f"buffer_load_dwordx4 v2, s[56:59], s75 offen offset:{i*1024} lds")
        e("s_add_u32 s75, s75, 8192")
        e(f"s_add_u32 s73, s73, {STG}")
    def lst():
        if PROF2:
            e("s_memtime s[88:89]")
            e("s_waitcnt lgkmcnt(0)")
            e("v_cmp_eq_u32 vcc, s81, v1")
            e("v_mov_b32 v21, s88")
            e("v_cndmask_b32 v20, v20, v21, vcc")
            e("s_add_u32 s81, s81, 1")
    e("s_mov_b32 s81, 0")
    lst()
    e("s_mov_b32 s79, 0")
    e(f"s_mov_b32 s80, {NS*STG}")
    e.label("K2_LP")
    g1_dma()
    e("s_add_u32 s79, s79, 1")
    e(f"s_cmp_lg_u32 s79, {LB0}")
    e("s_cbranch_scc1 K2_LP2")
    lst()
    e(f"s_waitcnt vmcnt({12*(LB0-1)})")
    e("s_barrier")
    lst()
    e.label("K2_LP2")
    e(f"s_cmp_lt_u32 s79, {NS-1}")
    e("s_cbranch_scc1 K2_LP")
    e.label("K2_LGL")
    e(f"s_waitcnt vmcnt({12*(NS-3)})")
    e("s_barrier")
    lst()
    g1_dma()
    e("s_cmp_ge_u32 s72, s80")
    e("s_cselect_b32 s33, s80, 0")
    e("s_sub_u32 s72, s72, s33")
    e("s_sub_u32 s73, s73, s33")
    e("s_add_u32 s79, s79, 1")
    e(f"s_cmp_lt_u32 s79, {NT}")
    e("s_cbranch_scc1 K2_LGL")
    for b in range(NT-NS+2, (max(NT, C1_E+1) if PROF2 else NT)):
        e(f"s_waitcnt vmcnt({12*max(NT-1-b, 0)})")
        e("s_barrier")
        lst()
    if PROF2:
        e("s_load_dwordx2 s[84:85], s[0:1], 88")
        e("s_waitcnt lgkmcnt(0)")
        e("s_mov_b32 s86, 256")
        e("s_mov_b32 s87, 0x00020000")
        e(f"s_cmp_lg_u32 s2, {PROF2}")
        e("s_cbranch_scc1 K2_END")
        e("s_cmp_lg_u32 s3, 0")
        e("s_cbranch_scc1 K2_END")
        e("v_lshlrev_b32 v120, 2, v1")
        e("buffer_store_dword v20, v120, s[84:87], 0 offen offset:128")
    e("s_endpgm")
    e.label("K2_CW")
    e("s_cmp_lt_u32 s3, 8")
    e("s_cselect_b32 s33, s64, 0")
    e("s_cmp_eq_u32 s33, 1")
    e("s_cbranch_scc1 K2_G")
    srd_off(e, 20, 12, 13, WS_KVT, SZ_SD)
    srd_off(e, 24, 12, 13, WS_Y2T, SZ_SD)
    q(e, 0, 8)
    e("s_and_b32 s39, s3, 3")
    e("s_lshr_b32 s38, s3, 2")
    e("s_cmp_eq_u32 s64, 1")
    e("s_cselect_b32 s38, 0, s38")
    e("s_mul_i32 s33, s38, 40")
    e("s_add_u32 s65, s65, s33")
    e("s_add_u32 s69, s69, s33")
    e(f"s_mul_i32 s33, s38, {CV_SZ}")
    e("s_add_u32 s66, s66, s33")
    e("s_lshr_b32 s38, s39, 1")
    e("s_min_u32 s68, s69, 639")
    e("s_lshr_b32 s28, s65, 1")
    e("s_lshl_b32 s28, s28, 2")
    e("s_load_dword s70, s[6:7], s28")
    e("s_lshr_b32 s28, s68, 1")
    e("s_lshl_b32 s28, s28, 2")
    e("s_load_dword s71, s[6:7], s28")
    e("s_lshl_b32 s32, s65, 12")
    e("s_lshl_b32 s33, s68, 12")
    e("v_lshl_add_u32 v16, s39, 6, v1")
    e("v_lshlrev_b32 v12, 4, v16")
    e("buffer_load_dwordx4 v[104:107], v12, s[16:19], s32 offen")
    e("buffer_load_dwordx2 v[108:109], v12, s[16:19], s32 offen offset:16")
    e("buffer_load_dwordx4 v[4:7], v12, s[20:23], s32 offen")
    e("buffer_load_dwordx4 v[120:123], v12, s[16:19], s33 offen")
    e("buffer_load_dwordx2 v[124:125], v12, s[16:19], s33 offen offset:16")
    e("buffer_load_dwordx4 v[112:115], v12, s[20:23], s33 offen")
    e(f"s_add_u32 s34, s66, {CP_OFF + 128}")
    e("v_add_u32 v117, s34, v12")
    for i in range(4):
        e(f"v_mov_b32 v{28+i}, 0")
    e("v_lshrrev_b32 v21, 3, v1")
    e(f"v_mul_u32_u24 v20, {COPY}, v21")
    e("v_and_b32 v21, 7, v1")
    e("v_lshl_add_u32 v20, v21, 4, v20")
    e(f"s_add_u32 s34, s66, {CP_OFF}")
    e("v_add_u32 v20, s34, v20")
    e("v_and_b32 v22, 15, v1")
    e("v_bfe_u32 v21, v1, 4, 1")
    e(f"v_mul_u32_u24 v21, {KVSZ}, v21")
    e("v_lshl_add_u32 v21, v22, 4, v21")
    e("v_add_u32 v21, s66, v21")
    e("v_cmp_gt_u32 vcc, 9, v22")
    e("s_mov_b32 vcc_hi, 0")
    e("s_cmp_eq_u32 s39, 0")
    e("s_cbranch_scc0 CF_0")
    e("ds_write_b128 v20, v[28:31]")
    e("s_and_saveexec_b64 s[36:37], vcc")
    e("ds_write_b128 v21, v[28:31]")
    e("s_mov_b64 exec, s[36:37]")
    e.label("CF_0")
    e("v_lshrrev_b32 v118, 3, v16")
    e("v_mul_u32_u24 v118, 144, v118")
    e("v_and_b32 v26, 7, v16")
    e("v_lshl_add_u32 v118, v26, 4, v118")
    e("s_add_u32 s34, s66, 144")
    e("v_add_u32 v118, s34, v118")
    e("v_and_b32 v40, 15, v1")
    e("v_lshrrev_b32 v41, 4, v1")
    e("v_add_u32 v16, 1, v40")
    e("v_and_b32 v16, 3, v16")
    e(f"v_mul_u32_u24 v8, {COPY - 2}, v16")
    e("v_lshl_add_u32 v8, v40, 1, v8")
    e("v_lshlrev_b32 v17, 4, v41")
    e("v_sub_u32 v8, v8, v17")
    e("s_lshl_b32 s41, s38, 10")
    e("s_and_b32 s42, s39, 1")
    e("s_lshl_b32 s42, s42, 5")
    e("s_add_u32 s42, s42, s41")
    e("s_add_u32 s42, s42, s66")
    e(f"s_add_u32 s42, s42, {CP_OFF + 2*(64-7) - 64}")
    e("v_add_u32 v8, s42, v8")
    e("v_add_u32 v9, 2048, v8")
    e("v_mul_u32_u24 v10, 144, v40")
    e("v_lshlrev_b32 v11, 4, v41")
    e("v_add_u32 v11, s66, v11")
    e("v_add_u32 v10, v10, v11")
    e("s_mul_i32 s43, s38, 1152")
    e("s_sub_u32 s43, 144, s43")
    e("v_add_u32 v10, s43, v10")
    e("s_mul_i32 s44, s2, 12")
    e("s_add_u32 s44, s44, s3")
    e("s_xor_b32 s45, s44, 2")
    e("s_lshl_b32 s44, s44, 12")
    e("s_lshl_b32 s45, s45, 12")
    e("v_add_u32 v14, s44, v2")
    e("v_add_u32 v15, s45, v2")
    e("v_mul_u32_u24 v13, 144, v40")
    e("v_lshrrev_b32 v42, 1, v41")
    e("v_lshl_add_u32 v13, v42, 4, v13")
    e("v_and_b32 v42, 1, v41")
    e("v_lshlrev_b32 v42, 3, v42")
    e("v_xor_b32 v42, 8, v42")
    e("v_add_u32 v13, v13, v42")
    e("s_lshl_b32 s46, s39, 5")
    e("s_add_u32 s47, s46, s66")
    e("s_add_u32 s47, s47, 144")
    e("v_add_u32 v13, s47, v13")
    e("v_lshlrev_b32 v2, 7, v40")
    e("v_lshl_add_u32 v2, v41, 3, v2")
    e("v_add_u32 v2, s46, v2")
    e("s_waitcnt vmcnt(4)")
    write_copies(e, 104, "CF_1", 0)
    e("s_waitcnt vmcnt(3)")
    e("ds_write_b128 v118, v[4:7]")
    e("s_waitcnt vmcnt(1)")
    write_copies(e, 120, "CF_2", 4*COPY)
    e("s_waitcnt vmcnt(0)")
    e(f"ds_write_b128 v118, v[112:115] offset:{KVSZ}")
    e("s_waitcnt lgkmcnt(0)")
    srd_off(e, 60, 12, 13, WS_XCH, 256*12*4096)
    q(e, 5, 8)
    conv_main(e)
    q(e, 11, 8)
    if PROF2 or TRACE: e("s_waitcnt vmcnt(0)")
    q(e, 7, 8)
    qdump(e, 12, 8)
    p4dump(e, "P4_C")
    trace_end(e, 0, 512)
    e("s_endpgm")
    e.label("K2_G")
    q(e, 0)
    srd_off(e, 60, 12, 13, WS_H, SZ_H)
    e("s_lshr_b32 s47, s3, 1")
    e("s_and_b32 s48, s3, 1")
    e("v_and_b32 v4, 31, v1")
    e("v_lshrrev_b32 v3, 5, v1")
    e("s_lshl_b32 s49, s47, 6")
    e("v_add_u32 v4, s49, v4")
    e("v_lshrrev_b32 v7, 2, v4")
    e("v_and_b32 v5, 3, v4")
    e("v_lshl_add_u32 v5, v5, 2, v3")
    e("v_and_b32 v6, 3, v7")
    e("v_xor_b32 v5, v5, v6")
    e("v_lshlrev_b32 v5, 4, v5")
    e("v_lshl_add_u32 v12, v7, 8, v5")
    e("v_xor_b32 v13, 32, v12")
    e("v_lshrrev_b32 v8, 4, v1")
    e("v_bfe_u32 v3, v1, 2, 2")
    e("v_and_b32 v4, 3, v1")
    e("v_lshrrev_b32 v5, 1, v8")
    e("v_lshl_add_u32 v5, v5, 3, v3")
    e("v_lshlrev_b32 v5, 7, v5")
    e("v_and_b32 v6, 1, v8")
    e("v_lshlrev_b32 v6, 1, v6")
    e("v_lshrrev_b32 v7, 1, v4")
    e("v_add_u32 v6, v6, v7")
    e("s_lshl_b32 s49, s48, 2")
    e("v_add_u32 v6, s49, v6")
    e("v_bfe_u32 v7, v3, 1, 1")
    e("v_lshlrev_b32 v7, 2, v7")
    e("v_xor_b32 v6, v6, v7")
    e("v_lshl_add_u32 v5, v6, 4, v5")
    e("v_and_b32 v7, 1, v4")
    e("v_lshl_add_u32 v5, v7, 3, v5")
    e("v_add_u32 v14, 16384, v5")
    G0, U0 = 64, 96
    for i in range(64):
        e(f"v_mov_b32 v{64+i}, 0")
    e("v_add_u32 v9, 0x10000, v12")
    e("v_add_u32 v10, 0x10000, v13")
    e("v_add_u32 v11, 0x10000, v14")
    def frag_ops(g):
        if "nofr" in X2: return []
        t = g >> 1; ks = g & 1; fb = 16 + 16*(g % 3)
        sb = (t % NS)*STG
        hi64 = sb >= 65536
        if hi64: sb -= 65536
        xa = (9 if hi64 else 12) + ks; wa = 11 if hi64 else 14
        r = []
        for mat in range(2):
            for hi in range(2):
                rr = fb + 8 + 4*mat + 2*hi
                r.append(f"ds_read_b64_tr_b16 v[{rr}:{rr+1}], v{wa} offset:{sb + mat*4096 + ks*2048 + hi*512}")
        for mi in range(2):
            r.append(f"ds_read_b128 v[{fb+4*mi}:{fb+4*mi+3}], v{xa} offset:{sb + mi*2048}")
        return r
    def frag_loads(g):
        for x in frag_ops(g): e(x)
    def mf(g, ops):
        fb = 16 + 16*(g % 3)
        ms = []
        for mi in range(2):
            x = fb+4*mi
            ms.append(f"v_mfma_f32_32x32x16_bf16 v[{G0+16*mi}:{G0+16*mi+15}], v[{fb+8}:{fb+11}], v[{x}:{x+3}], v[{G0+16*mi}:{G0+16*mi+15}]")
            ms.append(f"v_mfma_f32_32x32x16_bf16 v[{U0+16*mi}:{U0+16*mi+15}], v[{fb+12}:{fb+15}], v[{x}:{x+3}], v[{U0+16*mi}:{U0+16*mi+15}]")
        grp = [ops[0:2], ops[2:4], ops[4:5], ops[5:6]]
        for i in range(4):
            e(ms[i])
            for x in grp[i]: e(x)
    e("v_lshrrev_b32 v3, 5, v1")
    e("v_and_b32 v4, 31, v1")
    e("v_lshlrev_b32 v4, 4, v4")
    e("v_lshl_add_u32 v4, v3, 10, v4")
    e("s_lshl_b32 s46, s77, 2")
    e("s_add_u32 s46, s46, s47")
    e(f"s_mul_i32 s46, s46, {27*8192}")
    e("s_lshl_b32 s49, s76, 13")
    e("s_add_u32 s46, s46, s49")
    e("s_lshl_b32 s49, s48, 12")
    e("s_add_u32 s46, s46, s49")
    q(e, 1)
    e("s_barrier")
    q(e, 2)
    frag_loads(0); frag_loads(1)
    for g in range(2*NT):
        ops = []
        if g + 2 < 2*NT:
            if g & 1 == 0: bar(e, (g+2)//2)
            ops = frag_ops(g+2)
        e(f"s_waitcnt lgkmcnt({6*min(1, 2*NT-1-g)})")
        mf(g, ops)
    q(e, 3)
    gb = NT
    if C1_E >= gb: e("s_barrier"); gb += 1
    e("s_nop 15")
    for mi in range(2):
        for pi in range(2):
            o = 16 + 4*(2*mi+pi)
            for ii in range(2):
                i = 2*pi + ii
                g = G0+16*mi+4*i; u = U0+16*mi+4*i
                for pr in range(2):
                    e(f"v_cvt_pk_bf16_f32 v40, v{g+2*pr}, v{g+2*pr+1}")
                    e(f"v_cvt_pk_bf16_f32 v41, v{u+2*pr}, v{u+2*pr+1}")
                    e("v_lshlrev_b32 v42, 16, v40")
                    e("v_and_b32 v43, 0xffff0000, v40")
                    e("v_lshlrev_b32 v44, 16, v41")
                    e("v_and_b32 v45, 0xffff0000, v41")
                    e("v_mul_f32 v42, v42, v44")
                    e("v_mul_f32 v43, v43, v45")
                    e(f"v_cvt_pk_bf16_f32 v{o+2*ii+pr}, v42, v43")
            e("s_nop 1")
            e(f"v_permlane32_swap_b32 v{o}, v{o+2}")
            e(f"v_permlane32_swap_b32 v{o+1}, v{o+3}")
            e("s_nop 1")
            e(f"buffer_store_dwordx4 v[{o}:{o+3}], v4, s[60:63], s46 offen offset:{pi*2048 + mi*512}")
    while C1_E >= gb:
        e("s_barrier"); gb += 1
    q(e, 4)
    if PROF2 or TRACE: e("s_waitcnt vmcnt(0)")
    q(e, 7)
    qdump(e, 12)
    p4dump(e, "P4_G")
    trace_end(e, 1)
    e.label("K2_END")
    e("s_endpgm")
    return e.text()


N_G2 = 256
K3_NS = 8
K3_STG = 18432
K3_LDS = K3_STG*K3_NS
def k3():
    e = E()
    NS = K3_NS; NT = 27; STG = K3_STG
    Y2_L = 3*STG; X_L = 4*STG; XN_L = 5*STG
    e(f"s_cmp_ge_u32 s2, {N_G2}")
    e("s_cbranch_scc1 K3_END")
    trace_start(e)
    e("s_load_dwordx2 s[4:5], s[0:1], 0")
    e("s_load_dwordx2 s[10:11], s[0:1], 80")
    e("s_load_dwordx2 s[12:13], s[0:1], 96")
    e("v_lshrrev_b32 v1, 6, v0")
    e("s_nop 0")
    e("v_readfirstlane_b32 s3, v1")
    e("s_and_b32 s15, s2, 7")
    e("s_lshl_b32 s15, s15, 2")
    e("s_lshr_b32 s28, s2, 3")
    e("s_and_b32 s29, s28, 3")
    e("s_add_u32 s15, s15, s29")
    e("s_lshr_b32 s28, s28, 2")
    e("s_lshl_b32 s36, s15, 6")
    e("s_mul_i32 s39, s28, 160")
    e("v_and_b32 v1, 63, v0")
    e("s_waitcnt lgkmcnt(0)")
    e("s_cmp_lt_u32 s3, 4")
    e("s_cbranch_scc1 K3_COMP")
    e("s_sub_u32 s3, s3, 4")
    srd_off(e, 16, 12, 13, WS_H, SZ_H)
    srd_off(e, 20, 12, 13, WS_WP2, D*F*2)
    e("v_lshlrev_b32 v2, 4, v1")
    e("s_lshl_b32 s40, s3, 12")
    e("s_mul_i32 s41, s3, 5120")
    e(f"s_mul_i32 s42, s15, {27*8192}")
    e("s_add_u32 s42, s42, s40")
    e(f"s_mul_i32 s43, s28, {1728*160}")
    e("s_add_u32 s43, s43, s41")
    e("s_add_u32 s41, s41, 8192")
    def dma():
        e("s_mov_b32 m0, s40")
        e("s_add_u32 s46, s43, 4096")
        for i in range(4):
            e(f"buffer_load_dwordx4 v2, s[16:19], s42 offen offset:{i*1024} lds")
        e("s_mov_b32 m0, s41")
        e("s_add_u32 s42, s42, 8192")
        for i in range(4):
            e(f"buffer_load_dwordx4 v2, s[20:23], s43 offen offset:{i*1024} lds")
        e("s_add_u32 m0, s41, 4096")
        e("s_add_u32 s43, s43, 10240")
        e(f"buffer_load_dwordx4 v2, s[20:23], s46 offen lds")
    e("s_mov_b32 s44, 0")
    e.label("K3_LP")
    dma()
    e(f"s_add_u32 s40, s40, {STG}")
    e(f"s_add_u32 s41, s41, {STG}")
    e("s_add_u32 s44, s44, 1")
    e(f"s_cmp_lt_u32 s44, {NS-1}")
    e("s_cbranch_scc1 K3_LP")
    srd_off(e, 24, 12, 13, WS_Y2T, SZ_SD)
    srd(e, 52, 4, 5, SZ_SD)
    srd_off(e, 56, 12, 13, WS_XN, SZ_SD)
    e("v_lshrrev_b32 v3, 3, v1")
    e("v_lshlrev_b32 v3, 12, v3")
    e("v_and_b32 v4, 7, v1")
    e("v_lshl_add_u32 v15, v4, 4, v3")
    e("s_mul_i32 s47, s28, 80")
    e("s_mul_i32 s46, s3, 40")
    e("s_add_u32 s47, s47, s46")
    e("s_lshl_b32 s47, s47, 12")
    e("s_lshl_b32 s46, s36, 1")
    e("s_add_u32 s47, s47, s46")
    for i in range(5):
        e(f"v_add_u32 v3, {64*i}, v1")
        e("v_mul_u32_u24 v4, 6554, v3")
        e("v_lshrrev_b32 v4, 16, v4")
        e("v_mul_u32_u24 v5, 10, v4")
        e("v_sub_u32 v5, v3, v5")
        e("v_mul_u32_u24 v4, 1280, v4")
        e(f"v_lshl_add_u32 v{10+i}, v5, 4, v4")
    e("s_lshl_b32 s48, s3, 5")
    e("s_add_u32 s48, s48, s36")
    e("s_mul_i32 s48, s48, 1280")
    e("s_add_u32 s48, s48, s39")
    e("s_mul_i32 s49, s3, 5120")
    e(f"s_mov_b32 s45, {NS*STG}")
    e.label("K3_LL")
    e(f"s_waitcnt vmcnt({9*(NS-2)})")
    e("s_barrier")
    dma()
    e(f"s_add_u32 s40, s40, {STG}")
    e(f"s_add_u32 s41, s41, {STG}")
    e("s_cmp_ge_u32 s40, s45")
    e("s_cselect_b32 s46, s45, 0")
    e("s_sub_u32 s40, s40, s46")
    e("s_sub_u32 s41, s41, s46")
    e("s_add_u32 s44, s44, 1")
    e(f"s_cmp_lt_u32 s44, {NT}")
    e("s_cbranch_scc1 K3_LL")
    nx = 0
    for t in range(NT-NS+1, NT):
        e(f"s_waitcnt vmcnt({9*(NT-1-t) + 5*nx})")
        e("s_barrier")
        if nx == 0:
            for i in range(5):
                e(f"s_add_u32 m0, s49, {Y2_L + i*1024}")
                e(f"s_add_u32 s46, s47, {i*8*4096}")
                e("buffer_load_dwordx4 v15, s[24:27], s46 offen lds")
        elif nx < 3:
            for i in range(5):
                e(f"s_add_u32 m0, s49, {(X_L if nx == 1 else XN_L) + i*1024}")
                e("s_nop 0")
                e(f"buffer_load_dwordx4 v{10+i}, s[{52 if nx == 1 else 56}:{55 if nx == 1 else 59}], s48 offen lds")
        if nx < 3: nx += 1
    e("s_waitcnt vmcnt(0)")
    e("s_barrier")
    e("s_barrier")
    e("s_endpgm")
    e.label("K3_COMP")
    srd(e, 32, 10, 11, SZ_SD)
    e("s_lshr_b32 s47, s3, 1")
    e("s_and_b32 s48, s3, 1")
    e("v_and_b32 v2, 15, v1")
    e("v_lshrrev_b32 v3, 4, v1")
    e("v_and_b32 v4, 1, v3")
    e("s_lshl_b32 s49, s3, 4")
    e("v_add_u32 v5, s49, v2")
    e("v_mul_u32_u24 v31, 160, v5")
    e("v_lshl_add_u32 v31, v3, 3, v31")
    e("v_add_u32 v5, s36, v5")
    e("v_mul_u32_u24 v5, 1280, v5")
    e("v_lshl_add_u32 v5, v3, 3, v5")
    e("v_add_u32 v30, s39, v5")
    e("s_lshl_b32 s49, s48, 2")
    e("v_add_u32 v5, s49, v3")
    e("v_lshlrev_b32 v5, 10, v5")
    e("v_lshl_add_u32 v5, v2, 4, v5")
    e("v_lshl_add_u32 v5, v4, 3, v5")
    e("s_lshl_b32 s49, s47, 9")
    e("v_add_u32 v12, s49, v5")
    e("v_xor_b32 v13, 8, v12")
    e("v_bfe_u32 v5, v1, 2, 2")
    e("v_lshl_add_u32 v5, v3, 3, v5")
    e("s_lshl_b32 s49, s48, 5")
    e("v_add_u32 v5, s49, v5")
    e("v_lshl_add_u32 v6, v4, 2, v5")
    e("v_xor_b32 v7, 1, v4")
    e("v_lshl_add_u32 v7, v7, 2, v5")
    e("v_and_b32 v5, 3, v1")
    e("v_lshlrev_b32 v5, 3, v5")
    e("v_add_u32 v5, 8192, v5")
    e("s_movk_i32 s49, 160")
    e("v_mad_u32_u24 v14, v6, s49, v5")
    e("v_mad_u32_u24 v15, v7, s49, v5")
    ACC = 32
    for i in range(40):
        e(f"v_mov_b32 v{ACC+i}, 0")
    HF = [72, 100]; WF = [80, 108]
    def frag_loads(buf):
        for k in range(4):
            e(f"v_add_u32 v{16+k}, s44, v{12+k}")
        e(f"s_add_u32 s44, s44, {STG}")
        e("s_cmp_ge_u32 s44, s45")
        e("s_cselect_b32 s44, 0, s44")
        for si in range(2):
            for hf in range(2):
                r = HF[buf] + 4*si + 2*hf
                e(f"ds_read_b64 v[{r}:{r+1}], v{16+hf} offset:{si*256}")
        for t in range(5):
            for hf in range(2):
                r = WF[buf] + 4*t + 2*hf
                e(f"ds_read_b64_tr_b16 v[{r}:{r+1}], v{18+hf} offset:{32*t}")
    def mfmas(buf):
        for t in range(5):
            for si in range(2):
                a = ACC + 8*t + 4*si
                w = WF[buf] + 4*t; h = HF[buf] + 4*si
                e(f"v_mfma_f32_16x16x32_bf16 v[{a}:{a+3}], v[{w}:{w+3}], v[{h}:{h+3}], v[{a}:{a+3}]")
    e("s_mov_b32 s44, 0")
    e(f"s_mov_b32 s45, {NS*STG}")
    e("s_mov_b32 s46, 0")
    e("s_barrier")
    frag_loads(0)
    e("s_waitcnt lgkmcnt(0)")
    e.label("K3_CL")
    for hb in range(2):
        e("s_barrier")
        frag_loads(1-hb)
        mfmas(hb)
        e("s_waitcnt lgkmcnt(0)")
    e("s_add_u32 s46, s46, 1")
    e(f"s_cmp_lt_u32 s46, {(NT-1)//2}")
    e("s_cbranch_scc1 K3_CL")
    mfmas(0)
    e("s_nop 7")
    e("s_barrier")
    e("v_lshlrev_b32 v4, 4, v1")
    e("s_mul_i32 s49, s3, 5120")
    e("v_add_u32 v5, s49, v4")
    e("s_xor_b32 s49, s3, 1")
    e("s_mul_i32 s49, s49, 5120")
    e("v_add_u32 v6, s49, v4")
    e("s_cmp_eq_u32 s48, 0")
    e("s_cbranch_scc1 K3_X0")
    for t in range(5):
        e(f"ds_write_b128 v5, v[{ACC+8*t}:{ACC+8*t+3}] offset:{1024*t}")
    for t in range(5):
        for j in range(4):
            e(f"v_mov_b32 v{ACC+8*t+j}, v{ACC+8*t+4+j}")
    e("s_branch K3_X1")
    e.label("K3_X0")
    for t in range(5):
        e(f"ds_write_b128 v5, v[{ACC+8*t+4}:{ACC+8*t+7}] offset:{1024*t}")
    e.label("K3_X1")
    e("v_lshrrev_b32 v7, 2, v1")
    e("v_lshlrev_b32 v7, 7, v7")
    e("v_and_b32 v8, 3, v1")
    e("v_lshl_add_u32 v7, v8, 3, v7")
    e("s_lshl_b32 s49, s3, 5")
    e(f"s_add_u32 s49, s49, {Y2_L}")
    e("v_add_u32 v7, s49, v7")
    e(f"v_add_u32 v31, {X_L}, v31")
    XR, XNR, YR = 128, 138, 148
    for t in range(5):
        e(f"ds_read_b64_tr_b16 v[{YR+2*t}:{YR+2*t+1}], v7 offset:{2048*t}")
        e(f"ds_read_b64 v[{XR+2*t}:{XR+2*t+1}], v31 offset:{32*t}")
        e(f"ds_read_b64 v[{XNR+2*t}:{XNR+2*t+1}], v31 offset:{STG + 32*t}")
    e("s_waitcnt lgkmcnt(0)")
    e("s_barrier")
    for t in range(5):
        e(f"ds_read_b128 v[{ACC+8*t+4}:{ACC+8*t+7}], v6 offset:{1024*t}")
    for t in range(5):
        r = 2*t
        for pr in range(2):
            e(f"v_lshlrev_b32 v22, 16, v{XNR+r+pr}")
            e(f"v_and_b32 v23, 0xffff0000, v{XNR+r+pr}")
            e(f"v_lshlrev_b32 v24, 16, v{YR+r+pr}")
            e(f"v_and_b32 v25, 0xffff0000, v{YR+r+pr}")
            e("v_mul_f32 v22, v22, v24")
            e("v_mul_f32 v23, v23, v25")
            e("v_cvt_pk_bf16_f32 v21, v22, v23")
            e("v_lshlrev_b32 v22, 16, v21")
            e("v_and_b32 v23, 0xffff0000, v21")
            e(f"v_lshlrev_b32 v24, 16, v{XR+r+pr}")
            e(f"v_and_b32 v25, 0xffff0000, v{XR+r+pr}")
            e("v_add_f32 v22, v22, v24")
            e("v_add_f32 v23, v23, v25")
            e(f"v_cvt_pk_bf16_f32 v{XR+r+pr}, v22, v23")
    for t in range(5):
        a = ACC + 8*t
        r = 2*t
        e(f"s_waitcnt lgkmcnt({4-t})")
        for j in range(4):
            e(f"v_add_f32 v{a+j}, v{a+j}, v{a+4+j}")
        for pr in range(2):
            e(f"v_cvt_pk_bf16_f32 v20, v{a+2*pr}, v{a+2*pr+1}")
            e(f"v_lshlrev_b32 v22, 16, v{XR+r+pr}")
            e(f"v_and_b32 v23, 0xffff0000, v{XR+r+pr}")
            e("v_lshlrev_b32 v24, 16, v20")
            e("v_and_b32 v25, 0xffff0000, v20")
            e("v_add_f32 v22, v22, v24")
            e("v_add_f32 v23, v23, v25")
            e(f"v_cvt_pk_bf16_f32 v{XR+r+pr}, v22, v23")
        e(f"buffer_store_dwordx2 v[{XR+r}:{XR+r+1}], v30, s[32:35], 0 offen offset:{32*t}")
    trace_end(e, 2)
    e.label("K3_END")
    e("s_endpgm")
    return e.text()

def build(kernels):
    out = []
    out.append(open("cdna_kernels/%s.s.ref" % NAME).read().split("; Override launch")[0])
    for (name, grid, block, lds, body, vgpr) in kernels:
        out.append(f"; @launch kernel={name} grid=({grid},1,1) block=({block},1,1) lds={lds}\n")
    out.append('.amdgcn_target "amdgcn-amd-amdhsa--gfx950"\n.text\n')
    for (name, grid, block, lds, body, vgpr) in kernels:
        out.append(khead(name))
        out.append(body)
    out.append('.section .rodata,"a"\n')
    for (name, grid, block, lds, body, vgpr) in kernels:
        out.append(".p2align 6\n")
        out.append(kdesc(name, vgpr))
    return "".join(out)

if __name__ == "__main__":
    ks = [("prep_kernel", N_K1, 256, 128*144, k1(), 120),
          ("mid_kernel", N_K2, 896, K2_LDS, k2(), 128),
          ("fin_kernel", N_G2, 384, K3_LDS, k3(), 160)]
    open(sys.argv[1] if len(sys.argv) > 1 else "cdna_kernels/%s.s" % NAME, "w").write(build(ks))
```

```python
import sys
NAME = "parallel_sum__ssm_conv_h3__glu_gated_bilinear__prompt"
S, D, F = 2048, 640, 1728
WS_XN  = 0
WS_KVT = 0x280000
WS_H   = 0x500000
WS_Y2T = 0xC00000
WS_XNP = 0xF00000
WS_WP1 = 0x1200000
WS_WP2 = 0x1700000
WS_XCH = 0x1A00000
WS_XP = 0x2800000
WS_T3 = 0x2800000
SZ_T3 = 256*10240
SZ_SD = S*D*2
SZ_H = S*F*2

class E:
    def __init__(self):
        self.l = []
    def __call__(self, s):
        for line in s.strip("\n").split("\n"):
            self.l.append("    " + line.strip() if not line.strip().endswith(":") else line.strip())
    def label(self, n):
        self.l.append(n + ":")
    def text(self):
        return "\n".join(self.l) + "\n"

def srd(e, d, blo, bhi, nbytes):
    e(f"s_mov_b32 s{d}, s{blo}")
    e(f"s_mov_b32 s{d+1}, s{bhi}")
    e(f"s_mov_b32 s{d+2}, {nbytes}")
    e(f"s_mov_b32 s{d+3}, 0x00020000")

def srd_off(e, d, blo, bhi, off, nbytes):
    e(f"s_add_u32 s{d}, s{blo}, {off}")
    e(f"s_addc_u32 s{d+1}, s{bhi}, 0")
    e(f"s_mov_b32 s{d+2}, {nbytes}")
    e(f"s_mov_b32 s{d+3}, 0x00020000")

def kdesc(name, vgpr, sgpr=102):
    acc = (vgpr + 3)//4*4
    return f""".amdhsa_kernel {name}
  .amdhsa_next_free_vgpr {vgpr}
  .amdhsa_next_free_sgpr {sgpr}
  .amdhsa_accum_offset {acc}
  .amdhsa_group_segment_fixed_size 0
  .amdhsa_kernarg_size 104
  .amdhsa_user_sgpr_count 2
  .amdhsa_user_sgpr_kernarg_segment_ptr 1
  .amdhsa_system_sgpr_workgroup_id_x 1
.end_amdhsa_kernel
"""

import os
STAMP = os.environ.get("STAMP")
X3 = os.environ.get("X3", "").split(",")
X2 = os.environ.get("X2", "").split(",")
def stamp(e, idx):
    if not STAMP: return
    e(f"s_memtime s[88:89]")
    e("s_waitcnt lgkmcnt(0)")
    e(f"s_mov_b32 s{90+idx}, s88")
def stamp_dump(e, n, wg):
    if not STAMP: return
    e("s_load_dwordx2 s[84:85], s[0:1], 88")
    e("s_waitcnt lgkmcnt(0)")
    e("s_mov_b32 s86, 256")
    e("s_mov_b32 s87, 0x00020000")
    e(f"s_cmp_lg_u32 s2, {wg}")
    e("s_cbranch_scc1 9f")
    e("s_cmp_lg_u32 s3, 0")
    e("s_cbranch_scc1 9f")
    e("v_mov_b32 v120, 0")
    for i in range(1, n):
        e(f"s_sub_u32 s83, s{90+i}, s90")
        e("v_mov_b32 v121, s83")
        e(f"buffer_store_dword v121, v120, s[84:87], 0 offen offset:{4*i}")
    e("9:")

TRACE = os.environ.get("TRACE")
def trace_start(e):
    if not TRACE: return
    e("s_memrealtime s[96:97]")
    e("s_memtime s[98:99]")
    e("s_mov_b32 s82, s2")
def trace_end(e, kidx, tid=0):
    if not TRACE: return
    e("s_waitcnt vmcnt(0) lgkmcnt(0)")
    e("s_memrealtime s[92:93]")
    e("s_memtime s[94:95]")
    e("s_load_dwordx2 s[84:85], s[0:1], 96")
    e("s_getreg_b32 s90, hwreg(HW_REG_HW_ID)")
    e("s_getreg_b32 s91, hwreg(HW_REG_XCC_ID)")
    e("s_waitcnt lgkmcnt(0)")
    e(f"s_add_u32 s84, s84, {(64<<20) + kidx*65536}")
    e("s_addc_u32 s85, s85, 0")
    e("s_mov_b32 s86, 65536")
    e("s_mov_b32 s87, 0x00020000")
    e("s_lshl_b32 s91, s91, 24")
    e("s_and_b32 s90, s90, 0xffffff")
    e("s_or_b32 s90, s90, s91")
    e("s_sub_u32 s94, s94, s98")
    e("v_mov_b32 v124, s96")
    e("v_mov_b32 v125, s92")
    e("v_mov_b32 v126, s90")
    e("v_mov_b32 v127, s94")
    e("s_lshl_b32 s83, s82, 4")
    e("v_mov_b32 v121, s83")
    e(f"v_cmp_eq_u32 vcc, {tid}, v0")
    e("s_and_saveexec_b64 s[80:81], vcc")
    e("s_cbranch_execz 8f")
    e("buffer_store_dwordx4 v[124:127], v121, s[84:87], 0 offen")
    e("s_waitcnt vmcnt(0)")
    e("8:")

PROF = os.environ.get("PROF")
def pt(e, acc):
    if not PROF: return
    e("s_memtime s[88:89]")
    e("s_waitcnt lgkmcnt(0)")
    e("s_sub_u32 s90, s88, s87")
    e(f"s_add_u32 s{acc}, s{acc}, s90")
    e("s_mov_b32 s87, s88")
def pinit(e):
    if not PROF: return
    for i in range(80, 87): e(f"s_mov_b32 s{i}, 0")
    e("s_memtime s[88:89]")
    e("s_waitcnt lgkmcnt(0)")
    e("s_mov_b32 s87, s88")
def pdump(e, wave_off):
    if not PROF: return
    e("s_load_dwordx2 s[92:93], s[0:1], 88")
    e("s_waitcnt lgkmcnt(0)")
    e("s_mov_b32 s94, 256")
    e("s_mov_b32 s95, 0x00020000")
    e(f"s_cmp_lg_u32 s2, {PROF}")
    e("s_cbranch_scc1 7f")
    e("s_cmp_lg_u32 s3, 0")
    e("s_cbranch_scc1 7f")
    e("v_mov_b32 v120, 0")
    for i in range(7):
        e(f"v_mov_b32 v121, s{80+i}")
        e(f"buffer_store_dword v121, v120, s[92:95], 0 offen offset:{wave_off + 4*i}")
    e("s_waitcnt vmcnt(0)")
    e("7:")

PROF2 = os.environ.get("PROF2")
def q(e, idx, wv=0):
    if not PROF2: return
    e("s_memtime s[88:89]")
    e("s_waitcnt lgkmcnt(0)")
    e(f"s_mov_b32 s{90+idx}, s88")
def qdump(e, n, wv=0):
    if not PROF2: return
    e("s_load_dwordx2 s[84:85], s[0:1], 88")
    e("s_waitcnt lgkmcnt(0)")
    e("s_mov_b32 s86, 256")
    e("s_mov_b32 s87, 0x00020000")
    e(f"s_cmp_lg_u32 s2, {PROF2}")
    e("s_cbranch_scc1 6f")
    e(f"s_cmp_lg_u32 s3, {wv}")
    e("s_cbranch_scc1 6f")
    e(f"v_mov_b32 v120, {64 if wv else 0}")
    for i in range(1, n):
        e(f"s_sub_u32 s83, s{90+i}, s90")
        e("v_mov_b32 v121, s83")
        e(f"buffer_store_dword v121, v120, s[84:87], 0 offen offset:{4*i}")
    e("6:")

PROF4 = os.environ.get("PROF4")
P4_REGS = [50,52,54,56,58,72,74,76,78,80,82,84,86]
P4_LO = int(os.environ.get('P4LO', '4'))
def bar(e, b):
    k = b - P4_LO
    if PROF4 and 0 <= k < 6:
        e(f"s_memtime s[{P4_REGS[2*k]}:{P4_REGS[2*k]+1}]")
    e("s_barrier")
    if PROF4 and 0 <= k < 6:
        e(f"s_memtime s[{P4_REGS[2*k+1]}:{P4_REGS[2*k+1]+1}]")
def p4dump(e, lab):
    if not PROF4: return
    e("s_load_dwordx2 s[92:93], s[0:1], 88")
    e("s_waitcnt lgkmcnt(0)")
    e("s_mov_b32 s94, 4096")
    e("s_mov_b32 s95, 0x00020000")
    e(f"s_cmp_lg_u32 s2, {PROF4}")
    e(f"s_cbranch_scc1 {lab}")
    e("v_lshrrev_b32 v120, 6, v0")
    e("v_lshlrev_b32 v120, 6, v120")
    for i in range(12):
        e(f"v_mov_b32 v121, s{P4_REGS[i]}")
        e(f"buffer_store_dword v121, v120, s[92:95], 0 offen offset:{512 + 4*i}")
    e.label(lab)

def khead(name):
    return f""".globl {name}
.p2align 8
.type {name},@function
{name}:
"""

N_LN = 128
N_KV = 160
N_R1 = 135
N_R2 = 68
N_TC = 0 if "notc" in X2 else 80
N_K1 = N_LN+N_KV+N_R1+N_R2+N_TC
def k1():
    e = E()
    e(f"s_cmp_ge_u32 s2, {N_K1}")
    e("s_cbranch_scc1 K1_END")
    e(f"s_cmp_ge_u32 s2, {N_K1-N_TC}")
    e("s_cbranch_scc1 K1_TC")
    e(f"s_cmp_ge_u32 s2, {N_LN+N_KV}")
    e("s_cbranch_scc1 K1_RP")
    e("s_load_dwordx4 s[4:7], s[0:1], 0")
    e("s_load_dwordx4 s[8:11], s[0:1], 16")
    e("s_load_dwordx2 s[12:13], s[0:1], 96")
    e(f"s_cmp_ge_u32 s2, {N_LN}")
    e("s_cbranch_scc1 K1_KV")
    e("s_waitcnt lgkmcnt(0)")
    srd(e, 16, 4, 5, SZ_SD)
    srd_off(e, 20, 12, 13, WS_XN, S*8)
    e("s_lshl_b32 s3, s2, 4")
    e("v_lshrrev_b32 v1, 4, v0")
    e("v_add_u32 v1, s3, v1")
    e("v_mul_u32_u24 v1, 1280, v1")
    e("v_and_b32 v2, 15, v0")
    e("v_lshlrev_b32 v2, 4, v2")
    e("v_add_u32 v1, v1, v2")
    for j in range(5):
        e(f"buffer_load_dwordx4 v[{4+4*j}:{7+4*j}], v1, s[16:19], 0 offen offset:{256*j}")
    e("s_waitcnt vmcnt(0)")
    for i in range(20):
        e(f"v_lshlrev_b32 v{32+2*i}, 16, v{4+i}")
        e(f"v_and_b32 v{33+2*i}, 0xffff0000, v{4+i}")
    e("v_add_f32 v24, v32, v33")
    e("v_add_f32 v25, v34, v35")
    for i in range(4, 40, 2):
        e(f"v_add_f32 v24, v24, v{32+i}")
        e(f"v_add_f32 v25, v25, v{33+i}")
    e("v_add_f32 v24, v24, v25")
    def red16(r):
        for sh in (8, 4, 2, 1):
            e("s_nop 1")
            e(f"v_add_f32_dpp v{r}, v{r}, v{r} row_ror:{sh} row_mask:0xf bank_mask:0xf")
    red16(24)
    e("s_mov_b32 s24, 0x3acccccd")
    e("v_mul_f32 v24, s24, v24")
    e("v_sub_f32 v26, v32, v24")
    e("v_mul_f32 v25, v26, v26")
    for i in range(1, 40):
        e(f"v_sub_f32 v26, v{32+i}, v24")
        e("v_fmac_f32 v25, v26, v26")
    red16(25)
    e("v_mul_f32 v25, s24, v25")
    e("v_cvt_pk_bf16_f32 v26, v24, v25")
    e("v_and_b32 v27, 0xffff0000, v26")
    e("v_lshlrev_b32 v26, 16, v26")
    e("v_add_f32 v27, 0x3727c5ac, v27")
    e("v_cvt_pk_bf16_f32 v27, v27, v27")
    e("v_lshlrev_b32 v27, 16, v27")
    e("v_sqrt_f32 v27, v27")
    e("s_nop 0")
    e("v_cvt_pk_bf16_f32 v27, v27, v27")
    e("v_lshlrev_b32 v27, 16, v27")
    e("v_rcp_f32 v28, v27")
    e("v_lshrrev_b32 v72, 4, v0")
    e("v_add_u32 v72, s3, v72")
    e("v_lshlrev_b32 v72, 3, v72")
    e("v_and_b32 v73, 15, v0")
    e("v_cmp_eq_u32 vcc, 0, v73")
    e("s_and_saveexec_b64 s[36:37], vcc")
    e("buffer_store_dwordx2 v[26:27], v72, s[20:23], 0 offen")
    e("s_mov_b64 exec, s[36:37]")
    for i in range(20):
        a, b = 32+2*i, 33+2*i
        e(f"v_sub_f32 v{a}, v{a}, v26")
        e(f"v_sub_f32 v{b}, v{b}, v26")
        e(f"v_cvt_pk_bf16_f32 v29, v{a}, v{b}")
        e(f"v_lshlrev_b32 v{a}, 16, v29")
        e(f"v_and_b32 v{b}, 0xffff0000, v29")
        e(f"v_mul_f32 v30, v{a}, v28")
        e(f"v_mul_f32 v31, v{b}, v28")
        e(f"v_fma_f32 v{a}, -v30, v27, v{a}")
        e(f"v_fma_f32 v{b}, -v31, v27, v{b}")
        e(f"v_fmac_f32 v30, v{a}, v28")
        e(f"v_fmac_f32 v31, v{b}, v28")
        e(f"v_cvt_pk_bf16_f32 v{4+i}, v30, v31")
    srd_off(e, 28, 12, 13, WS_XNP, SZ_SD)
    e("v_lshrrev_b32 v1, 4, v0")
    e("v_and_b32 v2, 15, v0")
    e("v_lshrrev_b32 v3, 2, v1")
    e("v_and_b32 v24, 3, v1")
    e("v_and_b32 v25, 3, v2")
    e("v_lshl_add_u32 v24, v24, 2, v25")
    e("v_xor_b32 v24, v24, v3")
    e("v_lshlrev_b32 v24, 4, v24")
    e("v_lshl_add_u32 v24, v3, 8, v24")
    e("v_lshrrev_b32 v2, 2, v2")
    e("v_lshl_add_u32 v24, v2, 14, v24")
    e("s_lshr_b32 s25, s2, 4")
    e("s_mul_i32 s25, s25, 327680")
    e("s_and_b32 s26, s2, 15")
    e("s_lshl_b32 s26, s26, 10")
    e("s_add_u32 s25, s25, s26")
    for j in range(5):
        e(f"buffer_store_dwordx4 v[{4+4*j}:{7+4*j}], v24, s[28:31], s25 offen")
        e("s_add_u32 s25, s25, 65536")
    e("s_endpgm")
    e.label("K1_TC")
    e("s_load_dwordx2 s[4:5], s[0:1], 32")
    e(f"s_sub_u32 s3, s2, {N_K1-N_TC}")
    e("s_lshl_b32 s3, s3, 15")
    e("v_lshlrev_b32 v1, 4, v0")
    e("s_waitcnt lgkmcnt(0)")
    srd(e, 16, 4, 5, SZ_SD)
    for i in range(8):
        e(f"buffer_load_dwordx4 v[{4+4*i}:{7+4*i}], v1, s[16:19], s3 offen")
        e("s_add_u32 s3, s3, 4096")
    e("s_waitcnt vmcnt(0)")
    e("s_endpgm")
    e.label("K1_RP")
    e("s_load_dwordx4 s[4:7], s[0:1], 56")
    e("s_load_dwordx2 s[8:9], s[0:1], 72")
    e("s_load_dwordx2 s[12:13], s[0:1], 96")
    e(f"s_sub_u32 s3, s2, {N_LN+N_KV}")
    e(f"s_cmp_ge_u32 s3, {N_R1}")
    e("s_cbranch_scc1 K1_RP2")
    e("s_waitcnt lgkmcnt(0)")
    srd(e, 16, 4, 5, D*F*2)
    srd(e, 20, 6, 7, D*F*2)
    srd_off(e, 24, 12, 13, WS_WP1, 2*D*F*2)
    e("v_lshrrev_b32 v1, 3, v0")
    e("v_and_b32 v2, 7, v0")
    e("v_bfe_u32 v3, v1, 1, 1")
    e("v_lshlrev_b32 v3, 2, v3")
    e("v_xor_b32 v2, v2, v3")
    e("v_mul_u32_u24 v1, 3456, v1")
    e("v_lshl_add_u32 v1, v2, 4, v1")
    e("v_lshlrev_b32 v2, 4, v0")
    e("s_lshl_b32 s28, s3, 15")
    for bq in range(4):
        e(f"s_lshl_b32 s29, s3, 2")
        e(f"s_add_u32 s29, s29, {bq}")
        e("s_mul_hi_u32 s30, s29, 0xcccccccd")
        e("s_lshr_b32 s30, s30, 4")
        e("s_mul_i32 s31, s30, 20")
        e("s_sub_u32 s31, s29, s31")
        e(f"s_mul_i32 s31, s31, {32*3456}")
        e("s_lshl_b32 s30, s30, 7")
        e("s_add_u32 s31, s31, s30")
        e(f"buffer_load_dwordx4 v[{8+8*bq}:{11+8*bq}], v1, s[16:19], s31 offen")
        e(f"buffer_load_dwordx4 v[{12+8*bq}:{15+8*bq}], v1, s[20:23], s31 offen")
    for q in range(8):
        e(f"s_waitcnt vmcnt({7-q})" if q < 7 else "s_waitcnt vmcnt(0)")
        e(f"buffer_store_dwordx4 v[{8+4*q}:{11+4*q}], v2, s[24:27], s28 offen")
        e("s_add_u32 s28, s28, 4096")
    e("s_endpgm")
    e.label("K1_RP2")
    e(f"s_sub_u32 s3, s3, {N_R1}")
    e("s_waitcnt lgkmcnt(0)")
    srd(e, 16, 8, 9, D*F*2)
    srd_off(e, 24, 12, 13, WS_WP2, D*F*2)
    e("s_lshl_b32 s28, s3, 11")
    e("v_add_u32 v1, s28, v0")
    e("v_lshlrev_b32 v2, 4, v1")
    for q in range(8):
        e(f"s_movk_i32 s29, {q*4096}" if q < 8 else "")
        e(f"buffer_load_dwordx4 v[{8+4*q}:{11+4*q}], v2, s[16:19], s29 offen")
    e("s_mov_b32 s30, 0xcccccccd")
    e(f"s_mov_b32 s31, {F*D//8}")
    for q in range(8):
        e(f"v_add_u32 v3, {256*q}, v1")
        e("v_mul_hi_u32 v4, v3, s30")
        e("v_lshrrev_b32 v4, 6, v4")
        e("v_mul_u32_u24 v5, 80, v4")
        e("v_sub_u32 v5, v3, v5")
        e("v_mul_u32_u24 v6, 6554, v5")
        e("v_lshrrev_b32 v6, 16, v6")
        e("v_mul_u32_u24 v7, 10, v6")
        e("v_sub_u32 v7, v5, v7")
        e("v_mul_u32_u24 v6, 1728, v6")
        e("v_add_u32 v6, v6, v4")
        e("v_mul_u32_u24 v6, 160, v6")
        e("v_lshl_add_u32 v6, v7, 4, v6")
        e("v_cmp_gt_u32 vcc, s31, v3")
        e("v_mov_b32 v7, 0x7fffffff")
        e(f"v_cndmask_b32 v{40+q}, v7, v6, vcc")
    for q in range(8):
        e(f"s_waitcnt vmcnt({7-q})")
        e(f"buffer_store_dwordx4 v[{8+4*q}:{11+4*q}], v{40+q}, s[24:27], 0 offen")
    e("s_endpgm")
    e.label("K1_KV")
    e(f"s_sub_u32 s3, s2, {N_LN}")
    e("s_mul_hi_u32 s14, s3, 0x33333334")
    e("s_mul_i32 s15, s14, 5")
    e("s_sub_u32 s15, s3, s15")
    e("s_waitcnt lgkmcnt(0)")
    srd(e, 16, 6, 7, SZ_SD)
    srd(e, 20, 8, 9, SZ_SD)
    srd(e, 24, 10, 11, D*4*2)
    srd_off(e, 28, 12, 13, WS_KVT, SZ_SD)
    e("v_and_b32 v1, 15, v0")
    e("v_lshrrev_b32 v2, 4, v0")
    e("s_lshl_b32 s32, s14, 6")
    e("v_lshlrev_b32 v3, 2, v2")
    e("v_add_u32 v3, s32, v3")
    e("v_mul_u32_u24 v4, 1280, v3")
    e("s_lshl_b32 s33, s15, 8")
    e("v_lshlrev_b32 v5, 4, v1")
    e("v_add_u32 v5, s33, v5")
    e("v_add_u32 v4, v4, v5")
    e("v_subrev_u32 v6, 3840, v4")
    for r in range(3):
        e(f"buffer_load_dwordx4 v[{16+4*r}:{19+4*r}], v6, s[16:19], 0 offen offset:{1280*r}")
    for r in range(3):
        e(f"buffer_load_dwordx4 v[{28+4*r}:{31+4*r}], v4, s[16:19], 0 offen offset:{1280*r}")
    e("buffer_load_dwordx4 v[40:43], v4, s[16:19], 0 offen offset:3840")
    for r in range(4):
        e(f"buffer_load_dwordx4 v[{44+4*r}:{47+4*r}], v4, s[20:23], 0 offen offset:{1280*r}")
    e("v_lshlrev_b32 v7, 2, v5")
    for j in range(4):
        e(f"buffer_load_dwordx4 v[{60+4*j}:{63+4*j}], v7, s[24:27], 0 offen offset:{16*j}")
    e("s_mov_b32 s34, 0x05040100")
    e("s_mov_b32 s35, 0x07060302")
    e("v_lshlrev_b32 v8, 3, v1")
    e("v_mul_u32_u24 v8, 144, v8")
    e("v_lshrrev_b32 v9, 1, v2")
    e("v_lshlrev_b32 v9, 4, v9")
    e("v_add_u32 v8, v8, v9")
    e("v_and_b32 v9, 1, v2")
    e("v_lshlrev_b32 v9, 3, v9")
    e("v_xor_b32 v9, 8, v9")
    e("v_add_u32 v8, v8, v9")
    e("s_waitcnt vmcnt(0)")
    for p in range(4):
        for h in range(2):
            c = 2*p+h
            e(f"v_lshlrev_b32 v{80+4*h}, 16, v{60+2*c}")
            e(f"v_and_b32 v{81+4*h}, 0xffff0000, v{60+2*c}")
            e(f"v_lshlrev_b32 v{82+4*h}, 16, v{61+2*c}")
            e(f"v_and_b32 v{83+4*h}, 0xffff0000, v{61+2*c}")
        for r in range(7):
            e(f"v_lshlrev_b32 v{88+2*r}, 16, v{16+4*r+p}")
            e(f"v_and_b32 v{89+2*r}, 0xffff0000, v{16+4*r+p}")
        for i in range(4):
            for t in range(4):
                r = i + t
                w = 3 - t
                e(f"v_mul_f32 v104, v{88+2*r}, v{80+w}")
                e(f"v_mul_f32 v105, v{89+2*r}, v{84+w}")
                e("v_cvt_pk_bf16_f32 v106, v104, v105")
                if t == 0:
                    e("v_lshlrev_b32 v102, 16, v106")
                    e("v_and_b32 v103, 0xffff0000, v106")
                else:
                    e("v_lshlrev_b32 v104, 16, v106")
                    e("v_and_b32 v105, 0xffff0000, v106")
                    e("v_add_f32 v102, v102, v104")
                    e("v_add_f32 v103, v103, v105")
                    e("v_cvt_pk_bf16_f32 v106, v102, v103")
                    e("v_lshlrev_b32 v102, 16, v106")
                    e("v_and_b32 v103, 0xffff0000, v106")
            e(f"v_lshlrev_b32 v104, 16, v{44+4*i+p}")
            e(f"v_and_b32 v105, 0xffff0000, v{44+4*i+p}")
            e("v_mul_f32 v102, v102, v104")
            e("v_mul_f32 v103, v103, v105")
            e(f"v_cvt_pk_bf16_f32 v{108+i}, v102, v103")
        e("v_perm_b32 v112, v110, v111, s34")
        e("v_perm_b32 v113, v108, v109, s34")
        e(f"ds_write_b64 v8, v[112:113] offset:{(2*p)*144}")
        e("v_perm_b32 v114, v110, v111, s35")
        e("v_perm_b32 v115, v108, v109, s35")
        e(f"ds_write_b64 v8, v[114:115] offset:{(2*p+1)*144}")
    e("s_waitcnt lgkmcnt(0)")
    e("s_barrier")
    e("v_lshrrev_b32 v1, 1, v0")
    e("v_and_b32 v2, 1, v0")
    e("v_mul_u32_u24 v3, 144, v1")
    e("v_lshlrev_b32 v4, 6, v2")
    e("v_add_u32 v3, v3, v4")
    for j in range(4):
        e(f"ds_read_b128 v[{16+4*j}:{19+4*j}], v3 offset:{16*j}")
    e("s_lshl_b32 s33, s15, 7")
    e("v_add_u32 v5, s33, v1")
    e("v_lshlrev_b32 v5, 12, v5")
    e("s_lshl_b32 s32, s14, 7")
    e("v_add_u32 v5, s32, v5")
    e("v_add_u32 v5, v5, v4")
    e("s_waitcnt lgkmcnt(0)")
    for j in range(4):
        e(f"buffer_store_dwordx4 v[{16+4*j}:{19+4*j}], v5, s[28:31], 0 offen offset:{16*j}")
    e.label("K1_END")
    e("s_endpgm")
    return e.text()


N_K2 = 256
COPY = 4288
KVSZ = 33*144
CP_OFF = 2*KVSZ
SC_OFF = CP_OFF + 8*COPY
CV_SZ = SC_OFF
K2_NS = 4
K2_STG = 24576
CV_A = K2_NS*K2_STG
K2_LDS = max(CV_A + CV_SZ, 3*CV_SZ)
PB0 = 1
LB0 = 2
if os.environ.get("CS"):
    exec(os.environ["CS"])
C1_E = PB0 + 16

class VQ:
    def __init__(self, e): self.q = []; self.e = e
    def issue(self, tag, n): self.q += [tag]*n
    def wait(self, tags):
        idx = max([i for i, t in enumerate(self.q) if t in tags], default=-1)
        if idx < 0: return
        n = len(self.q) - 1 - idx
        self.e(f"s_waitcnt vmcnt({min(n, 63)})")
        self.q = self.q[idx+1:]

def write_copies(e, d, lab, ro):
    e(f"ds_write_b128 v117, v[{d}:{d+3}] offset:{ro}")
    for i in range(4):
        e(f"v_alignbit_b32 v{16+i}, v{d+i+1}, v{d+i}, 16")
    e(f"ds_write_b128 v117, v[16:19] offset:{ro + COPY}")
    for i in range(4):
        e(f"v_mov_b32 v{20+i}, v{d+i+1}")
    e(f"ds_write_b128 v117, v[20:23] offset:{ro + 2*COPY}")
    for i in range(4):
        e(f"v_alignbit_b32 v{24+i}, v{d+i+2}, v{d+i+1}, 16")
    e(f"ds_write_b128 v117, v[24:27] offset:{ro + 3*COPY}")
    e("s_cmp_eq_u32 s39, 0")
    e(f"s_cbranch_scc0 {lab}")
    e("v_mov_b32 v28, 0")
    e(f"v_lshlrev_b32 v29, 16, v{d}")
    e("v_mov_b32 v32, 0")
    e(f"v_mov_b32 v33, v{d}")
    e("v_mov_b32 v34, v29")
    e("v_mov_b32 v35, v16")
    e("s_mov_b64 exec, 1")
    e(f"ds_write_b64 v117, v[28:29] offset:{ro + COPY - 8}")
    e(f"ds_write_b64 v117, v[32:33] offset:{ro + 2*COPY - 8}")
    e(f"ds_write_b64 v117, v[34:35] offset:{ro + 3*COPY - 8}")
    e("s_mov_b64 exec, -1")
    e.label(lab)

def conv_main(e):
    ACCS = [16, 112]; FL, FH, BB = 32, 56, 80
    lq = []
    def wait(tags):
        idx = max((i for i, t in enumerate(lq) if t in tags), default=-1)
        if idx >= 0: e(f"s_waitcnt lgkmcnt({min(len(lq) - 1 - idx, 15)})")
    def put(it):
        if it[0] is None: wait(it[1]); return
        e(it[0])
        for _ in range(it[2] if len(it) > 2 else 1):
            if it[1] is not None: lq.append(it[1])
    def lda(F):
        c, f = divmod(F, 17)
        sl = F % 6
        r = []
        for (R, va) in ((FL, 8), (FH, 9)):
            o = 4*COPY*c + 64*f
            r.append((f"ds_read_b64 v[{R+4*sl}:{R+4*sl+1}], v{va} offset:{o}", ("a", F)))
            r.append((f"ds_read_b64 v[{R+4*sl+2}:{R+4*sl+3}], v{va} offset:{o+8}", ("a", F)))
        return r
    def ldb(P):
        c, p = divmod(P, 16)
        st = p >> 1; kk = 1 - (p & 1)
        bb = BB + 8*(P & 3)
        pre = ""
        if p & 1 == 0:
            pre = f"v_subrev_u32 v12, {144*st}, v10\nv_max_i32 v3, v12, v11\n"
        return [(pre + f"ds_read_b128 v[{bb}:{bb+3}], v3 offset:{KVSZ*c + 64*kk}", ("b", P)),
                (f"ds_read_b128 v[{bb+4}:{bb+7}], v12 offset:{KVSZ*c + 16*144 + 64*kk}", ("b", P))]
    def dterm_ld(c):
        return [(f"ds_read_b64 v[{4+2*h}:{5+2*h}], v13 offset:{KVSZ*c + 16*144*h}", ("k", c)) for h in range(2)]
    def dterm(c, T):
        sch = 65 if c == 0 else 69
        r = [(f"s_and_b32 s29, s{sch}, 1\ns_lshl_b32 s29, s29, 4\ns_lshr_b32 s29, s{70+c}, s29\ns_lshl_b32 s29, s29, 16", None), (None, [("k", c)])]
        for h in range(2):
            k0, k1 = 4+2*h, 5+2*h
            r += [(f"v_and_b32 v{T}, 0xffff0000, v{k1}", None), (f"v_lshlrev_b32 v{T+1}, 16, v{k1}", None),
                  (f"v_and_b32 v{T+2}, 0xffff0000, v{k0}", None), (f"v_lshlrev_b32 v{T+3}, 16, v{k0}", None)]
            r += [(f"v_mul_f32 v{T+j}, s29, v{T+j}", None) for j in range(4)]
            r += [(f"v_cvt_pk_bf16_f32 v{k0}, v{T}, v{T+1}", None), (f"v_cvt_pk_bf16_f32 v{k1}, v{T+2}, v{T+3}", None)]
        return r
    def exch(c):
        A = ACCS[c]
        t = ["s_cmp_eq_u32 s38, 0", f"s_cbranch_scc1 CX0_{c}"]
        t += [f"buffer_store_dwordx4 v[{A+4*h}:{A+4*h+3}], v14, s[60:63], 0 offen offset:{2048*c + 1024*h}" for h in range(2)]
        t += [f"v_mov_b32 v{A+i}, v{A+8+i}" for i in range(8)]
        t += [f"s_branch CX1_{c}", f"CX0_{c}:"]
        t += [f"buffer_store_dwordx4 v[{A+8+4*h}:{A+8+4*h+3}], v14, s[60:63], 0 offen offset:{2048*c + 1024*h}" for h in range(2)]
        t += [f"CX1_{c}:"]
        return [("\n".join(t), None)]
    def xread(c):
        A = ACCS[c]
        return [(f"buffer_load_dwordx4 v[{A+8+4*h}:{A+11+4*h}], v15, s[60:63], 0 offen offset:{2048*c + 1024*h}", None) for h in range(2)]
    def fin(c, h):
        sch = 65 if c == 0 else 69
        o = ACCS[c] + 4*h; p = ACCS[c] + 8 + 4*h
        r = [("s_waitcnt vmcnt(0)", None)] if h == 0 else []
        r += [(f"v_add_f32 v{o+j}, v{o+j}, v{p+j}", None) for j in range(4)]
        r += [(f"v_cvt_pk_bf16_f32 v{p}, v{o}, v{o+1}", None), (f"v_cvt_pk_bf16_f32 v{p+1}, v{o+2}, v{o+3}", None)]
        r += [(f"v_lshlrev_b32 v{o}, 16, v{p}", None), (f"v_and_b32 v{o+1}, 0xffff0000, v{p}", None),
              (f"v_lshlrev_b32 v{o+2}, 16, v{p+1}", None), (f"v_and_b32 v{o+3}, 0xffff0000, v{p+1}", None)]
        for k in range(2):
            r += [(f"v_lshlrev_b32 v{p+2}, 16, v{4+2*h+k}", None), (f"v_and_b32 v{p+3}, 0xffff0000, v{4+2*h+k}", None),
                  (f"v_add_f32 v{o+2*k}, v{o+2*k}, v{p+2}", None), (f"v_add_f32 v{o+2*k+1}, v{o+2*k+1}, v{p+3}", None)]
        r += [(f"v_cvt_pk_bf16_f32 v{p}, v{o}, v{o+1}", None), (f"v_cvt_pk_bf16_f32 v{p+1}, v{o+2}, v{o+3}", None)]
        r += [(f"s_lshl_b32 s48, s{sch}, 7\ns_add_u32 s48, s48, {16*81920*h}\nbuffer_store_dwordx2 v[{p}:{p+1}], v2, s[24:27], s48 offen", None)]
        return r
    extra = {P: [] for P in range(32)}
    tail = {P: [] for P in range(32)}
    tail[16] = exch(0)
    tail[19] = [("s_waitcnt vmcnt(0)", None)]
    extra[20] = xread(0)
    extra[24] = fin(0, 0)
    extra[25] = fin(0, 1)
    tail[25] = [("s_cmp_ge_u32 s69, 640\ns_cbranch_scc1 K2_END", None)]
    extra[26] = dterm_ld(1)
    d1 = dterm(1, 16)
    extra[27] = d1[:12]; extra[28] = d1[12:]
    bcur = 0
    while bcur < PB0:
        bar(e, bcur); bcur += 1
    for it in dterm_ld(0) + lda(0) + lda(1) + ldb(0) + lda(2) + ldb(1) + lda(3) + ldb(2) + dterm(0, 16): put(it)
    nfa = 4; nfb = 3
    for P in range(32):
        c, p = divmod(P, 16)
        if P & 1 == 0:
            bar(e, bcur); bcur += 1
        if P == 0: e("s_setprio 3")
        F0 = 17*c + p
        ops = []
        while nfa <= F0 + 4 and nfa < 34:
            ops += lda(nfa); nfa += 1
        while nfb <= P + 3 and nfb < 32:
            ops += ldb(nfb); nfb += 1
        ops = extra[P][:0] + ops
        ex = list(extra[P])
        wait([("a", F0), ("a", F0+1), ("b", P)])
        bb = BB + 8*(P & 3)
        A = ACCS[c]
        mfs = []
        for mu in range(2):
            fl = FL + 4*((F0+mu) % 6)
            a0 = A + 8*mu; a1 = a0 + 4
            c0 = "0" if p == 0 else f"v[{a0}:{a0+3}]"
            c1 = "0" if p == 0 else f"v[{a1}:{a1+3}]"
            mfs.append(f"v_mfma_f32_16x16x32_bf16 v[{a0}:{a0+3}], v[{fl}:{fl+3}], v[{bb}:{bb+3}], {c0}")
            mfs.append(f"v_mfma_f32_16x16x32_bf16 v[{a1}:{a1+3}], v[{fl}:{fl+3}], v[{bb+4}:{bb+7}], {c1}")
        for mu in range(2):
            fh = FH + 4*((F0+mu) % 6)
            a1 = A + 8*mu + 4
            mfs.append(f"v_mfma_f32_16x16x32_bf16 v[{a1}:{a1+3}], v[{fh}:{fh+3}], v[{bb}:{bb+3}], v[{a1}:{a1+3}]")
        for i in range(6):
            e(mfs[i])
            no = (len(ops) + 5 - i) // (6 - i)
            for it in ops[:no]: put(it)
            ops = ops[no:]
            ne = (len(ex) + 5 - i) // (6 - i)
            for it in ex[:ne]: put(it)
            ex = ex[ne:]
        for it in tail[P]: put(it)
        if P == 15: q(e, 8, 8)
    q(e, 10, 8)
    e("s_setprio 0")
    e("s_nop 7")
    for it in exch(1): put(it)
    e("s_waitcnt vmcnt(0)")
    bar(e, bcur); bcur += 1
    assert bcur == C1_E + 1
    for it in xread(1): put(it)
    while bcur < 20:
        bar(e, bcur); bcur += 1
    for it in fin(1, 0) + fin(1, 1): put(it)

def k2():
    e = E()
    NS = K2_NS; STG = K2_STG; NT = 20
    e(f"s_cmp_ge_u32 s2, {N_K2}")
    e("s_cbranch_scc1 K2_END")
    trace_start(e)
    e("s_load_dwordx4 s[4:7], s[0:1], 32")
    e("s_load_dwordx2 s[12:13], s[0:1], 96")
    e("v_lshrrev_b32 v1, 6, v0")
    e("s_nop 0")
    e("v_readfirstlane_b32 s3, v1")
    e("v_and_b32 v1, 63, v0")
    e("v_lshlrev_b32 v2, 4, v1")
    e("s_and_b32 s14, s2, 7")
    e("s_lshr_b32 s15, s2, 3")
    if "map2" in X2:
        e("s_mul_i32 s32, s14, 27")
        e("s_add_u32 s65, s32, s15")
        e("s_lshl_b32 s65, s65, 1")
        e("s_add_u32 s69, s65, 1")
        e(f"s_mov_b32 s66, {CV_A}")
        e("s_cmp_lt_u32 s15, 27")
        e("s_cselect_b32 s64, 1, 0")
        e("s_cbranch_scc1 K2_R")
        e("s_mul_i32 s32, s14, 5")
        e("s_add_u32 s32, s32, s15")
        e("s_add_u32 s65, s32, 405")
        e("s_add_u32 s69, s65, 120")
        e("s_mov_b32 s66, 0")
        e.label("K2_R")
        e("s_mov_b32 s76, s15")
        e("s_mov_b32 s77, s14")
    else:
        e("s_lshr_b32 s28, s14, 2")
        e("s_lshl_b32 s29, s28, 1")
        e("s_sub_u32 s29, 28, s29")
        e("s_and_b32 s31, s14, 3")
        e("s_mul_i32 s32, s31, s29")
        e("s_mul_i32 s33, s28, 112")
        e("s_add_u32 s32, s32, s33")
        e("s_add_u32 s65, s32, s15")
        e("s_lshl_b32 s65, s65, 1")
        e("s_add_u32 s69, s65, 1")
        e(f"s_mov_b32 s66, {CV_A}")
        e("s_cmp_lt_u32 s15, s29")
        e("s_cselect_b32 s64, 1, 0")
        e("s_cbranch_scc1 K2_R")
        e("s_sub_u32 s32, 32, s29")
        e("s_mul_i32 s32, s32, s31")
        e("s_lshl_b32 s33, s28, 4")
        e("s_add_u32 s32, s32, s33")
        e("s_add_u32 s32, s32, s15")
        e("s_sub_u32 s32, s32, s29")
        e("s_add_u32 s65, s32, 432")
        e("s_add_u32 s69, s65, 120")
        e("s_mov_b32 s66, 0")
        e.label("K2_R")
        e("s_mul_i32 s76, s28, 14")
        e("s_lshr_b32 s33, s15, 1")
        e("s_add_u32 s76, s76, s33")
        e("s_lshl_b32 s77, s31, 1")
        e("s_and_b32 s33, s15, 1")
        e("s_add_u32 s77, s77, s33")
    e("s_waitcnt lgkmcnt(0)")
    srd(e, 16, 4, 5, SZ_SD)
    e("s_cmp_lt_u32 s3, 12")
    e("s_cbranch_scc1 K2_CW")
    e("s_sub_u32 s3, s3, 12")
    e("s_cmp_eq_u32 s64, 0")
    e("s_cbranch_scc1 K2_END")
    srd_off(e, 52, 12, 13, WS_XNP, SZ_SD)
    srd_off(e, 56, 12, 13, WS_WP1, 2*D*F*2)
    e("s_lshl_b32 s72, s3, 13")
    e("s_lshl_b32 s73, s3, 12")
    e("s_mul_i32 s74, s77, 327680")
    e("s_add_u32 s74, s74, s72")
    e("s_mul_i32 s75, s76, 163840")
    e("s_add_u32 s75, s75, s73")
    e("s_add_u32 s73, s73, 16384")
    def g1_dma():
        e("s_mov_b32 m0, s72")
        e("s_add_u32 s34, s74, 4096")
        for i in range(4):
            e(f"buffer_load_dwordx4 v2, s[52:55], s74 offen offset:{i*1024} lds")
        e("s_add_u32 m0, s72, 4096")
        e("s_add_u32 s74, s74, 16384")
        for i in range(4):
            e(f"buffer_load_dwordx4 v2, s[52:55], s34 offen offset:{i*1024} lds")
        e("s_mov_b32 m0, s73")
        e(f"s_add_u32 s72, s72, {STG}")
        for i in range(4):
            e(f"buffer_load_dwordx4 v2, s[56:59], s75 offen offset:{i*1024} lds")
        e("s_add_u32 s75, s75, 8192")
        e(f"s_add_u32 s73, s73, {STG}")
    def lst():
        if PROF2:
            e("s_memtime s[88:89]")
            e("s_waitcnt lgkmcnt(0)")
            e("v_cmp_eq_u32 vcc, s81, v1")
            e("v_mov_b32 v21, s88")
            e("v_cndmask_b32 v20, v20, v21, vcc")
            e("s_add_u32 s81, s81, 1")
    e("s_mov_b32 s81, 0")
    lst()
    e("s_mov_b32 s79, 0")
    e(f"s_mov_b32 s80, {NS*STG}")
    e.label("K2_LP")
    g1_dma()
    e("s_add_u32 s79, s79, 1")
    e(f"s_cmp_lg_u32 s79, {LB0}")
    e("s_cbranch_scc1 K2_LP2")
    lst()
    e(f"s_waitcnt vmcnt({12*(LB0-1)})")
    e("s_barrier")
    lst()
    e.label("K2_LP2")
    e(f"s_cmp_lt_u32 s79, {NS-1}")
    e("s_cbranch_scc1 K2_LP")
    e.label("K2_LGL")
    e(f"s_waitcnt vmcnt({12*(NS-3)})")
    e("s_barrier")
    lst()
    g1_dma()
    e("s_cmp_ge_u32 s72, s80")
    e("s_cselect_b32 s33, s80, 0")
    e("s_sub_u32 s72, s72, s33")
    e("s_sub_u32 s73, s73, s33")
    e("s_add_u32 s79, s79, 1")
    e(f"s_cmp_lt_u32 s79, {NT}")
    e("s_cbranch_scc1 K2_LGL")
    for b in range(NT-NS+2, (max(NT, C1_E+1) if PROF2 else NT)):
        e(f"s_waitcnt vmcnt({12*max(NT-1-b, 0)})")
        e("s_barrier")
        lst()
    if PROF2:
        e("s_load_dwordx2 s[84:85], s[0:1], 88")
        e("s_waitcnt lgkmcnt(0)")
        e("s_mov_b32 s86, 256")
        e("s_mov_b32 s87, 0x00020000")
        e(f"s_cmp_lg_u32 s2, {PROF2}")
        e("s_cbranch_scc1 K2_END")
        e("s_cmp_lg_u32 s3, 0")
        e("s_cbranch_scc1 K2_END")
        e("v_lshlrev_b32 v120, 2, v1")
        e("buffer_store_dword v20, v120, s[84:87], 0 offen offset:128")
    e("s_endpgm")
    e.label("K2_CW")
    e("s_cmp_lt_u32 s3, 8")
    e("s_cselect_b32 s33, s64, 0")
    e("s_cmp_eq_u32 s33, 1")
    e("s_cbranch_scc1 K2_G")
    srd_off(e, 20, 12, 13, WS_KVT, SZ_SD)
    srd_off(e, 24, 12, 13, WS_T3, SZ_T3)
    q(e, 0, 8)
    e("s_and_b32 s39, s3, 3")
    e("s_lshr_b32 s38, s3, 2")
    e("s_cmp_eq_u32 s64, 1")
    e("s_cselect_b32 s38, 0, s38")
    e("s_mul_i32 s33, s38, 40")
    e("s_add_u32 s65, s65, s33")
    e("s_add_u32 s69, s69, s33")
    e(f"s_mul_i32 s33, s38, {CV_SZ}")
    e("s_add_u32 s66, s66, s33")
    e("s_lshr_b32 s38, s39, 1")
    e("s_min_u32 s68, s69, 639")
    e("s_lshr_b32 s28, s65, 1")
    e("s_lshl_b32 s28, s28, 2")
    e("s_load_dword s70, s[6:7], s28")
    e("s_lshr_b32 s28, s68, 1")
    e("s_lshl_b32 s28, s28, 2")
    e("s_load_dword s71, s[6:7], s28")
    e("s_lshl_b32 s32, s65, 12")
    e("s_lshl_b32 s33, s68, 12")
    e("v_lshl_add_u32 v16, s39, 6, v1")
    e("v_lshlrev_b32 v12, 4, v16")
    e("buffer_load_dwordx4 v[104:107], v12, s[16:19], s32 offen")
    e("buffer_load_dwordx2 v[108:109], v12, s[16:19], s32 offen offset:16")
    e("buffer_load_dwordx4 v[4:7], v12, s[20:23], s32 offen")
    e("buffer_load_dwordx4 v[120:123], v12, s[16:19], s33 offen")
    e("buffer_load_dwordx2 v[124:125], v12, s[16:19], s33 offen offset:16")
    e("buffer_load_dwordx4 v[112:115], v12, s[20:23], s33 offen")
    e(f"s_add_u32 s34, s66, {CP_OFF + 128}")
    e("v_add_u32 v117, s34, v12")
    for i in range(4):
        e(f"v_mov_b32 v{28+i}, 0")
    e("v_lshrrev_b32 v21, 3, v1")
    e(f"v_mul_u32_u24 v20, {COPY}, v21")
    e("v_and_b32 v21, 7, v1")
    e("v_lshl_add_u32 v20, v21, 4, v20")
    e(f"s_add_u32 s34, s66, {CP_OFF}")
    e("v_add_u32 v20, s34, v20")
    e("v_and_b32 v22, 15, v1")
    e("v_bfe_u32 v21, v1, 4, 1")
    e(f"v_mul_u32_u24 v21, {KVSZ}, v21")
    e("v_lshl_add_u32 v21, v22, 4, v21")
    e("v_add_u32 v21, s66, v21")
    e("v_cmp_gt_u32 vcc, 9, v22")
    e("s_mov_b32 vcc_hi, 0")
    e("s_cmp_eq_u32 s39, 0")
    e("s_cbranch_scc0 CF_0")
    e("ds_write_b128 v20, v[28:31]")
    e("s_and_saveexec_b64 s[36:37], vcc")
    e("ds_write_b128 v21, v[28:31]")
    e("s_mov_b64 exec, s[36:37]")
    e.label("CF_0")
    e("v_lshrrev_b32 v118, 3, v16")
    e("v_mul_u32_u24 v118, 144, v118")
    e("v_and_b32 v26, 7, v16")
    e("v_lshl_add_u32 v118, v26, 4, v118")
    e("s_add_u32 s34, s66, 144")
    e("v_add_u32 v118, s34, v118")
    e("v_and_b32 v40, 15, v1")
    e("v_lshrrev_b32 v41, 4, v1")
    e("v_add_u32 v16, 1, v40")
    e("v_and_b32 v16, 3, v16")
    e(f"v_mul_u32_u24 v8, {COPY - 2}, v16")
    e("v_lshl_add_u32 v8, v40, 1, v8")
    e("v_lshlrev_b32 v17, 4, v41")
    e("v_sub_u32 v8, v8, v17")
    e("s_lshl_b32 s41, s38, 10")
    e("s_and_b32 s42, s39, 1")
    e("s_lshl_b32 s42, s42, 5")
    e("s_add_u32 s42, s42, s41")
    e("s_add_u32 s42, s42, s66")
    e(f"s_add_u32 s42, s42, {CP_OFF + 2*(64-7) - 64}")
    e("v_add_u32 v8, s42, v8")
    e("v_add_u32 v9, 2048, v8")
    e("v_mul_u32_u24 v10, 144, v40")
    e("v_lshlrev_b32 v11, 4, v41")
    e("v_add_u32 v11, s66, v11")
    e("v_add_u32 v10, v10, v11")
    e("s_mul_i32 s43, s38, 1152")
    e("s_sub_u32 s43, 144, s43")
    e("v_add_u32 v10, s43, v10")
    e("s_mul_i32 s44, s2, 12")
    e("s_add_u32 s44, s44, s3")
    e("s_xor_b32 s45, s44, 2")
    e("s_lshl_b32 s44, s44, 12")
    e("s_lshl_b32 s45, s45, 12")
    e("v_add_u32 v14, s44, v2")
    e("v_add_u32 v15, s45, v2")
    e("v_mul_u32_u24 v13, 144, v40")
    e("v_lshrrev_b32 v42, 1, v41")
    e("v_lshl_add_u32 v13, v42, 4, v13")
    e("v_and_b32 v42, 1, v41")
    e("v_lshlrev_b32 v42, 3, v42")
    e("v_xor_b32 v42, 8, v42")
    e("v_add_u32 v13, v13, v42")
    e("s_lshl_b32 s46, s39, 5")
    e("s_add_u32 s47, s46, s66")
    e("s_add_u32 s47, s47, 144")
    e("v_add_u32 v13, s47, v13")
    e("v_mul_u32_u24 v2, 81920, v40")
    e("v_lshl_add_u32 v2, v41, 3, v2")
    e("v_add_u32 v2, s46, v2")
    e("s_waitcnt vmcnt(4)")
    write_copies(e, 104, "CF_1", 0)
    e("s_waitcnt vmcnt(3)")
    e("ds_write_b128 v118, v[4:7]")
    e("s_waitcnt vmcnt(1)")
    write_copies(e, 120, "CF_2", 4*COPY)
    e("s_waitcnt vmcnt(0)")
    e(f"ds_write_b128 v118, v[112:115] offset:{KVSZ}")
    e("s_waitcnt lgkmcnt(0)")
    srd_off(e, 60, 12, 13, WS_XCH, 256*12*4096)
    q(e, 5, 8)
    conv_main(e)
    q(e, 11, 8)
    if PROF2 or TRACE: e("s_waitcnt vmcnt(0)")
    q(e, 7, 8)
    qdump(e, 12, 8)
    p4dump(e, "P4_C")
    trace_end(e, 0, 512)
    e("s_endpgm")
    e.label("K2_G")
    q(e, 0)
    srd_off(e, 60, 12, 13, WS_H, SZ_H)
    e("s_lshr_b32 s47, s3, 1")
    e("s_and_b32 s48, s3, 1")
    e("v_and_b32 v4, 31, v1")
    e("v_lshrrev_b32 v3, 5, v1")
    e("s_lshl_b32 s49, s47, 6")
    e("v_add_u32 v4, s49, v4")
    e("v_lshrrev_b32 v7, 2, v4")
    e("v_and_b32 v5, 3, v4")
    e("v_lshl_add_u32 v5, v5, 2, v3")
    e("v_and_b32 v6, 3, v7")
    e("v_xor_b32 v5, v5, v6")
    e("v_lshlrev_b32 v5, 4, v5")
    e("v_lshl_add_u32 v12, v7, 8, v5")
    e("v_xor_b32 v13, 32, v12")
    e("v_lshrrev_b32 v8, 4, v1")
    e("v_bfe_u32 v3, v1, 2, 2")
    e("v_and_b32 v4, 3, v1")
    e("v_lshrrev_b32 v5, 1, v8")
    e("v_lshl_add_u32 v5, v5, 3, v3")
    e("v_lshlrev_b32 v5, 7, v5")
    e("v_and_b32 v6, 1, v8")
    e("v_lshlrev_b32 v6, 1, v6")
    e("v_lshrrev_b32 v7, 1, v4")
    e("v_add_u32 v6, v6, v7")
    e("s_lshl_b32 s49, s48, 2")
    e("v_add_u32 v6, s49, v6")
    e("v_bfe_u32 v7, v3, 1, 1")
    e("v_lshlrev_b32 v7, 2, v7")
    e("v_xor_b32 v6, v6, v7")
    e("v_lshl_add_u32 v5, v6, 4, v5")
    e("v_and_b32 v7, 1, v4")
    e("v_lshl_add_u32 v5, v7, 3, v5")
    e("v_add_u32 v14, 16384, v5")
    G0, U0 = 64, 96
    for i in range(64):
        e(f"v_mov_b32 v{64+i}, 0")
    e("v_add_u32 v9, 0x10000, v12")
    e("v_add_u32 v10, 0x10000, v13")
    e("v_add_u32 v11, 0x10000, v14")
    def frag_ops(g):
        if "nofr" in X2: return []
        t = g >> 1; ks = g & 1; fb = 16 + 16*(g % 3)
        sb = (t % NS)*STG
        hi64 = sb >= 65536
        if hi64: sb -= 65536
        xa = (9 if hi64 else 12) + ks; wa = 11 if hi64 else 14
        r = []
        for mat in range(2):
            for hi in range(2):
                rr = fb + 8 + 4*mat + 2*hi
                r.append(f"ds_read_b64_tr_b16 v[{rr}:{rr+1}], v{wa} offset:{sb + mat*4096 + ks*2048 + hi*512}")
        for mi in range(2):
            r.append(f"ds_read_b128 v[{fb+4*mi}:{fb+4*mi+3}], v{xa} offset:{sb + mi*2048}")
        return r
    def frag_loads(g):
        for x in frag_ops(g): e(x)
    def mf(g, ops):
        fb = 16 + 16*(g % 3)
        ms = []
        for mi in range(2):
            x = fb+4*mi
            ms.append(f"v_mfma_f32_32x32x16_bf16 v[{G0+16*mi}:{G0+16*mi+15}], v[{fb+8}:{fb+11}], v[{x}:{x+3}], v[{G0+16*mi}:{G0+16*mi+15}]")
            ms.append(f"v_mfma_f32_32x32x16_bf16 v[{U0+16*mi}:{U0+16*mi+15}], v[{fb+12}:{fb+15}], v[{x}:{x+3}], v[{U0+16*mi}:{U0+16*mi+15}]")
        grp = [ops[0:2], ops[2:4], ops[4:5], ops[5:6]]
        for i in range(4):
            e(ms[i])
            for x in grp[i]: e(x)
    e("v_lshrrev_b32 v3, 5, v1")
    e("v_and_b32 v4, 31, v1")
    e("v_lshlrev_b32 v4, 4, v4")
    e("v_lshl_add_u32 v4, v3, 10, v4")
    e("s_lshl_b32 s46, s77, 2")
    e("s_add_u32 s46, s46, s47")
    e(f"s_mul_i32 s46, s46, {27*8192}")
    e("s_lshl_b32 s49, s76, 13")
    e("s_add_u32 s46, s46, s49")
    e("s_lshl_b32 s49, s48, 12")
    e("s_add_u32 s46, s46, s49")
    q(e, 1)
    e("s_barrier")
    q(e, 2)
    frag_loads(0); frag_loads(1)
    for g in range(2*NT):
        ops = []
        if g + 2 < 2*NT:
            if g & 1 == 0: bar(e, (g+2)//2)
            ops = frag_ops(g+2)
        e(f"s_waitcnt lgkmcnt({6*min(1, 2*NT-1-g)})")
        mf(g, ops)
    q(e, 3)
    gb = NT
    if C1_E >= gb: e("s_barrier"); gb += 1
    e("s_nop 15")
    for mi in range(2):
        for pi in range(2):
            o = 16 + 4*(2*mi+pi)
            for ii in range(2):
                i = 2*pi + ii
                g = G0+16*mi+4*i; u = U0+16*mi+4*i
                for pr in range(2):
                    e(f"v_cvt_pk_bf16_f32 v40, v{g+2*pr}, v{g+2*pr+1}")
                    e(f"v_cvt_pk_bf16_f32 v41, v{u+2*pr}, v{u+2*pr+1}")
                    e("v_lshlrev_b32 v42, 16, v40")
                    e("v_and_b32 v43, 0xffff0000, v40")
                    e("v_lshlrev_b32 v44, 16, v41")
                    e("v_and_b32 v45, 0xffff0000, v41")
                    e("v_mul_f32 v42, v42, v44")
                    e("v_mul_f32 v43, v43, v45")
                    e(f"v_cvt_pk_bf16_f32 v{o+2*ii+pr}, v42, v43")
            e("s_nop 1")
            e(f"v_permlane32_swap_b32 v{o}, v{o+2}")
            e(f"v_permlane32_swap_b32 v{o+1}, v{o+3}")
            e("s_nop 1")
            e(f"buffer_store_dwordx4 v[{o}:{o+3}], v4, s[60:63], s46 offen offset:{pi*2048 + mi*512}")
    while C1_E >= gb:
        e("s_barrier"); gb += 1
    q(e, 4)
    if PROF2 or TRACE: e("s_waitcnt vmcnt(0)")
    q(e, 7)
    qdump(e, 12)
    p4dump(e, "P4_G")
    trace_end(e, 1)
    e.label("K2_END")
    e("s_endpgm")
    return e.text()


N_G2 = 256
K3_NS = 7
K3_STG = 18432
K3_X0 = K3_STG*K3_NS
K3_LDS = K3_X0 + 2*10240
K3_XB = 12
K3_XI = int(os.environ.get('K3XI', '0'))
K3_D = int(os.environ.get('K3D', '1'))
PROF5 = os.environ.get("PROF5")
def k3():
    e = E()
    NS = K3_NS; NT = 27; STG = K3_STG
    Y2_L = K3_X0; X_L = K3_X0 + 10240; XN_L = K3_X0 + 20480
    e(f"s_cmp_ge_u32 s2, {N_G2}")
    e("s_cbranch_scc1 K3_END")
    trace_start(e)
    e("s_load_dwordx2 s[4:5], s[0:1], 0")
    e("s_load_dwordx2 s[10:11], s[0:1], 80")
    e("s_load_dwordx2 s[12:13], s[0:1], 96")
    e("v_lshrrev_b32 v1, 6, v0")
    e("s_nop 0")
    e("v_readfirstlane_b32 s3, v1")
    e("s_and_b32 s15, s2, 7")
    e("s_lshl_b32 s15, s15, 2")
    e("s_lshr_b32 s28, s2, 3")
    e("s_and_b32 s29, s28, 3")
    e("s_add_u32 s15, s15, s29")
    e("s_lshr_b32 s28, s28, 2")
    e("s_lshl_b32 s36, s15, 6")
    e("s_mul_i32 s39, s28, 160")
    e("v_and_b32 v1, 63, v0")
    e("s_waitcnt lgkmcnt(0)")
    e("s_cmp_lt_u32 s3, 4")
    e("s_cbranch_scc1 K3_COMP")
    e("s_sub_u32 s3, s3, 4")
    e("v_lshlrev_b32 v2, 4, v1")
    e("s_cmp_ge_u32 s3, 2")
    e("s_cbranch_scc1 K3_XL")
    srd_off(e, 16, 12, 13, WS_H, SZ_H)
    srd_off(e, 20, 12, 13, WS_WP2, D*F*2)
    e("v_lshlrev_b32 v2, 4, v1")
    e("s_lshl_b32 s40, s3, 12")
    e("s_mul_i32 s41, s3, 5120")
    e(f"s_mul_i32 s42, s15, {0 if 'hotA' in X3 else 27*8192}")
    e("s_add_u32 s42, s42, s40")
    e(f"s_mul_i32 s43, s28, {0 if 'hotW' in X3 else 1728*160}")
    e("s_add_u32 s43, s43, s41")
    e("s_add_u32 s41, s41, 8192")
    vq = VQ(e)
    def lst():
        if PROF5:
            e("s_memtime s[88:89]")
            e("s_waitcnt lgkmcnt(0)")
            e("v_cmp_eq_u32 vcc, s81, v1")
            e("v_mov_b32 v21, s88")
            e("v_cndmask_b32 v20, v20, v21, vcc")
            e("s_add_u32 s81, s81, 1")
    e("s_mov_b32 s81, 0")
    lst()
    def dma(t):
        sb = (t % NS)*STG
        e(f"s_add_u32 m0, s40, {sb}")
        e("s_add_u32 s46, s43, 4096")
        for i in range(4):
            e(f"buffer_load_dwordx4 v2, s[16:19], s42 offen offset:{i*1024} lds")
        e(f"s_add_u32 m0, s41, {sb}")
        e("s_add_u32 s42, s42, 8192")
        for i in range(4):
            e(f"buffer_load_dwordx4 v2, s[20:23], s43 offen offset:{i*1024} lds")
        e(f"s_add_u32 m0, s41, {sb + 4096}")
        e("s_add_u32 s43, s43, 10240")
        e(f"buffer_load_dwordx4 v2, s[20:23], s46 offen lds")
        vq.issue(("g", t), 9)
    def extras():
        srd_off(e, 24, 12, 13, WS_T3, SZ_T3)
        srd(e, 52, 4, 5, SZ_SD)
        e("s_lshl_b32 s47, s15, 3")
        e("s_add_u32 s47, s47, s28")
        e(f"s_mul_i32 s47, s47, {0 if 'hotX' in X3 else 10240}")
        e("s_mul_i32 s49, s3, 5120")
        e("s_add_u32 s47, s47, s49")
        e("s_add_u32 s48, s47, 4096")
        e(f"s_add_u32 m0, s49, {Y2_L}")
        e("s_nop 0")
        for i in range(4):
            e(f"buffer_load_dwordx4 v2, s[24:27], s47 offen offset:{i*1024} lds")
        e(f"s_add_u32 m0, s49, {Y2_L + 4096}")
        e("s_nop 0")
        e(f"buffer_load_dwordx4 v2, s[24:27], s48 offen lds")
        for i in range(5):
            e(f"v_add_u32 v3, {64*i}, v1")
            e("v_mul_u32_u24 v4, 6554, v3")
            e("v_lshrrev_b32 v4, 16, v4")
            e("v_mul_u32_u24 v5, 10, v4")
            e("v_sub_u32 v5, v3, v5")
            e("v_mul_u32_u24 v4, 1280, v4")
            e(f"v_lshl_add_u32 v{10+i}, v5, 4, v4")
        e("s_lshl_b32 s48, s3, 5")
        e("s_add_u32 s48, s48, s36")
        e("s_mul_i32 s48, s48, 1280")
        e("s_add_u32 s48, s48, s39")
        for i in range(5):
            e(f"s_add_u32 m0, s49, {X_L + i*1024}")
            e("s_nop 0")
            e(f"buffer_load_dwordx4 v{10+i}, s[52:55], s48 offen lds")
    nxt = 0
    DD = K3_D + 1
    for b in range(NT):
        lim = NS - 1 if b < DD else b - 1 - DD + NS
        lim = min(lim, 2*b + 1, NT - 1)
        while nxt <= lim:
            dma(nxt); nxt += 1
        vq.wait([("g", b)])
        e("s_barrier")
        lst()
    if PROF5:
        e("s_load_dwordx2 s[84:85], s[0:1], 88")
        e("s_waitcnt lgkmcnt(0)")
        e("s_mov_b32 s86, 256")
        e("s_mov_b32 s87, 0x00020000")
        e(f"s_cmp_lg_u32 s2, {PROF5}")
        e("s_cbranch_scc1 K3_END")
        e("s_cmp_lg_u32 s3, 0")
        e("s_cbranch_scc1 K3_END")
        e("v_lshlrev_b32 v120, 2, v1")
        e("buffer_store_dword v20, v120, s[84:87], 0 offen")
    e("s_endpgm")
    e.label("K3_XL")
    e("s_sub_u32 s3, s3, 2")
    for b in range(K3_XB + 1):
        if b == K3_XI: extras()
        if b == K3_XB: e("s_waitcnt vmcnt(0)")
        e("s_barrier")
    e("s_endpgm")
    e.label("K3_COMP")
    srd(e, 32, 10, 11, SZ_SD)
    e("v_and_b32 v20, 15, v1")
    e("v_lshrrev_b32 v21, 4, v1")
    e("v_and_b32 v22, 1, v21")
    e("s_lshl_b32 s49, s3, 4")
    e("v_add_u32 v23, s49, v20")
    e("v_mul_u32_u24 v2, 160, v23")
    e("v_lshl_add_u32 v2, v21, 3, v2")
    e(f"v_add_u32 v2, {X_L}, v2")
    e("v_add_u32 v24, s36, v23")
    srd_off(e, 40, 12, 13, WS_XN, S*8)
    e("v_lshlrev_b32 v25, 3, v24")
    e("buffer_load_dwordx2 v[14:15], v25, s[40:43], 0 offen")
    e("v_mul_u32_u24 v24, 1280, v24")
    e("v_lshl_add_u32 v24, v21, 3, v24")
    e("v_add_u32 v3, s39, v24")
    e("v_lshlrev_b32 v24, 10, v21")
    e("v_lshl_add_u32 v24, v23, 4, v24")
    e("v_lshl_add_u32 v4, v22, 3, v24")
    e("v_xor_b32 v5, 8, v4")
    e("v_bfe_u32 v24, v1, 2, 2")
    e("v_lshl_add_u32 v24, v21, 3, v24")
    e("v_lshl_add_u32 v25, v22, 2, v24")
    e("v_xor_b32 v26, 1, v22")
    e("v_lshl_add_u32 v26, v26, 2, v24")
    e("v_and_b32 v24, 3, v1")
    e("v_lshlrev_b32 v24, 3, v24")
    e("v_add_u32 v24, 8192, v24")
    e("s_movk_i32 s49, 160")
    e("v_mad_u32_u24 v6, v25, s49, v24")
    e("v_mad_u32_u24 v7, v26, s49, v24")
    for k in range(4):
        e(f"v_add_u32 v{8+k}, {4*STG}, v{4+k}")
    e("v_lshrrev_b32 v12, 2, v1")
    e("v_lshlrev_b32 v12, 7, v12")
    e("v_and_b32 v24, 3, v1")
    e("v_lshl_add_u32 v12, v24, 3, v12")
    e("s_lshl_b32 s49, s3, 5")
    e(f"s_add_u32 s49, s49, {Y2_L}")
    e("v_add_u32 v12, s49, v12")
    ACC = 16; XR, XNR, YR = 36, 46, 56; T = 66; FB = 72
    lq = []
    def wait(tags):
        idx = max((i for i, t in enumerate(lq) if t in tags), default=-1)
        if idx >= 0: e(f"s_waitcnt lgkmcnt({min(len(lq) - 1 - idx, 15)})")
    def put(it):
        if it[0] is None: wait(it[1]); return
        e(it[0])
        if it[1] is not None: lq.append(it[1])
    def frag_ops(t):
        fb = FB + 48*(t % (K3_D+1))
        sl = t % NS
        ab = 4 if sl < 4 else 8
        sb = (sl if sl < 4 else sl - 4)*STG
        r = []
        for kk in range(2):
            for hf in range(2):
                rr = fb + 4*kk + 2*hf
                r.append((f"ds_read_b64 v[{rr}:{rr+1}], v{ab+hf} offset:{sb + kk*4096}", ("f", t, kk)))
            for tt in range(5):
                for hf in range(2):
                    rr = fb + 8 + 20*kk + 4*tt + 2*hf
                    r.append((f"ds_read_b64_tr_b16 v[{rr}:{rr+1}], v{ab+2+hf} offset:{sb + kk*5120 + 32*tt}", ("f", t, kk)))
        return r
    xl = []
    for tt in range(5):
        xl.append((f"ds_read_b64_tr_b16 v[{YR+2*tt}:{YR+2*tt+1}], v12 offset:{2048*tt}", "x"))
        xl.append((f"ds_read_b64 v[{XR+2*tt}:{XR+2*tt+1}], v2 offset:{32*tt}", "x"))
    def amath(i):
        r = [f"v_lshlrev_b32 v{T}, 16, v{XR+i}", f"v_and_b32 v{T+1}, 0xffff0000, v{XR+i}",
             f"v_sub_f32 v{T+2}, v{T}, v14", f"v_sub_f32 v{T+3}, v{T+1}, v14",
             f"v_cvt_pk_bf16_f32 v{T+4}, v{T+2}, v{T+3}",
             f"v_lshlrev_b32 v{T+2}, 16, v{T+4}", f"v_and_b32 v{T+3}, 0xffff0000, v{T+4}",
             f"v_mul_f32 v{T+4}, v{T+2}, v13", f"v_mul_f32 v{T+5}, v{T+3}, v13",
             f"v_fma_f32 v{T+2}, -v{T+4}, v15, v{T+2}", f"v_fma_f32 v{T+3}, -v{T+5}, v15, v{T+3}",
             f"v_fmac_f32 v{T+4}, v{T+2}, v13", f"v_fmac_f32 v{T+5}, v{T+3}, v13",
             f"v_cvt_pk_bf16_f32 v{T+4}, v{T+4}, v{T+5}",
             f"v_lshlrev_b32 v{T+2}, 16, v{T+4}", f"v_and_b32 v{T+3}, 0xffff0000, v{T+4}",
             f"v_lshlrev_b32 v{T+4}, 16, v{YR+i}", f"v_and_b32 v{T+5}, 0xffff0000, v{YR+i}",
             f"v_mul_f32 v{T+2}, v{T+2}, v{T+4}", f"v_mul_f32 v{T+3}, v{T+3}, v{T+5}",
             f"v_cvt_pk_bf16_f32 v{T+4}, v{T+2}, v{T+3}",
             f"v_lshlrev_b32 v{T+2}, 16, v{T+4}", f"v_and_b32 v{T+3}, 0xffff0000, v{T+4}",
             f"v_add_f32 v{T}, v{T}, v{T+2}", f"v_add_f32 v{T+1}, v{T+1}, v{T+3}",
             f"v_cvt_pk_bf16_f32 v{T+4}, v{T}, v{T+1}",
             f"v_lshlrev_b32 v{XR+i}, 16, v{T+4}", f"v_and_b32 v{XNR+i}, 0xffff0000, v{T+4}"]
        return [(x, None) for x in r]
    extra = {t: [] for t in range(NT)}
    tx = K3_XB - K3_D
    extra[tx] = xl
    extra[tx + 1] = [("s_waitcnt vmcnt(0)\nv_rcp_f32 v13, v15", None)]
    extra[tx + 2] = [(None, ["x"])]
    for i in range(10):
        extra[tx + 2 + i] += amath(i)
    for t in range(K3_D):
        e("s_barrier")
        for it in frag_ops(t): put(it)
    for t in range(NT):
        ops = []
        if t + K3_D < NT:
            e("s_barrier")
            ops = frag_ops(t+K3_D)
        ex = list(extra[t])
        fb = FB + 48*(t % (K3_D+1))
        for kk in range(2):
            wait([("f", t, kk)])
            for tt in range(5):
                a = ACC + 4*tt
                w = fb + 8 + 20*kk + 4*tt; h = fb + 4*kk
                c = "0" if (t == 0 and kk == 0) else f"v[{a}:{a+3}]"
                e(f"v_mfma_f32_16x16x32_bf16 v[{a}:{a+3}], v[{w}:{w+3}], v[{h}:{h+3}], {c}")
                left = 10 - (5*kk + tt)
                no = (len(ops) + left - 1)//left
                for it in ops[:no]: put(it)
                ops = ops[no:]
                ne = (len(ex) + left - 1)//left
                for it in ex[:ne]: put(it)
                ex = ex[ne:]
    e("s_nop 7")
    for tt in range(5):
        a = ACC + 4*tt
        for pr in range(2):
            i = 2*tt + pr
            e(f"v_cvt_pk_bf16_f32 v{T}, v{a+2*pr}, v{a+2*pr+1}")
            e(f"v_lshlrev_b32 v{T+1}, 16, v{T}")
            e(f"v_and_b32 v{T+2}, 0xffff0000, v{T}")
            e(f"v_add_f32 v{T+1}, v{XR+i}, v{T+1}")
            e(f"v_add_f32 v{T+2}, v{XNR+i}, v{T+2}")
            e(f"v_cvt_pk_bf16_f32 v{YR+i}, v{T+1}, v{T+2}")
        e(f"buffer_store_dwordx2 v[{YR+2*tt}:{YR+2*tt+1}], v3, s[32:35], 0 offen offset:{32*tt}")
    trace_end(e, 2)
    e.label("K3_END")
    e("s_endpgm")
    return e.text()

def build(kernels):
    out = []
    out.append(open("cdna_kernels/%s.s.ref" % NAME).read().split("; Override launch")[0])
    for (name, grid, block, lds, body, vgpr) in kernels:
        out.append(f"; @launch kernel={name} grid=({grid},1,1) block=({block},1,1) lds={lds}\n")
    out.append('.amdgcn_target "amdgcn-amd-amdhsa--gfx950"\n.text\n')
    for (name, grid, block, lds, body, vgpr) in kernels:
        out.append(khead(name))
        out.append(body)
    out.append('.section .rodata,"a"\n')
    for (name, grid, block, lds, body, vgpr) in kernels:
        out.append(".p2align 6\n")
        out.append(kdesc(name, vgpr))
    return "".join(out)

if __name__ == "__main__":
    ks = [("prep_kernel", N_K1, 256, 128*144, k1(), 120),
          ("mid_kernel", N_K2, 896, K2_LDS, k2(), 128),
          ("fin_kernel", N_G2, 512, K3_LDS, k3(), 72 + 48*(K3_D+1))]
    open(sys.argv[1] if len(sys.argv) > 1 else "cdna_kernels/%s.s" % NAME, "w").write(build(ks))
```

```python
import sys
NAME = "parallel_sum__ssm_conv_h3__glu_gated_bilinear__prompt"
S, D, F = 2048, 640, 1728
WS_XN  = 0
WS_KVT = 0x280000
WS_H   = 0x500000
WS_Y2T = 0xC00000
WS_XNP = 0xF00000
WS_WP1 = 0x1200000
WS_WP2 = 0x1700000
WS_XCH = 0x1A00000
WS_XP = 0x2800000
WS_T3 = 0x2800000
SZ_T3 = 256*10240
SZ_SD = S*D*2
SZ_H = S*F*2

class E:
    def __init__(self):
        self.l = []
    def __call__(self, s):
        for line in s.strip("\n").split("\n"):
            self.l.append("    " + line.strip() if not line.strip().endswith(":") else line.strip())
    def label(self, n):
        self.l.append(n + ":")
    def text(self):
        return "\n".join(self.l) + "\n"

def srd(e, d, blo, bhi, nbytes):
    e(f"s_mov_b32 s{d}, s{blo}")
    e(f"s_mov_b32 s{d+1}, s{bhi}")
    e(f"s_mov_b32 s{d+2}, {nbytes}")
    e(f"s_mov_b32 s{d+3}, 0x00020000")

def srd_off(e, d, blo, bhi, off, nbytes):
    e(f"s_add_u32 s{d}, s{blo}, {off}")
    e(f"s_addc_u32 s{d+1}, s{bhi}, 0")
    e(f"s_mov_b32 s{d+2}, {nbytes}")
    e(f"s_mov_b32 s{d+3}, 0x00020000")

def kdesc(name, vgpr, sgpr=102):
    acc = (vgpr + 3)//4*4
    return f""".amdhsa_kernel {name}
  .amdhsa_next_free_vgpr {vgpr}
  .amdhsa_next_free_sgpr {sgpr}
  .amdhsa_accum_offset {acc}
  .amdhsa_group_segment_fixed_size 0
  .amdhsa_kernarg_size 104
  .amdhsa_user_sgpr_count 2
  .amdhsa_user_sgpr_kernarg_segment_ptr 1
  .amdhsa_system_sgpr_workgroup_id_x 1
.end_amdhsa_kernel
"""

import os
STAMP = os.environ.get("STAMP")
X3 = os.environ.get("X3", "").split(",")
X2 = os.environ.get("X2", "").split(",")
ST1 = os.environ.get("ST1", "sc1")
ST2H = os.environ.get("ST2H", "sc1")
ST2Y = os.environ.get("ST2Y", "")
ST3 = os.environ.get("ST3", "")
STW = os.environ.get("STW", "sc1")
def stamp(e, idx):
    if not STAMP: return
    e(f"s_memtime s[88:89]")
    e("s_waitcnt lgkmcnt(0)")
    e(f"s_mov_b32 s{90+idx}, s88")
def stamp_dump(e, n, wg):
    if not STAMP: return
    e("s_load_dwordx2 s[84:85], s[0:1], 88")
    e("s_waitcnt lgkmcnt(0)")
    e("s_mov_b32 s86, 256")
    e("s_mov_b32 s87, 0x00020000")
    e(f"s_cmp_lg_u32 s2, {wg}")
    e("s_cbranch_scc1 9f")
    e("s_cmp_lg_u32 s3, 0")
    e("s_cbranch_scc1 9f")
    e("v_mov_b32 v120, 0")
    for i in range(1, n):
        e(f"s_sub_u32 s83, s{90+i}, s90")
        e("v_mov_b32 v121, s83")
        e(f"buffer_store_dword v121, v120, s[84:87], 0 offen offset:{4*i}")
    e("9:")

TRACE = os.environ.get("TRACE")
def trace_start(e):
    if not TRACE: return
    e("s_memrealtime s[96:97]")
    e("s_memtime s[98:99]")
    e("s_mov_b32 s82, s2")
def trace_end(e, kidx, tid=0):
    if not TRACE: return
    e("s_waitcnt vmcnt(0) lgkmcnt(0)")
    e("s_memrealtime s[92:93]")
    e("s_memtime s[94:95]")
    e("s_load_dwordx2 s[84:85], s[0:1], 96")
    e("s_getreg_b32 s90, hwreg(HW_REG_HW_ID)")
    e("s_getreg_b32 s91, hwreg(HW_REG_XCC_ID)")
    e("s_waitcnt lgkmcnt(0)")
    e(f"s_add_u32 s84, s84, {(64<<20) + kidx*65536}")
    e("s_addc_u32 s85, s85, 0")
    e("s_mov_b32 s86, 65536")
    e("s_mov_b32 s87, 0x00020000")
    e("s_lshl_b32 s91, s91, 24")
    e("s_and_b32 s90, s90, 0xffffff")
    e("s_or_b32 s90, s90, s91")
    e("s_sub_u32 s94, s94, s98")
    e("v_mov_b32 v124, s96")
    e("v_mov_b32 v125, s92")
    e("v_mov_b32 v126, s90")
    e("v_mov_b32 v127, s94")
    e("s_lshl_b32 s83, s82, 4")
    e("v_mov_b32 v121, s83")
    e(f"v_cmp_eq_u32 vcc, {tid}, v0")
    e("s_and_saveexec_b64 s[80:81], vcc")
    e("s_cbranch_execz 8f")
    e("buffer_store_dwordx4 v[124:127], v121, s[84:87], 0 offen")
    e("s_waitcnt vmcnt(0)")
    e("8:")

PROF = os.environ.get("PROF")
def pt(e, acc):
    if not PROF: return
    e("s_memtime s[88:89]")
    e("s_waitcnt lgkmcnt(0)")
    e("s_sub_u32 s90, s88, s87")
    e(f"s_add_u32 s{acc}, s{acc}, s90")
    e("s_mov_b32 s87, s88")
def pinit(e):
    if not PROF: return
    for i in range(80, 87): e(f"s_mov_b32 s{i}, 0")
    e("s_memtime s[88:89]")
    e("s_waitcnt lgkmcnt(0)")
    e("s_mov_b32 s87, s88")
def pdump(e, wave_off):
    if not PROF: return
    e("s_load_dwordx2 s[92:93], s[0:1], 88")
    e("s_waitcnt lgkmcnt(0)")
    e("s_mov_b32 s94, 256")
    e("s_mov_b32 s95, 0x00020000")
    e(f"s_cmp_lg_u32 s2, {PROF}")
    e("s_cbranch_scc1 7f")
    e("s_cmp_lg_u32 s3, 0")
    e("s_cbranch_scc1 7f")
    e("v_mov_b32 v120, 0")
    for i in range(7):
        e(f"v_mov_b32 v121, s{80+i}")
        e(f"buffer_store_dword v121, v120, s[92:95], 0 offen offset:{wave_off + 4*i}")
    e("s_waitcnt vmcnt(0)")
    e("7:")

PROF2 = os.environ.get("PROF2")
def q(e, idx, wv=0):
    if not PROF2: return
    e("s_memtime s[88:89]")
    e("s_waitcnt lgkmcnt(0)")
    e(f"s_mov_b32 s{90+idx}, s88")
def qdump(e, n, wv=0):
    if not PROF2: return
    e("s_load_dwordx2 s[84:85], s[0:1], 88")
    e("s_waitcnt lgkmcnt(0)")
    e("s_mov_b32 s86, 256")
    e("s_mov_b32 s87, 0x00020000")
    e(f"s_cmp_lg_u32 s2, {PROF2}")
    e("s_cbranch_scc1 6f")
    e(f"s_cmp_lg_u32 s3, {wv}")
    e("s_cbranch_scc1 6f")
    e(f"v_mov_b32 v120, {64 if wv else 0}")
    for i in range(1, n):
        e(f"s_sub_u32 s83, s{90+i}, s90")
        e("v_mov_b32 v121, s83")
        e(f"buffer_store_dword v121, v120, s[84:87], 0 offen offset:{4*i}")
    e("6:")

PROF4 = os.environ.get("PROF4")
P4_REGS = [50,52,54,56,58,72,74,76,78,80,82,84,86]
P4_LO = int(os.environ.get('P4LO', '4'))
def bar(e, b):
    k = b - P4_LO
    if PROF4 and 0 <= k < 6:
        e(f"s_memtime s[{P4_REGS[2*k]}:{P4_REGS[2*k]+1}]")
    e("s_barrier")
    if PROF4 and 0 <= k < 6:
        e(f"s_memtime s[{P4_REGS[2*k+1]}:{P4_REGS[2*k+1]+1}]")
def p4dump(e, lab):
    if not PROF4: return
    e("s_load_dwordx2 s[92:93], s[0:1], 88")
    e("s_waitcnt lgkmcnt(0)")
    e("s_mov_b32 s94, 4096")
    e("s_mov_b32 s95, 0x00020000")
    e(f"s_cmp_lg_u32 s2, {PROF4}")
    e(f"s_cbranch_scc1 {lab}")
    e("v_lshrrev_b32 v120, 6, v0")
    e("v_lshlrev_b32 v120, 6, v120")
    for i in range(12):
        e(f"v_mov_b32 v121, s{P4_REGS[i]}")
        e(f"buffer_store_dword v121, v120, s[92:95], 0 offen offset:{512 + 4*i}")
    e.label(lab)

def khead(name):
    return f""".globl {name}
.p2align 8
.type {name},@function
{name}:
"""

N_KV = 160
N_LN = 64
N_TC = 32
N_K1 = N_KV+N_LN+N_TC
K1_LDS = int(os.environ.get("K1LDS", str(128*144 + 256)))
def k1():
    e = E()
    e(f"s_cmp_ge_u32 s2, {N_K1}")
    e("s_cbranch_scc1 K1_END")
    trace_start(e)
    e(f"s_cmp_ge_u32 s2, {N_KV+N_LN}")
    e("s_cbranch_scc1 K1_TC")
    e("s_load_dwordx4 s[4:7], s[0:1], 0")
    e("s_load_dwordx4 s[8:11], s[0:1], 16")
    e("s_load_dwordx2 s[12:13], s[0:1], 96")
    e(f"s_cmp_lt_u32 s2, {N_KV}")
    e("s_cbranch_scc1 K1_KV")
    e("v_lshrrev_b32 v1, 8, v0")
    e(f"s_sub_u32 s14, s2, {N_KV}")
    e("v_readfirstlane_b32 s15, v1")
    e("s_lshl_b32 s14, s14, 1")
    e("v_and_b32 v80, 255, v0")
    e("s_add_u32 s14, s14, s15")
    e("s_waitcnt lgkmcnt(0)")
    srd(e, 16, 4, 5, SZ_SD)
    srd_off(e, 20, 12, 13, WS_XN, S*8)
    e("s_lshl_b32 s3, s14, 4")
    e("v_lshrrev_b32 v1, 4, v80")
    e("v_add_u32 v1, s3, v1")
    e("v_mul_u32_u24 v1, 1280, v1")
    e("v_and_b32 v2, 15, v80")
    e("v_lshlrev_b32 v2, 4, v2")
    e("v_add_u32 v1, v1, v2")
    for j in range(5):
        e(f"buffer_load_dwordx4 v[{4+4*j}:{7+4*j}], v1, s[16:19], 0 offen offset:{256*j}")
    e("v_lshrrev_b32 v72, 4, v80")
    e("v_add_u32 v72, s3, v72")
    e("v_lshlrev_b32 v72, 3, v72")
    e("v_and_b32 v73, 15, v80")
    srd_off(e, 28, 12, 13, WS_XNP, SZ_SD)
    e("v_lshrrev_b32 v1, 4, v80")
    e("v_and_b32 v2, 15, v80")
    e("v_lshrrev_b32 v3, 2, v1")
    e("v_and_b32 v74, 3, v1")
    e("v_and_b32 v75, 3, v2")
    e("v_lshl_add_u32 v74, v74, 2, v75")
    e("v_xor_b32 v74, v74, v3")
    e("v_lshlrev_b32 v74, 4, v74")
    e("v_lshl_add_u32 v74, v3, 8, v74")
    e("v_lshrrev_b32 v2, 2, v2")
    e("v_lshl_add_u32 v74, v2, 14, v74")
    e("s_lshr_b32 s25, s14, 4")
    e("s_mul_i32 s25, s25, 327680")
    e("s_and_b32 s26, s14, 15")
    e("s_lshl_b32 s26, s26, 10")
    e("s_add_u32 s25, s25, s26")
    e("s_mov_b32 s24, 0x3acccccd")
    e("v_cmp_eq_u32 vcc, 0, v73")
    for j in range(5):
        e(f"s_waitcnt vmcnt({4-j})")
        for i in range(4*j, 4*j+4):
            e(f"v_lshlrev_b32 v{32+2*i}, 16, v{4+i}")
            e(f"v_and_b32 v{33+2*i}, 0xffff0000, v{4+i}")
        for i in range(4*j, 4*j+4):
            if i == 0: continue
            if i == 1: e("v_pk_add_f32 v[24:25], v[32:33], v[34:35]")
            else: e(f"v_pk_add_f32 v[24:25], v[24:25], v[{32+2*i}:{33+2*i}]")
    e("v_add_f32 v24, v24, v25")
    def red16(r):
        for sh in (8, 4, 2, 1):
            e("s_nop 1")
            e(f"v_add_f32_dpp v{r}, v{r}, v{r} row_ror:{sh} row_mask:0xf bank_mask:0xf")
    red16(24)
    e("v_mul_f32 v24, s24, v24")
    e("v_mov_b32 v25, v24")
    for i in range(20):
        t = 26 + 2*(i & 1)
        e(f"v_pk_add_f32 v[{t}:{t+1}], v[{32+2*i}:{33+2*i}], v[24:25] neg_lo:[0,1] neg_hi:[0,1]")
        if i == 0: e(f"v_pk_mul_f32 v[30:31], v[{t}:{t+1}], v[{t}:{t+1}]")
        else: e(f"v_pk_fma_f32 v[30:31], v[{t}:{t+1}], v[{t}:{t+1}], v[30:31]")
    e("v_add_f32 v25, v30, v31")
    red16(25)
    e("v_mul_f32 v25, s24, v25")
    e("v_cvt_pk_bf16_f32 v26, v24, v25")
    e("v_and_b32 v27, 0xffff0000, v26")
    e("v_lshlrev_b32 v26, 16, v26")
    e("v_add_f32 v27, 0x3727c5ac, v27")
    e("v_cvt_pk_bf16_f32 v27, v27, v27")
    e("v_lshlrev_b32 v27, 16, v27")
    e("v_sqrt_f32 v27, v27")
    e("s_nop 0")
    e("v_cvt_pk_bf16_f32 v27, v27, v27")
    e("v_lshlrev_b32 v27, 16, v27")
    e("v_rcp_f32 v28, v27")
    e("s_and_saveexec_b64 s[36:37], vcc")
    e("buffer_store_dwordx2 v[26:27], v72, s[20:23], 0 offen")
    e("s_mov_b64 exec, s[36:37]")
    e("v_mov_b32 v24, v26")
    e("v_mov_b32 v25, v26")
    e("v_mov_b32 v76, v27")
    e("v_mov_b32 v77, v27")
    e("v_mov_b32 v29, v28")
    for i2 in range(0, 20, 2):
        ops = [[], []]
        for u in range(2):
            i = i2 + u
            a, b = 32+2*i, 33+2*i
            t = 30 if u == 0 else 78
            c = 2 + u
            ops[u] = [f"v_pk_add_f32 v[{a}:{b}], v[{a}:{b}], v[24:25] neg_lo:[0,1] neg_hi:[0,1]",
                      f"v_cvt_pk_bf16_f32 v{c}, v{a}, v{b}",
                      f"v_lshlrev_b32 v{a}, 16, v{c}",
                      f"v_and_b32 v{b}, 0xffff0000, v{c}",
                      f"v_pk_mul_f32 v[{t}:{t+1}], v[{a}:{b}], v[28:29]",
                      f"v_pk_fma_f32 v[{a}:{b}], v[{t}:{t+1}], v[76:77], v[{a}:{b}] neg_lo:[1,0,0] neg_hi:[1,0,0]",
                      f"v_pk_fma_f32 v[{t}:{t+1}], v[{a}:{b}], v[28:29], v[{t}:{t+1}]",
                      f"v_cvt_pk_bf16_f32 v{4+i}, v{t}, v{t+1}"]
        for x, y in zip(ops[0], ops[1]):
            e(x); e(y)
        if i2 & 3 == 2:
            j = i2 >> 2
            e(f"buffer_store_dwordx4 v[{4+4*j}:{7+4*j}], v74, s[28:31], s25 offen {ST1}")
            e("s_add_u32 s25, s25, 65536")
    trace_end(e, 3)
    e("s_endpgm")
    e.label("K1_TC")
    e("s_load_dwordx2 s[4:5], s[0:1], 32")
    e(f"s_sub_u32 s3, s2, {N_KV+N_LN}")
    e("s_mul_i32 s3, s3, 81920")
    e("v_lshlrev_b32 v1, 4, v0")
    e("s_waitcnt lgkmcnt(0)")
    srd(e, 16, 4, 5, SZ_SD)
    for i in range(10):
        e(f"buffer_load_dwordx4 v[{4+4*i}:{7+4*i}], v1, s[16:19], s3 offen")
        e("s_add_u32 s3, s3, 8192")
    e("s_waitcnt vmcnt(0)")
    trace_end(e, 3)
    e("s_endpgm")
    e.label("K1_KV")
    e("s_mul_hi_u32 s14, s2, 0x33333334")
    e("s_mul_i32 s15, s14, 5")
    e("s_sub_u32 s15, s2, s15")
    e("v_and_b32 v1, 15, v0")
    e("v_lshrrev_b32 v2, 4, v0")
    e("s_lshl_b32 s32, s14, 6")
    e("v_lshlrev_b32 v3, 1, v2")
    e("v_add_u32 v3, s32, v3")
    e("v_mul_u32_u24 v4, 1280, v3")
    e("s_lshl_b32 s33, s15, 8")
    e("v_lshlrev_b32 v5, 4, v1")
    e("v_add_u32 v5, s33, v5")
    e("v_add_u32 v4, v4, v5")
    e("v_subrev_u32 v6, 3840, v4")
    e("v_subrev_u32 v10, 2560, v4")
    e("v_subrev_u32 v11, 1280, v4")
    e("v_lshlrev_b32 v7, 2, v5")
    e("s_waitcnt lgkmcnt(0)")
    srd(e, 16, 6, 7, SZ_SD)
    srd(e, 20, 8, 9, SZ_SD)
    srd(e, 24, 10, 11, D*4*2)
    srd_off(e, 28, 12, 13, WS_KVT, SZ_SD)
    for j in range(4):
        e(f"buffer_load_dwordx4 v[{60+4*j}:{63+4*j}], v7, s[24:27], 0 offen offset:{16*j}")
    e("buffer_load_dwordx4 v[16:19], v6, s[16:19], 0 offen")
    e("buffer_load_dwordx4 v[20:23], v10, s[16:19], 0 offen")
    e("buffer_load_dwordx4 v[24:27], v11, s[16:19], 0 offen")
    e("buffer_load_dwordx4 v[28:31], v4, s[16:19], 0 offen")
    e("buffer_load_dwordx4 v[32:35], v4, s[16:19], 0 offen offset:1280")
    for r in range(2):
        e(f"buffer_load_dwordx4 v[{44+4*r}:{47+4*r}], v4, s[20:23], 0 offen offset:{1280*r}")
    e("s_mov_b32 s34, 0x05040100")
    e("s_mov_b32 s35, 0x07060302")
    e("v_mul_u32_u24 v8, 1168, v1")
    e("v_lshrrev_b32 v9, 2, v2")
    e("v_lshl_add_u32 v8, v9, 4, v8")
    e("v_and_b32 v9, 3, v2")
    e("v_xor_b32 v9, 3, v9")
    e("v_lshl_add_u32 v8, v9, 2, v8")
    e("v_lshrrev_b32 v12, 3, v0")
    e("v_and_b32 v13, 7, v0")
    e("v_mul_u32_u24 v14, 144, v12")
    e("v_lshrrev_b32 v15, 3, v12")
    e("v_add_u32 v15, v15, v13")
    e("v_lshl_add_u32 v14, v15, 4, v14")
    e("s_lshl_b32 s33, s15, 7")
    e("v_add_u32 v15, s33, v12")
    e("v_lshlrev_b32 v15, 12, v15")
    e("s_lshl_b32 s32, s14, 7")
    e("v_lshl_add_u32 v15, v13, 4, v15")
    e("s_add_u32 s33, s32, 0x40000")
    e("s_waitcnt vmcnt(7)")
    for p in range(4):
        for h in range(2):
            c = 2*p+h
            e(f"v_lshlrev_b32 v{76+8*p+h}, 16, v{60+2*c}")
            e(f"v_and_b32 v{78+8*p+h}, 0xffff0000, v{60+2*c}")
            e(f"v_lshlrev_b32 v{80+8*p+h}, 16, v{61+2*c}")
            e(f"v_and_b32 v{82+8*p+h}, 0xffff0000, v{61+2*c}")
    e("s_waitcnt vmcnt(0)")
    for p in range(4):
        W = 76 + 8*p
        for r in range(5):
            e(f"v_lshlrev_b32 v{60+2*r}, 16, v{16+4*r+p}")
            e(f"v_and_b32 v{61+2*r}, 0xffff0000, v{16+4*r+p}")
        ch = [[], []]
        for i in range(2):
            A = 108 + 6*i; T = A + 2; C = A + 4
            o = ch[i]
            for t in range(4):
                r = i + t
                w = 3 - t
                o.append(f"v_pk_mul_f32 v[{T}:{T+1}], v[{60+2*r}:{61+2*r}], v[{W+2*w}:{W+2*w+1}]")
                o.append(f"v_cvt_pk_bf16_f32 v{C}, v{T}, v{T+1}")
                if t == 0:
                    o.append(f"v_lshlrev_b32 v{A}, 16, v{C}")
                    o.append(f"v_and_b32 v{A+1}, 0xffff0000, v{C}")
                else:
                    o.append(f"v_lshlrev_b32 v{T}, 16, v{C}")
                    o.append(f"v_and_b32 v{T+1}, 0xffff0000, v{C}")
                    o.append(f"v_pk_add_f32 v[{A}:{A+1}], v[{A}:{A+1}], v[{T}:{T+1}]")
                    o.append(f"v_cvt_pk_bf16_f32 v{C}, v{A}, v{A+1}")
                    o.append(f"v_lshlrev_b32 v{A}, 16, v{C}")
                    o.append(f"v_and_b32 v{A+1}, 0xffff0000, v{C}")
            o.append(f"v_lshlrev_b32 v{T}, 16, v{44+4*i+p}")
            o.append(f"v_and_b32 v{T+1}, 0xffff0000, v{44+4*i+p}")
            o.append(f"v_pk_mul_f32 v[{A}:{A+1}], v[{A}:{A+1}], v[{T}:{T+1}]")
            o.append(f"v_cvt_pk_bf16_f32 v{C}, v{A}, v{A+1}")
        for x, y in zip(ch[0], ch[1]):
            e(x); e(y)
        e("v_perm_b32 v70, v112, v118, s34")
        e(f"ds_write_b32 v8, v70 offset:{(2*p)*144}")
        e("v_perm_b32 v71, v112, v118, s35")
        e(f"ds_write_b32 v8, v71 offset:{(2*p+1)*144}")
    e("s_waitcnt lgkmcnt(0)")
    e("s_barrier")
    e("ds_read_b128 v[16:19], v14")
    e(f"ds_read_b128 v[20:23], v14 offset:{64*144 + 8*16}")
    e("s_waitcnt lgkmcnt(1)")
    e(f"buffer_store_dwordx4 v[16:19], v15, s[28:31], s32 offen {ST1}")
    e("s_waitcnt lgkmcnt(0)")
    e(f"buffer_store_dwordx4 v[20:23], v15, s[28:31], s33 offen {ST1}")
    trace_end(e, 3)
    e.label("K1_END")
    e("s_endpgm")
    return e.text()


N_K2 = 256
COPY = 4288
KVSZ = 33*144
CP_OFF = 2*KVSZ
SC_OFF = CP_OFF + 8*COPY
CV_SZ = SC_OFF
K2_NS = 4
K2_STG = 24576
CV_A = K2_NS*K2_STG
K2_LDS = max(CV_A + CV_SZ, 3*CV_SZ)
PB0 = 1
LB0 = 2
RPB = 6
if os.environ.get("CS"):
    exec(os.environ["CS"])
C1_E = PB0 + 16

class VQ:
    def __init__(self, e): self.q = []; self.e = e
    def issue(self, tag, n): self.q += [tag]*n
    def wait(self, tags):
        idx = max([i for i, t in enumerate(self.q) if t in tags], default=-1)
        if idx < 0: return
        n = len(self.q) - 1 - idx
        self.e(f"s_waitcnt vmcnt({min(n, 63)})")
        self.q = self.q[idx+1:]

def write_copies(e, d, lab, ro):
    e(f"ds_write_b128 v117, v[{d}:{d+3}] offset:{ro}")
    for i in range(4):
        e(f"v_alignbit_b32 v{16+i}, v{d+i+1}, v{d+i}, 16")
    e(f"ds_write_b128 v117, v[16:19] offset:{ro + COPY}")
    for i in range(4):
        e(f"v_mov_b32 v{20+i}, v{d+i+1}")
    e(f"ds_write_b128 v117, v[20:23] offset:{ro + 2*COPY}")
    for i in range(4):
        e(f"v_alignbit_b32 v{24+i}, v{d+i+2}, v{d+i+1}, 16")
    e(f"ds_write_b128 v117, v[24:27] offset:{ro + 3*COPY}")
    e("s_cmp_eq_u32 s39, 0")
    e(f"s_cbranch_scc0 {lab}")
    e("v_mov_b32 v28, 0")
    e(f"v_lshlrev_b32 v29, 16, v{d}")
    e("v_mov_b32 v32, 0")
    e(f"v_mov_b32 v33, v{d}")
    e("v_mov_b32 v34, v29")
    e("v_mov_b32 v35, v16")
    e("s_mov_b64 exec, 1")
    e(f"ds_write_b64 v117, v[28:29] offset:{ro + COPY - 8}")
    e(f"ds_write_b64 v117, v[32:33] offset:{ro + 2*COPY - 8}")
    e(f"ds_write_b64 v117, v[34:35] offset:{ro + 3*COPY - 8}")
    e("s_mov_b64 exec, -1")
    e.label(lab)

def conv_main(e):
    ACCS = [16, 112]; FL, FH, BB = 32, 56, 80
    lq = []
    def wait(tags):
        idx = max((i for i, t in enumerate(lq) if t in tags), default=-1)
        if idx >= 0: e(f"s_waitcnt lgkmcnt({min(len(lq) - 1 - idx, 15)})")
    def put(it):
        if it[0] is None: wait(it[1]); return
        e(it[0])
        for _ in range(it[2] if len(it) > 2 else 1):
            if it[1] is not None: lq.append(it[1])
    def lda(F):
        c, f = divmod(F, 17)
        sl = F % 6
        r = []
        for (R, va) in ((FL, 8), (FH, 9)):
            o = 4*COPY*c + 64*f
            r.append((f"ds_read_b64 v[{R+4*sl}:{R+4*sl+1}], v{va} offset:{o}", ("a", F)))
            r.append((f"ds_read_b64 v[{R+4*sl+2}:{R+4*sl+3}], v{va} offset:{o+8}", ("a", F)))
        return r
    def ldb(P):
        c, p = divmod(P, 16)
        st = p >> 1; kk = 1 - (p & 1)
        bb = BB + 8*(P & 3)
        pre = ""
        if p & 1 == 0:
            pre = f"v_subrev_u32 v12, {144*st}, v10\nv_max_i32 v3, v12, v11\n"
        return [(pre + f"ds_read_b128 v[{bb}:{bb+3}], v3 offset:{KVSZ*c + 64*kk}", ("b", P)),
                (f"ds_read_b128 v[{bb+4}:{bb+7}], v12 offset:{KVSZ*c + 16*144 + 64*kk}", ("b", P))]
    def dterm_ld(c):
        return [(f"ds_read_b64 v[{4+2*h}:{5+2*h}], v13 offset:{KVSZ*c + 16*144*h}", ("k", c)) for h in range(2)]
    def dterm(c, T):
        sch = 65 if c == 0 else 69
        r = [(f"s_and_b32 s29, s{sch}, 1\ns_lshl_b32 s29, s29, 4\ns_lshr_b32 s29, s{70+c}, s29\ns_lshl_b32 s29, s29, 16", None), (None, [("k", c)])]
        for h in range(2):
            k0, k1 = 4+2*h, 5+2*h
            r += [(f"v_and_b32 v{T}, 0xffff0000, v{k1}", None), (f"v_lshlrev_b32 v{T+1}, 16, v{k1}", None),
                  (f"v_and_b32 v{T+2}, 0xffff0000, v{k0}", None), (f"v_lshlrev_b32 v{T+3}, 16, v{k0}", None)]
            r += [(f"v_mul_f32 v{T+j}, s29, v{T+j}", None) for j in range(4)]
            r += [(f"v_cvt_pk_bf16_f32 v{k0}, v{T}, v{T+1}", None), (f"v_cvt_pk_bf16_f32 v{k1}, v{T+2}, v{T+3}", None)]
        return r
    def exch(c):
        A = ACCS[c]
        t = ["s_cmp_eq_u32 s38, 0", f"s_cbranch_scc1 CX0_{c}"]
        t += [f"buffer_store_dwordx4 v[{A+4*h}:{A+4*h+3}], v14, s[60:63], 0 offen offset:{2048*c + 1024*h}" for h in range(2)]
        t += [f"v_mov_b32 v{A+i}, v{A+8+i}" for i in range(8)]
        t += [f"s_branch CX1_{c}", f"CX0_{c}:"]
        t += [f"buffer_store_dwordx4 v[{A+8+4*h}:{A+8+4*h+3}], v14, s[60:63], 0 offen offset:{2048*c + 1024*h}" for h in range(2)]
        t += [f"CX1_{c}:"]
        return [("\n".join(t), None)]
    def xread(c):
        A = ACCS[c]
        return [(f"buffer_load_dwordx4 v[{A+8+4*h}:{A+11+4*h}], v15, s[60:63], 0 offen offset:{2048*c + 1024*h}", None) for h in range(2)]
    def fin(c, h):
        sch = 65 if c == 0 else 69
        o = ACCS[c] + 4*h; p = ACCS[c] + 8 + 4*h
        r = [("s_waitcnt vmcnt(0)", None)] if h == 0 else []
        r += [(f"v_add_f32 v{o+j}, v{o+j}, v{p+j}", None) for j in range(4)]
        r += [(f"v_cvt_pk_bf16_f32 v{p}, v{o}, v{o+1}", None), (f"v_cvt_pk_bf16_f32 v{p+1}, v{o+2}, v{o+3}", None)]
        r += [(f"v_lshlrev_b32 v{o}, 16, v{p}", None), (f"v_and_b32 v{o+1}, 0xffff0000, v{p}", None),
              (f"v_lshlrev_b32 v{o+2}, 16, v{p+1}", None), (f"v_and_b32 v{o+3}, 0xffff0000, v{p+1}", None)]
        for k in range(2):
            r += [(f"v_lshlrev_b32 v{p+2}, 16, v{4+2*h+k}", None), (f"v_and_b32 v{p+3}, 0xffff0000, v{4+2*h+k}", None),
                  (f"v_add_f32 v{o+2*k}, v{o+2*k}, v{p+2}", None), (f"v_add_f32 v{o+2*k+1}, v{o+2*k+1}, v{p+3}", None)]
        r += [(f"v_cvt_pk_bf16_f32 v{p}, v{o}, v{o+1}", None), (f"v_cvt_pk_bf16_f32 v{p+1}, v{o+2}, v{o+3}", None)]
        r += [(f"s_lshl_b32 s48, s{sch}, 7\ns_add_u32 s48, s48, {16*81920*h}\nbuffer_store_dwordx2 v[{p}:{p+1}], v2, s[24:27], s48 offen {ST2Y}", None)]
        return r
    extra = {P: [] for P in range(32)}
    tail = {P: [] for P in range(32)}
    tail[16] = exch(0)
    tail[19] = [("s_waitcnt vmcnt(0)", None)]
    extra[20] = xread(0)
    extra[24] = fin(0, 0)
    extra[25] = fin(0, 1)
    tail[25] = [("s_cmp_ge_u32 s69, 640\ns_cbranch_scc1 K2_END", None)]
    extra[26] = dterm_ld(1)
    d1 = dterm(1, 16)
    extra[27] = d1[:12]; extra[28] = d1[12:]
    bcur = 0
    while bcur < PB0:
        bar(e, bcur); bcur += 1
    for it in dterm_ld(0) + lda(0) + lda(1) + ldb(0) + lda(2) + ldb(1) + lda(3) + ldb(2) + dterm(0, 16): put(it)
    nfa = 4; nfb = 3
    for P in range(32):
        c, p = divmod(P, 16)
        if P & 1 == 0:
            bar(e, bcur); bcur += 1
        if P == 0: e("s_setprio 3")
        F0 = 17*c + p
        ops = []
        while nfa <= F0 + 4 and nfa < 34:
            ops += lda(nfa); nfa += 1
        while nfb <= P + 3 and nfb < 32:
            ops += ldb(nfb); nfb += 1
        ops = extra[P][:0] + ops
        ex = list(extra[P])
        wait([("a", F0), ("a", F0+1), ("b", P)])
        bb = BB + 8*(P & 3)
        A = ACCS[c]
        mfs = []
        for mu in range(2):
            fl = FL + 4*((F0+mu) % 6)
            a0 = A + 8*mu; a1 = a0 + 4
            c0 = "0" if p == 0 else f"v[{a0}:{a0+3}]"
            c1 = "0" if p == 0 else f"v[{a1}:{a1+3}]"
            mfs.append(f"v_mfma_f32_16x16x32_bf16 v[{a0}:{a0+3}], v[{fl}:{fl+3}], v[{bb}:{bb+3}], {c0}")
            mfs.append(f"v_mfma_f32_16x16x32_bf16 v[{a1}:{a1+3}], v[{fl}:{fl+3}], v[{bb+4}:{bb+7}], {c1}")
        for mu in range(2):
            fh = FH + 4*((F0+mu) % 6)
            a1 = A + 8*mu + 4
            mfs.append(f"v_mfma_f32_16x16x32_bf16 v[{a1}:{a1+3}], v[{fh}:{fh+3}], v[{bb}:{bb+3}], v[{a1}:{a1+3}]")
        for i in range(6):
            e(mfs[i])
            no = (len(ops) + 5 - i) // (6 - i)
            for it in ops[:no]: put(it)
            ops = ops[no:]
            ne = (len(ex) + 5 - i) // (6 - i)
            for it in ex[:ne]: put(it)
            ex = ex[ne:]
        for it in tail[P]: put(it)
        if P == 15: q(e, 8, 8)
    q(e, 10, 8)
    e("s_setprio 0")
    e("s_nop 7")
    for it in exch(1): put(it)
    e("s_waitcnt vmcnt(0)")
    bar(e, bcur); bcur += 1
    assert bcur == C1_E + 1
    for it in xread(1): put(it)
    while bcur < 20:
        bar(e, bcur); bcur += 1
    for it in fin(1, 0) + fin(1, 1): put(it)

def k2():
    e = E()
    NS = K2_NS; STG = K2_STG; NT = 20
    e(f"s_cmp_ge_u32 s2, {N_K2}")
    e("s_cbranch_scc1 K2_END")
    trace_start(e)
    e("s_load_dwordx4 s[4:7], s[0:1], 32")
    e("s_load_dwordx2 s[12:13], s[0:1], 96")
    e("s_load_dwordx4 s[8:11], s[0:1], 56")
    e("s_load_dwordx2 s[50:51], s[0:1], 72")
    e("v_lshrrev_b32 v1, 6, v0")
    e("s_nop 0")
    e("v_readfirstlane_b32 s3, v1")
    e("v_and_b32 v1, 63, v0")
    e("v_lshlrev_b32 v2, 4, v1")
    e("s_and_b32 s14, s2, 7")
    e("s_lshr_b32 s15, s2, 3")
    if "map2" in X2:
        e("s_mul_i32 s32, s14, 27")
        e("s_add_u32 s65, s32, s15")
        e("s_lshl_b32 s65, s65, 1")
        e("s_add_u32 s69, s65, 1")
        e(f"s_mov_b32 s66, {CV_A}")
        e("s_cmp_lt_u32 s15, 27")
        e("s_cselect_b32 s64, 1, 0")
        e("s_cbranch_scc1 K2_R")
        e("s_mul_i32 s32, s14, 5")
        e("s_add_u32 s32, s32, s15")
        e("s_add_u32 s65, s32, 405")
        e("s_add_u32 s69, s65, 120")
        e("s_mov_b32 s66, 0")
        e.label("K2_R")
        e("s_mov_b32 s76, s15")
        e("s_mov_b32 s77, s14")
    else:
        e("s_lshr_b32 s28, s14, 2")
        e("s_lshl_b32 s29, s28, 1")
        e("s_sub_u32 s29, 28, s29")
        e("s_and_b32 s31, s14, 3")
        e("s_mul_i32 s32, s31, s29")
        e("s_mul_i32 s33, s28, 112")
        e("s_add_u32 s32, s32, s33")
        e("s_add_u32 s65, s32, s15")
        e("s_lshl_b32 s65, s65, 1")
        e("s_add_u32 s69, s65, 1")
        e(f"s_mov_b32 s66, {CV_A}")
        e("s_cmp_lt_u32 s15, s29")
        e("s_cselect_b32 s64, 1, 0")
        e("s_cbranch_scc1 K2_R")
        e("s_sub_u32 s32, 32, s29")
        e("s_mul_i32 s32, s32, s31")
        e("s_lshl_b32 s33, s28, 4")
        e("s_add_u32 s32, s32, s33")
        e("s_add_u32 s32, s32, s15")
        e("s_sub_u32 s32, s32, s29")
        e("s_add_u32 s65, s32, 432")
        e("s_add_u32 s69, s65, 120")
        e("s_mov_b32 s66, 0")
        e.label("K2_R")
        e("s_mul_i32 s76, s28, 14")
        e("s_lshr_b32 s33, s15, 1")
        e("s_add_u32 s76, s76, s33")
        e("s_lshl_b32 s77, s31, 1")
        e("s_and_b32 s33, s15, 1")
        e("s_add_u32 s77, s77, s33")
    e("s_waitcnt lgkmcnt(0)")
    srd(e, 16, 4, 5, SZ_SD)
    e("s_cmp_lt_u32 s3, 12")
    e("s_cbranch_scc1 K2_CW")
    e("s_sub_u32 s3, s3, 12")
    e("s_cmp_eq_u32 s64, 0")
    e("s_cbranch_scc1 K2_RP")
    srd_off(e, 52, 12, 13, WS_XNP, SZ_SD)
    e("s_cmp_eq_u32 s3, 0")
    e("s_cselect_b32 s56, s8, s10")
    e("s_cselect_b32 s57, s9, s11")
    e(f"s_mov_b32 s58, {D*F*2}")
    e("s_mov_b32 s59, 0x00020000")
    e("v_lshrrev_b32 v3, 3, v1")
    e("v_and_b32 v4, 7, v1")
    e("v_bfe_u32 v5, v3, 1, 1")
    e("v_lshlrev_b32 v5, 2, v5")
    e("v_xor_b32 v4, v4, v5")
    e("v_mul_u32_u24 v3, 3456, v3")
    e("v_lshl_add_u32 v3, v4, 4, v3")
    for i in range(1, 4):
        e(f"v_add_u32 v{3+i}, {i*(8*3456-1024)}, v3")
    e("s_lshl_b32 s72, s3, 13")
    e("s_lshl_b32 s73, s3, 12")
    e("s_mul_i32 s74, s77, 327680")
    e("s_add_u32 s74, s74, s72")
    e("s_lshl_b32 s75, s76, 7")
    e("s_add_u32 s73, s73, 16384")
    def g1_dma():
        e("s_mov_b32 m0, s72")
        e("s_add_u32 s34, s74, 4096")
        for i in range(4):
            e(f"buffer_load_dwordx4 v2, s[52:55], s74 offen offset:{i*1024} lds")
        e("s_add_u32 m0, s72, 4096")
        e("s_add_u32 s74, s74, 16384")
        for i in range(4):
            e(f"buffer_load_dwordx4 v2, s[52:55], s34 offen offset:{i*1024} lds")
        e("s_mov_b32 m0, s73")
        e(f"s_add_u32 s72, s72, {STG}")
        for i in range(4):
            e(f"buffer_load_dwordx4 v{3+i}, s[56:59], s75 offen offset:{i*1024} lds")
        e(f"s_add_u32 s75, s75, {32*3456}")
        e(f"s_add_u32 s73, s73, {STG}")
    def lst():
        if PROF2:
            e("s_memtime s[88:89]")
            e("s_waitcnt lgkmcnt(0)")
            e("v_cmp_eq_u32 vcc, s81, v1")
            e("v_mov_b32 v21, s88")
            e("v_cndmask_b32 v20, v20, v21, vcc")
            e("s_add_u32 s81, s81, 1")
    e("s_mov_b32 s81, 0")
    lst()
    e("s_mov_b32 s79, 0")
    e(f"s_mov_b32 s80, {NS*STG}")
    e.label("K2_LP")
    g1_dma()
    e("s_add_u32 s79, s79, 1")
    e(f"s_cmp_lg_u32 s79, {LB0}")
    e("s_cbranch_scc1 K2_LP2")
    lst()
    e(f"s_waitcnt vmcnt({12*(LB0-1)})")
    e("s_barrier")
    lst()
    e.label("K2_LP2")
    e(f"s_cmp_lt_u32 s79, {NS-1}")
    e("s_cbranch_scc1 K2_LP")
    e.label("K2_LGL")
    e(f"s_waitcnt vmcnt({12*(NS-3)})")
    e("s_barrier")
    lst()
    g1_dma()
    e("s_cmp_ge_u32 s72, s80")
    e("s_cselect_b32 s33, s80, 0")
    e("s_sub_u32 s72, s72, s33")
    e("s_sub_u32 s73, s73, s33")
    e("s_add_u32 s79, s79, 1")
    e(f"s_cmp_lt_u32 s79, {NT}")
    e("s_cbranch_scc1 K2_LGL")
    for b in range(NT-NS+2, (max(NT, C1_E+1) if PROF2 else NT)):
        e(f"s_waitcnt vmcnt({12*max(NT-1-b, 0)})")
        e("s_barrier")
        lst()
    if PROF2:
        e("s_load_dwordx2 s[84:85], s[0:1], 88")
        e("s_waitcnt lgkmcnt(0)")
        e("s_mov_b32 s86, 256")
        e("s_mov_b32 s87, 0x00020000")
        e(f"s_cmp_lg_u32 s2, {PROF2}")
        e("s_cbranch_scc1 K2_END")
        e("s_cmp_lg_u32 s3, 0")
        e("s_cbranch_scc1 K2_END")
        e("v_lshlrev_b32 v120, 2, v1")
        e("buffer_store_dword v20, v120, s[84:87], 0 offen offset:128")
    e("s_endpgm")
    e.label("K2_RP")
    srd(e, 52, 50, 51, D*F*2)
    srd_off(e, 56, 12, 13, WS_WP2, D*F*2)
    e("s_sub_u32 s28, s65, 432")
    e("s_lshl_b32 s28, s28, 1")
    e("s_add_u32 s28, s28, s3")
    e("s_mul_hi_u32 s29, s28, 0x1999999a")
    e("s_mul_i32 s30, s29, 10")
    e("s_sub_u32 s30, s28, s30")
    e("s_mul_i32 s30, s30, 1728")
    e("s_mul_i32 s29, s29, 160")
    e("s_mul_i32 s28, s28, 27648")
    e("s_mov_b32 s31, 0xcccccccd")
    e("v_add_u32 v3, s30, v1")
    for i in range(27):
        e(f"v_add_u32 v4, {64*i}, v3")
        e("v_mul_hi_u32 v5, v4, s31")
        e("v_lshrrev_b32 v5, 3, v5")
        e("v_mul_u32_u24 v6, 10, v5")
        e("v_sub_u32 v6, v4, v6")
        e("v_mul_u32_u24 v5, 1280, v5")
        e("v_lshl_add_u32 v5, v6, 4, v5")
        e(f"buffer_load_dwordx4 v[{8+4*i}:{11+4*i}], v5, s[52:55], s29 offen")
    for i in range(RPB): e("s_barrier")
    e("s_waitcnt vmcnt(0)")
    for i in range(27):
        e(f"buffer_store_dwordx4 v[{8+4*i}:{11+4*i}], v2, s[56:59], s28 offen offset:{(i&3)*1024} {STW}")
        if i & 3 == 3: e("s_add_u32 s28, s28, 4096")
    e("s_endpgm")
    e.label("K2_CW")
    e("s_cmp_lt_u32 s3, 8")
    e("s_cselect_b32 s33, s64, 0")
    e("s_cmp_eq_u32 s33, 1")
    e("s_cbranch_scc1 K2_G")
    srd_off(e, 20, 12, 13, WS_KVT, SZ_SD)
    srd_off(e, 24, 12, 13, WS_T3, SZ_T3)
    q(e, 0, 8)
    e("s_and_b32 s39, s3, 3")
    e("s_lshr_b32 s38, s3, 2")
    e("s_cmp_eq_u32 s64, 1")
    e("s_cselect_b32 s38, 0, s38")
    e("s_mul_i32 s33, s38, 40")
    e("s_add_u32 s65, s65, s33")
    e("s_add_u32 s69, s69, s33")
    e(f"s_mul_i32 s33, s38, {CV_SZ}")
    e("s_add_u32 s66, s66, s33")
    e("s_lshr_b32 s38, s39, 1")
    e("s_min_u32 s68, s69, 639")
    e("s_lshr_b32 s28, s65, 1")
    e("s_lshl_b32 s28, s28, 2")
    e("s_load_dword s70, s[6:7], s28")
    e("s_lshr_b32 s28, s68, 1")
    e("s_lshl_b32 s28, s28, 2")
    e("s_load_dword s71, s[6:7], s28")
    e("s_lshl_b32 s32, s65, 12")
    e("s_lshl_b32 s33, s68, 12")
    e("v_lshl_add_u32 v16, s39, 6, v1")
    e("v_lshlrev_b32 v12, 4, v16")
    e("buffer_load_dwordx4 v[104:107], v12, s[16:19], s32 offen")
    e("buffer_load_dwordx2 v[108:109], v12, s[16:19], s32 offen offset:16")
    e("buffer_load_dwordx4 v[4:7], v12, s[20:23], s32 offen")
    e("buffer_load_dwordx4 v[120:123], v12, s[16:19], s33 offen")
    e("buffer_load_dwordx2 v[124:125], v12, s[16:19], s33 offen offset:16")
    e("buffer_load_dwordx4 v[112:115], v12, s[20:23], s33 offen")
    e(f"s_add_u32 s34, s66, {CP_OFF + 128}")
    e("v_add_u32 v117, s34, v12")
    for i in range(4):
        e(f"v_mov_b32 v{28+i}, 0")
    e("v_lshrrev_b32 v21, 3, v1")
    e(f"v_mul_u32_u24 v20, {COPY}, v21")
    e("v_and_b32 v21, 7, v1")
    e("v_lshl_add_u32 v20, v21, 4, v20")
    e(f"s_add_u32 s34, s66, {CP_OFF}")
    e("v_add_u32 v20, s34, v20")
    e("v_and_b32 v22, 15, v1")
    e("v_bfe_u32 v21, v1, 4, 1")
    e(f"v_mul_u32_u24 v21, {KVSZ}, v21")
    e("v_lshl_add_u32 v21, v22, 4, v21")
    e("v_add_u32 v21, s66, v21")
    e("v_cmp_gt_u32 vcc, 9, v22")
    e("s_mov_b32 vcc_hi, 0")
    e("s_cmp_eq_u32 s39, 0")
    e("s_cbranch_scc0 CF_0")
    e("ds_write_b128 v20, v[28:31]")
    e("s_and_saveexec_b64 s[36:37], vcc")
    e("ds_write_b128 v21, v[28:31]")
    e("s_mov_b64 exec, s[36:37]")
    e.label("CF_0")
    e("v_lshrrev_b32 v118, 3, v16")
    e("v_mul_u32_u24 v118, 144, v118")
    e("v_and_b32 v26, 7, v16")
    e("v_lshl_add_u32 v118, v26, 4, v118")
    e("s_add_u32 s34, s66, 144")
    e("v_add_u32 v118, s34, v118")
    e("v_and_b32 v40, 15, v1")
    e("v_lshrrev_b32 v41, 4, v1")
    e("v_add_u32 v16, 1, v40")
    e("v_and_b32 v16, 3, v16")
    e(f"v_mul_u32_u24 v8, {COPY - 2}, v16")
    e("v_lshl_add_u32 v8, v40, 1, v8")
    e("v_lshlrev_b32 v17, 4, v41")
    e("v_sub_u32 v8, v8, v17")
    e("s_lshl_b32 s41, s38, 10")
    e("s_and_b32 s42, s39, 1")
    e("s_lshl_b32 s42, s42, 5")
    e("s_add_u32 s42, s42, s41")
    e("s_add_u32 s42, s42, s66")
    e(f"s_add_u32 s42, s42, {CP_OFF + 2*(64-7) - 64}")
    e("v_add_u32 v8, s42, v8")
    e("v_add_u32 v9, 2048, v8")
    e("v_mul_u32_u24 v10, 144, v40")
    e("v_lshlrev_b32 v11, 4, v41")
    e("v_add_u32 v11, s66, v11")
    e("v_add_u32 v10, v10, v11")
    e("s_mul_i32 s43, s38, 1152")
    e("s_sub_u32 s43, 144, s43")
    e("v_add_u32 v10, s43, v10")
    e("s_mul_i32 s44, s2, 12")
    e("s_add_u32 s44, s44, s3")
    e("s_xor_b32 s45, s44, 2")
    e("s_lshl_b32 s44, s44, 12")
    e("s_lshl_b32 s45, s45, 12")
    e("v_add_u32 v14, s44, v2")
    e("v_add_u32 v15, s45, v2")
    e("v_mul_u32_u24 v13, 144, v40")
    e("v_lshrrev_b32 v42, 1, v41")
    e("v_lshl_add_u32 v13, v42, 4, v13")
    e("v_and_b32 v42, 1, v41")
    e("v_lshlrev_b32 v42, 3, v42")
    e("v_xor_b32 v42, 8, v42")
    e("v_add_u32 v13, v13, v42")
    e("s_lshl_b32 s46, s39, 5")
    e("s_add_u32 s47, s46, s66")
    e("s_add_u32 s47, s47, 144")
    e("v_add_u32 v13, s47, v13")
    e("v_mul_u32_u24 v2, 81920, v40")
    e("v_lshl_add_u32 v2, v41, 3, v2")
    e("v_add_u32 v2, s46, v2")
    e("s_waitcnt vmcnt(4)")
    write_copies(e, 104, "CF_1", 0)
    e("s_waitcnt vmcnt(3)")
    e("ds_write_b128 v118, v[4:7]")
    e("s_waitcnt vmcnt(1)")
    write_copies(e, 120, "CF_2", 4*COPY)
    e("s_waitcnt vmcnt(0)")
    e(f"ds_write_b128 v118, v[112:115] offset:{KVSZ}")
    e("s_waitcnt lgkmcnt(0)")
    srd_off(e, 60, 12, 13, WS_XCH, 256*12*4096)
    q(e, 5, 8)
    conv_main(e)
    q(e, 11, 8)
    if PROF2 or TRACE: e("s_waitcnt vmcnt(0)")
    q(e, 7, 8)
    qdump(e, 12, 8)
    p4dump(e, "P4_C")
    trace_end(e, 0, 512)
    e("s_endpgm")
    e.label("K2_G")
    q(e, 0)
    srd_off(e, 60, 12, 13, WS_H, SZ_H)
    e("s_lshr_b32 s47, s3, 1")
    e("s_and_b32 s48, s3, 1")
    e("v_and_b32 v4, 31, v1")
    e("v_lshrrev_b32 v3, 5, v1")
    e("s_lshl_b32 s49, s47, 6")
    e("v_add_u32 v4, s49, v4")
    e("v_lshrrev_b32 v7, 2, v4")
    e("v_and_b32 v5, 3, v4")
    e("v_lshl_add_u32 v5, v5, 2, v3")
    e("v_and_b32 v6, 3, v7")
    e("v_xor_b32 v5, v5, v6")
    e("v_lshlrev_b32 v5, 4, v5")
    e("v_lshl_add_u32 v12, v7, 8, v5")
    e("v_xor_b32 v13, 32, v12")
    e("v_lshrrev_b32 v8, 4, v1")
    e("v_bfe_u32 v3, v1, 2, 2")
    e("v_and_b32 v4, 3, v1")
    e("v_lshrrev_b32 v5, 1, v8")
    e("v_lshl_add_u32 v5, v5, 3, v3")
    e("v_lshlrev_b32 v5, 7, v5")
    e("v_and_b32 v6, 1, v8")
    e("v_lshlrev_b32 v6, 1, v6")
    e("v_lshrrev_b32 v7, 1, v4")
    e("v_add_u32 v6, v6, v7")
    e("s_lshl_b32 s49, s48, 2")
    e("v_add_u32 v6, s49, v6")
    e("v_bfe_u32 v7, v3, 1, 1")
    e("v_lshlrev_b32 v7, 2, v7")
    e("v_xor_b32 v6, v6, v7")
    e("v_lshl_add_u32 v5, v6, 4, v5")
    e("v_and_b32 v7, 1, v4")
    e("v_lshl_add_u32 v5, v7, 3, v5")
    e("v_add_u32 v14, 16384, v5")
    G0, U0 = 64, 96
    for i in range(64):
        e(f"v_mov_b32 v{64+i}, 0")
    e("v_add_u32 v9, 0x10000, v12")
    e("v_add_u32 v10, 0x10000, v13")
    e("v_add_u32 v11, 0x10000, v14")
    def frag_ops(g):
        if "nofr" in X2: return []
        t = g >> 1; ks = g & 1; fb = 16 + 16*(g % 3)
        sb = (t % NS)*STG
        hi64 = sb >= 65536
        if hi64: sb -= 65536
        xa = (9 if hi64 else 12) + ks; wa = 11 if hi64 else 14
        r = []
        for mat in range(2):
            for hi in range(2):
                rr = fb + 8 + 4*mat + 2*hi
                r.append(f"ds_read_b64_tr_b16 v[{rr}:{rr+1}], v{wa} offset:{sb + mat*4096 + ks*2048 + hi*512}")
        for mi in range(2):
            r.append(f"ds_read_b128 v[{fb+4*mi}:{fb+4*mi+3}], v{xa} offset:{sb + mi*2048}")
        return r
    def frag_loads(g):
        for x in frag_ops(g): e(x)
    def mf(g, ops):
        fb = 16 + 16*(g % 3)
        ms = []
        for mi in range(2):
            x = fb+4*mi
            ms.append(f"v_mfma_f32_32x32x16_bf16 v[{G0+16*mi}:{G0+16*mi+15}], v[{fb+8}:{fb+11}], v[{x}:{x+3}], v[{G0+16*mi}:{G0+16*mi+15}]")
            ms.append(f"v_mfma_f32_32x32x16_bf16 v[{U0+16*mi}:{U0+16*mi+15}], v[{fb+12}:{fb+15}], v[{x}:{x+3}], v[{U0+16*mi}:{U0+16*mi+15}]")
        grp = [ops[0:2], ops[2:4], ops[4:5], ops[5:6]]
        for i in range(4):
            e(ms[i])
            for x in grp[i]: e(x)
    e("v_lshrrev_b32 v3, 5, v1")
    e("v_and_b32 v4, 31, v1")
    e("v_lshlrev_b32 v4, 4, v4")
    e("v_lshl_add_u32 v4, v3, 10, v4")
    e("s_lshl_b32 s46, s77, 2")
    e("s_add_u32 s46, s46, s47")
    e(f"s_mul_i32 s46, s46, {27*8192}")
    e("s_lshl_b32 s49, s76, 13")
    e("s_add_u32 s46, s46, s49")
    e("s_lshl_b32 s49, s48, 12")
    e("s_add_u32 s46, s46, s49")
    q(e, 1)
    e("s_barrier")
    q(e, 2)
    frag_loads(0); frag_loads(1)
    for g in range(2*NT):
        ops = []
        if g + 2 < 2*NT:
            if g & 1 == 0: bar(e, (g+2)//2)
            ops = frag_ops(g+2)
        e(f"s_waitcnt lgkmcnt({6*min(1, 2*NT-1-g)})")
        mf(g, ops)
    q(e, 3)
    gb = NT
    if C1_E >= gb: e("s_barrier"); gb += 1
    e("s_nop 15")
    for mi in range(2):
        for pi in range(2):
            o = 16 + 4*(2*mi+pi)
            for ii in range(2):
                i = 2*pi + ii
                g = G0+16*mi+4*i; u = U0+16*mi+4*i
                for pr in range(2):
                    e(f"v_cvt_pk_bf16_f32 v40, v{g+2*pr}, v{g+2*pr+1}")
                    e(f"v_cvt_pk_bf16_f32 v41, v{u+2*pr}, v{u+2*pr+1}")
                    e("v_lshlrev_b32 v42, 16, v40")
                    e("v_and_b32 v43, 0xffff0000, v40")
                    e("v_lshlrev_b32 v44, 16, v41")
                    e("v_and_b32 v45, 0xffff0000, v41")
                    e("v_mul_f32 v42, v42, v44")
                    e("v_mul_f32 v43, v43, v45")
                    e(f"v_cvt_pk_bf16_f32 v{o+2*ii+pr}, v42, v43")
            e("s_nop 1")
            e(f"v_permlane32_swap_b32 v{o}, v{o+2}")
            e(f"v_permlane32_swap_b32 v{o+1}, v{o+3}")
            e("s_nop 1")
            e(f"buffer_store_dwordx4 v[{o}:{o+3}], v4, s[60:63], s46 offen offset:{pi*2048 + mi*512} {ST2H}")
    while C1_E >= gb:
        e("s_barrier"); gb += 1
    q(e, 4)
    if PROF2 or TRACE: e("s_waitcnt vmcnt(0)")
    q(e, 7)
    qdump(e, 12)
    p4dump(e, "P4_G")
    trace_end(e, 1)
    e.label("K2_END")
    e("s_endpgm")
    return e.text()


N_G2 = 256
K3_NS = 7
K3_STG = 18432
K3_X0 = K3_STG*K3_NS
K3_LDS = K3_X0 + 2*10240
K3_XB = 12
K3_XI = int(os.environ.get('K3XI', '0'))
K3_D = int(os.environ.get('K3D', '1'))
PROF5 = os.environ.get("PROF5")
def k3():
    e = E()
    NS = K3_NS; NT = 27; STG = K3_STG
    Y2_L = K3_X0; X_L = K3_X0 + 10240; XN_L = K3_X0 + 20480
    e(f"s_cmp_ge_u32 s2, {N_G2}")
    e("s_cbranch_scc1 K3_END")
    trace_start(e)
    e("s_load_dwordx2 s[4:5], s[0:1], 0")
    e("s_load_dwordx2 s[10:11], s[0:1], 80")
    e("s_load_dwordx2 s[12:13], s[0:1], 96")
    e("v_lshrrev_b32 v1, 6, v0")
    e("s_nop 0")
    e("v_readfirstlane_b32 s3, v1")
    e("s_and_b32 s15, s2, 7")
    e("s_lshl_b32 s15, s15, 2")
    e("s_lshr_b32 s28, s2, 3")
    e("s_and_b32 s29, s28, 3")
    e("s_add_u32 s15, s15, s29")
    e("s_lshr_b32 s28, s28, 2")
    e("s_lshl_b32 s36, s15, 6")
    e("s_mul_i32 s39, s28, 160")
    e("v_and_b32 v1, 63, v0")
    e("s_waitcnt lgkmcnt(0)")
    e("s_cmp_lt_u32 s3, 4")
    e("s_cbranch_scc1 K3_COMP")
    e("s_sub_u32 s3, s3, 4")
    e("v_lshlrev_b32 v2, 4, v1")
    e("s_cmp_ge_u32 s3, 2")
    e("s_cbranch_scc1 K3_XL")
    srd_off(e, 16, 12, 13, WS_H, SZ_H)
    srd_off(e, 20, 12, 13, WS_WP2, D*F*2)
    e("v_lshlrev_b32 v2, 4, v1")
    e("s_lshl_b32 s40, s3, 12")
    e("s_mul_i32 s41, s3, 5120")
    e(f"s_mul_i32 s42, s15, {0 if 'hotA' in X3 else 27*8192}")
    e("s_add_u32 s42, s42, s40")
    e(f"s_mul_i32 s43, s28, {0 if 'hotW' in X3 else 1728*160}")
    e("s_add_u32 s43, s43, s41")
    e("s_add_u32 s41, s41, 8192")
    vq = VQ(e)
    def lst():
        if PROF5:
            e("s_memtime s[88:89]")
            e("s_waitcnt lgkmcnt(0)")
            e("v_cmp_eq_u32 vcc, s81, v1")
            e("v_mov_b32 v21, s88")
            e("v_cndmask_b32 v20, v20, v21, vcc")
            e("s_add_u32 s81, s81, 1")
    e("s_mov_b32 s81, 0")
    lst()
    def dma(t):
        sb = (t % NS)*STG
        e(f"s_add_u32 m0, s40, {sb}")
        e("s_add_u32 s46, s43, 4096")
        for i in range(4):
            e(f"buffer_load_dwordx4 v2, s[16:19], s42 offen offset:{i*1024} lds")
        e(f"s_add_u32 m0, s41, {sb}")
        e("s_add_u32 s42, s42, 8192")
        for i in range(4):
            e(f"buffer_load_dwordx4 v2, s[20:23], s43 offen offset:{i*1024} lds")
        e(f"s_add_u32 m0, s41, {sb + 4096}")
        e("s_add_u32 s43, s43, 10240")
        e(f"buffer_load_dwordx4 v2, s[20:23], s46 offen lds")
        vq.issue(("g", t), 9)
    def extras():
        srd_off(e, 24, 12, 13, WS_T3, SZ_T3)
        srd(e, 52, 4, 5, SZ_SD)
        e("s_lshl_b32 s47, s15, 3")
        e("s_add_u32 s47, s47, s28")
        e(f"s_mul_i32 s47, s47, {0 if 'hotX' in X3 else 10240}")
        e("s_mul_i32 s49, s3, 5120")
        e("s_add_u32 s47, s47, s49")
        e("s_add_u32 s48, s47, 4096")
        e(f"s_add_u32 m0, s49, {Y2_L}")
        e("s_nop 0")
        for i in range(4):
            e(f"buffer_load_dwordx4 v2, s[24:27], s47 offen offset:{i*1024} lds")
        e(f"s_add_u32 m0, s49, {Y2_L + 4096}")
        e("s_nop 0")
        e(f"buffer_load_dwordx4 v2, s[24:27], s48 offen lds")
        for i in range(5):
            e(f"v_add_u32 v3, {64*i}, v1")
            e("v_mul_u32_u24 v4, 6554, v3")
            e("v_lshrrev_b32 v4, 16, v4")
            e("v_mul_u32_u24 v5, 10, v4")
            e("v_sub_u32 v5, v3, v5")
            e("v_mul_u32_u24 v4, 1280, v4")
            e(f"v_lshl_add_u32 v{10+i}, v5, 4, v4")
        e("s_lshl_b32 s48, s3, 5")
        e("s_add_u32 s48, s48, s36")
        e("s_mul_i32 s48, s48, 1280")
        e("s_add_u32 s48, s48, s39")
        for i in range(5):
            e(f"s_add_u32 m0, s49, {X_L + i*1024}")
            e("s_nop 0")
            e(f"buffer_load_dwordx4 v{10+i}, s[52:55], s48 offen lds")
    nxt = 0
    DD = K3_D + 1
    for b in range(NT):
        lim = NS - 1 if b < DD else b - 1 - DD + NS
        lim = min(lim, 2*b + 1, NT - 1)
        while nxt <= lim:
            dma(nxt); nxt += 1
        vq.wait([("g", b)])
        e("s_barrier")
        lst()
    if PROF5:
        e("s_load_dwordx2 s[84:85], s[0:1], 88")
        e("s_waitcnt lgkmcnt(0)")
        e("s_mov_b32 s86, 256")
        e("s_mov_b32 s87, 0x00020000")
        e(f"s_cmp_lg_u32 s2, {PROF5}")
        e("s_cbranch_scc1 K3_END")
        e("s_cmp_lg_u32 s3, 0")
        e("s_cbranch_scc1 K3_END")
        e("v_lshlrev_b32 v120, 2, v1")
        e("buffer_store_dword v20, v120, s[84:87], 0 offen")
    e("s_endpgm")
    e.label("K3_XL")
    e("s_sub_u32 s3, s3, 2")
    for b in range(K3_XB + 1):
        if b == K3_XI: extras()
        if b == K3_XB: e("s_waitcnt vmcnt(0)")
        e("s_barrier")
    e("s_endpgm")
    e.label("K3_COMP")
    srd(e, 32, 10, 11, SZ_SD)
    e("v_and_b32 v20, 15, v1")
    e("v_lshrrev_b32 v21, 4, v1")
    e("v_and_b32 v22, 1, v21")
    e("s_lshl_b32 s49, s3, 4")
    e("v_add_u32 v23, s49, v20")
    e("v_mul_u32_u24 v2, 160, v23")
    e("v_lshl_add_u32 v2, v21, 3, v2")
    e(f"v_add_u32 v2, {X_L}, v2")
    e("v_add_u32 v24, s36, v23")
    srd_off(e, 40, 12, 13, WS_XN, S*8)
    e("v_lshlrev_b32 v25, 3, v24")
    e("buffer_load_dwordx2 v[14:15], v25, s[40:43], 0 offen")
    e("v_mul_u32_u24 v24, 1280, v24")
    e("v_lshl_add_u32 v24, v21, 3, v24")
    e("v_add_u32 v3, s39, v24")
    e("v_lshlrev_b32 v24, 10, v21")
    e("v_lshl_add_u32 v24, v23, 4, v24")
    e("v_lshl_add_u32 v4, v22, 3, v24")
    e("v_xor_b32 v5, 8, v4")
    e("v_bfe_u32 v24, v1, 2, 2")
    e("v_lshl_add_u32 v24, v21, 3, v24")
    e("v_lshl_add_u32 v25, v22, 2, v24")
    e("v_xor_b32 v26, 1, v22")
    e("v_lshl_add_u32 v26, v26, 2, v24")
    e("v_and_b32 v24, 3, v1")
    e("v_lshlrev_b32 v24, 3, v24")
    e("v_add_u32 v24, 8192, v24")
    e("s_movk_i32 s49, 160")
    e("v_mad_u32_u24 v6, v25, s49, v24")
    e("v_mad_u32_u24 v7, v26, s49, v24")
    for k in range(4):
        e(f"v_add_u32 v{8+k}, {4*STG}, v{4+k}")
    e("v_lshrrev_b32 v12, 2, v1")
    e("v_lshlrev_b32 v12, 7, v12")
    e("v_and_b32 v24, 3, v1")
    e("v_lshl_add_u32 v12, v24, 3, v12")
    e("s_lshl_b32 s49, s3, 5")
    e(f"s_add_u32 s49, s49, {Y2_L}")
    e("v_add_u32 v12, s49, v12")
    ACC = 16; XR, XNR, YR = 36, 46, 56; T = 66; FB = 72
    lq = []
    def wait(tags):
        idx = max((i for i, t in enumerate(lq) if t in tags), default=-1)
        if idx >= 0: e(f"s_waitcnt lgkmcnt({min(len(lq) - 1 - idx, 15)})")
    def put(it):
        if it[0] is None: wait(it[1]); return
        e(it[0])
        if it[1] is not None: lq.append(it[1])
    def frag_ops(t):
        fb = FB + 48*(t % (K3_D+1))
        sl = t % NS
        ab = 4 if sl < 4 else 8
        sb = (sl if sl < 4 else sl - 4)*STG
        r = []
        for kk in range(2):
            for hf in range(2):
                rr = fb + 4*kk + 2*hf
                r.append((f"ds_read_b64 v[{rr}:{rr+1}], v{ab+hf} offset:{sb + kk*4096}", ("f", t, kk)))
            for tt in range(5):
                for hf in range(2):
                    rr = fb + 8 + 20*kk + 4*tt + 2*hf
                    r.append((f"ds_read_b64_tr_b16 v[{rr}:{rr+1}], v{ab+2+hf} offset:{sb + kk*5120 + 32*tt}", ("f", t, kk)))
        return r
    xl = []
    for tt in range(5):
        xl.append((f"ds_read_b64_tr_b16 v[{YR+2*tt}:{YR+2*tt+1}], v12 offset:{2048*tt}", "x"))
        xl.append((f"ds_read_b64 v[{XR+2*tt}:{XR+2*tt+1}], v2 offset:{32*tt}", "x"))
    def amath(i):
        r = [f"v_lshlrev_b32 v{T}, 16, v{XR+i}", f"v_and_b32 v{T+1}, 0xffff0000, v{XR+i}",
             f"v_sub_f32 v{T+2}, v{T}, v14", f"v_sub_f32 v{T+3}, v{T+1}, v14",
             f"v_cvt_pk_bf16_f32 v{T+4}, v{T+2}, v{T+3}",
             f"v_lshlrev_b32 v{T+2}, 16, v{T+4}", f"v_and_b32 v{T+3}, 0xffff0000, v{T+4}",
             f"v_mul_f32 v{T+4}, v{T+2}, v13", f"v_mul_f32 v{T+5}, v{T+3}, v13",
             f"v_fma_f32 v{T+2}, -v{T+4}, v15, v{T+2}", f"v_fma_f32 v{T+3}, -v{T+5}, v15, v{T+3}",
             f"v_fmac_f32 v{T+4}, v{T+2}, v13", f"v_fmac_f32 v{T+5}, v{T+3}, v13",
             f"v_cvt_pk_bf16_f32 v{T+4}, v{T+4}, v{T+5}",
             f"v_lshlrev_b32 v{T+2}, 16, v{T+4}", f"v_and_b32 v{T+3}, 0xffff0000, v{T+4}",
             f"v_lshlrev_b32 v{T+4}, 16, v{YR+i}", f"v_and_b32 v{T+5}, 0xffff0000, v{YR+i}",
             f"v_mul_f32 v{T+2}, v{T+2}, v{T+4}", f"v_mul_f32 v{T+3}, v{T+3}, v{T+5}",
             f"v_cvt_pk_bf16_f32 v{T+4}, v{T+2}, v{T+3}",
             f"v_lshlrev_b32 v{T+2}, 16, v{T+4}", f"v_and_b32 v{T+3}, 0xffff0000, v{T+4}",
             f"v_add_f32 v{T}, v{T}, v{T+2}", f"v_add_f32 v{T+1}, v{T+1}, v{T+3}",
             f"v_cvt_pk_bf16_f32 v{T+4}, v{T}, v{T+1}",
             f"v_lshlrev_b32 v{XR+i}, 16, v{T+4}", f"v_and_b32 v{XNR+i}, 0xffff0000, v{T+4}"]
        return [(x, None) for x in r]
    extra = {t: [] for t in range(NT)}
    tx = K3_XB - K3_D
    extra[tx] = xl
    extra[tx + 1] = [("s_waitcnt vmcnt(0)\nv_rcp_f32 v13, v15", None)]
    extra[tx + 2] = [(None, ["x"])]
    for i in range(10):
        extra[tx + 2 + i] += amath(i)
    for t in range(K3_D):
        e("s_barrier")
        for it in frag_ops(t): put(it)
    for t in range(NT):
        ops = []
        if t + K3_D < NT:
            e("s_barrier")
            ops = frag_ops(t+K3_D)
        ex = list(extra[t])
        fb = FB + 48*(t % (K3_D+1))
        for kk in range(2):
            wait([("f", t, kk)])
            for tt in range(5):
                a = ACC + 4*tt
                w = fb + 8 + 20*kk + 4*tt; h = fb + 4*kk
                c = "0" if (t == 0 and kk == 0) else f"v[{a}:{a+3}]"
                e(f"v_mfma_f32_16x16x32_bf16 v[{a}:{a+3}], v[{w}:{w+3}], v[{h}:{h+3}], {c}")
                left = 10 - (5*kk + tt)
                no = (len(ops) + left - 1)//left
                for it in ops[:no]: put(it)
                ops = ops[no:]
                ne = (len(ex) + left - 1)//left
                for it in ex[:ne]: put(it)
                ex = ex[ne:]
    e("s_nop 7")
    for tt in range(5):
        a = ACC + 4*tt
        for pr in range(2):
            i = 2*tt + pr
            e(f"v_cvt_pk_bf16_f32 v{T}, v{a+2*pr}, v{a+2*pr+1}")
            e(f"v_lshlrev_b32 v{T+1}, 16, v{T}")
            e(f"v_and_b32 v{T+2}, 0xffff0000, v{T}")
            e(f"v_add_f32 v{T+1}, v{XR+i}, v{T+1}")
            e(f"v_add_f32 v{T+2}, v{XNR+i}, v{T+2}")
            e(f"v_cvt_pk_bf16_f32 v{YR+i}, v{T+1}, v{T+2}")
        e(f"buffer_store_dwordx2 v[{YR+2*tt}:{YR+2*tt+1}], v3, s[32:35], 0 offen offset:{32*tt} {ST3}")
    trace_end(e, 2)
    e.label("K3_END")
    e("s_endpgm")
    return e.text()

def build(kernels):
    out = []
    out.append(open("cdna_kernels/%s.s.ref" % NAME).read().split("; Override launch")[0])
    for (name, grid, block, lds, body, vgpr) in kernels:
        out.append(f"; @launch kernel={name} grid=({grid},1,1) block=({block},1,1) lds={lds}\n")
    out.append('.amdgcn_target "amdgcn-amd-amdhsa--gfx950"\n.text\n')
    for (name, grid, block, lds, body, vgpr) in kernels:
        out.append(khead(name))
        out.append(body)
    out.append('.section .rodata,"a"\n')
    for (name, grid, block, lds, body, vgpr) in kernels:
        out.append(".p2align 6\n")
        out.append(kdesc(name, vgpr))
    return "".join(out)

if __name__ == "__main__":
    ks = [("prep_kernel", N_K1, 512, K1_LDS, k1(), 128),
          ("mid_kernel", N_K2, 896, K2_LDS, k2(), 128),
          ("fin_kernel", N_G2, 512, K3_LDS, k3(), 72 + 48*(K3_D+1))]
    open(sys.argv[1] if len(sys.argv) > 1 else "cdna_kernels/%s.s" % NAME, "w").write(build(ks))
```

```python
import sys
NAME = "parallel_sum__ssm_conv_h3__glu_gated_bilinear__prompt"
S, D, F = 2048, 640, 1728
WS_XN  = 0
WS_KVT = 0x280000
WS_H   = 0x500000
WS_Y2T = 0xC00000
WS_XNP = 0xF00000
WS_WP1 = 0x1200000
WS_WP2 = 0x1700000
WS_XCH = 0x1A00000
WS_XP = 0x2800000
WS_T3 = 0x2800000
SZ_T3 = 256*10240
SZ_SD = S*D*2
SZ_H = S*F*2

class E:
    def __init__(self):
        self.l = []
    def __call__(self, s):
        for line in s.strip("\n").split("\n"):
            self.l.append("    " + line.strip() if not line.strip().endswith(":") else line.strip())
    def label(self, n):
        self.l.append(n + ":")
    def text(self):
        return "\n".join(self.l) + "\n"

def srd(e, d, blo, bhi, nbytes):
    e(f"s_mov_b32 s{d}, s{blo}")
    e(f"s_mov_b32 s{d+1}, s{bhi}")
    e(f"s_mov_b32 s{d+2}, {nbytes}")
    e(f"s_mov_b32 s{d+3}, 0x00020000")

def srd_off(e, d, blo, bhi, off, nbytes):
    e(f"s_add_u32 s{d}, s{blo}, {off}")
    e(f"s_addc_u32 s{d+1}, s{bhi}, 0")
    e(f"s_mov_b32 s{d+2}, {nbytes}")
    e(f"s_mov_b32 s{d+3}, 0x00020000")

def kdesc(name, vgpr, sgpr=102):
    acc = (vgpr + 3)//4*4
    return f""".amdhsa_kernel {name}
  .amdhsa_next_free_vgpr {vgpr}
  .amdhsa_next_free_sgpr {sgpr}
  .amdhsa_accum_offset {acc}
  .amdhsa_group_segment_fixed_size 0
  .amdhsa_kernarg_size 104
  .amdhsa_user_sgpr_count 2
  .amdhsa_user_sgpr_kernarg_segment_ptr 1
  .amdhsa_system_sgpr_workgroup_id_x 1
.end_amdhsa_kernel
"""

import os
STAMP = os.environ.get("STAMP")
X3 = os.environ.get("X3", "").split(",")
X2 = os.environ.get("X2", "").split(",")
ST1 = os.environ.get("ST1", "sc1")
ST2H = os.environ.get("ST2H", "sc1")
ST2Y = os.environ.get("ST2Y", "")
ST3 = os.environ.get("ST3", "")
STW = os.environ.get("STW", "sc1")
STX = os.environ.get("STX", "sc1,").split(",")
XOFF = int(os.environ.get("XOFF", "2048"))
def stamp(e, idx):
    if not STAMP: return
    e(f"s_memtime s[88:89]")
    e("s_waitcnt lgkmcnt(0)")
    e(f"s_mov_b32 s{90+idx}, s88")
def stamp_dump(e, n, wg):
    if not STAMP: return
    e("s_load_dwordx2 s[84:85], s[0:1], 88")
    e("s_waitcnt lgkmcnt(0)")
    e("s_mov_b32 s86, 256")
    e("s_mov_b32 s87, 0x00020000")
    e(f"s_cmp_lg_u32 s2, {wg}")
    e("s_cbranch_scc1 9f")
    e("s_cmp_lg_u32 s3, 0")
    e("s_cbranch_scc1 9f")
    e("v_mov_b32 v120, 0")
    for i in range(1, n):
        e(f"s_sub_u32 s83, s{90+i}, s90")
        e("v_mov_b32 v121, s83")
        e(f"buffer_store_dword v121, v120, s[84:87], 0 offen offset:{4*i}")
    e("9:")

TRACE = os.environ.get("TRACE")
def trace_start(e):
    if not TRACE: return
    e("s_memrealtime s[96:97]")
    e("s_memtime s[98:99]")
    e("s_mov_b32 s82, s2")
def trace_end(e, kidx, tid=0):
    if not TRACE: return
    e("s_waitcnt vmcnt(0) lgkmcnt(0)")
    e("s_memrealtime s[92:93]")
    e("s_memtime s[94:95]")
    e("s_load_dwordx2 s[84:85], s[0:1], 96")
    e("s_getreg_b32 s90, hwreg(HW_REG_HW_ID)")
    e("s_getreg_b32 s91, hwreg(HW_REG_XCC_ID)")
    e("s_waitcnt lgkmcnt(0)")
    e(f"s_add_u32 s84, s84, {(64<<20) + kidx*65536}")
    e("s_addc_u32 s85, s85, 0")
    e("s_mov_b32 s86, 65536")
    e("s_mov_b32 s87, 0x00020000")
    e("s_lshl_b32 s91, s91, 24")
    e("s_and_b32 s90, s90, 0xffffff")
    e("s_or_b32 s90, s90, s91")
    e("s_sub_u32 s94, s94, s98")
    e("v_mov_b32 v124, s96")
    e("v_mov_b32 v125, s92")
    e("v_mov_b32 v126, s90")
    e("v_mov_b32 v127, s94")
    e("s_lshl_b32 s83, s82, 4")
    e("v_mov_b32 v121, s83")
    e(f"v_cmp_eq_u32 vcc, {tid}, v0")
    e("s_and_saveexec_b64 s[80:81], vcc")
    e("s_cbranch_execz 8f")
    e("buffer_store_dwordx4 v[124:127], v121, s[84:87], 0 offen")
    e("s_waitcnt vmcnt(0)")
    e("8:")

PROF = os.environ.get("PROF")
def pt(e, acc):
    if not PROF: return
    e("s_memtime s[88:89]")
    e("s_waitcnt lgkmcnt(0)")
    e("s_sub_u32 s90, s88, s87")
    e(f"s_add_u32 s{acc}, s{acc}, s90")
    e("s_mov_b32 s87, s88")
def pinit(e):
    if not PROF: return
    for i in range(80, 87): e(f"s_mov_b32 s{i}, 0")
    e("s_memtime s[88:89]")
    e("s_waitcnt lgkmcnt(0)")
    e("s_mov_b32 s87, s88")
def pdump(e, wave_off):
    if not PROF: return
    e("s_load_dwordx2 s[92:93], s[0:1], 88")
    e("s_waitcnt lgkmcnt(0)")
    e("s_mov_b32 s94, 256")
    e("s_mov_b32 s95, 0x00020000")
    e(f"s_cmp_lg_u32 s2, {PROF}")
    e("s_cbranch_scc1 7f")
    e("s_cmp_lg_u32 s3, 0")
    e("s_cbranch_scc1 7f")
    e("v_mov_b32 v120, 0")
    for i in range(7):
        e(f"v_mov_b32 v121, s{80+i}")
        e(f"buffer_store_dword v121, v120, s[92:95], 0 offen offset:{wave_off + 4*i}")
    e("s_waitcnt vmcnt(0)")
    e("7:")

PROF2 = os.environ.get("PROF2")
def q(e, idx, wv=0):
    if not PROF2: return
    e("s_memtime s[88:89]")
    e("s_waitcnt lgkmcnt(0)")
    e(f"s_mov_b32 s{90+idx}, s88")
def qdump(e, n, wv=0):
    if not PROF2: return
    e("s_load_dwordx2 s[84:85], s[0:1], 88")
    e("s_waitcnt lgkmcnt(0)")
    e("s_mov_b32 s86, 256")
    e("s_mov_b32 s87, 0x00020000")
    e(f"s_cmp_lg_u32 s2, {PROF2}")
    e("s_cbranch_scc1 6f")
    e(f"s_cmp_lg_u32 s3, {wv}")
    e("s_cbranch_scc1 6f")
    e(f"v_mov_b32 v120, {64 if wv else 0}")
    for i in range(1, n):
        e(f"s_sub_u32 s83, s{90+i}, s90")
        e("v_mov_b32 v121, s83")
        e(f"buffer_store_dword v121, v120, s[84:87], 0 offen offset:{4*i}")
    e("6:")

PROF4 = os.environ.get("PROF4")
P4_REGS = [50,52,54,56,58,72,74,76,78,80,82,84,86]
P4_LO = int(os.environ.get('P4LO', '4'))
def bar(e, b):
    k = b - P4_LO
    if PROF4 and 0 <= k < 6:
        e(f"s_memtime s[{P4_REGS[2*k]}:{P4_REGS[2*k]+1}]")
    e("s_barrier")
    if PROF4 and 0 <= k < 6:
        e(f"s_memtime s[{P4_REGS[2*k+1]}:{P4_REGS[2*k+1]+1}]")
def p4dump(e, lab):
    if not PROF4: return
    e("s_load_dwordx2 s[92:93], s[0:1], 88")
    e("s_waitcnt lgkmcnt(0)")
    e("s_mov_b32 s94, 4096")
    e("s_mov_b32 s95, 0x00020000")
    e(f"s_cmp_lg_u32 s2, {PROF4}")
    e(f"s_cbranch_scc1 {lab}")
    e("v_lshrrev_b32 v120, 6, v0")
    e("v_lshlrev_b32 v120, 6, v120")
    for i in range(12):
        e(f"v_mov_b32 v121, s{P4_REGS[i]}")
        e(f"buffer_store_dword v121, v120, s[92:95], 0 offen offset:{512 + 4*i}")
    e.label(lab)

def code_touch(e, tag, sub, endlab, startlab=None):
    if "noct" in X2: return
    e("s_getpc_b64 s[60:61]")
    e.label(f"CT_{tag}")
    st = f"CT_{tag}"
    if startlab:
        e(f"s_add_u32 s60, s60, {startlab}-CT_{tag}")
        e("s_addc_u32 s61, s61, 0")
        st = startlab
    if sub: e(f"v_subrev_u32 v126, {sub}, v0")
    src = "v126" if sub else "v0"
    e(f"v_cmp_gt_u32 vcc, ({endlab}-{st})/64, {src}")
    e(f"v_lshlrev_b32 v126, 6, {src}")
    e("s_and_saveexec_b64 s[62:63], vcc")
    e("global_load_dword v127, v126, s[60:61]")
    e("s_mov_b64 exec, s[62:63]")

def khead(name):
    return f""".globl {name}
.p2align 8
.type {name},@function
{name}:
"""

N_KV = 160
N_LN = 64
N_TC = 32
TWS = int(os.environ.get("TWS", "6"))
N_K1 = N_KV+N_LN+N_TC
K1_LDS = int(os.environ.get("K1LDS", str(128*144 + 256)))
def k1():
    e = E()
    e(f"s_cmp_ge_u32 s2, {N_K1}")
    e("s_cbranch_scc1 K1_END")
    code_touch(e, "k1", 0, "K1_END")
    trace_start(e)
    e(f"s_cmp_ge_u32 s2, {N_KV+N_LN}")
    e("s_cbranch_scc1 K1_TC")
    e("s_load_dwordx4 s[4:7], s[0:1], 0")
    e("s_load_dwordx4 s[8:11], s[0:1], 16")
    e("s_load_dwordx2 s[12:13], s[0:1], 96")
    e(f"s_cmp_lt_u32 s2, {N_KV}")
    e("s_cbranch_scc1 K1_KV")
    e("v_lshrrev_b32 v1, 8, v0")
    e(f"s_sub_u32 s14, s2, {N_KV}")
    e("v_readfirstlane_b32 s15, v1")
    e("s_lshl_b32 s14, s14, 1")
    e("v_and_b32 v80, 255, v0")
    e("s_add_u32 s14, s14, s15")
    e("s_waitcnt lgkmcnt(0)")
    srd(e, 16, 4, 5, SZ_SD)
    srd_off(e, 20, 12, 13, WS_XN, S*8)
    e("s_lshl_b32 s3, s14, 4")
    e("v_lshrrev_b32 v1, 4, v80")
    e("v_add_u32 v1, s3, v1")
    e("v_mul_u32_u24 v1, 1280, v1")
    e("v_and_b32 v2, 15, v80")
    e("v_lshlrev_b32 v2, 4, v2")
    e("v_add_u32 v1, v1, v2")
    for j in range(5):
        e(f"buffer_load_dwordx4 v[{4+4*j}:{7+4*j}], v1, s[16:19], 0 offen offset:{256*j}")
    e("v_lshrrev_b32 v72, 4, v80")
    e("v_add_u32 v72, s3, v72")
    e("v_lshlrev_b32 v72, 3, v72")
    e("v_and_b32 v73, 15, v80")
    srd_off(e, 28, 12, 13, WS_XNP, SZ_SD)
    e("v_lshrrev_b32 v1, 4, v80")
    e("v_and_b32 v2, 15, v80")
    e("v_lshrrev_b32 v3, 2, v1")
    e("v_and_b32 v74, 3, v1")
    e("v_and_b32 v75, 3, v2")
    e("v_lshl_add_u32 v74, v74, 2, v75")
    e("v_xor_b32 v74, v74, v3")
    e("v_lshlrev_b32 v74, 4, v74")
    e("v_lshl_add_u32 v74, v3, 8, v74")
    e("v_lshrrev_b32 v2, 2, v2")
    e("v_lshl_add_u32 v74, v2, 14, v74")
    e("s_lshr_b32 s25, s14, 4")
    e("s_mul_i32 s25, s25, 327680")
    e("s_and_b32 s26, s14, 15")
    e("s_lshl_b32 s26, s26, 10")
    e("s_add_u32 s25, s25, s26")
    e("s_mov_b32 s24, 0x3acccccd")
    e("v_cmp_eq_u32 vcc, 0, v73")
    for j in range(5):
        e(f"s_waitcnt vmcnt({4-j})")
        for i in range(4*j, 4*j+4):
            e(f"v_lshlrev_b32 v{32+2*i}, 16, v{4+i}")
            e(f"v_and_b32 v{33+2*i}, 0xffff0000, v{4+i}")
        for i in range(4*j, 4*j+4):
            if i == 0: continue
            if i == 1: e("v_pk_add_f32 v[24:25], v[32:33], v[34:35]")
            else: e(f"v_pk_add_f32 v[24:25], v[24:25], v[{32+2*i}:{33+2*i}]")
    e("v_add_f32 v24, v24, v25")
    def red16(r):
        for sh in (8, 4, 2, 1):
            e("s_nop 1")
            e(f"v_add_f32_dpp v{r}, v{r}, v{r} row_ror:{sh} row_mask:0xf bank_mask:0xf")
    red16(24)
    e("v_mul_f32 v24, s24, v24")
    e("v_mov_b32 v25, v24")
    for i in range(20):
        t = 26 + 2*(i & 1)
        e(f"v_pk_add_f32 v[{t}:{t+1}], v[{32+2*i}:{33+2*i}], v[24:25] neg_lo:[0,1] neg_hi:[0,1]")
        if i == 0: e(f"v_pk_mul_f32 v[30:31], v[{t}:{t+1}], v[{t}:{t+1}]")
        else: e(f"v_pk_fma_f32 v[30:31], v[{t}:{t+1}], v[{t}:{t+1}], v[30:31]")
    e("v_add_f32 v25, v30, v31")
    red16(25)
    e("v_mul_f32 v25, s24, v25")
    e("v_cvt_pk_bf16_f32 v26, v24, v25")
    e("v_and_b32 v27, 0xffff0000, v26")
    e("v_lshlrev_b32 v26, 16, v26")
    e("v_add_f32 v27, 0x3727c5ac, v27")
    e("v_cvt_pk_bf16_f32 v27, v27, v27")
    e("v_lshlrev_b32 v27, 16, v27")
    e("v_sqrt_f32 v27, v27")
    e("s_nop 0")
    e("v_cvt_pk_bf16_f32 v27, v27, v27")
    e("v_lshlrev_b32 v27, 16, v27")
    e("v_rcp_f32 v28, v27")
    e("s_and_saveexec_b64 s[36:37], vcc")
    e("buffer_store_dwordx2 v[26:27], v72, s[20:23], 0 offen")
    e("s_mov_b64 exec, s[36:37]")
    e("v_mov_b32 v24, v26")
    e("v_mov_b32 v25, v26")
    e("v_mov_b32 v76, v27")
    e("v_mov_b32 v77, v27")
    e("v_mov_b32 v29, v28")
    for i2 in range(0, 20, 2):
        ops = [[], []]
        for u in range(2):
            i = i2 + u
            a, b = 32+2*i, 33+2*i
            t = 30 if u == 0 else 78
            c = 2 + u
            ops[u] = [f"v_pk_add_f32 v[{a}:{b}], v[{a}:{b}], v[24:25] neg_lo:[0,1] neg_hi:[0,1]",
                      f"v_cvt_pk_bf16_f32 v{c}, v{a}, v{b}",
                      f"v_lshlrev_b32 v{a}, 16, v{c}",
                      f"v_and_b32 v{b}, 0xffff0000, v{c}",
                      f"v_pk_mul_f32 v[{t}:{t+1}], v[{a}:{b}], v[28:29]",
                      f"v_pk_fma_f32 v[{a}:{b}], v[{t}:{t+1}], v[76:77], v[{a}:{b}] neg_lo:[1,0,0] neg_hi:[1,0,0]",
                      f"v_pk_fma_f32 v[{t}:{t+1}], v[{a}:{b}], v[28:29], v[{t}:{t+1}]",
                      f"v_cvt_pk_bf16_f32 v{4+i}, v{t}, v{t+1}"]
        for x, y in zip(ops[0], ops[1]):
            e(x); e(y)
        if i2 & 3 == 2:
            j = i2 >> 2
            e(f"buffer_store_dwordx4 v[{4+4*j}:{7+4*j}], v74, s[28:31], s25 offen {ST1}")
            e("s_add_u32 s25, s25, 65536")
    trace_end(e, 3)
    e("s_endpgm")
    e.label("K1_TC")
    if "noct1" not in X2: code_touch(e, "k1b", 0, "K3_END", "mid_kernel")
    e("s_load_dwordx2 s[4:5], s[0:1], 32")
    e("s_load_dwordx4 s[8:11], s[0:1], 56")
    e(f"s_sub_u32 s3, s2, {N_KV+N_LN}")
    e(f"s_lshl_b32 s6, s3, {9 + TWS}")
    e("s_mul_i32 s3, s3, 81920")
    e("v_lshlrev_b32 v1, 4, v0")
    e(f"v_lshlrev_b32 v2, {TWS}, v0")
    e("s_waitcnt lgkmcnt(0)")
    srd(e, 16, 4, 5, SZ_SD)
    srd(e, 20, 8, 9, D*F*2)
    srd(e, 24, 10, 11, D*F*2)
    if "tw" in X2:
        n = -(-D*F*2 // (16384 << TWS))
        for i in range(n):
            e(f"buffer_load_dword v{50+2*i}, v2, s[20:23], s6 offen")
            e(f"buffer_load_dword v{51+2*i}, v2, s[24:27], s6 offen")
            e(f"s_add_u32 s6, s6, {16384 << TWS}")
    for i in range(10):
        e(f"buffer_load_dwordx4 v[{4+4*i}:{7+4*i}], v1, s[16:19], s3 offen")
        e("s_add_u32 s3, s3, 8192")
    e("s_waitcnt vmcnt(0)")
    for x in os.environ.get("K1SLEEP", "").split(","):
        if x: e(f"s_sleep {x}")
    trace_end(e, 3)
    e("s_endpgm")
    e.label("K1_KV")
    e("s_mul_hi_u32 s14, s2, 0x33333334")
    e("s_mul_i32 s15, s14, 5")
    e("s_sub_u32 s15, s2, s15")
    e("v_and_b32 v1, 15, v0")
    e("v_lshrrev_b32 v2, 4, v0")
    e("s_lshl_b32 s32, s14, 6")
    e("v_lshlrev_b32 v3, 1, v2")
    e("v_add_u32 v3, s32, v3")
    e("v_mul_u32_u24 v4, 1280, v3")
    e("s_lshl_b32 s33, s15, 8")
    e("v_lshlrev_b32 v5, 4, v1")
    e("v_add_u32 v5, s33, v5")
    e("v_add_u32 v4, v4, v5")
    e("v_subrev_u32 v6, 3840, v4")
    e("v_subrev_u32 v10, 2560, v4")
    e("v_subrev_u32 v11, 1280, v4")
    e("v_lshlrev_b32 v7, 2, v5")
    e("s_waitcnt lgkmcnt(0)")
    srd(e, 16, 6, 7, SZ_SD)
    srd(e, 20, 8, 9, SZ_SD)
    srd(e, 24, 10, 11, D*4*2)
    srd_off(e, 28, 12, 13, WS_KVT, SZ_SD)
    for j in range(4):
        e(f"buffer_load_dwordx4 v[{60+4*j}:{63+4*j}], v7, s[24:27], 0 offen offset:{16*j}")
    e("buffer_load_dwordx4 v[16:19], v6, s[16:19], 0 offen")
    e("buffer_load_dwordx4 v[20:23], v10, s[16:19], 0 offen")
    e("buffer_load_dwordx4 v[24:27], v11, s[16:19], 0 offen")
    e("buffer_load_dwordx4 v[28:31], v4, s[16:19], 0 offen")
    e("buffer_load_dwordx4 v[32:35], v4, s[16:19], 0 offen offset:1280")
    for r in range(2):
        e(f"buffer_load_dwordx4 v[{44+4*r}:{47+4*r}], v4, s[20:23], 0 offen offset:{1280*r}")
    e("s_mov_b32 s34, 0x05040100")
    e("s_mov_b32 s35, 0x07060302")
    e("v_mul_u32_u24 v8, 1168, v1")
    e("v_lshrrev_b32 v9, 2, v2")
    e("v_lshl_add_u32 v8, v9, 4, v8")
    e("v_and_b32 v9, 3, v2")
    e("v_xor_b32 v9, 3, v9")
    e("v_lshl_add_u32 v8, v9, 2, v8")
    e("v_lshrrev_b32 v12, 3, v0")
    e("v_and_b32 v13, 7, v0")
    e("v_mul_u32_u24 v14, 144, v12")
    e("v_lshrrev_b32 v15, 3, v12")
    e("v_add_u32 v15, v15, v13")
    e("v_lshl_add_u32 v14, v15, 4, v14")
    e("s_lshl_b32 s33, s15, 7")
    e("v_add_u32 v15, s33, v12")
    e("v_lshlrev_b32 v15, 12, v15")
    e("s_lshl_b32 s32, s14, 7")
    e("v_lshl_add_u32 v15, v13, 4, v15")
    e("s_add_u32 s33, s32, 0x40000")
    e("s_waitcnt vmcnt(7)")
    for p in range(4):
        for h in range(2):
            c = 2*p+h
            e(f"v_lshlrev_b32 v{76+8*p+h}, 16, v{60+2*c}")
            e(f"v_and_b32 v{78+8*p+h}, 0xffff0000, v{60+2*c}")
            e(f"v_lshlrev_b32 v{80+8*p+h}, 16, v{61+2*c}")
            e(f"v_and_b32 v{82+8*p+h}, 0xffff0000, v{61+2*c}")
    e("s_waitcnt vmcnt(0)")
    for p in range(4):
        W = 76 + 8*p
        for r in range(5):
            e(f"v_lshlrev_b32 v{60+2*r}, 16, v{16+4*r+p}")
            e(f"v_and_b32 v{61+2*r}, 0xffff0000, v{16+4*r+p}")
        ch = [[], []]
        for i in range(2):
            A = 108 + 6*i; T = A + 2; C = A + 4
            o = ch[i]
            for t in range(4):
                r = i + t
                w = 3 - t
                o.append(f"v_pk_mul_f32 v[{T}:{T+1}], v[{60+2*r}:{61+2*r}], v[{W+2*w}:{W+2*w+1}]")
                o.append(f"v_cvt_pk_bf16_f32 v{C}, v{T}, v{T+1}")
                if t == 0:
                    o.append(f"v_lshlrev_b32 v{A}, 16, v{C}")
                    o.append(f"v_and_b32 v{A+1}, 0xffff0000, v{C}")
                else:
                    o.append(f"v_lshlrev_b32 v{T}, 16, v{C}")
                    o.append(f"v_and_b32 v{T+1}, 0xffff0000, v{C}")
                    o.append(f"v_pk_add_f32 v[{A}:{A+1}], v[{A}:{A+1}], v[{T}:{T+1}]")
                    o.append(f"v_cvt_pk_bf16_f32 v{C}, v{A}, v{A+1}")
                    o.append(f"v_lshlrev_b32 v{A}, 16, v{C}")
                    o.append(f"v_and_b32 v{A+1}, 0xffff0000, v{C}")
            o.append(f"v_lshlrev_b32 v{T}, 16, v{44+4*i+p}")
            o.append(f"v_and_b32 v{T+1}, 0xffff0000, v{44+4*i+p}")
            o.append(f"v_pk_mul_f32 v[{A}:{A+1}], v[{A}:{A+1}], v[{T}:{T+1}]")
            o.append(f"v_cvt_pk_bf16_f32 v{C}, v{A}, v{A+1}")
        for x, y in zip(ch[0], ch[1]):
            e(x); e(y)
        e("v_perm_b32 v70, v112, v118, s34")
        e(f"ds_write_b32 v8, v70 offset:{(2*p)*144}")
        e("v_perm_b32 v71, v112, v118, s35")
        e(f"ds_write_b32 v8, v71 offset:{(2*p+1)*144}")
    e("s_waitcnt lgkmcnt(0)")
    e("s_barrier")
    e("ds_read_b128 v[16:19], v14")
    e(f"ds_read_b128 v[20:23], v14 offset:{64*144 + 8*16}")
    e("s_waitcnt lgkmcnt(1)")
    e(f"buffer_store_dwordx4 v[16:19], v15, s[28:31], s32 offen {ST1}")
    e("s_waitcnt lgkmcnt(0)")
    e(f"buffer_store_dwordx4 v[20:23], v15, s[28:31], s33 offen {ST1}")
    trace_end(e, 3)
    e.label("K1_END")
    e("s_endpgm")
    return e.text()


N_K2 = 256
COPY = 4288
KVSZ = 33*144
CP_OFF = 2*KVSZ
SC_OFF = CP_OFF + 8*COPY
CV_SZ = SC_OFF
K2_NS = 4
K2_STG = 24576
CV_A = K2_NS*K2_STG
K2_LDS = max(CV_A + CV_SZ, 3*CV_SZ)
PB0 = 1
LB0 = 2
RPB = 6
if os.environ.get("CS"):
    exec(os.environ["CS"])
C1_E = PB0 + 16

class VQ:
    def __init__(self, e): self.q = []; self.e = e
    def issue(self, tag, n): self.q += [tag]*n
    def wait(self, tags):
        idx = max([i for i, t in enumerate(self.q) if t in tags], default=-1)
        if idx < 0: return
        n = len(self.q) - 1 - idx
        self.e(f"s_waitcnt vmcnt({min(n, 63)})")
        self.q = self.q[idx+1:]

def write_copies(e, d, lab, ro):
    e(f"ds_write_b128 v117, v[{d}:{d+3}] offset:{ro}")
    for i in range(4):
        e(f"v_alignbit_b32 v{16+i}, v{d+i+1}, v{d+i}, 16")
    e(f"ds_write_b128 v117, v[16:19] offset:{ro + COPY}")
    for i in range(4):
        e(f"v_mov_b32 v{20+i}, v{d+i+1}")
    e(f"ds_write_b128 v117, v[20:23] offset:{ro + 2*COPY}")
    for i in range(4):
        e(f"v_alignbit_b32 v{24+i}, v{d+i+2}, v{d+i+1}, 16")
    e(f"ds_write_b128 v117, v[24:27] offset:{ro + 3*COPY}")
    e("s_cmp_eq_u32 s39, 0")
    e(f"s_cbranch_scc0 {lab}")
    e("v_mov_b32 v28, 0")
    e(f"v_lshlrev_b32 v29, 16, v{d}")
    e("v_mov_b32 v32, 0")
    e(f"v_mov_b32 v33, v{d}")
    e("v_mov_b32 v34, v29")
    e("v_mov_b32 v35, v16")
    e("s_mov_b64 exec, 1")
    e(f"ds_write_b64 v117, v[28:29] offset:{ro + COPY - 8}")
    e(f"ds_write_b64 v117, v[32:33] offset:{ro + 2*COPY - 8}")
    e(f"ds_write_b64 v117, v[34:35] offset:{ro + 3*COPY - 8}")
    e("s_mov_b64 exec, -1")
    e.label(lab)

def conv_main(e):
    ACCS = [16, 112]; FL, FH, BB = 32, 56, 80
    lq = []
    def wait(tags):
        idx = max((i for i, t in enumerate(lq) if t in tags), default=-1)
        if idx >= 0: e(f"s_waitcnt lgkmcnt({min(len(lq) - 1 - idx, 15)})")
    def put(it):
        if it[0] is None: wait(it[1]); return
        e(it[0])
        for _ in range(it[2] if len(it) > 2 else 1):
            if it[1] is not None: lq.append(it[1])
    def lda(F):
        c, f = divmod(F, 17)
        sl = F % 6
        r = []
        for (R, va) in ((FL, 8), (FH, 9)):
            o = 4*COPY*c + 64*f
            r.append((f"ds_read_b64 v[{R+4*sl}:{R+4*sl+1}], v{va} offset:{o}", ("a", F)))
            r.append((f"ds_read_b64 v[{R+4*sl+2}:{R+4*sl+3}], v{va} offset:{o+8}", ("a", F)))
        return r
    def ldb(P):
        c, p = divmod(P, 16)
        st = p >> 1; kk = 1 - (p & 1)
        bb = BB + 8*(P & 3)
        pre = ""
        if p & 1 == 0:
            pre = f"v_subrev_u32 v12, {144*st}, v10\nv_max_i32 v3, v12, v11\n"
        return [(pre + f"ds_read_b128 v[{bb}:{bb+3}], v3 offset:{KVSZ*c + 64*kk}", ("b", P)),
                (f"ds_read_b128 v[{bb+4}:{bb+7}], v12 offset:{KVSZ*c + 16*144 + 64*kk}", ("b", P))]
    def dterm_ld(c):
        return [(f"ds_read_b64 v[{4+2*h}:{5+2*h}], v13 offset:{KVSZ*c + 16*144*h}", ("k", c)) for h in range(2)]
    def dterm(c, T):
        sch = 65 if c == 0 else 69
        r = [(f"s_and_b32 s29, s{sch}, 1\ns_lshl_b32 s29, s29, 4\ns_lshr_b32 s29, s{70+c}, s29\ns_lshl_b32 s29, s29, 16", None), (None, [("k", c)])]
        for h in range(2):
            k0, k1 = 4+2*h, 5+2*h
            r += [(f"v_and_b32 v{T}, 0xffff0000, v{k1}", None), (f"v_lshlrev_b32 v{T+1}, 16, v{k1}", None),
                  (f"v_and_b32 v{T+2}, 0xffff0000, v{k0}", None), (f"v_lshlrev_b32 v{T+3}, 16, v{k0}", None)]
            r += [(f"v_mul_f32 v{T+j}, s29, v{T+j}", None) for j in range(4)]
            r += [(f"v_cvt_pk_bf16_f32 v{k0}, v{T}, v{T+1}", None), (f"v_cvt_pk_bf16_f32 v{k1}, v{T+2}, v{T+3}", None)]
        return r
    def exch(c):
        A = ACCS[c]
        t = ["s_cmp_eq_u32 s38, 0", f"s_cbranch_scc1 CX0_{c}"]
        t += [f"buffer_store_dwordx4 v[{A+4*h}:{A+4*h+3}], v14, s[60:63], 0 offen offset:{XOFF*c + 1024*h} {STX[c]}" for h in range(2)]
        t += [f"v_mov_b32 v{A+i}, v{A+8+i}" for i in range(8)]
        t += [f"s_branch CX1_{c}", f"CX0_{c}:"]
        t += [f"buffer_store_dwordx4 v[{A+8+4*h}:{A+8+4*h+3}], v14, s[60:63], 0 offen offset:{XOFF*c + 1024*h} {STX[c]}" for h in range(2)]
        t += [f"CX1_{c}:"]
        return [("\n".join(t), None)]
    def xread(c):
        A = ACCS[c]
        return [(f"buffer_load_dwordx4 v[{A+8+4*h}:{A+11+4*h}], v15, s[60:63], 0 offen offset:{XOFF*c + 1024*h}", None) for h in range(2)]
    def fin(c, h):
        sch = 65 if c == 0 else 69
        o = ACCS[c] + 4*h; p = ACCS[c] + 8 + 4*h
        r = [("s_waitcnt vmcnt(0)", None)] if h == 0 else []
        r += [(f"v_add_f32 v{o+j}, v{o+j}, v{p+j}", None) for j in range(4)]
        r += [(f"v_cvt_pk_bf16_f32 v{p}, v{o}, v{o+1}", None), (f"v_cvt_pk_bf16_f32 v{p+1}, v{o+2}, v{o+3}", None)]
        r += [(f"v_lshlrev_b32 v{o}, 16, v{p}", None), (f"v_and_b32 v{o+1}, 0xffff0000, v{p}", None),
              (f"v_lshlrev_b32 v{o+2}, 16, v{p+1}", None), (f"v_and_b32 v{o+3}, 0xffff0000, v{p+1}", None)]
        for k in range(2):
            r += [(f"v_lshlrev_b32 v{p+2}, 16, v{4+2*h+k}", None), (f"v_and_b32 v{p+3}, 0xffff0000, v{4+2*h+k}", None),
                  (f"v_add_f32 v{o+2*k}, v{o+2*k}, v{p+2}", None), (f"v_add_f32 v{o+2*k+1}, v{o+2*k+1}, v{p+3}", None)]
        r += [(f"v_cvt_pk_bf16_f32 v{p}, v{o}, v{o+1}", None), (f"v_cvt_pk_bf16_f32 v{p+1}, v{o+2}, v{o+3}", None)]
        r += [(f"s_lshl_b32 s48, s{sch}, 7\ns_add_u32 s48, s48, {16*81920*h}\nbuffer_store_dwordx2 v[{p}:{p+1}], v2, s[24:27], s48 offen {ST2Y}", None)]
        return r
    extra = {P: [] for P in range(32)}
    tail = {P: [] for P in range(32)}
    tail[16] = exch(0)
    tail[19] = [("s_waitcnt vmcnt(0)", None)]
    extra[20] = xread(0)
    extra[24] = fin(0, 0)
    extra[25] = fin(0, 1)
    tail[25] = [("s_cmp_ge_u32 s69, 640\ns_cbranch_scc1 K2_END", None)]
    extra[26] = dterm_ld(1)
    d1 = dterm(1, 16)
    extra[27] = d1[:12]; extra[28] = d1[12:]
    bcur = 0
    while bcur < PB0:
        bar(e, bcur); bcur += 1
    for it in dterm_ld(0) + lda(0) + lda(1) + ldb(0) + lda(2) + ldb(1) + lda(3) + ldb(2) + dterm(0, 16): put(it)
    nfa = 4; nfb = 3
    for P in range(32):
        c, p = divmod(P, 16)
        if P & 1 == 0:
            bar(e, bcur); bcur += 1
        if P == 0: e("s_setprio 3")
        F0 = 17*c + p
        ops = []
        while nfa <= F0 + 4 and nfa < 34:
            ops += lda(nfa); nfa += 1
        while nfb <= P + 3 and nfb < 32:
            ops += ldb(nfb); nfb += 1
        ops = extra[P][:0] + ops
        ex = list(extra[P])
        wait([("a", F0), ("a", F0+1), ("b", P)])
        bb = BB + 8*(P & 3)
        A = ACCS[c]
        mfs = []
        for mu in range(2):
            fl = FL + 4*((F0+mu) % 6)
            a0 = A + 8*mu; a1 = a0 + 4
            c0 = "0" if p == 0 else f"v[{a0}:{a0+3}]"
            c1 = "0" if p == 0 else f"v[{a1}:{a1+3}]"
            mfs.append(f"v_mfma_f32_16x16x32_bf16 v[{a0}:{a0+3}], v[{fl}:{fl+3}], v[{bb}:{bb+3}], {c0}")
            mfs.append(f"v_mfma_f32_16x16x32_bf16 v[{a1}:{a1+3}], v[{fl}:{fl+3}], v[{bb+4}:{bb+7}], {c1}")
        for mu in range(2):
            fh = FH + 4*((F0+mu) % 6)
            a1 = A + 8*mu + 4
            mfs.append(f"v_mfma_f32_16x16x32_bf16 v[{a1}:{a1+3}], v[{fh}:{fh+3}], v[{bb}:{bb+3}], v[{a1}:{a1+3}]")
        for i in range(6):
            e(mfs[i])
            no = (len(ops) + 5 - i) // (6 - i)
            for it in ops[:no]: put(it)
            ops = ops[no:]
            ne = (len(ex) + 5 - i) // (6 - i)
            for it in ex[:ne]: put(it)
            ex = ex[ne:]
        for it in tail[P]: put(it)
        if P == 15: q(e, 8, 8)
    q(e, 10, 8)
    e("s_setprio 0")
    e("s_nop 7")
    for it in exch(1): put(it)
    if "oldtail" not in X2:
        bar(e, bcur); bcur += 1
    e("s_waitcnt vmcnt(0)")
    bar(e, bcur); bcur += 1
    for it in xread(1): put(it)
    while bcur < 20:
        bar(e, bcur); bcur += 1
    for it in fin(1, 0) + fin(1, 1): put(it)

def k2():
    e = E()
    NS = K2_NS; STG = K2_STG; NT = 20
    e(f"s_cmp_ge_u32 s2, {N_K2}")
    e("s_cbranch_scc1 K2_END")
    code_touch(e, "k2", 512, "K2_END")
    trace_start(e)
    e("s_load_dwordx4 s[4:7], s[0:1], 32")
    e("s_load_dwordx2 s[12:13], s[0:1], 96")
    e("s_load_dwordx4 s[8:11], s[0:1], 56")
    e("s_load_dwordx2 s[50:51], s[0:1], 72")
    e("v_lshrrev_b32 v1, 6, v0")
    e("s_nop 0")
    e("v_readfirstlane_b32 s3, v1")
    e("v_and_b32 v1, 63, v0")
    e("v_lshlrev_b32 v2, 4, v1")
    e("s_and_b32 s14, s2, 7")
    e("s_lshr_b32 s15, s2, 3")
    if "map2" in X2:
        e("s_mul_i32 s32, s14, 27")
        e("s_add_u32 s65, s32, s15")
        e("s_lshl_b32 s65, s65, 1")
        e("s_add_u32 s69, s65, 1")
        e(f"s_mov_b32 s66, {CV_A}")
        e("s_cmp_lt_u32 s15, 27")
        e("s_cselect_b32 s64, 1, 0")
        e("s_cbranch_scc1 K2_R")
        e("s_mul_i32 s32, s14, 5")
        e("s_add_u32 s32, s32, s15")
        e("s_add_u32 s65, s32, 405")
        e("s_add_u32 s69, s65, 120")
        e("s_mov_b32 s66, 0")
        e.label("K2_R")
        e("s_mov_b32 s76, s15")
        e("s_mov_b32 s77, s14")
    else:
        e("s_lshr_b32 s28, s14, 2")
        e("s_lshl_b32 s29, s28, 1")
        e("s_sub_u32 s29, 28, s29")
        e("s_and_b32 s31, s14, 3")
        e("s_mul_i32 s32, s31, s29")
        e("s_mul_i32 s33, s28, 112")
        e("s_add_u32 s32, s32, s33")
        e("s_add_u32 s65, s32, s15")
        e("s_lshl_b32 s65, s65, 1")
        e("s_add_u32 s69, s65, 1")
        e(f"s_mov_b32 s66, {CV_A}")
        e("s_cmp_lt_u32 s15, s29")
        e("s_cselect_b32 s64, 1, 0")
        e("s_cbranch_scc1 K2_R")
        e("s_sub_u32 s32, 32, s29")
        e("s_mul_i32 s32, s32, s31")
        e("s_lshl_b32 s33, s28, 4")
        e("s_add_u32 s32, s32, s33")
        e("s_add_u32 s32, s32, s15")
        e("s_sub_u32 s32, s32, s29")
        e("s_add_u32 s65, s32, 432")
        e("s_add_u32 s69, s65, 120")
        e("s_mov_b32 s66, 0")
        e.label("K2_R")
        e("s_mul_i32 s76, s28, 14")
        e("s_lshr_b32 s33, s15, 1")
        e("s_add_u32 s76, s76, s33")
        e("s_lshl_b32 s77, s31, 1")
        e("s_and_b32 s33, s15, 1")
        e("s_add_u32 s77, s77, s33")
    e("s_waitcnt lgkmcnt(0)")
    srd(e, 16, 4, 5, SZ_SD)
    e("s_cmp_lt_u32 s3, 12")
    e("s_cbranch_scc1 K2_CW")
    e("s_sub_u32 s3, s3, 12")
    e("s_cmp_eq_u32 s64, 0")
    e("s_cbranch_scc1 K2_RP")
    srd_off(e, 52, 12, 13, WS_XNP, SZ_SD)
    e("s_cmp_eq_u32 s3, 0")
    e("s_cselect_b32 s56, s8, s10")
    e("s_cselect_b32 s57, s9, s11")
    e(f"s_mov_b32 s58, {D*F*2}")
    e("s_mov_b32 s59, 0x00020000")
    e("v_lshrrev_b32 v3, 3, v1")
    e("v_and_b32 v4, 7, v1")
    e("v_bfe_u32 v5, v3, 1, 1")
    e("v_lshlrev_b32 v5, 2, v5")
    e("v_xor_b32 v4, v4, v5")
    e("v_mul_u32_u24 v3, 3456, v3")
    e("v_lshl_add_u32 v3, v4, 4, v3")
    for i in range(1, 4):
        e(f"v_add_u32 v{3+i}, {i*(8*3456-1024)}, v3")
    e("s_lshl_b32 s72, s3, 13")
    e("s_lshl_b32 s73, s3, 12")
    e("s_mul_i32 s74, s77, 327680")
    e("s_add_u32 s74, s74, s72")
    e("s_lshl_b32 s75, s76, 7")
    e("s_add_u32 s73, s73, 16384")
    def g1_dma():
        e("s_mov_b32 m0, s72")
        e("s_add_u32 s34, s74, 4096")
        for i in range(4):
            e(f"buffer_load_dwordx4 v2, s[52:55], s74 offen offset:{i*1024} lds")
        e("s_add_u32 m0, s72, 4096")
        e("s_add_u32 s74, s74, 16384")
        for i in range(4):
            e(f"buffer_load_dwordx4 v2, s[52:55], s34 offen offset:{i*1024} lds")
        e("s_mov_b32 m0, s73")
        e(f"s_add_u32 s72, s72, {STG}")
        for i in range(4):
            e(f"buffer_load_dwordx4 v{3+i}, s[56:59], s75 offen offset:{i*1024} lds")
        e(f"s_add_u32 s75, s75, {32*3456}")
        e(f"s_add_u32 s73, s73, {STG}")
    def lst():
        if PROF2:
            e("s_memtime s[88:89]")
            e("s_waitcnt lgkmcnt(0)")
            e("v_cmp_eq_u32 vcc, s81, v1")
            e("v_mov_b32 v21, s88")
            e("v_cndmask_b32 v20, v20, v21, vcc")
            e("s_add_u32 s81, s81, 1")
    e("s_mov_b32 s81, 0")
    lst()
    e("s_mov_b32 s79, 0")
    e(f"s_mov_b32 s80, {NS*STG}")
    e.label("K2_LP")
    g1_dma()
    e("s_add_u32 s79, s79, 1")
    e(f"s_cmp_lg_u32 s79, {LB0}")
    e("s_cbranch_scc1 K2_LP2")
    lst()
    e(f"s_waitcnt vmcnt({12*(LB0-1)})")
    e("s_barrier")
    lst()
    e.label("K2_LP2")
    e(f"s_cmp_lt_u32 s79, {NS-1}")
    e("s_cbranch_scc1 K2_LP")
    e.label("K2_LGL")
    e(f"s_waitcnt vmcnt({12*(NS-3)})")
    e("s_barrier")
    lst()
    g1_dma()
    e("s_cmp_ge_u32 s72, s80")
    e("s_cselect_b32 s33, s80, 0")
    e("s_sub_u32 s72, s72, s33")
    e("s_sub_u32 s73, s73, s33")
    e("s_add_u32 s79, s79, 1")
    e(f"s_cmp_lt_u32 s79, {NT}")
    e("s_cbranch_scc1 K2_LGL")
    for b in range(NT-NS+2, (max(NT, C1_E+1) if PROF2 else NT)):
        e(f"s_waitcnt vmcnt({12*max(NT-1-b, 0)})")
        e("s_barrier")
        lst()
    if PROF2:
        e("s_load_dwordx2 s[84:85], s[0:1], 88")
        e("s_waitcnt lgkmcnt(0)")
        e("s_mov_b32 s86, 256")
        e("s_mov_b32 s87, 0x00020000")
        e(f"s_cmp_lg_u32 s2, {PROF2}")
        e("s_cbranch_scc1 K2_END")
        e("s_cmp_lg_u32 s3, 0")
        e("s_cbranch_scc1 K2_END")
        e("v_lshlrev_b32 v120, 2, v1")
        e("buffer_store_dword v20, v120, s[84:87], 0 offen offset:128")
    e("s_endpgm")
    e.label("K2_RP")
    srd(e, 52, 50, 51, D*F*2)
    srd_off(e, 56, 12, 13, WS_WP2, D*F*2)
    e("s_sub_u32 s28, s65, 432")
    e("s_lshl_b32 s28, s28, 1")
    e("s_add_u32 s28, s28, s3")
    e("s_mul_hi_u32 s29, s28, 0x1999999a")
    e("s_mul_i32 s30, s29, 10")
    e("s_sub_u32 s30, s28, s30")
    e("s_mul_i32 s30, s30, 1728")
    e("s_mul_i32 s29, s29, 160")
    e("s_mul_i32 s28, s28, 27648")
    e("s_mov_b32 s31, 0xcccccccd")
    e("v_add_u32 v3, s30, v1")
    for i in range(27):
        e(f"v_add_u32 v4, {64*i}, v3")
        e("v_mul_hi_u32 v5, v4, s31")
        e("v_lshrrev_b32 v5, 3, v5")
        e("v_mul_u32_u24 v6, 10, v5")
        e("v_sub_u32 v6, v4, v6")
        e("v_mul_u32_u24 v5, 1280, v5")
        e("v_lshl_add_u32 v5, v6, 4, v5")
        e(f"buffer_load_dwordx4 v[{8+4*i}:{11+4*i}], v5, s[52:55], s29 offen")
    for i in range(RPB): e("s_barrier")
    e("s_waitcnt vmcnt(0)")
    for i in range(27):
        e(f"buffer_store_dwordx4 v[{8+4*i}:{11+4*i}], v2, s[56:59], s28 offen offset:{(i&3)*1024} {STW}")
        if i & 3 == 3: e("s_add_u32 s28, s28, 4096")
    e("s_endpgm")
    e.label("K2_CW")
    e("s_cmp_lt_u32 s3, 8")
    e("s_cselect_b32 s33, s64, 0")
    e("s_cmp_eq_u32 s33, 1")
    e("s_cbranch_scc1 K2_G")
    srd_off(e, 20, 12, 13, WS_KVT, SZ_SD)
    srd_off(e, 24, 12, 13, WS_T3, SZ_T3)
    q(e, 0, 8)
    e("s_and_b32 s39, s3, 3")
    e("s_lshr_b32 s38, s3, 2")
    e("s_cmp_eq_u32 s64, 1")
    e("s_cselect_b32 s38, 0, s38")
    e("s_mul_i32 s33, s38, 40")
    e("s_add_u32 s65, s65, s33")
    e("s_add_u32 s69, s69, s33")
    e(f"s_mul_i32 s33, s38, {CV_SZ}")
    e("s_add_u32 s66, s66, s33")
    e("s_lshr_b32 s38, s39, 1")
    e("s_min_u32 s68, s69, 639")
    e("s_lshr_b32 s28, s65, 1")
    e("s_lshl_b32 s28, s28, 2")
    e("s_load_dword s70, s[6:7], s28")
    e("s_lshr_b32 s28, s68, 1")
    e("s_lshl_b32 s28, s28, 2")
    e("s_load_dword s71, s[6:7], s28")
    e("s_lshl_b32 s32, s65, 12")
    e("s_lshl_b32 s33, s68, 12")
    e("v_lshl_add_u32 v16, s39, 6, v1")
    e("v_lshlrev_b32 v12, 4, v16")
    e("buffer_load_dwordx4 v[104:107], v12, s[16:19], s32 offen")
    e("buffer_load_dwordx2 v[108:109], v12, s[16:19], s32 offen offset:16")
    e("buffer_load_dwordx4 v[4:7], v12, s[20:23], s32 offen")
    e("buffer_load_dwordx4 v[120:123], v12, s[16:19], s33 offen")
    e("buffer_load_dwordx2 v[124:125], v12, s[16:19], s33 offen offset:16")
    e("buffer_load_dwordx4 v[112:115], v12, s[20:23], s33 offen")
    e(f"s_add_u32 s34, s66, {CP_OFF + 128}")
    e("v_add_u32 v117, s34, v12")
    for i in range(4):
        e(f"v_mov_b32 v{28+i}, 0")
    e("v_lshrrev_b32 v21, 3, v1")
    e(f"v_mul_u32_u24 v20, {COPY}, v21")
    e("v_and_b32 v21, 7, v1")
    e("v_lshl_add_u32 v20, v21, 4, v20")
    e(f"s_add_u32 s34, s66, {CP_OFF}")
    e("v_add_u32 v20, s34, v20")
    e("v_and_b32 v22, 15, v1")
    e("v_bfe_u32 v21, v1, 4, 1")
    e(f"v_mul_u32_u24 v21, {KVSZ}, v21")
    e("v_lshl_add_u32 v21, v22, 4, v21")
    e("v_add_u32 v21, s66, v21")
    e("v_cmp_gt_u32 vcc, 9, v22")
    e("s_mov_b32 vcc_hi, 0")
    e("s_cmp_eq_u32 s39, 0")
    e("s_cbranch_scc0 CF_0")
    e("ds_write_b128 v20, v[28:31]")
    e("s_and_saveexec_b64 s[36:37], vcc")
    e("ds_write_b128 v21, v[28:31]")
    e("s_mov_b64 exec, s[36:37]")
    e.label("CF_0")
    e("v_lshrrev_b32 v118, 3, v16")
    e("v_mul_u32_u24 v118, 144, v118")
    e("v_and_b32 v26, 7, v16")
    e("v_lshl_add_u32 v118, v26, 4, v118")
    e("s_add_u32 s34, s66, 144")
    e("v_add_u32 v118, s34, v118")
    e("v_and_b32 v40, 15, v1")
    e("v_lshrrev_b32 v41, 4, v1")
    e("v_add_u32 v16, 1, v40")
    e("v_and_b32 v16, 3, v16")
    e(f"v_mul_u32_u24 v8, {COPY - 2}, v16")
    e("v_lshl_add_u32 v8, v40, 1, v8")
    e("v_lshlrev_b32 v17, 4, v41")
    e("v_sub_u32 v8, v8, v17")
    e("s_lshl_b32 s41, s38, 10")
    e("s_and_b32 s42, s39, 1")
    e("s_lshl_b32 s42, s42, 5")
    e("s_add_u32 s42, s42, s41")
    e("s_add_u32 s42, s42, s66")
    e(f"s_add_u32 s42, s42, {CP_OFF + 2*(64-7) - 64}")
    e("v_add_u32 v8, s42, v8")
    e("v_add_u32 v9, 2048, v8")
    e("v_mul_u32_u24 v10, 144, v40")
    e("v_lshlrev_b32 v11, 4, v41")
    e("v_add_u32 v11, s66, v11")
    e("v_add_u32 v10, v10, v11")
    e("s_mul_i32 s43, s38, 1152")
    e("s_sub_u32 s43, 144, s43")
    e("v_add_u32 v10, s43, v10")
    e("s_mul_i32 s44, s2, 12")
    e("s_add_u32 s44, s44, s3")
    e("s_xor_b32 s45, s44, 2")
    e("s_lshl_b32 s44, s44, 12")
    e("s_lshl_b32 s45, s45, 12")
    e("v_add_u32 v14, s44, v2")
    e("v_add_u32 v15, s45, v2")
    e("v_mul_u32_u24 v13, 144, v40")
    e("v_lshrrev_b32 v42, 1, v41")
    e("v_lshl_add_u32 v13, v42, 4, v13")
    e("v_and_b32 v42, 1, v41")
    e("v_lshlrev_b32 v42, 3, v42")
    e("v_xor_b32 v42, 8, v42")
    e("v_add_u32 v13, v13, v42")
    e("s_lshl_b32 s46, s39, 5")
    e("s_add_u32 s47, s46, s66")
    e("s_add_u32 s47, s47, 144")
    e("v_add_u32 v13, s47, v13")
    e("v_mul_u32_u24 v2, 81920, v40")
    e("v_lshl_add_u32 v2, v41, 3, v2")
    e("v_add_u32 v2, s46, v2")
    e("s_waitcnt vmcnt(4)")
    write_copies(e, 104, "CF_1", 0)
    e("s_waitcnt vmcnt(3)")
    e("ds_write_b128 v118, v[4:7]")
    e("s_waitcnt vmcnt(1)")
    write_copies(e, 120, "CF_2", 4*COPY)
    e("s_waitcnt vmcnt(0)")
    e(f"ds_write_b128 v118, v[112:115] offset:{KVSZ}")
    e("s_waitcnt lgkmcnt(0)")
    srd_off(e, 60, 12, 13, WS_XCH, 256*12*4096)
    q(e, 5, 8)
    conv_main(e)
    q(e, 11, 8)
    if PROF2 or TRACE: e("s_waitcnt vmcnt(0)")
    q(e, 7, 8)
    qdump(e, 12, 8)
    p4dump(e, "P4_C")
    trace_end(e, 0, 512)
    e("s_endpgm")
    e.label("K2_G")
    q(e, 0)
    srd_off(e, 60, 12, 13, WS_H, SZ_H)
    e("s_lshr_b32 s47, s3, 1")
    e("s_and_b32 s48, s3, 1")
    e("v_and_b32 v4, 31, v1")
    e("v_lshrrev_b32 v3, 5, v1")
    e("s_lshl_b32 s49, s47, 6")
    e("v_add_u32 v4, s49, v4")
    e("v_lshrrev_b32 v7, 2, v4")
    e("v_and_b32 v5, 3, v4")
    e("v_lshl_add_u32 v5, v5, 2, v3")
    e("v_and_b32 v6, 3, v7")
    e("v_xor_b32 v5, v5, v6")
    e("v_lshlrev_b32 v5, 4, v5")
    e("v_lshl_add_u32 v12, v7, 8, v5")
    e("v_xor_b32 v13, 32, v12")
    e("v_lshrrev_b32 v8, 4, v1")
    e("v_bfe_u32 v3, v1, 2, 2")
    e("v_and_b32 v4, 3, v1")
    e("v_lshrrev_b32 v5, 1, v8")
    e("v_lshl_add_u32 v5, v5, 3, v3")
    e("v_lshlrev_b32 v5, 7, v5")
    e("v_and_b32 v6, 1, v8")
    e("v_lshlrev_b32 v6, 1, v6")
    e("v_lshrrev_b32 v7, 1, v4")
    e("v_add_u32 v6, v6, v7")
    e("s_lshl_b32 s49, s48, 2")
    e("v_add_u32 v6, s49, v6")
    e("v_bfe_u32 v7, v3, 1, 1")
    e("v_lshlrev_b32 v7, 2, v7")
    e("v_xor_b32 v6, v6, v7")
    e("v_lshl_add_u32 v5, v6, 4, v5")
    e("v_and_b32 v7, 1, v4")
    e("v_lshl_add_u32 v5, v7, 3, v5")
    e("v_add_u32 v14, 16384, v5")
    G0, U0 = 64, 96
    for i in range(64):
        e(f"v_mov_b32 v{64+i}, 0")
    e("v_add_u32 v9, 0x10000, v12")
    e("v_add_u32 v10, 0x10000, v13")
    e("v_add_u32 v11, 0x10000, v14")
    def frag_ops(g):
        if "nofr" in X2: return []
        t = g >> 1; ks = g & 1; fb = 16 + 16*(g % 3)
        sb = (t % NS)*STG
        hi64 = sb >= 65536
        if hi64: sb -= 65536
        xa = (9 if hi64 else 12) + ks; wa = 11 if hi64 else 14
        r = []
        for mat in range(2):
            for hi in range(2):
                rr = fb + 8 + 4*mat + 2*hi
                r.append(f"ds_read_b64_tr_b16 v[{rr}:{rr+1}], v{wa} offset:{sb + mat*4096 + ks*2048 + hi*512}")
        for mi in range(2):
            r.append(f"ds_read_b128 v[{fb+4*mi}:{fb+4*mi+3}], v{xa} offset:{sb + mi*2048}")
        return r
    def frag_loads(g):
        for x in frag_ops(g): e(x)
    def mf(g, ops):
        fb = 16 + 16*(g % 3)
        ms = []
        for mi in range(2):
            x = fb+4*mi
            ms.append(f"v_mfma_f32_32x32x16_bf16 v[{G0+16*mi}:{G0+16*mi+15}], v[{fb+8}:{fb+11}], v[{x}:{x+3}], v[{G0+16*mi}:{G0+16*mi+15}]")
            ms.append(f"v_mfma_f32_32x32x16_bf16 v[{U0+16*mi}:{U0+16*mi+15}], v[{fb+12}:{fb+15}], v[{x}:{x+3}], v[{U0+16*mi}:{U0+16*mi+15}]")
        grp = [ops[0:2], ops[2:4], ops[4:5], ops[5:6]]
        for i in range(4):
            e(ms[i])
            for x in grp[i]: e(x)
    e("v_lshrrev_b32 v3, 5, v1")
    e("v_and_b32 v4, 31, v1")
    e("v_lshlrev_b32 v4, 4, v4")
    e("v_lshl_add_u32 v4, v3, 10, v4")
    e("s_lshl_b32 s46, s77, 2")
    e("s_add_u32 s46, s46, s47")
    e(f"s_mul_i32 s46, s46, {27*8192}")
    e("s_lshl_b32 s49, s76, 13")
    e("s_add_u32 s46, s46, s49")
    e("s_lshl_b32 s49, s48, 12")
    e("s_add_u32 s46, s46, s49")
    q(e, 1)
    e("s_barrier")
    q(e, 2)
    frag_loads(0); frag_loads(1)
    for g in range(2*NT):
        ops = []
        if g + 2 < 2*NT:
            if g & 1 == 0: bar(e, (g+2)//2)
            ops = frag_ops(g+2)
        e(f"s_waitcnt lgkmcnt({6*min(1, 2*NT-1-g)})")
        mf(g, ops)
    q(e, 3)
    gb = NT
    if C1_E >= gb: e("s_barrier"); gb += 1
    e("s_nop 15")
    for mi in range(2):
        for pi in range(2):
            o = 16 + 4*(2*mi+pi)
            for ii in range(2):
                i = 2*pi + ii
                g = G0+16*mi+4*i; u = U0+16*mi+4*i
                for pr in range(2):
                    e(f"v_cvt_pk_bf16_f32 v40, v{g+2*pr}, v{g+2*pr+1}")
                    e(f"v_cvt_pk_bf16_f32 v41, v{u+2*pr}, v{u+2*pr+1}")
                    e("v_lshlrev_b32 v42, 16, v40")
                    e("v_and_b32 v43, 0xffff0000, v40")
                    e("v_lshlrev_b32 v44, 16, v41")
                    e("v_and_b32 v45, 0xffff0000, v41")
                    e("v_mul_f32 v42, v42, v44")
                    e("v_mul_f32 v43, v43, v45")
                    e(f"v_cvt_pk_bf16_f32 v{o+2*ii+pr}, v42, v43")
            e("s_nop 1")
            e(f"v_permlane32_swap_b32 v{o}, v{o+2}")
            e(f"v_permlane32_swap_b32 v{o+1}, v{o+3}")
            e("s_nop 1")
            e(f"buffer_store_dwordx4 v[{o}:{o+3}], v4, s[60:63], s46 offen offset:{pi*2048 + mi*512} {ST2H}")
    while C1_E >= gb:
        e("s_barrier"); gb += 1
    q(e, 4)
    if PROF2 or TRACE: e("s_waitcnt vmcnt(0)")
    q(e, 7)
    qdump(e, 12)
    p4dump(e, "P4_G")
    trace_end(e, 1)
    e.label("K2_END")
    e("s_endpgm")
    return e.text()


N_G2 = 256
K3_NS = int(os.environ.get("K3NS", "7"))
K3_STG = 18432
K3_X0 = K3_STG*K3_NS
K3_LDS = K3_X0 + 2*10240
K3_XB = 12
K3_XI = int(os.environ.get('K3XI', '0'))
K3_D = int(os.environ.get('K3D', '1'))
PROF5 = os.environ.get("PROF5")
def k3():
    e = E()
    NS = K3_NS; NT = 27; STG = K3_STG
    Y2_L = K3_X0; X_L = K3_X0 + 10240; XN_L = K3_X0 + 20480
    e(f"s_cmp_ge_u32 s2, {N_G2}")
    e("s_cbranch_scc1 K3_END")
    code_touch(e, "k3", 256, "K3_END")
    trace_start(e)
    for i in range(int(os.environ.get("K3NOP", "0"))): e("s_nop 0")
    e("s_load_dwordx2 s[4:5], s[0:1], 0")
    e("s_load_dwordx2 s[10:11], s[0:1], 80")
    e("s_load_dwordx2 s[12:13], s[0:1], 96")
    e("v_lshrrev_b32 v1, 6, v0")
    e("s_nop 0")
    e("v_readfirstlane_b32 s3, v1")
    if "mapc" in X3:
        e("s_and_b32 s15, s2, 3")
        e("s_lshl_b32 s15, s15, 3")
        e("s_lshr_b32 s28, s2, 3")
        e("s_and_b32 s29, s28, 7")
        e("s_add_u32 s15, s15, s29")
        e("s_lshr_b32 s28, s28, 3")
        e("s_and_b32 s29, s2, 4")
        e("s_add_u32 s28, s28, s29")
    else:
        e("s_and_b32 s15, s2, 7")
        e("s_lshl_b32 s15, s15, 2")
        e("s_lshr_b32 s28, s2, 3")
        e("s_and_b32 s29, s28, 3")
        e("s_add_u32 s15, s15, s29")
        e("s_lshr_b32 s28, s28, 2")
    e("s_lshl_b32 s36, s15, 6")
    e("s_mul_i32 s39, s28, 160")
    e("v_and_b32 v1, 63, v0")
    e("s_waitcnt lgkmcnt(0)")
    e("s_cmp_lt_u32 s3, 4")
    e("s_cbranch_scc1 K3_COMP")
    e("s_sub_u32 s3, s3, 4")
    e("v_lshlrev_b32 v2, 4, v1")
    e("s_cmp_ge_u32 s3, 2")
    e("s_cbranch_scc1 K3_XL")
    srd_off(e, 16, 12, 13, WS_H, SZ_H)
    srd_off(e, 20, 12, 13, WS_WP2, D*F*2)
    e("v_lshlrev_b32 v2, 4, v1")
    e("s_lshl_b32 s40, s3, 12")
    e("s_mul_i32 s41, s3, 5120")
    e(f"s_mul_i32 s42, s15, {0 if 'hotA' in X3 else 27*8192}")
    e("s_add_u32 s42, s42, s40")
    e(f"s_mul_i32 s43, s28, {0 if 'hotW' in X3 else 1728*160}")
    e("s_add_u32 s43, s43, s41")
    e("s_add_u32 s41, s41, 8192")
    vq = VQ(e)
    def lst():
        if PROF5:
            e("s_memtime s[88:89]")
            e("s_waitcnt lgkmcnt(0)")
            e("v_cmp_eq_u32 vcc, s81, v1")
            e("v_mov_b32 v21, s88")
            e("v_cndmask_b32 v20, v20, v21, vcc")
            e("s_add_u32 s81, s81, 1")
    e("s_mov_b32 s81, 0")
    lst()
    def dma(t):
        sb = (t % NS)*STG
        e(f"s_add_u32 m0, s40, {sb}")
        e("s_add_u32 s46, s43, 4096")
        for i in range(4):
            e(f"buffer_load_dwordx4 v2, s[16:19], s42 offen offset:{i*1024} lds")
        e(f"s_add_u32 m0, s41, {sb}")
        e("s_add_u32 s42, s42, 8192")
        for i in range(4):
            e(f"buffer_load_dwordx4 v2, s[20:23], s43 offen offset:{i*1024} lds")
        e(f"s_add_u32 m0, s41, {sb + 4096}")
        e("s_add_u32 s43, s43, 10240")
        e(f"buffer_load_dwordx4 v2, s[20:23], s46 offen lds")
        vq.issue(("g", t), 9)
    def extras():
        srd_off(e, 24, 12, 13, WS_T3, SZ_T3)
        srd(e, 52, 4, 5, SZ_SD)
        e("s_lshl_b32 s47, s15, 3")
        e("s_add_u32 s47, s47, s28")
        e(f"s_mul_i32 s47, s47, {0 if 'hotX' in X3 else 10240}")
        e("s_mul_i32 s49, s3, 5120")
        e("s_add_u32 s47, s47, s49")
        e("s_add_u32 s48, s47, 4096")
        e(f"s_add_u32 m0, s49, {Y2_L}")
        e("s_nop 0")
        for i in range(4):
            e(f"buffer_load_dwordx4 v2, s[24:27], s47 offen offset:{i*1024} lds")
        e(f"s_add_u32 m0, s49, {Y2_L + 4096}")
        e("s_nop 0")
        e(f"buffer_load_dwordx4 v2, s[24:27], s48 offen lds")
        for i in range(5):
            e(f"v_add_u32 v3, {64*i}, v1")
            e("v_mul_u32_u24 v4, 6554, v3")
            e("v_lshrrev_b32 v4, 16, v4")
            e("v_mul_u32_u24 v5, 10, v4")
            e("v_sub_u32 v5, v3, v5")
            e("v_mul_u32_u24 v4, 1280, v4")
            e(f"v_lshl_add_u32 v{10+i}, v5, 4, v4")
        e("s_lshl_b32 s48, s3, 5")
        e("s_add_u32 s48, s48, s36")
        e("s_mul_i32 s48, s48, 1280")
        e("s_add_u32 s48, s48, s39")
        for i in range(5):
            e(f"s_add_u32 m0, s49, {X_L + i*1024}")
            e("s_nop 0")
            e(f"buffer_load_dwordx4 v{10+i}, s[52:55], s48 offen lds")
    nxt = 0
    DD = K3_D + 1
    for b in range(NT):
        lim = NS - 1 if b < DD else b - 1 - DD + NS
        lim = min(lim, 2*b + 1, NT - 1)
        while nxt <= lim:
            dma(nxt); nxt += 1
        vq.wait([("g", b)])
        e("s_barrier")
        lst()
    if PROF5:
        e("s_load_dwordx2 s[84:85], s[0:1], 88")
        e("s_waitcnt lgkmcnt(0)")
        e("s_mov_b32 s86, 256")
        e("s_mov_b32 s87, 0x00020000")
        e(f"s_cmp_lg_u32 s2, {PROF5}")
        e("s_cbranch_scc1 K3_END")
        e("s_cmp_lg_u32 s3, 0")
        e("s_cbranch_scc1 K3_END")
        e("v_lshlrev_b32 v120, 2, v1")
        e("buffer_store_dword v20, v120, s[84:87], 0 offen")
    e("s_endpgm")
    e.label("K3_XL")
    e("s_sub_u32 s3, s3, 2")
    for b in range(K3_XB + 1):
        if b == K3_XI: extras()
        if b == K3_XB: e("s_waitcnt vmcnt(0)")
        e("s_barrier")
    e("s_endpgm")
    e.label("K3_COMP")
    srd(e, 32, 10, 11, SZ_SD)
    e("v_and_b32 v20, 15, v1")
    e("v_lshrrev_b32 v21, 4, v1")
    e("v_and_b32 v22, 1, v21")
    e("s_lshl_b32 s49, s3, 4")
    e("v_add_u32 v23, s49, v20")
    e("v_mul_u32_u24 v2, 160, v23")
    e("v_lshl_add_u32 v2, v21, 3, v2")
    e(f"v_add_u32 v2, {X_L}, v2")
    e("v_add_u32 v24, s36, v23")
    srd_off(e, 40, 12, 13, WS_XN, S*8)
    e("v_lshlrev_b32 v25, 3, v24")
    e("buffer_load_dwordx2 v[14:15], v25, s[40:43], 0 offen")
    e("v_mul_u32_u24 v24, 1280, v24")
    e("v_lshl_add_u32 v24, v21, 3, v24")
    e("v_add_u32 v3, s39, v24")
    e("v_lshlrev_b32 v24, 10, v21")
    e("v_lshl_add_u32 v24, v23, 4, v24")
    e("v_lshl_add_u32 v4, v22, 3, v24")
    e("v_xor_b32 v5, 8, v4")
    e("v_bfe_u32 v24, v1, 2, 2")
    e("v_lshl_add_u32 v24, v21, 3, v24")
    e("v_lshl_add_u32 v25, v22, 2, v24")
    e("v_xor_b32 v26, 1, v22")
    e("v_lshl_add_u32 v26, v26, 2, v24")
    e("v_and_b32 v24, 3, v1")
    e("v_lshlrev_b32 v24, 3, v24")
    e("v_add_u32 v24, 8192, v24")
    e("s_movk_i32 s49, 160")
    e("v_mad_u32_u24 v6, v25, s49, v24")
    e("v_mad_u32_u24 v7, v26, s49, v24")
    for k in range(4):
        e(f"v_add_u32 v{8+k}, {4*STG}, v{4+k}")
    e("v_lshrrev_b32 v12, 2, v1")
    e("v_lshlrev_b32 v12, 7, v12")
    e("v_and_b32 v24, 3, v1")
    e("v_lshl_add_u32 v12, v24, 3, v12")
    e("s_lshl_b32 s49, s3, 5")
    e(f"s_add_u32 s49, s49, {Y2_L}")
    e("v_add_u32 v12, s49, v12")
    ACC = 16; XR, XNR, YR = 36, 46, 56; T = 66; FB = 72
    lq = []
    def wait(tags):
        idx = max((i for i, t in enumerate(lq) if t in tags), default=-1)
        if idx >= 0: e(f"s_waitcnt lgkmcnt({min(len(lq) - 1 - idx, 15)})")
    def put(it):
        if it[0] is None: wait(it[1]); return
        e(it[0])
        if it[1] is not None: lq.append(it[1])
    def frag_ops(t):
        fb = FB + 48*(t % (K3_D+1))
        sl = t % NS
        ab = 4 if sl < 4 else 8
        sb = (sl if sl < 4 else sl - 4)*STG
        r = []
        for kk in range(2):
            for hf in range(2):
                rr = fb + 4*kk + 2*hf
                r.append((f"ds_read_b64 v[{rr}:{rr+1}], v{ab+hf} offset:{sb + kk*4096}", ("f", t, kk)))
            for tt in range(5):
                for hf in range(2):
                    rr = fb + 8 + 20*kk + 4*tt + 2*hf
                    r.append((f"ds_read_b64_tr_b16 v[{rr}:{rr+1}], v{ab+2+hf} offset:{sb + kk*5120 + 32*tt}", ("f", t, kk)))
        return r
    xl = []
    for tt in range(5):
        xl.append((f"ds_read_b64_tr_b16 v[{YR+2*tt}:{YR+2*tt+1}], v12 offset:{2048*tt}", "x"))
        xl.append((f"ds_read_b64 v[{XR+2*tt}:{XR+2*tt+1}], v2 offset:{32*tt}", "x"))
    def amath(i):
        r = [f"v_lshlrev_b32 v{T}, 16, v{XR+i}", f"v_and_b32 v{T+1}, 0xffff0000, v{XR+i}",
             f"v_sub_f32 v{T+2}, v{T}, v14", f"v_sub_f32 v{T+3}, v{T+1}, v14",
             f"v_cvt_pk_bf16_f32 v{T+4}, v{T+2}, v{T+3}",
             f"v_lshlrev_b32 v{T+2}, 16, v{T+4}", f"v_and_b32 v{T+3}, 0xffff0000, v{T+4}",
             f"v_mul_f32 v{T+4}, v{T+2}, v13", f"v_mul_f32 v{T+5}, v{T+3}, v13",
             f"v_fma_f32 v{T+2}, -v{T+4}, v15, v{T+2}", f"v_fma_f32 v{T+3}, -v{T+5}, v15, v{T+3}",
             f"v_fmac_f32 v{T+4}, v{T+2}, v13", f"v_fmac_f32 v{T+5}, v{T+3}, v13",
             f"v_cvt_pk_bf16_f32 v{T+4}, v{T+4}, v{T+5}",
             f"v_lshlrev_b32 v{T+2}, 16, v{T+4}", f"v_and_b32 v{T+3}, 0xffff0000, v{T+4}",
             f"v_lshlrev_b32 v{T+4}, 16, v{YR+i}", f"v_and_b32 v{T+5}, 0xffff0000, v{YR+i}",
             f"v_mul_f32 v{T+2}, v{T+2}, v{T+4}", f"v_mul_f32 v{T+3}, v{T+3}, v{T+5}",
             f"v_cvt_pk_bf16_f32 v{T+4}, v{T+2}, v{T+3}",
             f"v_lshlrev_b32 v{T+2}, 16, v{T+4}", f"v_and_b32 v{T+3}, 0xffff0000, v{T+4}",
             f"v_add_f32 v{T}, v{T}, v{T+2}", f"v_add_f32 v{T+1}, v{T+1}, v{T+3}",
             f"v_cvt_pk_bf16_f32 v{T+4}, v{T}, v{T+1}",
             f"v_lshlrev_b32 v{XR+i}, 16, v{T+4}", f"v_and_b32 v{XNR+i}, 0xffff0000, v{T+4}"]
        return [(x, None) for x in r]
    extra = {t: [] for t in range(NT)}
    tx = K3_XB - K3_D
    extra[tx] = xl
    extra[tx + 1] = [("s_waitcnt vmcnt(0)\nv_rcp_f32 v13, v15", None)]
    extra[tx + 2] = [(None, ["x"])]
    for i in range(10):
        extra[tx + 2 + i] += amath(i)
    for t in range(K3_D):
        e("s_barrier")
        for it in frag_ops(t): put(it)
    for t in range(NT):
        ops = []
        if t + K3_D < NT:
            e("s_barrier")
            ops = frag_ops(t+K3_D)
        ex = list(extra[t])
        fb = FB + 48*(t % (K3_D+1))
        for kk in range(2):
            wait([("f", t, kk)])
            for tt in range(5):
                a = ACC + 4*tt
                w = fb + 8 + 20*kk + 4*tt; h = fb + 4*kk
                c = "0" if (t == 0 and kk == 0) else f"v[{a}:{a+3}]"
                e(f"v_mfma_f32_16x16x32_bf16 v[{a}:{a+3}], v[{w}:{w+3}], v[{h}:{h+3}], {c}")
                left = 10 - (5*kk + tt)
                no = (len(ops) + left - 1)//left
                for it in ops[:no]: put(it)
                ops = ops[no:]
                ne = (len(ex) + left - 1)//left
                for it in ex[:ne]: put(it)
                ex = ex[ne:]
    e("s_nop 7")
    for tt in range(5):
        a = ACC + 4*tt
        for pr in range(2):
            i = 2*tt + pr
            e(f"v_cvt_pk_bf16_f32 v{T}, v{a+2*pr}, v{a+2*pr+1}")
            e(f"v_lshlrev_b32 v{T+1}, 16, v{T}")
            e(f"v_and_b32 v{T+2}, 0xffff0000, v{T}")
            e(f"v_add_f32 v{T+1}, v{XR+i}, v{T+1}")
            e(f"v_add_f32 v{T+2}, v{XNR+i}, v{T+2}")
            e(f"v_cvt_pk_bf16_f32 v{YR+i}, v{T+1}, v{T+2}")
        e(f"buffer_store_dwordx2 v[{YR+2*tt}:{YR+2*tt+1}], v3, s[32:35], 0 offen offset:{32*tt} {ST3}")
    trace_end(e, 2)
    e.label("K3_END")
    e("s_endpgm")
    return e.text()

def build(kernels):
    out = []
    out.append(open("cdna_kernels/%s.s.ref" % NAME).read().split("; Override launch")[0])
    for (name, grid, block, lds, body, vgpr) in kernels:
        out.append(f"; @launch kernel={name} grid=({grid},1,1) block=({block},1,1) lds={lds}\n")
    out.append('.amdgcn_target "amdgcn-amd-amdhsa--gfx950"\n.text\n')
    for (name, grid, block, lds, body, vgpr) in kernels:
        out.append(khead(name))
        out.append(body)
    out.append('.section .rodata,"a"\n')
    for (name, grid, block, lds, body, vgpr) in kernels:
        out.append(".p2align 6\n")
        out.append(kdesc(name, vgpr))
    return "".join(out)

if __name__ == "__main__":
    ks = [("prep_kernel", N_K1, 512, K1_LDS, k1(), 128),
          ("mid_kernel", N_K2, 896, K2_LDS, k2(), 128),
          ("fin_kernel", N_G2, 512, K3_LDS, k3(), 72 + 48*(K3_D+1))]
    open(sys.argv[1] if len(sys.argv) > 1 else "cdna_kernels/%s.s" % NAME, "w").write(build(ks))
```

```python
import sys
NAME = "parallel_sum__ssm_conv_h3__glu_gated_bilinear__prompt"
S, D, F = 2048, 640, 1728
WS_XN  = 0
WS_KVT = 0x280000
WS_H   = 0x500000
WS_Y2T = 0xC00000
WS_XNP = 0xF00000
WS_WP1 = 0x1200000
WS_WP2 = 0x1700000
WS_XCH = 0x1A00000
WS_XP = 0x2800000
WS_T3 = 0x2800000
SZ_T3 = 256*10240
SZ_SD = S*D*2
SZ_H = S*F*2

class E:
    def __init__(self):
        self.l = []
    def __call__(self, s):
        for line in s.strip("\n").split("\n"):
            self.l.append("    " + line.strip() if not line.strip().endswith(":") else line.strip())
    def label(self, n):
        self.l.append(n + ":")
    def text(self):
        return "\n".join(self.l) + "\n"

def srd(e, d, blo, bhi, nbytes):
    e(f"s_mov_b32 s{d}, s{blo}")
    e(f"s_mov_b32 s{d+1}, s{bhi}")
    e(f"s_mov_b32 s{d+2}, {nbytes}")
    e(f"s_mov_b32 s{d+3}, 0x00020000")

def srd_off(e, d, blo, bhi, off, nbytes):
    e(f"s_add_u32 s{d}, s{blo}, {off}")
    e(f"s_addc_u32 s{d+1}, s{bhi}, 0")
    e(f"s_mov_b32 s{d+2}, {nbytes}")
    e(f"s_mov_b32 s{d+3}, 0x00020000")

def kdesc(name, vgpr, sgpr=102):
    acc = (vgpr + 3)//4*4
    return f""".amdhsa_kernel {name}
  .amdhsa_next_free_vgpr {vgpr}
  .amdhsa_next_free_sgpr {sgpr}
  .amdhsa_accum_offset {acc}
  .amdhsa_group_segment_fixed_size 0
  .amdhsa_kernarg_size 104
  .amdhsa_user_sgpr_count 2
  .amdhsa_user_sgpr_kernarg_segment_ptr 1
  .amdhsa_system_sgpr_workgroup_id_x 1
.end_amdhsa_kernel
"""

import os
STAMP = os.environ.get("STAMP")
X3 = os.environ.get("X3", "").split(",")
X2 = os.environ.get("X2", "").split(",")
ST1 = os.environ.get("ST1", "sc1")
ST2H = os.environ.get("ST2H", "sc1")
ST2Y = os.environ.get("ST2Y", "")
ST3 = os.environ.get("ST3", "")
STW = os.environ.get("STW", "sc1")
STX = os.environ.get("STX", "sc1,").split(",")
XOFF = int(os.environ.get("XOFF", "2048"))
def stamp(e, idx):
    if not STAMP: return
    e(f"s_memtime s[88:89]")
    e("s_waitcnt lgkmcnt(0)")
    e(f"s_mov_b32 s{90+idx}, s88")
def stamp_dump(e, n, wg):
    if not STAMP: return
    e("s_load_dwordx2 s[84:85], s[0:1], 88")
    e("s_waitcnt lgkmcnt(0)")
    e("s_mov_b32 s86, 256")
    e("s_mov_b32 s87, 0x00020000")
    e(f"s_cmp_lg_u32 s2, {wg}")
    e("s_cbranch_scc1 9f")
    e("s_cmp_lg_u32 s3, 0")
    e("s_cbranch_scc1 9f")
    e("v_mov_b32 v120, 0")
    for i in range(1, n):
        e(f"s_sub_u32 s83, s{90+i}, s90")
        e("v_mov_b32 v121, s83")
        e(f"buffer_store_dword v121, v120, s[84:87], 0 offen offset:{4*i}")
    e("9:")

TRACE = os.environ.get("TRACE")
def trace_start(e):
    if not TRACE: return
    e("s_memrealtime s[96:97]")
    e("s_memtime s[98:99]")
    e("s_mov_b32 s82, s2")
def trace_end(e, kidx, tid=0):
    if not TRACE: return
    e("s_waitcnt vmcnt(0) lgkmcnt(0)")
    e("s_memrealtime s[92:93]")
    e("s_memtime s[94:95]")
    e("s_load_dwordx2 s[84:85], s[0:1], 96")
    e("s_getreg_b32 s90, hwreg(HW_REG_HW_ID)")
    e("s_getreg_b32 s91, hwreg(HW_REG_XCC_ID)")
    e("s_waitcnt lgkmcnt(0)")
    e(f"s_add_u32 s84, s84, {(64<<20) + kidx*65536}")
    e("s_addc_u32 s85, s85, 0")
    e("s_mov_b32 s86, 65536")
    e("s_mov_b32 s87, 0x00020000")
    e("s_lshl_b32 s91, s91, 24")
    e("s_and_b32 s90, s90, 0xffffff")
    e("s_or_b32 s90, s90, s91")
    e("s_sub_u32 s94, s94, s98")
    e("v_mov_b32 v124, s96")
    e("v_mov_b32 v125, s92")
    e("v_mov_b32 v126, s90")
    e("v_mov_b32 v127, s94")
    e("s_lshl_b32 s83, s82, 4")
    e("v_mov_b32 v121, s83")
    e(f"v_cmp_eq_u32 vcc, {tid}, v0")
    e("s_and_saveexec_b64 s[80:81], vcc")
    e("s_cbranch_execz 8f")
    e("buffer_store_dwordx4 v[124:127], v121, s[84:87], 0 offen")
    e("s_waitcnt vmcnt(0)")
    e("8:")

PROF = os.environ.get("PROF")
def pt(e, acc):
    if not PROF: return
    e("s_memtime s[88:89]")
    e("s_waitcnt lgkmcnt(0)")
    e("s_sub_u32 s90, s88, s87")
    e(f"s_add_u32 s{acc}, s{acc}, s90")
    e("s_mov_b32 s87, s88")
def pinit(e):
    if not PROF: return
    for i in range(80, 87): e(f"s_mov_b32 s{i}, 0")
    e("s_memtime s[88:89]")
    e("s_waitcnt lgkmcnt(0)")
    e("s_mov_b32 s87, s88")
def pdump(e, wave_off):
    if not PROF: return
    e("s_load_dwordx2 s[92:93], s[0:1], 88")
    e("s_waitcnt lgkmcnt(0)")
    e("s_mov_b32 s94, 256")
    e("s_mov_b32 s95, 0x00020000")
    e(f"s_cmp_lg_u32 s2, {PROF}")
    e("s_cbranch_scc1 7f")
    e("s_cmp_lg_u32 s3, 0")
    e("s_cbranch_scc1 7f")
    e("v_mov_b32 v120, 0")
    for i in range(7):
        e(f"v_mov_b32 v121, s{80+i}")
        e(f"buffer_store_dword v121, v120, s[92:95], 0 offen offset:{wave_off + 4*i}")
    e("s_waitcnt vmcnt(0)")
    e("7:")

PROF2 = os.environ.get("PROF2")
def q(e, idx, wv=0):
    if not PROF2: return
    e("s_memtime s[88:89]")
    e("s_waitcnt lgkmcnt(0)")
    e(f"s_mov_b32 s{90+idx}, s88")
def qdump(e, n, wv=0):
    if not PROF2: return
    e("s_load_dwordx2 s[84:85], s[0:1], 88")
    e("s_waitcnt lgkmcnt(0)")
    e("s_mov_b32 s86, 256")
    e("s_mov_b32 s87, 0x00020000")
    e(f"s_cmp_lg_u32 s2, {PROF2}")
    e("s_cbranch_scc1 6f")
    e(f"s_cmp_lg_u32 s3, {wv}")
    e("s_cbranch_scc1 6f")
    e(f"v_mov_b32 v120, {64 if wv else 0}")
    for i in range(1, n):
        e(f"s_sub_u32 s83, s{90+i}, s90")
        e("v_mov_b32 v121, s83")
        e(f"buffer_store_dword v121, v120, s[84:87], 0 offen offset:{4*i}")
    e("6:")

PROF4 = os.environ.get("PROF4")
P4_REGS = [50,52,54,56,58,72,74,76,78,80,82,84,86]
P4_LO = int(os.environ.get('P4LO', '4'))
def bar(e, b):
    k = b - P4_LO
    if PROF4 and 0 <= k < 6:
        e(f"s_memtime s[{P4_REGS[2*k]}:{P4_REGS[2*k]+1}]")
    e("s_barrier")
    if PROF4 and 0 <= k < 6:
        e(f"s_memtime s[{P4_REGS[2*k+1]}:{P4_REGS[2*k+1]+1}]")
def p4dump(e, lab):
    if not PROF4: return
    e("s_load_dwordx2 s[92:93], s[0:1], 88")
    e("s_waitcnt lgkmcnt(0)")
    e("s_mov_b32 s94, 4096")
    e("s_mov_b32 s95, 0x00020000")
    e(f"s_cmp_lg_u32 s2, {PROF4}")
    e(f"s_cbranch_scc1 {lab}")
    e("v_lshrrev_b32 v120, 6, v0")
    e("v_lshlrev_b32 v120, 6, v120")
    for i in range(12):
        e(f"v_mov_b32 v121, s{P4_REGS[i]}")
        e(f"buffer_store_dword v121, v120, s[92:95], 0 offen offset:{512 + 4*i}")
    e.label(lab)

def code_touch(e, tag, sub, endlab, startlab=None):
    if "noct" in X2: return
    e("s_getpc_b64 s[60:61]")
    e.label(f"CT_{tag}")
    st = f"CT_{tag}"
    if startlab:
        e(f"s_add_u32 s60, s60, {startlab}-CT_{tag}")
        e("s_addc_u32 s61, s61, 0")
        st = startlab
    if sub: e(f"v_subrev_u32 v126, {sub}, v0")
    src = "v126" if sub else "v0"
    e(f"v_cmp_gt_u32 vcc, ({endlab}-{st})/64, {src}")
    e(f"v_lshlrev_b32 v126, 6, {src}")
    e("s_and_saveexec_b64 s[62:63], vcc")
    e("global_load_dword v127, v126, s[60:61]")
    e("s_mov_b64 exec, s[62:63]")

def khead(name):
    return f""".globl {name}
.p2align 8
.type {name},@function
{name}:
"""

N_KV = 160
N_LN = 64
N_TC = 32
TWS = int(os.environ.get("TWS", "6"))
N_K1 = N_KV+N_LN+N_TC
K1_LDS = int(os.environ.get("K1LDS", str(128*144 + 256)))
def k1():
    e = E()
    e(f"s_cmp_ge_u32 s2, {N_K1}")
    e("s_cbranch_scc1 K1_END")
    code_touch(e, "k1", 0, "K1_END")
    trace_start(e)
    e(f"s_cmp_ge_u32 s2, {N_KV+N_LN}")
    e("s_cbranch_scc1 K1_TC")
    e("s_load_dwordx4 s[4:7], s[0:1], 0")
    e("s_load_dwordx4 s[8:11], s[0:1], 16")
    e("s_load_dwordx2 s[12:13], s[0:1], 96")
    e(f"s_cmp_lt_u32 s2, {N_KV}")
    e("s_cbranch_scc1 K1_KV")
    e("v_lshrrev_b32 v1, 8, v0")
    e(f"s_sub_u32 s14, s2, {N_KV}")
    e("v_readfirstlane_b32 s15, v1")
    e("s_lshl_b32 s14, s14, 1")
    e("v_and_b32 v80, 255, v0")
    e("s_add_u32 s14, s14, s15")
    e("s_waitcnt lgkmcnt(0)")
    srd(e, 16, 4, 5, SZ_SD)
    srd_off(e, 20, 12, 13, WS_XN, S*8)
    e("s_lshl_b32 s3, s14, 4")
    e("v_lshrrev_b32 v1, 4, v80")
    e("v_add_u32 v1, s3, v1")
    e("v_mul_u32_u24 v1, 1280, v1")
    e("v_and_b32 v2, 15, v80")
    e("v_lshlrev_b32 v2, 4, v2")
    e("v_add_u32 v1, v1, v2")
    for j in range(5):
        e(f"buffer_load_dwordx4 v[{4+4*j}:{7+4*j}], v1, s[16:19], 0 offen offset:{256*j}")
    e("v_lshrrev_b32 v72, 4, v80")
    e("v_add_u32 v72, s3, v72")
    e("v_lshlrev_b32 v72, 3, v72")
    e("v_and_b32 v73, 15, v80")
    srd_off(e, 28, 12, 13, WS_XNP, SZ_SD)
    e("v_lshrrev_b32 v1, 4, v80")
    e("v_and_b32 v2, 15, v80")
    e("v_lshrrev_b32 v3, 2, v1")
    e("v_and_b32 v74, 3, v1")
    e("v_and_b32 v75, 3, v2")
    e("v_lshl_add_u32 v74, v74, 2, v75")
    e("v_xor_b32 v74, v74, v3")
    e("v_lshlrev_b32 v74, 4, v74")
    e("v_lshl_add_u32 v74, v3, 8, v74")
    e("v_lshrrev_b32 v2, 2, v2")
    e("v_lshl_add_u32 v74, v2, 14, v74")
    e("s_lshr_b32 s25, s14, 4")
    e("s_mul_i32 s25, s25, 327680")
    e("s_and_b32 s26, s14, 15")
    e("s_lshl_b32 s26, s26, 10")
    e("s_add_u32 s25, s25, s26")
    e("s_mov_b32 s24, 0x3acccccd")
    e("v_cmp_eq_u32 vcc, 0, v73")
    for j in range(5):
        e(f"s_waitcnt vmcnt({4-j})")
        for i in range(4*j, 4*j+4):
            e(f"v_lshlrev_b32 v{32+2*i}, 16, v{4+i}")
            e(f"v_and_b32 v{33+2*i}, 0xffff0000, v{4+i}")
        for i in range(4*j, 4*j+4):
            if i == 0: continue
            if i == 1: e("v_pk_add_f32 v[24:25], v[32:33], v[34:35]")
            else: e(f"v_pk_add_f32 v[24:25], v[24:25], v[{32+2*i}:{33+2*i}]")
    e("v_add_f32 v24, v24, v25")
    def red16(r):
        for sh in (8, 4, 2, 1):
            e("s_nop 1")
            e(f"v_add_f32_dpp v{r}, v{r}, v{r} row_ror:{sh} row_mask:0xf bank_mask:0xf")
    red16(24)
    e("v_mul_f32 v24, s24, v24")
    e("v_mov_b32 v25, v24")
    for i in range(20):
        t = 26 + 2*(i & 1)
        e(f"v_pk_add_f32 v[{t}:{t+1}], v[{32+2*i}:{33+2*i}], v[24:25] neg_lo:[0,1] neg_hi:[0,1]")
        if i == 0: e(f"v_pk_mul_f32 v[30:31], v[{t}:{t+1}], v[{t}:{t+1}]")
        else: e(f"v_pk_fma_f32 v[30:31], v[{t}:{t+1}], v[{t}:{t+1}], v[30:31]")
    e("v_add_f32 v25, v30, v31")
    red16(25)
    e("v_mul_f32 v25, s24, v25")
    e("v_cvt_pk_bf16_f32 v26, v24, v25")
    e("v_and_b32 v27, 0xffff0000, v26")
    e("v_lshlrev_b32 v26, 16, v26")
    e("v_add_f32 v27, 0x3727c5ac, v27")
    e("v_cvt_pk_bf16_f32 v27, v27, v27")
    e("v_lshlrev_b32 v27, 16, v27")
    e("v_sqrt_f32 v27, v27")
    e("s_nop 0")
    e("v_cvt_pk_bf16_f32 v27, v27, v27")
    e("v_lshlrev_b32 v27, 16, v27")
    e("v_rcp_f32 v28, v27")
    e("s_and_saveexec_b64 s[36:37], vcc")
    e("buffer_store_dwordx2 v[26:27], v72, s[20:23], 0 offen")
    e("s_mov_b64 exec, s[36:37]")
    e("v_mov_b32 v24, v26")
    e("v_mov_b32 v25, v26")
    e("v_mov_b32 v76, v27")
    e("v_mov_b32 v77, v27")
    e("v_mov_b32 v29, v28")
    for i2 in range(0, 20, 2):
        ops = [[], []]
        for u in range(2):
            i = i2 + u
            a, b = 32+2*i, 33+2*i
            t = 30 if u == 0 else 78
            c = 2 + u
            ops[u] = [f"v_pk_add_f32 v[{a}:{b}], v[{a}:{b}], v[24:25] neg_lo:[0,1] neg_hi:[0,1]",
                      f"v_cvt_pk_bf16_f32 v{c}, v{a}, v{b}",
                      f"v_lshlrev_b32 v{a}, 16, v{c}",
                      f"v_and_b32 v{b}, 0xffff0000, v{c}",
                      f"v_pk_mul_f32 v[{t}:{t+1}], v[{a}:{b}], v[28:29]",
                      f"v_pk_fma_f32 v[{a}:{b}], v[{t}:{t+1}], v[76:77], v[{a}:{b}] neg_lo:[1,0,0] neg_hi:[1,0,0]",
                      f"v_pk_fma_f32 v[{t}:{t+1}], v[{a}:{b}], v[28:29], v[{t}:{t+1}]",
                      f"v_cvt_pk_bf16_f32 v{4+i}, v{t}, v{t+1}"]
        for x, y in zip(ops[0], ops[1]):
            e(x); e(y)
        if i2 & 3 == 2:
            j = i2 >> 2
            e(f"buffer_store_dwordx4 v[{4+4*j}:{7+4*j}], v74, s[28:31], s25 offen {ST1}")
            e("s_add_u32 s25, s25, 65536")
    trace_end(e, 3)
    e("s_endpgm")
    e.label("K1_TC")
    if "noct1" not in X2: code_touch(e, "k1b", 0, "K3_END", "mid_kernel")
    e("s_load_dwordx2 s[4:5], s[0:1], 32")
    e("s_load_dwordx4 s[8:11], s[0:1], 56")
    e(f"s_sub_u32 s3, s2, {N_KV+N_LN}")
    e(f"s_lshl_b32 s6, s3, {9 + TWS}")
    e("s_mul_i32 s3, s3, 81920")
    e("v_lshlrev_b32 v1, 4, v0")
    e(f"v_lshlrev_b32 v2, {TWS}, v0")
    e("s_waitcnt lgkmcnt(0)")
    srd(e, 16, 4, 5, SZ_SD)
    srd(e, 20, 8, 9, D*F*2)
    srd(e, 24, 10, 11, D*F*2)
    if "tw" in X2:
        n = -(-D*F*2 // (16384 << TWS))
        for i in range(n):
            e(f"buffer_load_dword v{50+2*i}, v2, s[20:23], s6 offen")
            e(f"buffer_load_dword v{51+2*i}, v2, s[24:27], s6 offen")
            e(f"s_add_u32 s6, s6, {16384 << TWS}")
    for i in range(10):
        e(f"buffer_load_dwordx4 v[{4+4*i}:{7+4*i}], v1, s[16:19], s3 offen")
        e("s_add_u32 s3, s3, 8192")
    e("s_waitcnt vmcnt(0)")
    for x in os.environ.get("K1SLEEP", "").split(","):
        if x: e(f"s_sleep {x}")
    trace_end(e, 3)
    e("s_endpgm")
    e.label("K1_KV")
    e("s_mul_hi_u32 s14, s2, 0x33333334")
    e("s_mul_i32 s15, s14, 5")
    e("s_sub_u32 s15, s2, s15")
    e("v_and_b32 v1, 15, v0")
    e("v_lshrrev_b32 v2, 4, v0")
    e("s_lshl_b32 s32, s14, 6")
    e("v_lshlrev_b32 v3, 1, v2")
    e("v_add_u32 v3, s32, v3")
    e("v_mul_u32_u24 v4, 1280, v3")
    e("s_lshl_b32 s33, s15, 8")
    e("v_lshlrev_b32 v5, 4, v1")
    e("v_add_u32 v5, s33, v5")
    e("v_add_u32 v4, v4, v5")
    e("v_subrev_u32 v6, 3840, v4")
    e("v_subrev_u32 v10, 2560, v4")
    e("v_subrev_u32 v11, 1280, v4")
    e("v_lshlrev_b32 v7, 2, v5")
    e("s_waitcnt lgkmcnt(0)")
    srd(e, 16, 6, 7, SZ_SD)
    srd(e, 20, 8, 9, SZ_SD)
    srd(e, 24, 10, 11, D*4*2)
    srd_off(e, 28, 12, 13, WS_KVT, SZ_SD)
    for j in range(4):
        e(f"buffer_load_dwordx4 v[{60+4*j}:{63+4*j}], v7, s[24:27], 0 offen offset:{16*j}")
    e("buffer_load_dwordx4 v[16:19], v6, s[16:19], 0 offen")
    e("buffer_load_dwordx4 v[20:23], v10, s[16:19], 0 offen")
    e("buffer_load_dwordx4 v[24:27], v11, s[16:19], 0 offen")
    e("buffer_load_dwordx4 v[28:31], v4, s[16:19], 0 offen")
    e("buffer_load_dwordx4 v[32:35], v4, s[16:19], 0 offen offset:1280")
    for r in range(2):
        e(f"buffer_load_dwordx4 v[{44+4*r}:{47+4*r}], v4, s[20:23], 0 offen offset:{1280*r}")
    e("s_mov_b32 s34, 0x05040100")
    e("s_mov_b32 s35, 0x07060302")
    e("v_mul_u32_u24 v8, 1168, v1")
    e("v_lshrrev_b32 v9, 2, v2")
    e("v_lshl_add_u32 v8, v9, 4, v8")
    e("v_and_b32 v9, 3, v2")
    e("v_xor_b32 v9, 3, v9")
    e("v_lshl_add_u32 v8, v9, 2, v8")
    e("v_lshrrev_b32 v12, 3, v0")
    e("v_and_b32 v13, 7, v0")
    e("v_mul_u32_u24 v14, 144, v12")
    e("v_lshrrev_b32 v15, 3, v12")
    e("v_add_u32 v15, v15, v13")
    e("v_lshl_add_u32 v14, v15, 4, v14")
    e("s_lshl_b32 s33, s15, 7")
    e("v_add_u32 v15, s33, v12")
    e("v_lshlrev_b32 v15, 12, v15")
    e("s_lshl_b32 s32, s14, 7")
    e("v_lshl_add_u32 v15, v13, 4, v15")
    e("s_add_u32 s33, s32, 0x40000")
    e("s_waitcnt vmcnt(7)")
    for p in range(4):
        for h in range(2):
            c = 2*p+h
            e(f"v_lshlrev_b32 v{76+8*p+h}, 16, v{60+2*c}")
            e(f"v_and_b32 v{78+8*p+h}, 0xffff0000, v{60+2*c}")
            e(f"v_lshlrev_b32 v{80+8*p+h}, 16, v{61+2*c}")
            e(f"v_and_b32 v{82+8*p+h}, 0xffff0000, v{61+2*c}")
    e("s_waitcnt vmcnt(0)")
    for p in range(4):
        W = 76 + 8*p
        for r in range(5):
            e(f"v_lshlrev_b32 v{60+2*r}, 16, v{16+4*r+p}")
            e(f"v_and_b32 v{61+2*r}, 0xffff0000, v{16+4*r+p}")
        ch = [[], []]
        for i in range(2):
            A = 108 + 6*i; T = A + 2; C = A + 4
            o = ch[i]
            for t in range(4):
                r = i + t
                w = 3 - t
                o.append(f"v_pk_mul_f32 v[{T}:{T+1}], v[{60+2*r}:{61+2*r}], v[{W+2*w}:{W+2*w+1}]")
                o.append(f"v_cvt_pk_bf16_f32 v{C}, v{T}, v{T+1}")
                if t == 0:
                    o.append(f"v_lshlrev_b32 v{A}, 16, v{C}")
                    o.append(f"v_and_b32 v{A+1}, 0xffff0000, v{C}")
                else:
                    o.append(f"v_lshlrev_b32 v{T}, 16, v{C}")
                    o.append(f"v_and_b32 v{T+1}, 0xffff0000, v{C}")
                    o.append(f"v_pk_add_f32 v[{A}:{A+1}], v[{A}:{A+1}], v[{T}:{T+1}]")
                    o.append(f"v_cvt_pk_bf16_f32 v{C}, v{A}, v{A+1}")
                    o.append(f"v_lshlrev_b32 v{A}, 16, v{C}")
                    o.append(f"v_and_b32 v{A+1}, 0xffff0000, v{C}")
            o.append(f"v_lshlrev_b32 v{T}, 16, v{44+4*i+p}")
            o.append(f"v_and_b32 v{T+1}, 0xffff0000, v{44+4*i+p}")
            o.append(f"v_pk_mul_f32 v[{A}:{A+1}], v[{A}:{A+1}], v[{T}:{T+1}]")
            o.append(f"v_cvt_pk_bf16_f32 v{C}, v{A}, v{A+1}")
        for x, y in zip(ch[0], ch[1]):
            e(x); e(y)
        e("v_perm_b32 v70, v112, v118, s34")
        e(f"ds_write_b32 v8, v70 offset:{(2*p)*144}")
        e("v_perm_b32 v71, v112, v118, s35")
        e(f"ds_write_b32 v8, v71 offset:{(2*p+1)*144}")
    e("s_waitcnt lgkmcnt(0)")
    e("s_barrier")
    e("ds_read_b128 v[16:19], v14")
    e(f"ds_read_b128 v[20:23], v14 offset:{64*144 + 8*16}")
    e("s_waitcnt lgkmcnt(1)")
    e(f"buffer_store_dwordx4 v[16:19], v15, s[28:31], s32 offen {ST1}")
    e("s_waitcnt lgkmcnt(0)")
    e(f"buffer_store_dwordx4 v[20:23], v15, s[28:31], s33 offen {ST1}")
    trace_end(e, 3)
    e.label("K1_END")
    e("s_endpgm")
    return e.text()


N_K2 = 256
COPY = 4288
KVSZ = 33*144
CP_OFF = 2*KVSZ
SC_OFF = CP_OFF + 8*COPY
CV_SZ = SC_OFF
K2_NS = 4
K2_STG = 24576
CV_A = K2_NS*K2_STG
K2_LDS = max(CV_A + CV_SZ, 3*CV_SZ)
PB0 = 1
LB0 = 2
RPB = 6
if os.environ.get("CS"):
    exec(os.environ["CS"])
C1_E = PB0 + 16

class VQ:
    def __init__(self, e): self.q = []; self.e = e
    def issue(self, tag, n): self.q += [tag]*n
    def wait(self, tags):
        idx = max([i for i, t in enumerate(self.q) if t in tags], default=-1)
        if idx < 0: return
        n = len(self.q) - 1 - idx
        self.e(f"s_waitcnt vmcnt({min(n, 63)})")
        self.q = self.q[idx+1:]

def write_copies(e, d, lab, ro):
    e(f"ds_write_b128 v117, v[{d}:{d+3}] offset:{ro}")
    for i in range(4):
        e(f"v_alignbit_b32 v{16+i}, v{d+i+1}, v{d+i}, 16")
    e(f"ds_write_b128 v117, v[16:19] offset:{ro + COPY}")
    for i in range(4):
        e(f"v_mov_b32 v{20+i}, v{d+i+1}")
    e(f"ds_write_b128 v117, v[20:23] offset:{ro + 2*COPY}")
    for i in range(4):
        e(f"v_alignbit_b32 v{24+i}, v{d+i+2}, v{d+i+1}, 16")
    e(f"ds_write_b128 v117, v[24:27] offset:{ro + 3*COPY}")
    e("s_cmp_eq_u32 s39, 0")
    e(f"s_cbranch_scc0 {lab}")
    e("v_mov_b32 v28, 0")
    e(f"v_lshlrev_b32 v29, 16, v{d}")
    e("v_mov_b32 v32, 0")
    e(f"v_mov_b32 v33, v{d}")
    e("v_mov_b32 v34, v29")
    e("v_mov_b32 v35, v16")
    e("s_mov_b64 exec, 1")
    e(f"ds_write_b64 v117, v[28:29] offset:{ro + COPY - 8}")
    e(f"ds_write_b64 v117, v[32:33] offset:{ro + 2*COPY - 8}")
    e(f"ds_write_b64 v117, v[34:35] offset:{ro + 3*COPY - 8}")
    e("s_mov_b64 exec, -1")
    e.label(lab)

def conv_main(e):
    ACCS = [16, 112]; FL, FH, BB = 32, 56, 80
    lq = []
    def wait(tags):
        idx = max((i for i, t in enumerate(lq) if t in tags), default=-1)
        if idx >= 0: e(f"s_waitcnt lgkmcnt({min(len(lq) - 1 - idx, 15)})")
    def put(it):
        if it[0] is None: wait(it[1]); return
        e(it[0])
        for _ in range(it[2] if len(it) > 2 else 1):
            if it[1] is not None: lq.append(it[1])
    def lda(F):
        c, f = divmod(F, 17)
        sl = F % 6
        r = []
        for (R, va) in ((FL, 8), (FH, 9)):
            o = 4*COPY*c + 64*f
            r.append((f"ds_read_b64 v[{R+4*sl}:{R+4*sl+1}], v{va} offset:{o}", ("a", F)))
            r.append((f"ds_read_b64 v[{R+4*sl+2}:{R+4*sl+3}], v{va} offset:{o+8}", ("a", F)))
        return r
    def ldb(P):
        c, p = divmod(P, 16)
        st = p >> 1; kk = 1 - (p & 1)
        bb = BB + 8*(P & 3)
        pre = ""
        if p & 1 == 0:
            pre = f"v_subrev_u32 v12, {144*st}, v10\nv_max_i32 v3, v12, v11\n"
        return [(pre + f"ds_read_b128 v[{bb}:{bb+3}], v3 offset:{KVSZ*c + 64*kk}", ("b", P)),
                (f"ds_read_b128 v[{bb+4}:{bb+7}], v12 offset:{KVSZ*c + 16*144 + 64*kk}", ("b", P))]
    def dterm_ld(c):
        return [(f"ds_read_b64 v[{4+2*h}:{5+2*h}], v13 offset:{KVSZ*c + 16*144*h}", ("k", c)) for h in range(2)]
    def dterm(c, T):
        sch = 65 if c == 0 else 69
        r = [(f"s_and_b32 s29, s{sch}, 1\ns_lshl_b32 s29, s29, 4\ns_lshr_b32 s29, s{70+c}, s29\ns_lshl_b32 s29, s29, 16", None), (None, [("k", c)])]
        for h in range(2):
            k0, k1 = 4+2*h, 5+2*h
            r += [(f"v_and_b32 v{T}, 0xffff0000, v{k1}", None), (f"v_lshlrev_b32 v{T+1}, 16, v{k1}", None),
                  (f"v_and_b32 v{T+2}, 0xffff0000, v{k0}", None), (f"v_lshlrev_b32 v{T+3}, 16, v{k0}", None)]
            r += [(f"v_mul_f32 v{T+j}, s29, v{T+j}", None) for j in range(4)]
            r += [(f"v_cvt_pk_bf16_f32 v{k0}, v{T}, v{T+1}", None), (f"v_cvt_pk_bf16_f32 v{k1}, v{T+2}, v{T+3}", None)]
        return r
    def exch(c):
        A = ACCS[c]
        t = ["s_cmp_eq_u32 s38, 0", f"s_cbranch_scc1 CX0_{c}"]
        t += [f"buffer_store_dwordx4 v[{A+4*h}:{A+4*h+3}], v14, s[60:63], 0 offen offset:{XOFF*c + 1024*h} {STX[c]}" for h in range(2)]
        t += [f"v_mov_b32 v{A+i}, v{A+8+i}" for i in range(8)]
        t += [f"s_branch CX1_{c}", f"CX0_{c}:"]
        t += [f"buffer_store_dwordx4 v[{A+8+4*h}:{A+8+4*h+3}], v14, s[60:63], 0 offen offset:{XOFF*c + 1024*h} {STX[c]}" for h in range(2)]
        t += [f"CX1_{c}:"]
        return [("\n".join(t), None)]
    def xread(c):
        A = ACCS[c]
        return [(f"buffer_load_dwordx4 v[{A+8+4*h}:{A+11+4*h}], v15, s[60:63], 0 offen offset:{XOFF*c + 1024*h}", None) for h in range(2)]
    def fin(c, h):
        sch = 65 if c == 0 else 69
        o = ACCS[c] + 4*h; p = ACCS[c] + 8 + 4*h
        r = [("s_waitcnt vmcnt(0)", None)] if h == 0 else []
        r += [(f"v_add_f32 v{o+j}, v{o+j}, v{p+j}", None) for j in range(4)]
        r += [(f"v_cvt_pk_bf16_f32 v{p}, v{o}, v{o+1}", None), (f"v_cvt_pk_bf16_f32 v{p+1}, v{o+2}, v{o+3}", None)]
        r += [(f"v_lshlrev_b32 v{o}, 16, v{p}", None), (f"v_and_b32 v{o+1}, 0xffff0000, v{p}", None),
              (f"v_lshlrev_b32 v{o+2}, 16, v{p+1}", None), (f"v_and_b32 v{o+3}, 0xffff0000, v{p+1}", None)]
        for k in range(2):
            r += [(f"v_lshlrev_b32 v{p+2}, 16, v{4+2*h+k}", None), (f"v_and_b32 v{p+3}, 0xffff0000, v{4+2*h+k}", None),
                  (f"v_add_f32 v{o+2*k}, v{o+2*k}, v{p+2}", None), (f"v_add_f32 v{o+2*k+1}, v{o+2*k+1}, v{p+3}", None)]
        r += [(f"v_cvt_pk_bf16_f32 v{p}, v{o}, v{o+1}", None), (f"v_cvt_pk_bf16_f32 v{p+1}, v{o+2}, v{o+3}", None)]
        r += [(f"s_lshl_b32 s48, s{sch}, 7\ns_add_u32 s48, s48, {16*81920*h}\nbuffer_store_dwordx2 v[{p}:{p+1}], v2, s[24:27], s48 offen {ST2Y}", None)]
        return r
    extra = {P: [] for P in range(32)}
    tail = {P: [] for P in range(32)}
    tail[16] = exch(0)
    tail[19] = [("s_waitcnt vmcnt(0)", None)]
    extra[20] = xread(0)
    extra[24] = fin(0, 0)
    extra[25] = fin(0, 1)
    tail[25] = [("s_cmp_ge_u32 s69, 640\ns_cbranch_scc1 K2_END", None)]
    extra[26] = dterm_ld(1)
    d1 = dterm(1, 16)
    extra[27] = d1[:12]; extra[28] = d1[12:]
    bcur = 0
    while bcur < PB0:
        bar(e, bcur); bcur += 1
    for it in dterm_ld(0) + lda(0) + lda(1) + ldb(0) + lda(2) + ldb(1) + lda(3) + ldb(2) + dterm(0, 16): put(it)
    nfa = 4; nfb = 3
    for P in range(32):
        c, p = divmod(P, 16)
        if P & 1 == 0:
            bar(e, bcur); bcur += 1
        if P == 0: e("s_setprio 3")
        F0 = 17*c + p
        ops = []
        while nfa <= F0 + 4 and nfa < 34:
            ops += lda(nfa); nfa += 1
        while nfb <= P + 3 and nfb < 32:
            ops += ldb(nfb); nfb += 1
        ops = extra[P][:0] + ops
        ex = list(extra[P])
        wait([("a", F0), ("a", F0+1), ("b", P)])
        bb = BB + 8*(P & 3)
        A = ACCS[c]
        mfs = []
        for mu in range(2):
            fl = FL + 4*((F0+mu) % 6)
            a0 = A + 8*mu; a1 = a0 + 4
            c0 = "0" if p == 0 else f"v[{a0}:{a0+3}]"
            c1 = "0" if p == 0 else f"v[{a1}:{a1+3}]"
            mfs.append(f"v_mfma_f32_16x16x32_bf16 v[{a0}:{a0+3}], v[{fl}:{fl+3}], v[{bb}:{bb+3}], {c0}")
            mfs.append(f"v_mfma_f32_16x16x32_bf16 v[{a1}:{a1+3}], v[{fl}:{fl+3}], v[{bb+4}:{bb+7}], {c1}")
        for mu in range(2):
            fh = FH + 4*((F0+mu) % 6)
            a1 = A + 8*mu + 4
            mfs.append(f"v_mfma_f32_16x16x32_bf16 v[{a1}:{a1+3}], v[{fh}:{fh+3}], v[{bb}:{bb+3}], v[{a1}:{a1+3}]")
        for i in range(6):
            e(mfs[i])
            no = (len(ops) + 5 - i) // (6 - i)
            for it in ops[:no]: put(it)
            ops = ops[no:]
            ne = (len(ex) + 5 - i) // (6 - i)
            for it in ex[:ne]: put(it)
            ex = ex[ne:]
        for it in tail[P]: put(it)
        if P == 15: q(e, 8, 8)
    q(e, 10, 8)
    e("s_setprio 0")
    e("s_nop 7")
    if "gx1" in X2:
        for it in exch(1): put(it)
        bar(e, bcur); bcur += 1
        e("s_waitcnt vmcnt(0)")
        bar(e, bcur); bcur += 1
        for it in xread(1): put(it)
        while bcur < 20:
            bar(e, bcur); bcur += 1
        for it in fin(1, 0) + fin(1, 1): put(it)
        return
    A = ACCS[1]
    bar(e, bcur); bcur += 1
    e("s_lshl_b32 s44, s39, 11")
    e(f"s_add_u32 s45, s66, {CP_OFF}")
    e("s_add_u32 s44, s44, s45")
    e("v_lshl_add_u32 v32, v1, 4, s44")
    e("s_xor_b32 s44, s39, 2")
    e("s_lshl_b32 s44, s44, 11")
    e("s_add_u32 s44, s44, s45")
    e("v_lshl_add_u32 v33, v1, 4, s44")
    e("s_cmp_eq_u32 s38, 0")
    e("s_cbranch_scc1 CX0_1")
    for h in range(2): e(f"ds_write_b128 v32, v[{A+4*h}:{A+4*h+3}] offset:{1024*h}")
    for i in range(8): e(f"v_mov_b32 v{A+i}, v{A+8+i}")
    e("s_branch CX1_1")
    e.label("CX0_1")
    for h in range(2): e(f"ds_write_b128 v32, v[{A+8+4*h}:{A+8+4*h+3}] offset:{1024*h}")
    e.label("CX1_1")
    e("s_waitcnt lgkmcnt(0)")
    bar(e, bcur); bcur += 1
    for h in range(2): e(f"ds_read_b128 v[{A+8+4*h}:{A+11+4*h}], v33 offset:{1024*h}")
    while bcur < 20:
        bar(e, bcur); bcur += 1
    e("s_waitcnt lgkmcnt(0)")
    for it in fin(1, 0)[1:] + fin(1, 1): put(it)

def k2():
    e = E()
    NS = K2_NS; STG = K2_STG; NT = 20
    e(f"s_cmp_ge_u32 s2, {N_K2}")
    e("s_cbranch_scc1 K2_END")
    code_touch(e, "k2", 512, "K2_END")
    trace_start(e)
    e("s_load_dwordx4 s[4:7], s[0:1], 32")
    e("s_load_dwordx2 s[12:13], s[0:1], 96")
    e("s_load_dwordx4 s[8:11], s[0:1], 56")
    e("s_load_dwordx2 s[50:51], s[0:1], 72")
    e("v_lshrrev_b32 v1, 6, v0")
    e("s_nop 0")
    e("v_readfirstlane_b32 s3, v1")
    e("v_and_b32 v1, 63, v0")
    e("v_lshlrev_b32 v2, 4, v1")
    e("s_and_b32 s14, s2, 7")
    e("s_lshr_b32 s15, s2, 3")
    if "map2" in X2:
        e("s_mul_i32 s32, s14, 27")
        e("s_add_u32 s65, s32, s15")
        e("s_lshl_b32 s65, s65, 1")
        e("s_add_u32 s69, s65, 1")
        e(f"s_mov_b32 s66, {CV_A}")
        e("s_cmp_lt_u32 s15, 27")
        e("s_cselect_b32 s64, 1, 0")
        e("s_cbranch_scc1 K2_R")
        e("s_mul_i32 s32, s14, 5")
        e("s_add_u32 s32, s32, s15")
        e("s_add_u32 s65, s32, 405")
        e("s_add_u32 s69, s65, 120")
        e("s_mov_b32 s66, 0")
        e.label("K2_R")
        e("s_mov_b32 s76, s15")
        e("s_mov_b32 s77, s14")
    else:
        e("s_lshr_b32 s28, s14, 2")
        e("s_lshl_b32 s29, s28, 1")
        e("s_sub_u32 s29, 28, s29")
        e("s_and_b32 s31, s14, 3")
        e("s_mul_i32 s32, s31, s29")
        e("s_mul_i32 s33, s28, 112")
        e("s_add_u32 s32, s32, s33")
        e("s_add_u32 s65, s32, s15")
        e("s_lshl_b32 s65, s65, 1")
        e("s_add_u32 s69, s65, 1")
        e(f"s_mov_b32 s66, {CV_A}")
        e("s_cmp_lt_u32 s15, s29")
        e("s_cselect_b32 s64, 1, 0")
        e("s_cbranch_scc1 K2_R")
        e("s_sub_u32 s32, 32, s29")
        e("s_mul_i32 s32, s32, s31")
        e("s_lshl_b32 s33, s28, 4")
        e("s_add_u32 s32, s32, s33")
        e("s_add_u32 s32, s32, s15")
        e("s_sub_u32 s32, s32, s29")
        e("s_add_u32 s65, s32, 432")
        e("s_add_u32 s69, s65, 120")
        e("s_mov_b32 s66, 0")
        e.label("K2_R")
        e("s_mul_i32 s76, s28, 14")
        e("s_lshr_b32 s33, s15, 1")
        e("s_add_u32 s76, s76, s33")
        e("s_lshl_b32 s77, s31, 1")
        e("s_and_b32 s33, s15, 1")
        e("s_add_u32 s77, s77, s33")
    e("s_waitcnt lgkmcnt(0)")
    srd(e, 16, 4, 5, SZ_SD)
    e("s_cmp_lt_u32 s3, 12")
    e("s_cbranch_scc1 K2_CW")
    e("s_sub_u32 s3, s3, 12")
    e("s_cmp_eq_u32 s64, 0")
    e("s_cbranch_scc1 K2_RP")
    srd_off(e, 52, 12, 13, WS_XNP, SZ_SD)
    e("s_cmp_eq_u32 s3, 0")
    e("s_cselect_b32 s56, s8, s10")
    e("s_cselect_b32 s57, s9, s11")
    e(f"s_mov_b32 s58, {D*F*2}")
    e("s_mov_b32 s59, 0x00020000")
    e("v_lshrrev_b32 v3, 3, v1")
    e("v_and_b32 v4, 7, v1")
    e("v_bfe_u32 v5, v3, 1, 1")
    e("v_lshlrev_b32 v5, 2, v5")
    e("v_xor_b32 v4, v4, v5")
    e("v_mul_u32_u24 v3, 3456, v3")
    e("v_lshl_add_u32 v3, v4, 4, v3")
    for i in range(1, 4):
        e(f"v_add_u32 v{3+i}, {i*(8*3456-1024)}, v3")
    e("s_lshl_b32 s72, s3, 13")
    e("s_lshl_b32 s73, s3, 12")
    e("s_mul_i32 s74, s77, 327680")
    e("s_add_u32 s74, s74, s72")
    e("s_lshl_b32 s75, s76, 7")
    e("s_add_u32 s73, s73, 16384")
    def g1_dma():
        e("s_mov_b32 m0, s72")
        e("s_add_u32 s34, s74, 4096")
        for i in range(4):
            e(f"buffer_load_dwordx4 v2, s[52:55], s74 offen offset:{i*1024} lds")
        e("s_add_u32 m0, s72, 4096")
        e("s_add_u32 s74, s74, 16384")
        for i in range(4):
            e(f"buffer_load_dwordx4 v2, s[52:55], s34 offen offset:{i*1024} lds")
        e("s_mov_b32 m0, s73")
        e(f"s_add_u32 s72, s72, {STG}")
        for i in range(4):
            e(f"buffer_load_dwordx4 v{3+i}, s[56:59], s75 offen offset:{i*1024} lds")
        e(f"s_add_u32 s75, s75, {32*3456}")
        e(f"s_add_u32 s73, s73, {STG}")
    def lst():
        if PROF2:
            e("s_memtime s[88:89]")
            e("s_waitcnt lgkmcnt(0)")
            e("v_cmp_eq_u32 vcc, s81, v1")
            e("v_mov_b32 v21, s88")
            e("v_cndmask_b32 v20, v20, v21, vcc")
            e("s_add_u32 s81, s81, 1")
    e("s_mov_b32 s81, 0")
    lst()
    e("s_mov_b32 s79, 0")
    e(f"s_mov_b32 s80, {NS*STG}")
    e.label("K2_LP")
    g1_dma()
    e("s_add_u32 s79, s79, 1")
    e(f"s_cmp_lg_u32 s79, {LB0}")
    e("s_cbranch_scc1 K2_LP2")
    lst()
    e(f"s_waitcnt vmcnt({12*(LB0-1)})")
    e("s_barrier")
    lst()
    e.label("K2_LP2")
    e(f"s_cmp_lt_u32 s79, {NS-1}")
    e("s_cbranch_scc1 K2_LP")
    e.label("K2_LGL")
    e(f"s_waitcnt vmcnt({12*(NS-3)})")
    e("s_barrier")
    lst()
    g1_dma()
    e("s_cmp_ge_u32 s72, s80")
    e("s_cselect_b32 s33, s80, 0")
    e("s_sub_u32 s72, s72, s33")
    e("s_sub_u32 s73, s73, s33")
    e("s_add_u32 s79, s79, 1")
    e(f"s_cmp_lt_u32 s79, {NT}")
    e("s_cbranch_scc1 K2_LGL")
    for b in range(NT-NS+2, (max(NT, C1_E+1) if PROF2 else NT)):
        e(f"s_waitcnt vmcnt({12*max(NT-1-b, 0)})")
        e("s_barrier")
        lst()
    if PROF2:
        e("s_load_dwordx2 s[84:85], s[0:1], 88")
        e("s_waitcnt lgkmcnt(0)")
        e("s_mov_b32 s86, 256")
        e("s_mov_b32 s87, 0x00020000")
        e(f"s_cmp_lg_u32 s2, {PROF2}")
        e("s_cbranch_scc1 K2_END")
        e("s_cmp_lg_u32 s3, 0")
        e("s_cbranch_scc1 K2_END")
        e("v_lshlrev_b32 v120, 2, v1")
        e("buffer_store_dword v20, v120, s[84:87], 0 offen offset:128")
    e("s_endpgm")
    e.label("K2_RP")
    srd(e, 52, 50, 51, D*F*2)
    srd_off(e, 56, 12, 13, WS_WP2, D*F*2)
    e("s_sub_u32 s28, s65, 432")
    e("s_lshl_b32 s28, s28, 1")
    e("s_add_u32 s28, s28, s3")
    e("s_mul_hi_u32 s29, s28, 0x1999999a")
    e("s_mul_i32 s30, s29, 10")
    e("s_sub_u32 s30, s28, s30")
    e("s_mul_i32 s30, s30, 1728")
    e("s_mul_i32 s29, s29, 160")
    e("s_mul_i32 s28, s28, 27648")
    e("s_mov_b32 s31, 0xcccccccd")
    e("v_add_u32 v3, s30, v1")
    for i in range(27):
        e(f"v_add_u32 v4, {64*i}, v3")
        e("v_mul_hi_u32 v5, v4, s31")
        e("v_lshrrev_b32 v5, 3, v5")
        e("v_mul_u32_u24 v6, 10, v5")
        e("v_sub_u32 v6, v4, v6")
        e("v_mul_u32_u24 v5, 1280, v5")
        e("v_lshl_add_u32 v5, v6, 4, v5")
        e(f"buffer_load_dwordx4 v[{8+4*i}:{11+4*i}], v5, s[52:55], s29 offen")
    for i in range(RPB): e("s_barrier")
    e("s_waitcnt vmcnt(0)")
    for i in range(27):
        e(f"buffer_store_dwordx4 v[{8+4*i}:{11+4*i}], v2, s[56:59], s28 offen offset:{(i&3)*1024} {STW}")
        if i & 3 == 3: e("s_add_u32 s28, s28, 4096")
    e("s_endpgm")
    e.label("K2_CW")
    e("s_cmp_lt_u32 s3, 8")
    e("s_cselect_b32 s33, s64, 0")
    e("s_cmp_eq_u32 s33, 1")
    e("s_cbranch_scc1 K2_G")
    srd_off(e, 20, 12, 13, WS_KVT, SZ_SD)
    srd_off(e, 24, 12, 13, WS_T3, SZ_T3)
    q(e, 0, 8)
    e("s_and_b32 s39, s3, 3")
    e("s_lshr_b32 s38, s3, 2")
    e("s_cmp_eq_u32 s64, 1")
    e("s_cselect_b32 s38, 0, s38")
    e("s_mul_i32 s33, s38, 40")
    e("s_add_u32 s65, s65, s33")
    e("s_add_u32 s69, s69, s33")
    e(f"s_mul_i32 s33, s38, {CV_SZ}")
    e("s_add_u32 s66, s66, s33")
    e("s_lshr_b32 s38, s39, 1")
    e("s_min_u32 s68, s69, 639")
    e("s_lshr_b32 s28, s65, 1")
    e("s_lshl_b32 s28, s28, 2")
    e("s_load_dword s70, s[6:7], s28")
    e("s_lshr_b32 s28, s68, 1")
    e("s_lshl_b32 s28, s28, 2")
    e("s_load_dword s71, s[6:7], s28")
    e("s_lshl_b32 s32, s65, 12")
    e("s_lshl_b32 s33, s68, 12")
    e("v_lshl_add_u32 v16, s39, 6, v1")
    e("v_lshlrev_b32 v12, 4, v16")
    e("buffer_load_dwordx4 v[104:107], v12, s[16:19], s32 offen")
    e("buffer_load_dwordx2 v[108:109], v12, s[16:19], s32 offen offset:16")
    e("buffer_load_dwordx4 v[4:7], v12, s[20:23], s32 offen")
    e("buffer_load_dwordx4 v[120:123], v12, s[16:19], s33 offen")
    e("buffer_load_dwordx2 v[124:125], v12, s[16:19], s33 offen offset:16")
    e("buffer_load_dwordx4 v[112:115], v12, s[20:23], s33 offen")
    e(f"s_add_u32 s34, s66, {CP_OFF + 128}")
    e("v_add_u32 v117, s34, v12")
    for i in range(4):
        e(f"v_mov_b32 v{28+i}, 0")
    e("v_lshrrev_b32 v21, 3, v1")
    e(f"v_mul_u32_u24 v20, {COPY}, v21")
    e("v_and_b32 v21, 7, v1")
    e("v_lshl_add_u32 v20, v21, 4, v20")
    e(f"s_add_u32 s34, s66, {CP_OFF}")
    e("v_add_u32 v20, s34, v20")
    e("v_and_b32 v22, 15, v1")
    e("v_bfe_u32 v21, v1, 4, 1")
    e(f"v_mul_u32_u24 v21, {KVSZ}, v21")
    e("v_lshl_add_u32 v21, v22, 4, v21")
    e("v_add_u32 v21, s66, v21")
    e("v_cmp_gt_u32 vcc, 9, v22")
    e("s_mov_b32 vcc_hi, 0")
    e("s_cmp_eq_u32 s39, 0")
    e("s_cbranch_scc0 CF_0")
    e("ds_write_b128 v20, v[28:31]")
    e("s_and_saveexec_b64 s[36:37], vcc")
    e("ds_write_b128 v21, v[28:31]")
    e("s_mov_b64 exec, s[36:37]")
    e.label("CF_0")
    e("v_lshrrev_b32 v118, 3, v16")
    e("v_mul_u32_u24 v118, 144, v118")
    e("v_and_b32 v26, 7, v16")
    e("v_lshl_add_u32 v118, v26, 4, v118")
    e("s_add_u32 s34, s66, 144")
    e("v_add_u32 v118, s34, v118")
    e("v_and_b32 v40, 15, v1")
    e("v_lshrrev_b32 v41, 4, v1")
    e("v_add_u32 v16, 1, v40")
    e("v_and_b32 v16, 3, v16")
    e(f"v_mul_u32_u24 v8, {COPY - 2}, v16")
    e("v_lshl_add_u32 v8, v40, 1, v8")
    e("v_lshlrev_b32 v17, 4, v41")
    e("v_sub_u32 v8, v8, v17")
    e("s_lshl_b32 s41, s38, 10")
    e("s_and_b32 s42, s39, 1")
    e("s_lshl_b32 s42, s42, 5")
    e("s_add_u32 s42, s42, s41")
    e("s_add_u32 s42, s42, s66")
    e(f"s_add_u32 s42, s42, {CP_OFF + 2*(64-7) - 64}")
    e("v_add_u32 v8, s42, v8")
    e("v_add_u32 v9, 2048, v8")
    e("v_mul_u32_u24 v10, 144, v40")
    e("v_lshlrev_b32 v11, 4, v41")
    e("v_add_u32 v11, s66, v11")
    e("v_add_u32 v10, v10, v11")
    e("s_mul_i32 s43, s38, 1152")
    e("s_sub_u32 s43, 144, s43")
    e("v_add_u32 v10, s43, v10")
    e("s_mul_i32 s44, s2, 12")
    e("s_add_u32 s44, s44, s3")
    e("s_xor_b32 s45, s44, 2")
    e("s_lshl_b32 s44, s44, 12")
    e("s_lshl_b32 s45, s45, 12")
    e("v_add_u32 v14, s44, v2")
    e("v_add_u32 v15, s45, v2")
    e("v_mul_u32_u24 v13, 144, v40")
    e("v_lshrrev_b32 v42, 1, v41")
    e("v_lshl_add_u32 v13, v42, 4, v13")
    e("v_and_b32 v42, 1, v41")
    e("v_lshlrev_b32 v42, 3, v42")
    e("v_xor_b32 v42, 8, v42")
    e("v_add_u32 v13, v13, v42")
    e("s_lshl_b32 s46, s39, 5")
    e("s_add_u32 s47, s46, s66")
    e("s_add_u32 s47, s47, 144")
    e("v_add_u32 v13, s47, v13")
    e("v_mul_u32_u24 v2, 81920, v40")
    e("v_lshl_add_u32 v2, v41, 3, v2")
    e("v_add_u32 v2, s46, v2")
    e("s_waitcnt vmcnt(4)")
    write_copies(e, 104, "CF_1", 0)
    e("s_waitcnt vmcnt(3)")
    e("ds_write_b128 v118, v[4:7]")
    e("s_waitcnt vmcnt(1)")
    write_copies(e, 120, "CF_2", 4*COPY)
    e("s_waitcnt vmcnt(0)")
    e(f"ds_write_b128 v118, v[112:115] offset:{KVSZ}")
    e("s_waitcnt lgkmcnt(0)")
    srd_off(e, 60, 12, 13, WS_XCH, 256*12*4096)
    q(e, 5, 8)
    conv_main(e)
    q(e, 11, 8)
    if PROF2 or TRACE: e("s_waitcnt vmcnt(0)")
    q(e, 7, 8)
    qdump(e, 12, 8)
    p4dump(e, "P4_C")
    trace_end(e, 0, 512)
    e("s_endpgm")
    e.label("K2_G")
    q(e, 0)
    srd_off(e, 60, 12, 13, WS_H, SZ_H)
    e("s_lshr_b32 s47, s3, 1")
    e("s_and_b32 s48, s3, 1")
    e("v_and_b32 v4, 31, v1")
    e("v_lshrrev_b32 v3, 5, v1")
    e("s_lshl_b32 s49, s47, 6")
    e("v_add_u32 v4, s49, v4")
    e("v_lshrrev_b32 v7, 2, v4")
    e("v_and_b32 v5, 3, v4")
    e("v_lshl_add_u32 v5, v5, 2, v3")
    e("v_and_b32 v6, 3, v7")
    e("v_xor_b32 v5, v5, v6")
    e("v_lshlrev_b32 v5, 4, v5")
    e("v_lshl_add_u32 v12, v7, 8, v5")
    e("v_xor_b32 v13, 32, v12")
    e("v_lshrrev_b32 v8, 4, v1")
    e("v_bfe_u32 v3, v1, 2, 2")
    e("v_and_b32 v4, 3, v1")
    e("v_lshrrev_b32 v5, 1, v8")
    e("v_lshl_add_u32 v5, v5, 3, v3")
    e("v_lshlrev_b32 v5, 7, v5")
    e("v_and_b32 v6, 1, v8")
    e("v_lshlrev_b32 v6, 1, v6")
    e("v_lshrrev_b32 v7, 1, v4")
    e("v_add_u32 v6, v6, v7")
    e("s_lshl_b32 s49, s48, 2")
    e("v_add_u32 v6, s49, v6")
    e("v_bfe_u32 v7, v3, 1, 1")
    e("v_lshlrev_b32 v7, 2, v7")
    e("v_xor_b32 v6, v6, v7")
    e("v_lshl_add_u32 v5, v6, 4, v5")
    e("v_and_b32 v7, 1, v4")
    e("v_lshl_add_u32 v5, v7, 3, v5")
    e("v_add_u32 v14, 16384, v5")
    G0, U0 = 64, 96
    for i in range(64):
        e(f"v_mov_b32 v{64+i}, 0")
    e("v_add_u32 v9, 0x10000, v12")
    e("v_add_u32 v10, 0x10000, v13")
    e("v_add_u32 v11, 0x10000, v14")
    def frag_ops(g):
        if "nofr" in X2: return []
        t = g >> 1; ks = g & 1; fb = 16 + 16*(g % 3)
        sb = (t % NS)*STG
        hi64 = sb >= 65536
        if hi64: sb -= 65536
        xa = (9 if hi64 else 12) + ks; wa = 11 if hi64 else 14
        r = []
        for mat in range(2):
            for hi in range(2):
                rr = fb + 8 + 4*mat + 2*hi
                r.append(f"ds_read_b64_tr_b16 v[{rr}:{rr+1}], v{wa} offset:{sb + mat*4096 + ks*2048 + hi*512}")
        for mi in range(2):
            r.append(f"ds_read_b128 v[{fb+4*mi}:{fb+4*mi+3}], v{xa} offset:{sb + mi*2048}")
        return r
    def frag_loads(g):
        for x in frag_ops(g): e(x)
    def mf(g, ops):
        fb = 16 + 16*(g % 3)
        ms = []
        for mi in range(2):
            x = fb+4*mi
            ms.append(f"v_mfma_f32_32x32x16_bf16 v[{G0+16*mi}:{G0+16*mi+15}], v[{fb+8}:{fb+11}], v[{x}:{x+3}], v[{G0+16*mi}:{G0+16*mi+15}]")
            ms.append(f"v_mfma_f32_32x32x16_bf16 v[{U0+16*mi}:{U0+16*mi+15}], v[{fb+12}:{fb+15}], v[{x}:{x+3}], v[{U0+16*mi}:{U0+16*mi+15}]")
        grp = [ops[0:2], ops[2:4], ops[4:5], ops[5:6]]
        for i in range(4):
            e(ms[i])
            for x in grp[i]: e(x)
    e("v_lshrrev_b32 v3, 5, v1")
    e("v_and_b32 v4, 31, v1")
    e("v_lshlrev_b32 v4, 4, v4")
    e("v_lshl_add_u32 v4, v3, 10, v4")
    e("s_lshl_b32 s46, s77, 2")
    e("s_add_u32 s46, s46, s47")
    e(f"s_mul_i32 s46, s46, {27*8192}")
    e("s_lshl_b32 s49, s76, 13")
    e("s_add_u32 s46, s46, s49")
    e("s_lshl_b32 s49, s48, 12")
    e("s_add_u32 s46, s46, s49")
    q(e, 1)
    e("s_barrier")
    q(e, 2)
    frag_loads(0); frag_loads(1)
    for g in range(2*NT):
        ops = []
        if g + 2 < 2*NT:
            if g & 1 == 0: bar(e, (g+2)//2)
            ops = frag_ops(g+2)
        e(f"s_waitcnt lgkmcnt({6*min(1, 2*NT-1-g)})")
        mf(g, ops)
    q(e, 3)
    gb = NT
    if C1_E >= gb: e("s_barrier"); gb += 1
    e("s_nop 15")
    for mi in range(2):
        for pi in range(2):
            o = 16 + 4*(2*mi+pi)
            for ii in range(2):
                i = 2*pi + ii
                g = G0+16*mi+4*i; u = U0+16*mi+4*i
                for pr in range(2):
                    e(f"v_cvt_pk_bf16_f32 v40, v{g+2*pr}, v{g+2*pr+1}")
                    e(f"v_cvt_pk_bf16_f32 v41, v{u+2*pr}, v{u+2*pr+1}")
                    e("v_lshlrev_b32 v42, 16, v40")
                    e("v_and_b32 v43, 0xffff0000, v40")
                    e("v_lshlrev_b32 v44, 16, v41")
                    e("v_and_b32 v45, 0xffff0000, v41")
                    e("v_mul_f32 v42, v42, v44")
                    e("v_mul_f32 v43, v43, v45")
                    e(f"v_cvt_pk_bf16_f32 v{o+2*ii+pr}, v42, v43")
            e("s_nop 1")
            e(f"v_permlane32_swap_b32 v{o}, v{o+2}")
            e(f"v_permlane32_swap_b32 v{o+1}, v{o+3}")
            e("s_nop 1")
            e(f"buffer_store_dwordx4 v[{o}:{o+3}], v4, s[60:63], s46 offen offset:{pi*2048 + mi*512} {ST2H}")
    while C1_E >= gb:
        e("s_barrier"); gb += 1
    q(e, 4)
    if PROF2 or TRACE: e("s_waitcnt vmcnt(0)")
    q(e, 7)
    qdump(e, 12)
    p4dump(e, "P4_G")
    trace_end(e, 1)
    e.label("K2_END")
    e("s_endpgm")
    return e.text()


N_G2 = 256
K3_NS = int(os.environ.get("K3NS", "7"))
K3_STG = 18432
K3_X0 = K3_STG*K3_NS
K3_LDS = K3_X0 + 2*10240
K3_XB = 12
K3R0, K3R1 = [int(x) for x in os.environ.get('K3R', '1,2').split(',')]
K3_XI = int(os.environ.get('K3XI', '0'))
K3_D = int(os.environ.get('K3D', '1'))
PROF5 = os.environ.get("PROF5")
def k3():
    e = E()
    NS = K3_NS; NT = 27; STG = K3_STG
    Y2_L = K3_X0; X_L = K3_X0 + 10240; XN_L = K3_X0 + 20480
    e(f"s_cmp_ge_u32 s2, {N_G2}")
    e("s_cbranch_scc1 K3_END")
    code_touch(e, "k3", 256, "K3_END")
    trace_start(e)
    for i in range(int(os.environ.get("K3NOP", "0"))): e("s_nop 0")
    e("s_load_dwordx2 s[4:5], s[0:1], 0")
    e("s_load_dwordx2 s[10:11], s[0:1], 80")
    e("s_load_dwordx2 s[12:13], s[0:1], 96")
    e("v_lshrrev_b32 v1, 6, v0")
    e("s_nop 0")
    e("v_readfirstlane_b32 s3, v1")
    if "mapc" in X3:
        e("s_and_b32 s15, s2, 3")
        e("s_lshl_b32 s15, s15, 3")
        e("s_lshr_b32 s28, s2, 3")
        e("s_and_b32 s29, s28, 7")
        e("s_add_u32 s15, s15, s29")
        e("s_lshr_b32 s28, s28, 3")
        e("s_and_b32 s29, s2, 4")
        e("s_add_u32 s28, s28, s29")
    else:
        e("s_and_b32 s15, s2, 7")
        e("s_lshl_b32 s15, s15, 2")
        e("s_lshr_b32 s28, s2, 3")
        e("s_and_b32 s29, s28, 3")
        e("s_add_u32 s15, s15, s29")
        e("s_lshr_b32 s28, s28, 2")
    e("s_lshl_b32 s36, s15, 6")
    e("s_mul_i32 s39, s28, 160")
    e("v_and_b32 v1, 63, v0")
    e("s_waitcnt lgkmcnt(0)")
    e("s_cmp_lt_u32 s3, 4")
    e("s_cbranch_scc1 K3_COMP")
    e("s_sub_u32 s3, s3, 4")
    e("v_lshlrev_b32 v2, 4, v1")
    e("s_cmp_ge_u32 s3, 2")
    e("s_cbranch_scc1 K3_XL")
    srd_off(e, 16, 12, 13, WS_H, SZ_H)
    srd_off(e, 20, 12, 13, WS_WP2, D*F*2)
    e("v_lshlrev_b32 v2, 4, v1")
    e("s_lshl_b32 s40, s3, 12")
    e("s_mul_i32 s41, s3, 5120")
    e(f"s_mul_i32 s42, s15, {0 if 'hotA' in X3 else 27*8192}")
    e("s_add_u32 s42, s42, s40")
    e(f"s_mul_i32 s43, s28, {0 if 'hotW' in X3 else 1728*160}")
    e("s_add_u32 s43, s43, s41")
    e("s_add_u32 s41, s41, 8192")
    vq = VQ(e)
    def lst():
        if PROF5:
            e("s_memtime s[88:89]")
            e("s_waitcnt lgkmcnt(0)")
            e("v_cmp_eq_u32 vcc, s81, v1")
            e("v_mov_b32 v21, s88")
            e("v_cndmask_b32 v20, v20, v21, vcc")
            e("s_add_u32 s81, s81, 1")
    e("s_mov_b32 s81, 0")
    lst()
    def dma(t):
        sb = (t % NS)*STG
        e(f"s_add_u32 m0, s40, {sb}")
        e("s_add_u32 s46, s43, 4096")
        for i in range(4):
            e(f"buffer_load_dwordx4 v2, s[16:19], s42 offen offset:{i*1024} lds")
        e(f"s_add_u32 m0, s41, {sb}")
        e("s_add_u32 s42, s42, 8192")
        for i in range(4):
            e(f"buffer_load_dwordx4 v2, s[20:23], s43 offen offset:{i*1024} lds")
        e(f"s_add_u32 m0, s41, {sb + 4096}")
        e("s_add_u32 s43, s43, 10240")
        e(f"buffer_load_dwordx4 v2, s[20:23], s46 offen lds")
        vq.issue(("g", t), 9)
    def extras():
        srd_off(e, 24, 12, 13, WS_T3, SZ_T3)
        srd(e, 52, 4, 5, SZ_SD)
        e("s_lshl_b32 s47, s15, 3")
        e("s_add_u32 s47, s47, s28")
        e(f"s_mul_i32 s47, s47, {0 if 'hotX' in X3 else 10240}")
        e("s_mul_i32 s49, s3, 5120")
        e("s_add_u32 s47, s47, s49")
        e("s_add_u32 s48, s47, 4096")
        e(f"s_add_u32 m0, s49, {Y2_L}")
        e("s_nop 0")
        for i in range(4):
            e(f"buffer_load_dwordx4 v2, s[24:27], s47 offen offset:{i*1024} lds")
        e(f"s_add_u32 m0, s49, {Y2_L + 4096}")
        e("s_nop 0")
        e(f"buffer_load_dwordx4 v2, s[24:27], s48 offen lds")
        for i in range(5):
            e(f"v_add_u32 v3, {64*i}, v1")
            e("v_mul_u32_u24 v4, 6554, v3")
            e("v_lshrrev_b32 v4, 16, v4")
            e("v_mul_u32_u24 v5, 10, v4")
            e("v_sub_u32 v5, v3, v5")
            e("v_mul_u32_u24 v4, 1280, v4")
            e(f"v_lshl_add_u32 v{10+i}, v5, 4, v4")
        e("s_lshl_b32 s48, s3, 5")
        e("s_add_u32 s48, s48, s36")
        e("s_mul_i32 s48, s48, 1280")
        e("s_add_u32 s48, s48, s39")
        for i in range(5):
            e(f"s_add_u32 m0, s49, {X_L + i*1024}")
            e("s_nop 0")
            e(f"buffer_load_dwordx4 v{10+i}, s[52:55], s48 offen lds")
    nxt = 0
    DD = K3_D + 1
    for b in range(NT):
        lim = NS - 1 if b < DD else b - 1 - DD + NS
        lim = min(lim, K3R1*b + K3R0, NT - 1)
        while nxt <= lim:
            dma(nxt); nxt += 1
        vq.wait([("g", b)])
        e("s_barrier")
        lst()
    if PROF5:
        e("s_load_dwordx2 s[84:85], s[0:1], 88")
        e("s_waitcnt lgkmcnt(0)")
        e("s_mov_b32 s86, 256")
        e("s_mov_b32 s87, 0x00020000")
        e(f"s_cmp_lg_u32 s2, {PROF5}")
        e("s_cbranch_scc1 K3_END")
        e("s_cmp_lg_u32 s3, 0")
        e("s_cbranch_scc1 K3_END")
        e("v_lshlrev_b32 v120, 2, v1")
        e("buffer_store_dword v20, v120, s[84:87], 0 offen")
    e("s_endpgm")
    e.label("K3_XL")
    e("s_sub_u32 s3, s3, 2")
    for b in range(K3_XB + 1):
        if b == K3_XI: extras()
        if b == K3_XB: e("s_waitcnt vmcnt(0)")
        e("s_barrier")
    e("s_endpgm")
    e.label("K3_COMP")
    srd(e, 32, 10, 11, SZ_SD)
    e("v_and_b32 v20, 15, v1")
    e("v_lshrrev_b32 v21, 4, v1")
    e("v_and_b32 v22, 1, v21")
    e("s_lshl_b32 s49, s3, 4")
    e("v_add_u32 v23, s49, v20")
    e("v_mul_u32_u24 v2, 160, v23")
    e("v_lshl_add_u32 v2, v21, 3, v2")
    e(f"v_add_u32 v2, {X_L}, v2")
    e("v_add_u32 v24, s36, v23")
    srd_off(e, 40, 12, 13, WS_XN, S*8)
    e("v_lshlrev_b32 v25, 3, v24")
    e("buffer_load_dwordx2 v[14:15], v25, s[40:43], 0 offen")
    e("v_mul_u32_u24 v24, 1280, v24")
    e("v_lshl_add_u32 v24, v21, 3, v24")
    e("v_add_u32 v3, s39, v24")
    e("v_lshlrev_b32 v24, 10, v21")
    e("v_lshl_add_u32 v24, v23, 4, v24")
    e("v_lshl_add_u32 v4, v22, 3, v24")
    e("v_xor_b32 v5, 8, v4")
    e("v_bfe_u32 v24, v1, 2, 2")
    e("v_lshl_add_u32 v24, v21, 3, v24")
    e("v_lshl_add_u32 v25, v22, 2, v24")
    e("v_xor_b32 v26, 1, v22")
    e("v_lshl_add_u32 v26, v26, 2, v24")
    e("v_and_b32 v24, 3, v1")
    e("v_lshlrev_b32 v24, 3, v24")
    e("v_add_u32 v24, 8192, v24")
    e("s_movk_i32 s49, 160")
    e("v_mad_u32_u24 v6, v25, s49, v24")
    e("v_mad_u32_u24 v7, v26, s49, v24")
    for k in range(4):
        e(f"v_add_u32 v{8+k}, {4*STG}, v{4+k}")
    e("v_lshrrev_b32 v12, 2, v1")
    e("v_lshlrev_b32 v12, 7, v12")
    e("v_and_b32 v24, 3, v1")
    e("v_lshl_add_u32 v12, v24, 3, v12")
    e("s_lshl_b32 s49, s3, 5")
    e(f"s_add_u32 s49, s49, {Y2_L}")
    e("v_add_u32 v12, s49, v12")
    ACC = 16; XR, XNR, YR = 36, 46, 56; T = 66; FB = 72
    lq = []
    def wait(tags):
        idx = max((i for i, t in enumerate(lq) if t in tags), default=-1)
        if idx >= 0: e(f"s_waitcnt lgkmcnt({min(len(lq) - 1 - idx, 15)})")
    def put(it):
        if it[0] is None: wait(it[1]); return
        e(it[0])
        if it[1] is not None: lq.append(it[1])
    def frag_ops(t):
        fb = FB + 48*(t % (K3_D+1))
        sl = t % NS
        ab = 4 if sl < 4 else 8
        sb = (sl if sl < 4 else sl - 4)*STG
        r = []
        for kk in range(2):
            for hf in range(2):
                rr = fb + 4*kk + 2*hf
                r.append((f"ds_read_b64 v[{rr}:{rr+1}], v{ab+hf} offset:{sb + kk*4096}", ("f", t, kk)))
            for tt in range(5):
                for hf in range(2):
                    rr = fb + 8 + 20*kk + 4*tt + 2*hf
                    r.append((f"ds_read_b64_tr_b16 v[{rr}:{rr+1}], v{ab+2+hf} offset:{sb + kk*5120 + 32*tt}", ("f", t, kk)))
        return r
    xl = []
    for tt in range(5):
        xl.append((f"ds_read_b64_tr_b16 v[{YR+2*tt}:{YR+2*tt+1}], v12 offset:{2048*tt}", "x"))
        xl.append((f"ds_read_b64 v[{XR+2*tt}:{XR+2*tt+1}], v2 offset:{32*tt}", "x"))
    def amath(i):
        r = [f"v_lshlrev_b32 v{T}, 16, v{XR+i}", f"v_and_b32 v{T+1}, 0xffff0000, v{XR+i}",
             f"v_sub_f32 v{T+2}, v{T}, v14", f"v_sub_f32 v{T+3}, v{T+1}, v14",
             f"v_cvt_pk_bf16_f32 v{T+4}, v{T+2}, v{T+3}",
             f"v_lshlrev_b32 v{T+2}, 16, v{T+4}", f"v_and_b32 v{T+3}, 0xffff0000, v{T+4}",
             f"v_mul_f32 v{T+4}, v{T+2}, v13", f"v_mul_f32 v{T+5}, v{T+3}, v13",
             f"v_fma_f32 v{T+2}, -v{T+4}, v15, v{T+2}", f"v_fma_f32 v{T+3}, -v{T+5}, v15, v{T+3}",
             f"v_fmac_f32 v{T+4}, v{T+2}, v13", f"v_fmac_f32 v{T+5}, v{T+3}, v13",
             f"v_cvt_pk_bf16_f32 v{T+4}, v{T+4}, v{T+5}",
             f"v_lshlrev_b32 v{T+2}, 16, v{T+4}", f"v_and_b32 v{T+3}, 0xffff0000, v{T+4}",
             f"v_lshlrev_b32 v{T+4}, 16, v{YR+i}", f"v_and_b32 v{T+5}, 0xffff0000, v{YR+i}",
             f"v_mul_f32 v{T+2}, v{T+2}, v{T+4}", f"v_mul_f32 v{T+3}, v{T+3}, v{T+5}",
             f"v_cvt_pk_bf16_f32 v{T+4}, v{T+2}, v{T+3}",
             f"v_lshlrev_b32 v{T+2}, 16, v{T+4}", f"v_and_b32 v{T+3}, 0xffff0000, v{T+4}",
             f"v_add_f32 v{T}, v{T}, v{T+2}", f"v_add_f32 v{T+1}, v{T+1}, v{T+3}",
             f"v_cvt_pk_bf16_f32 v{T+4}, v{T}, v{T+1}",
             f"v_lshlrev_b32 v{XR+i}, 16, v{T+4}", f"v_and_b32 v{XNR+i}, 0xffff0000, v{T+4}"]
        return [(x, None) for x in r]
    extra = {t: [] for t in range(NT)}
    tx = K3_XB - K3_D
    extra[tx] = xl
    extra[tx + 1] = [("s_waitcnt vmcnt(0)\nv_rcp_f32 v13, v15", None)]
    extra[tx + 2] = [(None, ["x"])]
    for i in range(10):
        extra[tx + 2 + i] += amath(i)
    for t in range(K3_D):
        e("s_barrier")
        for it in frag_ops(t): put(it)
    for t in range(NT):
        ops = []
        if t + K3_D < NT:
            e("s_barrier")
            ops = frag_ops(t+K3_D)
        ex = list(extra[t])
        fb = FB + 48*(t % (K3_D+1))
        for kk in range(2):
            wait([("f", t, kk)])
            for tt in range(5):
                a = ACC + 4*tt
                w = fb + 8 + 20*kk + 4*tt; h = fb + 4*kk
                c = "0" if (t == 0 and kk == 0) else f"v[{a}:{a+3}]"
                e(f"v_mfma_f32_16x16x32_bf16 v[{a}:{a+3}], v[{w}:{w+3}], v[{h}:{h+3}], {c}")
                left = 10 - (5*kk + tt)
                no = (len(ops) + left - 1)//left
                for it in ops[:no]: put(it)
                ops = ops[no:]
                ne = (len(ex) + left - 1)//left
                for it in ex[:ne]: put(it)
                ex = ex[ne:]
    e("s_nop 7")
    for tt in range(5):
        a = ACC + 4*tt
        for pr in range(2):
            i = 2*tt + pr
            e(f"v_cvt_pk_bf16_f32 v{T}, v{a+2*pr}, v{a+2*pr+1}")
            e(f"v_lshlrev_b32 v{T+1}, 16, v{T}")
            e(f"v_and_b32 v{T+2}, 0xffff0000, v{T}")
            e(f"v_add_f32 v{T+1}, v{XR+i}, v{T+1}")
            e(f"v_add_f32 v{T+2}, v{XNR+i}, v{T+2}")
            e(f"v_cvt_pk_bf16_f32 v{YR+i}, v{T+1}, v{T+2}")
        e(f"buffer_store_dwordx2 v[{YR+2*tt}:{YR+2*tt+1}], v3, s[32:35], 0 offen offset:{32*tt} {ST3}")
    trace_end(e, 2)
    e.label("K3_END")
    e("s_endpgm")
    return e.text()

def build(kernels):
    out = []
    out.append(open("cdna_kernels/%s.s.ref" % NAME).read().split("; Override launch")[0])
    for (name, grid, block, lds, body, vgpr) in kernels:
        out.append(f"; @launch kernel={name} grid=({grid},1,1) block=({block},1,1) lds={lds}\n")
    out.append('.amdgcn_target "amdgcn-amd-amdhsa--gfx950"\n.text\n')
    for (name, grid, block, lds, body, vgpr) in kernels:
        out.append(khead(name))
        out.append(body)
    out.append('.section .rodata,"a"\n')
    for (name, grid, block, lds, body, vgpr) in kernels:
        out.append(".p2align 6\n")
        out.append(kdesc(name, vgpr))
    return "".join(out)

if __name__ == "__main__":
    ks = [("prep_kernel", N_K1, 512, K1_LDS, k1(), 128),
          ("mid_kernel", N_K2, 896, K2_LDS, k2(), 128),
          ("fin_kernel", N_G2, 512, K3_LDS, k3(), 72 + 48*(K3_D+1))]
    open(sys.argv[1] if len(sys.argv) > 1 else "cdna_kernels/%s.s" % NAME, "w").write(build(ks))
```

```python
import sys
NAME = "parallel_sum__ssm_conv_h3__glu_gated_bilinear__prompt"
S, D, F = 2048, 640, 1728
WS_XN  = 0
WS_KVT = 0x280000
WS_H   = 0x500000
WS_Y2T = 0xC00000
WS_XNP = 0xF00000
WS_WP1 = 0x1200000
WS_WP2 = 0x1700000
WS_XCH = 0x1A00000
WS_XP = 0x2800000
WS_T3 = 0x2800000
SZ_T3 = 256*10240
SZ_SD = S*D*2
SZ_H = S*F*2

class E:
    def __init__(self):
        self.l = []
    def __call__(self, s):
        for line in s.strip("\n").split("\n"):
            self.l.append("    " + line.strip() if not line.strip().endswith(":") else line.strip())
    def label(self, n):
        self.l.append(n + ":")
    def text(self):
        return "\n".join(self.l) + "\n"

def srd(e, d, blo, bhi, nbytes):
    e(f"s_mov_b32 s{d}, s{blo}")
    e(f"s_mov_b32 s{d+1}, s{bhi}")
    e(f"s_mov_b32 s{d+2}, {nbytes}")
    e(f"s_mov_b32 s{d+3}, 0x00020000")

def srd_off(e, d, blo, bhi, off, nbytes):
    e(f"s_add_u32 s{d}, s{blo}, {off}")
    e(f"s_addc_u32 s{d+1}, s{bhi}, 0")
    e(f"s_mov_b32 s{d+2}, {nbytes}")
    e(f"s_mov_b32 s{d+3}, 0x00020000")

def kdesc(name, vgpr, sgpr=102):
    acc = (vgpr + 3)//4*4
    return f""".amdhsa_kernel {name}
  .amdhsa_next_free_vgpr {vgpr}
  .amdhsa_next_free_sgpr {sgpr}
  .amdhsa_accum_offset {acc}
  .amdhsa_group_segment_fixed_size 0
  .amdhsa_kernarg_size 104
  .amdhsa_user_sgpr_count 2
  .amdhsa_user_sgpr_kernarg_segment_ptr 1
  .amdhsa_system_sgpr_workgroup_id_x 1
.end_amdhsa_kernel
"""

import os
STAMP = os.environ.get("STAMP")
X3 = os.environ.get("X3", "").split(",")
X2 = os.environ.get("X2", "").split(",")
ST1 = os.environ.get("ST1", "sc1")
ST2H = os.environ.get("ST2H", "sc1")
ST2Y = os.environ.get("ST2Y", "")
ST3 = os.environ.get("ST3", "")
STW = os.environ.get("STW", "sc1")
STX = os.environ.get("STX", "sc1,").split(",")
XOFF = int(os.environ.get("XOFF", "2048"))
def stamp(e, idx):
    if not STAMP: return
    e(f"s_memtime s[88:89]")
    e("s_waitcnt lgkmcnt(0)")
    e(f"s_mov_b32 s{90+idx}, s88")
def stamp_dump(e, n, wg):
    if not STAMP: return
    e("s_load_dwordx2 s[84:85], s[0:1], 88")
    e("s_waitcnt lgkmcnt(0)")
    e("s_mov_b32 s86, 256")
    e("s_mov_b32 s87, 0x00020000")
    e(f"s_cmp_lg_u32 s2, {wg}")
    e("s_cbranch_scc1 9f")
    e("s_cmp_lg_u32 s3, 0")
    e("s_cbranch_scc1 9f")
    e("v_mov_b32 v120, 0")
    for i in range(1, n):
        e(f"s_sub_u32 s83, s{90+i}, s90")
        e("v_mov_b32 v121, s83")
        e(f"buffer_store_dword v121, v120, s[84:87], 0 offen offset:{4*i}")
    e("9:")

TRACE = os.environ.get("TRACE")
def trace_start(e):
    diag_start(e)
    if not TRACE: return
    e("s_memrealtime s[96:97]")
    e("s_memtime s[98:99]")
    e("s_mov_b32 s82, s2")
def trace_end(e, kidx, tid=0):
    if not TRACE: return
    e("s_waitcnt vmcnt(0) lgkmcnt(0)")
    e("s_memrealtime s[92:93]")
    e("s_memtime s[94:95]")
    e("s_load_dwordx2 s[84:85], s[0:1], 96")
    e("s_getreg_b32 s90, hwreg(HW_REG_HW_ID)")
    e("s_getreg_b32 s91, hwreg(HW_REG_XCC_ID)")
    e("s_waitcnt lgkmcnt(0)")
    e(f"s_add_u32 s84, s84, {(64<<20) + kidx*65536}")
    e("s_addc_u32 s85, s85, 0")
    e("s_mov_b32 s86, 65536")
    e("s_mov_b32 s87, 0x00020000")
    e("s_lshl_b32 s91, s91, 24")
    e("s_and_b32 s90, s90, 0xffffff")
    e("s_or_b32 s90, s90, s91")
    e("s_sub_u32 s94, s94, s98")
    e("v_mov_b32 v124, s96")
    e("v_mov_b32 v125, s92")
    e("v_mov_b32 v126, s90")
    e("v_mov_b32 v127, s94")
    e("s_lshl_b32 s83, s82, 4")
    e("v_mov_b32 v121, s83")
    e(f"v_cmp_eq_u32 vcc, {tid}, v0")
    e("s_and_saveexec_b64 s[80:81], vcc")
    e("s_cbranch_execz 8f")
    e("buffer_store_dwordx4 v[124:127], v121, s[84:87], 0 offen")
    e("s_waitcnt vmcnt(0)")
    e("8:")

PROF = os.environ.get("PROF")
def pt(e, acc):
    if not PROF: return
    e("s_memtime s[88:89]")
    e("s_waitcnt lgkmcnt(0)")
    e("s_sub_u32 s90, s88, s87")
    e(f"s_add_u32 s{acc}, s{acc}, s90")
    e("s_mov_b32 s87, s88")
def pinit(e):
    if not PROF: return
    for i in range(80, 87): e(f"s_mov_b32 s{i}, 0")
    e("s_memtime s[88:89]")
    e("s_waitcnt lgkmcnt(0)")
    e("s_mov_b32 s87, s88")
def pdump(e, wave_off):
    if not PROF: return
    e("s_load_dwordx2 s[92:93], s[0:1], 88")
    e("s_waitcnt lgkmcnt(0)")
    e("s_mov_b32 s94, 256")
    e("s_mov_b32 s95, 0x00020000")
    e(f"s_cmp_lg_u32 s2, {PROF}")
    e("s_cbranch_scc1 7f")
    e("s_cmp_lg_u32 s3, 0")
    e("s_cbranch_scc1 7f")
    e("v_mov_b32 v120, 0")
    for i in range(7):
        e(f"v_mov_b32 v121, s{80+i}")
        e(f"buffer_store_dword v121, v120, s[92:95], 0 offen offset:{wave_off + 4*i}")
    e("s_waitcnt vmcnt(0)")
    e("7:")

PROF2 = os.environ.get("PROF2")
def q(e, idx, wv=0):
    if not PROF2: return
    e("s_memtime s[88:89]")
    e("s_waitcnt lgkmcnt(0)")
    e(f"s_mov_b32 s{90+idx}, s88")
def qdump(e, n, wv=0):
    if not PROF2 or os.environ.get("PROFF"): return
    e("s_load_dwordx2 s[84:85], s[0:1], 88")
    e("s_waitcnt lgkmcnt(0)")
    e("s_mov_b32 s86, 256")
    e("s_mov_b32 s87, 0x00020000")
    e(f"s_cmp_lg_u32 s2, {PROF2}")
    e("s_cbranch_scc1 6f")
    e(f"s_cmp_lg_u32 s3, {wv}")
    e("s_cbranch_scc1 6f")
    e(f"v_mov_b32 v120, {64 if wv else 0}")
    for i in range(1, n):
        e(f"s_sub_u32 s83, s{90+i}, s90")
        e("v_mov_b32 v121, s83")
        e(f"buffer_store_dword v121, v120, s[84:87], 0 offen offset:{4*i}")
    e("6:")

PROF4 = os.environ.get("PROF4")
P4_REGS = [50,52,54,56,58,72,74,76,78,80,82,84,86]
P4_LO = int(os.environ.get('P4LO', '4'))
def bar(e, b):
    k = b - P4_LO
    if PROF4 and 0 <= k < 6:
        e(f"s_memtime s[{P4_REGS[2*k]}:{P4_REGS[2*k]+1}]")
    e("s_barrier")
    if PROF4 and 0 <= k < 6:
        e(f"s_memtime s[{P4_REGS[2*k+1]}:{P4_REGS[2*k+1]+1}]")
def p4dump(e, lab):
    if not PROF4: return
    e("s_load_dwordx2 s[92:93], s[0:1], 88")
    e("s_waitcnt lgkmcnt(0)")
    e("s_mov_b32 s94, 4096")
    e("s_mov_b32 s95, 0x00020000")
    e(f"s_cmp_lg_u32 s2, {PROF4}")
    e(f"s_cbranch_scc1 {lab}")
    e("v_lshrrev_b32 v120, 6, v0")
    e("v_lshlrev_b32 v120, 6, v120")
    for i in range(12):
        e(f"v_mov_b32 v121, s{P4_REGS[i]}")
        e(f"buffer_store_dword v121, v120, s[92:95], 0 offen offset:{512 + 4*i}")
    e.label(lab)

def code_touch(e, tag, sub, endlab, startlab=None):
    if "noct" in X2: return
    e("s_getpc_b64 s[60:61]")
    e.label(f"CT_{tag}")
    st = f"CT_{tag}"
    if startlab:
        e(f"s_add_u32 s60, s60, {startlab}-CT_{tag}")
        e("s_addc_u32 s61, s61, 0")
        st = startlab
    if sub: e(f"v_subrev_u32 v126, {sub}, v0")
    src = "v126" if sub else "v0"
    e(f"v_cmp_gt_u32 vcc, ({endlab}-{st})/64, {src}")
    e(f"v_lshlrev_b32 v126, 6, {src}")
    e("s_and_saveexec_b64 s[62:63], vcc")
    e("global_load_dword v127, v126, s[60:61]")
    e("s_mov_b64 exec, s[62:63]")

DIAG = os.environ.get("DIAG")
def diag_start(e):
    if not DIAG: return
    e("s_memrealtime s[96:97]")
    e("s_memtime s[98:99]")
def diag_end(e, kidx, slot, wg, tid, lab, wait=True):
    if not DIAG: return
    e(f"s_cmp_lg_u32 s2, {wg}")
    e(f"s_cbranch_scc1 {lab}")
    if wait: e("s_waitcnt vmcnt(0) lgkmcnt(0)")
    e("s_memrealtime s[92:93]")
    e("s_memtime s[94:95]")
    e("s_load_dwordx2 s[84:85], s[0:1], 88")
    e("s_waitcnt lgkmcnt(0)")
    e(f"s_add_u32 s84, s84, {512*(2-kidx)}")
    e("s_addc_u32 s85, s85, 0")
    e("s_mov_b32 s86, 256")
    e("s_mov_b32 s87, 0x00020000")
    e("s_sub_u32 s94, s94, s98")
    e("s_and_b32 s96, s96, 0xffffff")
    e("s_and_b32 s92, s92, 0xffffff")
    e("v_mov_b32 v124, s96")
    e("v_mov_b32 v125, s92")
    e("v_mov_b32 v126, s94")
    e("v_mov_b32 v121, 0")
    e(f"v_cmp_eq_u32 vcc, {tid}, v0")
    e("s_and_saveexec_b64 s[80:81], vcc")
    e(f"buffer_store_dwordx3 v[124:126], v121, s[84:87], 0 offen offset:{4*slot}")
    if kidx == 1:
        e("s_and_b32 s66, s66, 0xffffff")
        e("s_and_b32 s70, s70, 0xffffff")
        e("s_sub_u32 s68, s68, s98")
        e("s_sub_u32 s72, s72, s98")
        e("v_mov_b32 v116, s66")
        e("v_mov_b32 v117, s68")
        e("v_mov_b32 v118, s70")
        e("v_mov_b32 v119, s72")
        e(f"buffer_store_dwordx4 v[116:119], v121, s[84:87], 0 offen offset:36")
    e.label(lab)

def khead(name):
    return f""".globl {name}
.p2align 8
.type {name},@function
{name}:
"""

N_KV = 160
N_LN = 64
N_TC = 32
TWS = int(os.environ.get("TWS", "6"))
N_K1 = N_KV+N_LN+N_TC
K1_LDS = int(os.environ.get("K1LDS", str(128*144 + 256)))
def k1():
    e = E()
    e(f"s_cmp_ge_u32 s2, {N_K1}")
    e("s_cbranch_scc1 K1_END")
    code_touch(e, "k1", 0, "K1_END")
    trace_start(e)
    e(f"s_cmp_ge_u32 s2, {N_KV+N_LN}")
    e("s_cbranch_scc1 K1_TC")
    e("s_load_dwordx4 s[4:7], s[0:1], 0")
    e("s_load_dwordx4 s[8:11], s[0:1], 16")
    e("s_load_dwordx2 s[12:13], s[0:1], 96")
    e(f"s_cmp_lt_u32 s2, {N_KV}")
    e("s_cbranch_scc1 K1_KV")
    e("v_lshrrev_b32 v1, 8, v0")
    e(f"s_sub_u32 s14, s2, {N_KV}")
    e("v_readfirstlane_b32 s15, v1")
    e("s_lshl_b32 s14, s14, 1")
    e("v_and_b32 v80, 255, v0")
    e("s_add_u32 s14, s14, s15")
    e("s_waitcnt lgkmcnt(0)")
    srd(e, 16, 4, 5, SZ_SD)
    srd_off(e, 20, 12, 13, WS_XN, S*8)
    e("s_lshl_b32 s3, s14, 4")
    e("v_lshrrev_b32 v1, 4, v80")
    e("v_add_u32 v1, s3, v1")
    e("v_mul_u32_u24 v1, 1280, v1")
    e("v_and_b32 v2, 15, v80")
    e("v_lshlrev_b32 v2, 4, v2")
    e("v_add_u32 v1, v1, v2")
    for j in range(5):
        e(f"buffer_load_dwordx4 v[{4+4*j}:{7+4*j}], v1, s[16:19], 0 offen offset:{256*j}")
    e("v_lshrrev_b32 v72, 4, v80")
    e("v_add_u32 v72, s3, v72")
    e("v_lshlrev_b32 v72, 3, v72")
    e("v_and_b32 v73, 15, v80")
    srd_off(e, 28, 12, 13, WS_XNP, SZ_SD)
    e("v_lshrrev_b32 v1, 4, v80")
    e("v_and_b32 v2, 15, v80")
    e("v_lshrrev_b32 v3, 2, v1")
    e("v_and_b32 v74, 3, v1")
    e("v_and_b32 v75, 3, v2")
    e("v_lshl_add_u32 v74, v74, 2, v75")
    e("v_xor_b32 v74, v74, v3")
    e("v_lshlrev_b32 v74, 4, v74")
    e("v_lshl_add_u32 v74, v3, 8, v74")
    e("v_lshrrev_b32 v2, 2, v2")
    e("v_lshl_add_u32 v74, v2, 14, v74")
    e("s_lshr_b32 s25, s14, 4")
    e("s_mul_i32 s25, s25, 327680")
    e("s_and_b32 s26, s14, 15")
    e("s_lshl_b32 s26, s26, 10")
    e("s_add_u32 s25, s25, s26")
    e("s_mov_b32 s24, 0x3acccccd")
    e("v_cmp_eq_u32 vcc, 0, v73")
    for j in range(5):
        e(f"s_waitcnt vmcnt({4-j})")
        for i in range(4*j, 4*j+4):
            e(f"v_lshlrev_b32 v{32+2*i}, 16, v{4+i}")
            e(f"v_and_b32 v{33+2*i}, 0xffff0000, v{4+i}")
        for i in range(4*j, 4*j+4):
            if i == 0: continue
            if i == 1: e("v_pk_add_f32 v[24:25], v[32:33], v[34:35]")
            else: e(f"v_pk_add_f32 v[24:25], v[24:25], v[{32+2*i}:{33+2*i}]")
    e("v_add_f32 v24, v24, v25")
    def red16(r):
        for sh in (8, 4, 2, 1):
            e("s_nop 1")
            e(f"v_add_f32_dpp v{r}, v{r}, v{r} row_ror:{sh} row_mask:0xf bank_mask:0xf")
    red16(24)
    e("v_mul_f32 v24, s24, v24")
    e("v_mov_b32 v25, v24")
    for i in range(20):
        t = 26 + 2*(i & 1)
        e(f"v_pk_add_f32 v[{t}:{t+1}], v[{32+2*i}:{33+2*i}], v[24:25] neg_lo:[0,1] neg_hi:[0,1]")
        if i == 0: e(f"v_pk_mul_f32 v[30:31], v[{t}:{t+1}], v[{t}:{t+1}]")
        else: e(f"v_pk_fma_f32 v[30:31], v[{t}:{t+1}], v[{t}:{t+1}], v[30:31]")
    e("v_add_f32 v25, v30, v31")
    red16(25)
    e("v_mul_f32 v25, s24, v25")
    e("v_cvt_pk_bf16_f32 v26, v24, v25")
    e("v_and_b32 v27, 0xffff0000, v26")
    e("v_lshlrev_b32 v26, 16, v26")
    e("v_add_f32 v27, 0x3727c5ac, v27")
    e("v_cvt_pk_bf16_f32 v27, v27, v27")
    e("v_lshlrev_b32 v27, 16, v27")
    e("v_sqrt_f32 v27, v27")
    e("s_nop 0")
    e("v_cvt_pk_bf16_f32 v27, v27, v27")
    e("v_lshlrev_b32 v27, 16, v27")
    e("v_rcp_f32 v28, v27")
    e("s_and_saveexec_b64 s[36:37], vcc")
    e("buffer_store_dwordx2 v[26:27], v72, s[20:23], 0 offen")
    e("s_mov_b64 exec, s[36:37]")
    e("v_mov_b32 v24, v26")
    e("v_mov_b32 v25, v26")
    e("v_mov_b32 v76, v27")
    e("v_mov_b32 v77, v27")
    e("v_mov_b32 v29, v28")
    for i2 in range(0, 20, 2):
        ops = [[], []]
        for u in range(2):
            i = i2 + u
            a, b = 32+2*i, 33+2*i
            t = 30 if u == 0 else 78
            c = 2 + u
            ops[u] = [f"v_pk_add_f32 v[{a}:{b}], v[{a}:{b}], v[24:25] neg_lo:[0,1] neg_hi:[0,1]",
                      f"v_cvt_pk_bf16_f32 v{c}, v{a}, v{b}",
                      f"v_lshlrev_b32 v{a}, 16, v{c}",
                      f"v_and_b32 v{b}, 0xffff0000, v{c}",
                      f"v_pk_mul_f32 v[{t}:{t+1}], v[{a}:{b}], v[28:29]",
                      f"v_pk_fma_f32 v[{a}:{b}], v[{t}:{t+1}], v[76:77], v[{a}:{b}] neg_lo:[1,0,0] neg_hi:[1,0,0]",
                      f"v_pk_fma_f32 v[{t}:{t+1}], v[{a}:{b}], v[28:29], v[{t}:{t+1}]",
                      f"v_cvt_pk_bf16_f32 v{4+i}, v{t}, v{t+1}"]
        for x, y in zip(ops[0], ops[1]):
            e(x); e(y)
        if i2 & 3 == 2:
            j = i2 >> 2
            e(f"buffer_store_dwordx4 v[{4+4*j}:{7+4*j}], v74, s[28:31], s25 offen {ST1}")
            e("s_add_u32 s25, s25, 65536")
    trace_end(e, 3)
    e("s_endpgm")
    e.label("K1_TC")
    if "noct1" not in X2: code_touch(e, "k1b", 0, "K3_END", "mid_kernel")
    e("s_load_dwordx2 s[4:5], s[0:1], 32")
    e("s_load_dwordx4 s[8:11], s[0:1], 56")
    e(f"s_sub_u32 s3, s2, {N_KV+N_LN}")
    e(f"s_lshl_b32 s6, s3, {9 + TWS}")
    e("s_mul_i32 s3, s3, 81920")
    e("v_lshlrev_b32 v1, 4, v0")
    e(f"v_lshlrev_b32 v2, {TWS}, v0")
    e("s_waitcnt lgkmcnt(0)")
    srd(e, 16, 4, 5, SZ_SD)
    srd(e, 20, 8, 9, D*F*2)
    srd(e, 24, 10, 11, D*F*2)
    if "tw" in X2:
        n = -(-D*F*2 // (16384 << TWS))
        for i in range(n):
            e(f"buffer_load_dword v{50+2*i}, v2, s[20:23], s6 offen")
            e(f"buffer_load_dword v{51+2*i}, v2, s[24:27], s6 offen")
            e(f"s_add_u32 s6, s6, {16384 << TWS}")
    for i in range(10):
        e(f"buffer_load_dwordx4 v[{4+4*i}:{7+4*i}], v1, s[16:19], s3 offen")
        e("s_add_u32 s3, s3, 8192")
    e("s_waitcnt vmcnt(0)")
    for x in os.environ.get("K1SLEEP", "").split(","):
        if x: e(f"s_sleep {x}")
    trace_end(e, 3)
    e("s_endpgm")
    e.label("K1_KV")
    e("s_mul_hi_u32 s14, s2, 0x33333334")
    e("s_mul_i32 s15, s14, 5")
    e("s_sub_u32 s15, s2, s15")
    e("v_and_b32 v1, 15, v0")
    e("v_lshrrev_b32 v2, 4, v0")
    e("s_lshl_b32 s32, s14, 6")
    e("v_lshlrev_b32 v3, 1, v2")
    e("v_add_u32 v3, s32, v3")
    e("v_mul_u32_u24 v4, 1280, v3")
    e("s_lshl_b32 s33, s15, 8")
    e("v_lshlrev_b32 v5, 4, v1")
    e("v_add_u32 v5, s33, v5")
    e("v_add_u32 v4, v4, v5")
    e("v_subrev_u32 v6, 3840, v4")
    e("v_subrev_u32 v10, 2560, v4")
    e("v_subrev_u32 v11, 1280, v4")
    e("v_lshlrev_b32 v7, 2, v5")
    e("s_waitcnt lgkmcnt(0)")
    srd(e, 16, 6, 7, SZ_SD)
    srd(e, 20, 8, 9, SZ_SD)
    srd(e, 24, 10, 11, D*4*2)
    srd_off(e, 28, 12, 13, WS_KVT, SZ_SD)
    for j in range(4):
        e(f"buffer_load_dwordx4 v[{60+4*j}:{63+4*j}], v7, s[24:27], 0 offen offset:{16*j}")
    e("buffer_load_dwordx4 v[16:19], v6, s[16:19], 0 offen")
    e("buffer_load_dwordx4 v[20:23], v10, s[16:19], 0 offen")
    e("buffer_load_dwordx4 v[24:27], v11, s[16:19], 0 offen")
    e("buffer_load_dwordx4 v[28:31], v4, s[16:19], 0 offen")
    e("buffer_load_dwordx4 v[32:35], v4, s[16:19], 0 offen offset:1280")
    for r in range(2):
        e(f"buffer_load_dwordx4 v[{44+4*r}:{47+4*r}], v4, s[20:23], 0 offen offset:{1280*r}")
    e("s_mov_b32 s34, 0x05040100")
    e("s_mov_b32 s35, 0x07060302")
    e("v_mul_u32_u24 v8, 1168, v1")
    e("v_lshrrev_b32 v9, 2, v2")
    e("v_lshl_add_u32 v8, v9, 4, v8")
    e("v_and_b32 v9, 3, v2")
    e("v_xor_b32 v9, 3, v9")
    e("v_lshl_add_u32 v8, v9, 2, v8")
    e("v_lshrrev_b32 v12, 3, v0")
    e("v_and_b32 v13, 7, v0")
    e("v_mul_u32_u24 v14, 144, v12")
    e("v_lshrrev_b32 v15, 3, v12")
    e("v_add_u32 v15, v15, v13")
    e("v_lshl_add_u32 v14, v15, 4, v14")
    e("s_lshl_b32 s33, s15, 7")
    e("v_add_u32 v15, s33, v12")
    e("v_lshlrev_b32 v15, 12, v15")
    e("s_lshl_b32 s32, s14, 7")
    e("v_lshl_add_u32 v15, v13, 4, v15")
    e("s_add_u32 s33, s32, 0x40000")
    e("s_waitcnt vmcnt(7)")
    for p in range(4):
        for h in range(2):
            c = 2*p+h
            e(f"v_lshlrev_b32 v{76+8*p+h}, 16, v{60+2*c}")
            e(f"v_and_b32 v{78+8*p+h}, 0xffff0000, v{60+2*c}")
            e(f"v_lshlrev_b32 v{80+8*p+h}, 16, v{61+2*c}")
            e(f"v_and_b32 v{82+8*p+h}, 0xffff0000, v{61+2*c}")
    e("s_waitcnt vmcnt(0)")
    for p in range(4):
        W = 76 + 8*p
        for r in range(5):
            e(f"v_lshlrev_b32 v{60+2*r}, 16, v{16+4*r+p}")
            e(f"v_and_b32 v{61+2*r}, 0xffff0000, v{16+4*r+p}")
        ch = [[], []]
        for i in range(2):
            A = 108 + 6*i; T = A + 2; C = A + 4
            o = ch[i]
            for t in range(4):
                r = i + t
                w = 3 - t
                o.append(f"v_pk_mul_f32 v[{T}:{T+1}], v[{60+2*r}:{61+2*r}], v[{W+2*w}:{W+2*w+1}]")
                o.append(f"v_cvt_pk_bf16_f32 v{C}, v{T}, v{T+1}")
                if t == 0:
                    o.append(f"v_lshlrev_b32 v{A}, 16, v{C}")
                    o.append(f"v_and_b32 v{A+1}, 0xffff0000, v{C}")
                else:
                    o.append(f"v_lshlrev_b32 v{T}, 16, v{C}")
                    o.append(f"v_and_b32 v{T+1}, 0xffff0000, v{C}")
                    o.append(f"v_pk_add_f32 v[{A}:{A+1}], v[{A}:{A+1}], v[{T}:{T+1}]")
                    o.append(f"v_cvt_pk_bf16_f32 v{C}, v{A}, v{A+1}")
                    o.append(f"v_lshlrev_b32 v{A}, 16, v{C}")
                    o.append(f"v_and_b32 v{A+1}, 0xffff0000, v{C}")
            o.append(f"v_lshlrev_b32 v{T}, 16, v{44+4*i+p}")
            o.append(f"v_and_b32 v{T+1}, 0xffff0000, v{44+4*i+p}")
            o.append(f"v_pk_mul_f32 v[{A}:{A+1}], v[{A}:{A+1}], v[{T}:{T+1}]")
            o.append(f"v_cvt_pk_bf16_f32 v{C}, v{A}, v{A+1}")
        for x, y in zip(ch[0], ch[1]):
            e(x); e(y)
        e("v_perm_b32 v70, v112, v118, s34")
        e(f"ds_write_b32 v8, v70 offset:{(2*p)*144}")
        e("v_perm_b32 v71, v112, v118, s35")
        e(f"ds_write_b32 v8, v71 offset:{(2*p+1)*144}")
    e("s_waitcnt lgkmcnt(0)")
    e("s_barrier")
    e("ds_read_b128 v[16:19], v14")
    e(f"ds_read_b128 v[20:23], v14 offset:{64*144 + 8*16}")
    e("s_waitcnt lgkmcnt(1)")
    e(f"buffer_store_dwordx4 v[16:19], v15, s[28:31], s32 offen {ST1}")
    e("s_waitcnt lgkmcnt(0)")
    e(f"buffer_store_dwordx4 v[20:23], v15, s[28:31], s33 offen {ST1}")
    trace_end(e, 3)
    diag_end(e, 0, 0, 150, 0, "DG_1")
    e.label("K1_END")
    e("s_endpgm")
    return e.text()


N_K2 = 256
COPY = 4288
KVSZ = 33*144
CP_OFF = 2*KVSZ
SC_OFF = CP_OFF + 8*COPY
CV_SZ = SC_OFF
K2_NS = 4
K2_STG = 24576
CV_A = K2_NS*K2_STG
K2_LDS = max(CV_A + CV_SZ, 3*CV_SZ)
PB0 = 1
LB0 = 2
RPB = 6
CDL = int(os.environ.get("CDL", "0"))
PACE = [int(x) for x in os.environ.get("PACE", "").split(",") if x]
if os.environ.get("CS"):
    exec(os.environ["CS"])
C1_E = PB0 + 16

class VQ:
    def __init__(self, e): self.q = []; self.e = e
    def issue(self, tag, n): self.q += [tag]*n
    def wait(self, tags):
        idx = max([i for i, t in enumerate(self.q) if t in tags], default=-1)
        if idx < 0: return
        n = len(self.q) - 1 - idx
        self.e(f"s_waitcnt vmcnt({min(n, 63)})")
        self.q = self.q[idx+1:]

def write_copies(e, d, lab, ro):
    e(f"ds_write_b128 v117, v[{d}:{d+3}] offset:{ro}")
    for i in range(4):
        e(f"v_alignbit_b32 v{16+i}, v{d+i+1}, v{d+i}, 16")
    e(f"ds_write_b128 v117, v[16:19] offset:{ro + COPY}")
    for i in range(4):
        e(f"v_mov_b32 v{20+i}, v{d+i+1}")
    e(f"ds_write_b128 v117, v[20:23] offset:{ro + 2*COPY}")
    for i in range(4):
        e(f"v_alignbit_b32 v{24+i}, v{d+i+2}, v{d+i+1}, 16")
    e(f"ds_write_b128 v117, v[24:27] offset:{ro + 3*COPY}")
    e("s_cmp_eq_u32 s39, 0")
    e(f"s_cbranch_scc0 {lab}")
    e("v_mov_b32 v28, 0")
    e(f"v_lshlrev_b32 v29, 16, v{d}")
    e("v_mov_b32 v32, 0")
    e(f"v_mov_b32 v33, v{d}")
    e("v_mov_b32 v34, v29")
    e("v_mov_b32 v35, v16")
    e("s_mov_b64 exec, 1")
    e(f"ds_write_b64 v117, v[28:29] offset:{ro + COPY - 8}")
    e(f"ds_write_b64 v117, v[32:33] offset:{ro + 2*COPY - 8}")
    e(f"ds_write_b64 v117, v[34:35] offset:{ro + 3*COPY - 8}")
    e("s_mov_b64 exec, -1")
    e.label(lab)

def conv_main(e):
    ACCS = [16, 112]; FL, FH, BB = 32, 56, 80
    lq = []
    def wait(tags):
        idx = max((i for i, t in enumerate(lq) if t in tags), default=-1)
        if idx >= 0: e(f"s_waitcnt lgkmcnt({min(len(lq) - 1 - idx, 15)})")
    def put(it):
        if it[0] is None: wait(it[1]); return
        e(it[0])
        for _ in range(it[2] if len(it) > 2 else 1):
            if it[1] is not None: lq.append(it[1])
    def lda(F):
        c, f = divmod(F, 17)
        sl = F % 6
        r = []
        for (R, va) in ((FL, 8), (FH, 9)):
            o = 4*COPY*c + 64*f
            r.append((f"ds_read_b64 v[{R+4*sl}:{R+4*sl+1}], v{va} offset:{o}", ("a", F)))
            r.append((f"ds_read_b64 v[{R+4*sl+2}:{R+4*sl+3}], v{va} offset:{o+8}", ("a", F)))
        return r
    def ldb(P):
        c, p = divmod(P, 16)
        st = p >> 1; kk = 1 - (p & 1)
        bb = BB + 8*(P & 3)
        pre = ""
        if p & 1 == 0:
            pre = f"v_subrev_u32 v12, {144*st}, v10\nv_max_i32 v3, v12, v11\n"
        return [(pre + f"ds_read_b128 v[{bb}:{bb+3}], v3 offset:{KVSZ*c + 64*kk}", ("b", P)),
                (f"ds_read_b128 v[{bb+4}:{bb+7}], v12 offset:{KVSZ*c + 16*144 + 64*kk}", ("b", P))]
    def dterm_ld(c):
        return [(f"ds_read_b64 v[{4+2*h}:{5+2*h}], v13 offset:{KVSZ*c + 16*144*h}", ("k", c)) for h in range(2)]
    def dterm(c, T):
        sch = 65 if c == 0 else 69
        r = [(f"s_and_b32 s29, s{sch}, 1\ns_lshl_b32 s29, s29, 4\ns_lshr_b32 s29, s{70+c}, s29\ns_lshl_b32 s29, s29, 16", None), (None, [("k", c)])]
        for h in range(2):
            k0, k1 = 4+2*h, 5+2*h
            r += [(f"v_and_b32 v{T}, 0xffff0000, v{k1}", None), (f"v_lshlrev_b32 v{T+1}, 16, v{k1}", None),
                  (f"v_and_b32 v{T+2}, 0xffff0000, v{k0}", None), (f"v_lshlrev_b32 v{T+3}, 16, v{k0}", None)]
            r += [(f"v_mul_f32 v{T+j}, s29, v{T+j}", None) for j in range(4)]
            r += [(f"v_cvt_pk_bf16_f32 v{k0}, v{T}, v{T+1}", None), (f"v_cvt_pk_bf16_f32 v{k1}, v{T+2}, v{T+3}", None)]
        return r
    def exch(c):
        A = ACCS[c]
        t = ["s_cmp_eq_u32 s38, 0", f"s_cbranch_scc1 CX0_{c}"]
        t += [f"buffer_store_dwordx4 v[{A+4*h}:{A+4*h+3}], v14, s[60:63], 0 offen offset:{XOFF*c + 1024*h} {STX[c]}" for h in range(2)]
        t += [f"v_mov_b32 v{A+i}, v{A+8+i}" for i in range(8)]
        t += [f"s_branch CX1_{c}", f"CX0_{c}:"]
        t += [f"buffer_store_dwordx4 v[{A+8+4*h}:{A+8+4*h+3}], v14, s[60:63], 0 offen offset:{XOFF*c + 1024*h} {STX[c]}" for h in range(2)]
        t += [f"CX1_{c}:"]
        return [("\n".join(t), None)]
    def xread(c):
        A = ACCS[c]
        return [(f"buffer_load_dwordx4 v[{A+8+4*h}:{A+11+4*h}], v15, s[60:63], 0 offen offset:{XOFF*c + 1024*h}", None) for h in range(2)]
    def fin(c, h):
        sch = 65 if c == 0 else 69
        o = ACCS[c] + 4*h; p = ACCS[c] + 8 + 4*h
        r = [("s_waitcnt vmcnt(0)", None)] if h == 0 else []
        r += [(f"v_add_f32 v{o+j}, v{o+j}, v{p+j}", None) for j in range(4)]
        r += [(f"v_cvt_pk_bf16_f32 v{p}, v{o}, v{o+1}", None), (f"v_cvt_pk_bf16_f32 v{p+1}, v{o+2}, v{o+3}", None)]
        r += [(f"v_lshlrev_b32 v{o}, 16, v{p}", None), (f"v_and_b32 v{o+1}, 0xffff0000, v{p}", None),
              (f"v_lshlrev_b32 v{o+2}, 16, v{p+1}", None), (f"v_and_b32 v{o+3}, 0xffff0000, v{p+1}", None)]
        for k in range(2):
            r += [(f"v_lshlrev_b32 v{p+2}, 16, v{4+2*h+k}", None), (f"v_and_b32 v{p+3}, 0xffff0000, v{4+2*h+k}", None),
                  (f"v_add_f32 v{o+2*k}, v{o+2*k}, v{p+2}", None), (f"v_add_f32 v{o+2*k+1}, v{o+2*k+1}, v{p+3}", None)]
        r += [(f"v_cvt_pk_bf16_f32 v{p}, v{o}, v{o+1}", None), (f"v_cvt_pk_bf16_f32 v{p+1}, v{o+2}, v{o+3}", None)]
        r += [(f"s_lshl_b32 s48, s{sch}, 7\ns_add_u32 s48, s48, {16*81920*h}\nbuffer_store_dwordx2 v[{p}:{p+1}], v2, s[24:27], s48 offen {ST2Y}", None)]
        return r
    extra = {P: [] for P in range(32)}
    tail = {P: [] for P in range(32)}
    tail[16] = exch(0)
    tail[19] = [("s_waitcnt vmcnt(0)", None)]
    extra[20] = xread(0)
    extra[24] = fin(0, 0)
    extra[25] = fin(0, 1)
    tail[25] = [("s_cmp_ge_u32 s69, 640\ns_cbranch_scc1 K2_END", None)]
    extra[26] = dterm_ld(1)
    d1 = dterm(1, 16)
    extra[27] = d1[:12]; extra[28] = d1[12:]
    bcur = 0
    while bcur < PB0:
        bar(e, bcur); bcur += 1
    for it in dterm_ld(0) + lda(0) + lda(1) + ldb(0) + lda(2) + ldb(1) + lda(3) + ldb(2) + dterm(0, 16): put(it)
    nfa = 4; nfb = 3
    for P in range(32):
        c, p = divmod(P, 16)
        if P & 1 == 0:
            bar(e, bcur); bcur += 1
        if P == 0: e("s_setprio 3")
        F0 = 17*c + p
        ops = []
        while nfa <= F0 + 4 and nfa < 34:
            ops += lda(nfa); nfa += 1
        while nfb <= P + 3 and nfb < 32:
            ops += ldb(nfb); nfb += 1
        ops = extra[P][:0] + ops
        ex = list(extra[P])
        wait([("a", F0), ("a", F0+1), ("b", P)])
        bb = BB + 8*(P & 3)
        A = ACCS[c]
        mfs = []
        for mu in range(2):
            fl = FL + 4*((F0+mu) % 6)
            a0 = A + 8*mu; a1 = a0 + 4
            c0 = "0" if p == 0 else f"v[{a0}:{a0+3}]"
            c1 = "0" if p == 0 else f"v[{a1}:{a1+3}]"
            mfs.append(f"v_mfma_f32_16x16x32_bf16 v[{a0}:{a0+3}], v[{fl}:{fl+3}], v[{bb}:{bb+3}], {c0}")
            mfs.append(f"v_mfma_f32_16x16x32_bf16 v[{a1}:{a1+3}], v[{fl}:{fl+3}], v[{bb+4}:{bb+7}], {c1}")
        for mu in range(2):
            fh = FH + 4*((F0+mu) % 6)
            a1 = A + 8*mu + 4
            mfs.append(f"v_mfma_f32_16x16x32_bf16 v[{a1}:{a1+3}], v[{fh}:{fh+3}], v[{bb}:{bb+3}], v[{a1}:{a1+3}]")
        for i in range(6):
            if not ("cnm" in X2 or ("cn2" in X2 and i in (0, 2))): e(mfs[i])
            no = (len(ops) + 5 - i) // (6 - i)
            for it in ops[:no]: put(it)
            ops = ops[no:]
            ne = (len(ex) + 5 - i) // (6 - i)
            for it in ex[:ne]: put(it)
            ex = ex[ne:]
        for it in tail[P]: put(it)
        if P == 15: q(e, 8, 8)
    q(e, 10, 8)
    e("s_setprio 0")
    e("s_nop 7")
    if "gx1" in X2:
        for it in exch(1): put(it)
        bar(e, bcur); bcur += 1
        e("s_waitcnt vmcnt(0)")
        bar(e, bcur); bcur += 1
        for it in xread(1): put(it)
        while bcur < 20:
            bar(e, bcur); bcur += 1
        for it in fin(1, 0) + fin(1, 1): put(it)
        return
    A = ACCS[1]
    bar(e, bcur); bcur += 1
    e("s_lshl_b32 s44, s39, 11")
    e(f"s_add_u32 s45, s66, {CP_OFF}")
    e("s_add_u32 s44, s44, s45")
    e("v_lshl_add_u32 v32, v1, 4, s44")
    e("s_xor_b32 s44, s39, 2")
    e("s_lshl_b32 s44, s44, 11")
    e("s_add_u32 s44, s44, s45")
    e("v_lshl_add_u32 v33, v1, 4, s44")
    e("s_cmp_eq_u32 s38, 0")
    e("s_cbranch_scc1 CX0_1")
    for h in range(2): e(f"ds_write_b128 v32, v[{A+4*h}:{A+4*h+3}] offset:{1024*h}")
    for i in range(8): e(f"v_mov_b32 v{A+i}, v{A+8+i}")
    e("s_branch CX1_1")
    e.label("CX0_1")
    for h in range(2): e(f"ds_write_b128 v32, v[{A+8+4*h}:{A+8+4*h+3}] offset:{1024*h}")
    e.label("CX1_1")
    e("s_waitcnt lgkmcnt(0)")
    bar(e, bcur); bcur += 1
    for h in range(2): e(f"ds_read_b128 v[{A+8+4*h}:{A+11+4*h}], v33 offset:{1024*h}")
    while bcur < 20:
        bar(e, bcur); bcur += 1
    e("s_waitcnt lgkmcnt(0)")
    for it in fin(1, 0)[1:] + fin(1, 1): put(it)

def k2():
    e = E()
    NS = K2_NS; STG = K2_STG; NT = 20
    e(f"s_cmp_ge_u32 s2, {N_K2}")
    e("s_cbranch_scc1 K2_END")
    code_touch(e, "k2", 512, "K2_END")
    trace_start(e)
    e("s_load_dwordx4 s[4:7], s[0:1], 32")
    e("s_load_dwordx2 s[12:13], s[0:1], 96")
    e("s_load_dwordx4 s[8:11], s[0:1], 56")
    e("s_load_dwordx2 s[50:51], s[0:1], 72")
    e("v_lshrrev_b32 v1, 6, v0")
    e("s_nop 0")
    e("v_readfirstlane_b32 s3, v1")
    e("v_and_b32 v1, 63, v0")
    e("v_lshlrev_b32 v2, 4, v1")
    e("s_and_b32 s14, s2, 7")
    e("s_lshr_b32 s15, s2, 3")
    if "map2" in X2:
        e("s_mul_i32 s32, s14, 27")
        e("s_add_u32 s65, s32, s15")
        e("s_lshl_b32 s65, s65, 1")
        e("s_add_u32 s69, s65, 1")
        e(f"s_mov_b32 s66, {CV_A}")
        e("s_cmp_lt_u32 s15, 27")
        e("s_cselect_b32 s64, 1, 0")
        e("s_cbranch_scc1 K2_R")
        e("s_mul_i32 s32, s14, 5")
        e("s_add_u32 s32, s32, s15")
        e("s_add_u32 s65, s32, 405")
        e("s_add_u32 s69, s65, 120")
        e("s_mov_b32 s66, 0")
        e.label("K2_R")
        e("s_mov_b32 s76, s15")
        e("s_mov_b32 s77, s14")
    else:
        e("s_lshr_b32 s28, s14, 2")
        e("s_lshl_b32 s29, s28, 1")
        e("s_sub_u32 s29, 28, s29")
        e("s_and_b32 s31, s14, 3")
        e("s_mul_i32 s32, s31, s29")
        e("s_mul_i32 s33, s28, 112")
        e("s_add_u32 s32, s32, s33")
        e("s_add_u32 s65, s32, s15")
        e("s_lshl_b32 s65, s65, 1")
        e("s_add_u32 s69, s65, 1")
        e(f"s_mov_b32 s66, {CV_A}")
        e("s_cmp_lt_u32 s15, s29")
        e("s_cselect_b32 s64, 1, 0")
        e("s_cbranch_scc1 K2_R")
        e("s_sub_u32 s32, 32, s29")
        e("s_mul_i32 s32, s32, s31")
        e("s_lshl_b32 s33, s28, 4")
        e("s_add_u32 s32, s32, s33")
        e("s_add_u32 s32, s32, s15")
        e("s_sub_u32 s32, s32, s29")
        e("s_add_u32 s65, s32, 432")
        e("s_add_u32 s69, s65, 120")
        e("s_mov_b32 s66, 0")
        e.label("K2_R")
        e("s_mul_i32 s76, s28, 14")
        e("s_lshr_b32 s33, s15, 1")
        e("s_add_u32 s76, s76, s33")
        e("s_lshl_b32 s77, s31, 1")
        e("s_and_b32 s33, s15, 1")
        e("s_add_u32 s77, s77, s33")
    e("s_waitcnt lgkmcnt(0)")
    srd(e, 16, 4, 5, SZ_SD)
    e("s_cmp_lt_u32 s3, 12")
    e("s_cbranch_scc1 K2_CW")
    e("s_sub_u32 s3, s3, 12")
    e("s_cmp_eq_u32 s64, 0")
    e("s_cbranch_scc1 K2_RP")
    srd_off(e, 52, 12, 13, WS_XNP, SZ_SD)
    e("s_cmp_eq_u32 s3, 0")
    e("s_cselect_b32 s56, s8, s10")
    e("s_cselect_b32 s57, s9, s11")
    e(f"s_mov_b32 s58, {D*F*2}")
    e("s_mov_b32 s59, 0x00020000")
    e("v_lshrrev_b32 v3, 3, v1")
    e("v_and_b32 v4, 7, v1")
    e("v_bfe_u32 v5, v3, 1, 1")
    e("v_lshlrev_b32 v5, 2, v5")
    e("v_xor_b32 v4, v4, v5")
    e("v_mul_u32_u24 v3, 3456, v3")
    e("v_lshl_add_u32 v3, v4, 4, v3")
    for i in range(1, 4):
        e(f"v_add_u32 v{3+i}, {i*(8*3456-1024)}, v3")
    e("s_lshl_b32 s72, s3, 13")
    e("s_lshl_b32 s73, s3, 12")
    e("s_mul_i32 s74, s77, 327680")
    e("s_add_u32 s74, s74, s72")
    e("s_lshl_b32 s75, s76, 7")
    e("s_add_u32 s73, s73, 16384")
    def g1_dma():
        e("s_mov_b32 m0, s72")
        e("s_add_u32 s34, s74, 4096")
        for i in range(4):
            e(f"buffer_load_dwordx4 v2, s[52:55], s74 offen offset:{i*1024} lds")
        e("s_add_u32 m0, s72, 4096")
        e("s_add_u32 s74, s74, 16384")
        for i in range(4):
            e(f"buffer_load_dwordx4 v2, s[52:55], s34 offen offset:{i*1024} lds")
        e("s_mov_b32 m0, s73")
        e(f"s_add_u32 s72, s72, {STG}")
        for i in range(4):
            e(f"buffer_load_dwordx4 v{3+i}, s[56:59], s75 offen offset:{i*1024} lds")
        e(f"s_add_u32 s75, s75, {32*3456}")
        e(f"s_add_u32 s73, s73, {STG}")
    def lst():
        if PROF2:
            e("s_memtime s[88:89]")
            e("s_memrealtime s[90:91]")
            e("s_waitcnt lgkmcnt(0)")
            e("v_cmp_eq_u32 vcc, s81, v1")
            e("v_mov_b32 v21, s88")
            e("v_cndmask_b32 v20, v20, v21, vcc")
            e("v_mov_b32 v21, s90")
            e("v_cndmask_b32 v22, v22, v21, vcc")
            e("s_add_u32 s81, s81, 1")
    e("s_mov_b32 s81, 0")
    lst()
    e("s_mov_b32 s79, 0")
    e(f"s_mov_b32 s80, {NS*STG}")
    e.label("K2_LP")
    g1_dma()
    e("s_add_u32 s79, s79, 1")
    e(f"s_cmp_lg_u32 s79, {LB0}")
    e("s_cbranch_scc1 K2_LP2")
    lst()
    e(f"s_waitcnt vmcnt({12*(LB0-1)})")
    e("s_barrier")
    lst()
    e.label("K2_LP2")
    e(f"s_cmp_lt_u32 s79, {NS-1}")
    e("s_cbranch_scc1 K2_LP")
    if PACE: e(f"s_mov_b32 s78, {PACE[0]}")
    e.label("K2_LGL")
    if PACE:
        e(f"s_cmp_ge_u32 s79, {NS - 1 + PACE[2]}")
        e("s_cbranch_scc1 K2_PE")
        e("s_lshr_b32 s33, s78, 2")
        e.label("K2_PL")
        e("s_sleep 1")
        e("s_sub_u32 s33, s33, 1")
        e("s_cmp_lg_u32 s33, 0")
        e("s_cbranch_scc1 K2_PL")
        e(f"s_sub_u32 s78, s78, {PACE[1]}")
        e.label("K2_PE")
    e(f"s_waitcnt vmcnt({12*(NS-3)})")
    e("s_barrier")
    lst()
    g1_dma()
    e("s_cmp_ge_u32 s72, s80")
    e("s_cselect_b32 s33, s80, 0")
    e("s_sub_u32 s72, s72, s33")
    e("s_sub_u32 s73, s73, s33")
    e("s_add_u32 s79, s79, 1")
    if os.environ.get("K2SL"):
        sl = [int(x) for x in os.environ['K2SL'].split(",")]
        if len(sl) == 1: e(f"s_sleep {sl[0]}")
        else:
            e(f"s_sub_u32 s33, s79, {sl[1]}")
            e(f"s_cmp_ge_u32 s33, {sl[2]-sl[1]}")
            e("s_cbranch_scc1 K2_NSL")
            e(f"s_sleep {sl[0]}")
            e.label("K2_NSL")
    e(f"s_cmp_lt_u32 s79, {NT}")
    e("s_cbranch_scc1 K2_LGL")
    for b in range(NT-NS+2, (max(NT, C1_E+1) if PROF2 else NT)):
        e(f"s_waitcnt vmcnt({12*max(NT-1-b, 0)})")
        e("s_barrier")
        lst()
    if PROF2:
        e("s_load_dwordx2 s[84:85], s[0:1], 88")
        e("s_waitcnt lgkmcnt(0)")
        e("s_mov_b32 s86, 256")
        e("s_mov_b32 s87, 0x00020000")
        e(f"s_cmp_lg_u32 s2, {PROF2}")
        e("s_cbranch_scc1 K2_END")
        e("s_cmp_lg_u32 s3, 0")
        e("s_cbranch_scc1 K2_END")
        e("v_lshlrev_b32 v120, 2, v1")
        e("buffer_store_dword v20, v120, s[84:87], 0 offen offset:128")
        e("v_cmp_gt_u32 vcc, 32, v1")
        e("s_and_saveexec_b64 s[92:93], vcc")
        e("buffer_store_dword v22, v120, s[84:87], 0 offen")
    e("s_endpgm")
    e.label("K2_RP")
    srd(e, 52, 50, 51, D*F*2)
    srd_off(e, 56, 12, 13, WS_WP2, D*F*2)
    e("s_sub_u32 s28, s65, 432")
    e("s_lshl_b32 s28, s28, 1")
    e("s_add_u32 s28, s28, s3")
    e("s_mul_hi_u32 s29, s28, 0x1999999a")
    e("s_mul_i32 s30, s29, 10")
    e("s_sub_u32 s30, s28, s30")
    e("s_mul_i32 s30, s30, 1728")
    e("s_mul_i32 s29, s29, 160")
    e("s_mul_i32 s28, s28, 27648")
    e("s_mov_b32 s31, 0xcccccccd")
    e("v_add_u32 v3, s30, v1")
    for i in range(27):
        e(f"v_add_u32 v4, {64*i}, v3")
        e("v_mul_hi_u32 v5, v4, s31")
        e("v_lshrrev_b32 v5, 3, v5")
        e("v_mul_u32_u24 v6, 10, v5")
        e("v_sub_u32 v6, v4, v6")
        e("v_mul_u32_u24 v5, 1280, v5")
        e("v_lshl_add_u32 v5, v6, 4, v5")
        e(f"buffer_load_dwordx4 v[{8+4*i}:{11+4*i}], v5, s[52:55], s29 offen")
    for i in range(RPB):
        if i == 1 and CDL: e(f"s_sleep {CDL}")
        e("s_barrier")
    e("s_waitcnt vmcnt(0)")
    for i in range(27):
        e(f"buffer_store_dwordx4 v[{8+4*i}:{11+4*i}], v2, s[56:59], s28 offen offset:{(i&3)*1024} {STW}")
        if i & 3 == 3: e("s_add_u32 s28, s28, 4096")
    e("s_endpgm")
    e.label("K2_CW")
    e("s_cmp_lt_u32 s3, 8")
    e("s_cselect_b32 s33, s64, 0")
    e("s_cmp_eq_u32 s33, 1")
    e("s_cbranch_scc1 K2_G")
    srd_off(e, 20, 12, 13, WS_KVT, SZ_SD)
    srd_off(e, 24, 12, 13, WS_T3, SZ_T3)
    q(e, 0, 8)
    e("s_and_b32 s39, s3, 3")
    e("s_lshr_b32 s38, s3, 2")
    e("s_cmp_eq_u32 s64, 1")
    e("s_cselect_b32 s38, 0, s38")
    e("s_mul_i32 s33, s38, 40")
    e("s_add_u32 s65, s65, s33")
    e("s_add_u32 s69, s69, s33")
    e(f"s_mul_i32 s33, s38, {CV_SZ}")
    e("s_add_u32 s66, s66, s33")
    e("s_lshr_b32 s38, s39, 1")
    e("s_min_u32 s68, s69, 639")
    e("s_lshr_b32 s28, s65, 1")
    e("s_lshl_b32 s28, s28, 2")
    e("s_load_dword s70, s[6:7], s28")
    e("s_lshr_b32 s28, s68, 1")
    e("s_lshl_b32 s28, s28, 2")
    e("s_load_dword s71, s[6:7], s28")
    e("s_lshl_b32 s32, s65, 12")
    e("s_lshl_b32 s33, s68, 12")
    e("v_lshl_add_u32 v16, s39, 6, v1")
    e("v_lshlrev_b32 v12, 4, v16")
    e("buffer_load_dwordx4 v[104:107], v12, s[16:19], s32 offen")
    e("buffer_load_dwordx2 v[108:109], v12, s[16:19], s32 offen offset:16")
    e("buffer_load_dwordx4 v[4:7], v12, s[20:23], s32 offen")
    e("buffer_load_dwordx4 v[120:123], v12, s[16:19], s33 offen")
    e("buffer_load_dwordx2 v[124:125], v12, s[16:19], s33 offen offset:16")
    e("buffer_load_dwordx4 v[112:115], v12, s[20:23], s33 offen")
    e(f"s_add_u32 s34, s66, {CP_OFF + 128}")
    e("v_add_u32 v117, s34, v12")
    for i in range(4):
        e(f"v_mov_b32 v{28+i}, 0")
    e("v_lshrrev_b32 v21, 3, v1")
    e(f"v_mul_u32_u24 v20, {COPY}, v21")
    e("v_and_b32 v21, 7, v1")
    e("v_lshl_add_u32 v20, v21, 4, v20")
    e(f"s_add_u32 s34, s66, {CP_OFF}")
    e("v_add_u32 v20, s34, v20")
    e("v_and_b32 v22, 15, v1")
    e("v_bfe_u32 v21, v1, 4, 1")
    e(f"v_mul_u32_u24 v21, {KVSZ}, v21")
    e("v_lshl_add_u32 v21, v22, 4, v21")
    e("v_add_u32 v21, s66, v21")
    e("v_cmp_gt_u32 vcc, 9, v22")
    e("s_mov_b32 vcc_hi, 0")
    e("s_cmp_eq_u32 s39, 0")
    e("s_cbranch_scc0 CF_0")
    e("ds_write_b128 v20, v[28:31]")
    e("s_and_saveexec_b64 s[36:37], vcc")
    e("ds_write_b128 v21, v[28:31]")
    e("s_mov_b64 exec, s[36:37]")
    e.label("CF_0")
    e("v_lshrrev_b32 v118, 3, v16")
    e("v_mul_u32_u24 v118, 144, v118")
    e("v_and_b32 v26, 7, v16")
    e("v_lshl_add_u32 v118, v26, 4, v118")
    e("s_add_u32 s34, s66, 144")
    e("v_add_u32 v118, s34, v118")
    e("v_and_b32 v40, 15, v1")
    e("v_lshrrev_b32 v41, 4, v1")
    e("v_add_u32 v16, 1, v40")
    e("v_and_b32 v16, 3, v16")
    e(f"v_mul_u32_u24 v8, {COPY - 2}, v16")
    e("v_lshl_add_u32 v8, v40, 1, v8")
    e("v_lshlrev_b32 v17, 4, v41")
    e("v_sub_u32 v8, v8, v17")
    e("s_lshl_b32 s41, s38, 10")
    e("s_and_b32 s42, s39, 1")
    e("s_lshl_b32 s42, s42, 5")
    e("s_add_u32 s42, s42, s41")
    e("s_add_u32 s42, s42, s66")
    e(f"s_add_u32 s42, s42, {CP_OFF + 2*(64-7) - 64}")
    e("v_add_u32 v8, s42, v8")
    e("v_add_u32 v9, 2048, v8")
    e("v_mul_u32_u24 v10, 144, v40")
    e("v_lshlrev_b32 v11, 4, v41")
    e("v_add_u32 v11, s66, v11")
    e("v_add_u32 v10, v10, v11")
    e("s_mul_i32 s43, s38, 1152")
    e("s_sub_u32 s43, 144, s43")
    e("v_add_u32 v10, s43, v10")
    e("s_mul_i32 s44, s2, 12")
    e("s_add_u32 s44, s44, s3")
    e("s_xor_b32 s45, s44, 2")
    e("s_lshl_b32 s44, s44, 12")
    e("s_lshl_b32 s45, s45, 12")
    e("v_add_u32 v14, s44, v2")
    e("v_add_u32 v15, s45, v2")
    e("v_mul_u32_u24 v13, 144, v40")
    e("v_lshrrev_b32 v42, 1, v41")
    e("v_lshl_add_u32 v13, v42, 4, v13")
    e("v_and_b32 v42, 1, v41")
    e("v_lshlrev_b32 v42, 3, v42")
    e("v_xor_b32 v42, 8, v42")
    e("v_add_u32 v13, v13, v42")
    e("s_lshl_b32 s46, s39, 5")
    e("s_add_u32 s47, s46, s66")
    e("s_add_u32 s47, s47, 144")
    e("v_add_u32 v13, s47, v13")
    e("v_mul_u32_u24 v2, 81920, v40")
    e("v_lshl_add_u32 v2, v41, 3, v2")
    e("v_add_u32 v2, s46, v2")
    e("s_waitcnt vmcnt(4)")
    write_copies(e, 104, "CF_1", 0)
    e("s_waitcnt vmcnt(3)")
    e("ds_write_b128 v118, v[4:7]")
    e("s_waitcnt vmcnt(1)")
    write_copies(e, 120, "CF_2", 4*COPY)
    e("s_waitcnt vmcnt(0)")
    e(f"ds_write_b128 v118, v[112:115] offset:{KVSZ}")
    e("s_waitcnt lgkmcnt(0)")
    srd_off(e, 60, 12, 13, WS_XCH, 256*12*4096)
    q(e, 5, 8)
    conv_main(e)
    q(e, 11, 8)
    if PROF2 or TRACE: e("s_waitcnt vmcnt(0)")
    q(e, 7, 8)
    qdump(e, 12, 8)
    p4dump(e, "P4_C")
    trace_end(e, 0, 512)
    e("s_endpgm")
    e.label("K2_G")
    q(e, 0)
    srd_off(e, 60, 12, 13, WS_H, SZ_H)
    e("s_lshr_b32 s47, s3, 1")
    e("s_and_b32 s48, s3, 1")
    e("v_and_b32 v4, 31, v1")
    e("v_lshrrev_b32 v3, 5, v1")
    e("s_lshl_b32 s49, s47, 6")
    e("v_add_u32 v4, s49, v4")
    e("v_lshrrev_b32 v7, 2, v4")
    e("v_and_b32 v5, 3, v4")
    e("v_lshl_add_u32 v5, v5, 2, v3")
    e("v_and_b32 v6, 3, v7")
    e("v_xor_b32 v5, v5, v6")
    e("v_lshlrev_b32 v5, 4, v5")
    e("v_lshl_add_u32 v12, v7, 8, v5")
    e("v_xor_b32 v13, 32, v12")
    e("v_lshrrev_b32 v8, 4, v1")
    e("v_bfe_u32 v3, v1, 2, 2")
    e("v_and_b32 v4, 3, v1")
    e("v_lshrrev_b32 v5, 1, v8")
    e("v_lshl_add_u32 v5, v5, 3, v3")
    e("v_lshlrev_b32 v5, 7, v5")
    e("v_and_b32 v6, 1, v8")
    e("v_lshlrev_b32 v6, 1, v6")
    e("v_lshrrev_b32 v7, 1, v4")
    e("v_add_u32 v6, v6, v7")
    e("s_lshl_b32 s49, s48, 2")
    e("v_add_u32 v6, s49, v6")
    e("v_bfe_u32 v7, v3, 1, 1")
    e("v_lshlrev_b32 v7, 2, v7")
    e("v_xor_b32 v6, v6, v7")
    e("v_lshl_add_u32 v5, v6, 4, v5")
    e("v_and_b32 v7, 1, v4")
    e("v_lshl_add_u32 v5, v7, 3, v5")
    e("v_add_u32 v14, 16384, v5")
    G0, U0 = 64, 96
    for i in range(64):
        e(f"v_mov_b32 v{64+i}, 0")
    e("v_add_u32 v9, 0x10000, v12")
    e("v_add_u32 v10, 0x10000, v13")
    e("v_add_u32 v11, 0x10000, v14")
    def frag_ops(g):
        if "nofr" in X2: return []
        t = g >> 1; ks = g & 1; fb = 16 + 16*(g % 3)
        sb = (t % NS)*STG
        hi64 = sb >= 65536
        if hi64: sb -= 65536
        xa = (9 if hi64 else 12) + ks; wa = 11 if hi64 else 14
        r = []
        for mat in range(2):
            for hi in range(2):
                rr = fb + 8 + 4*mat + 2*hi
                r.append(f"ds_read_b64_tr_b16 v[{rr}:{rr+1}], v{wa} offset:{sb + mat*4096 + ks*2048 + hi*512}")
        for mi in range(2):
            r.append(f"ds_read_b128 v[{fb+4*mi}:{fb+4*mi+3}], v{xa} offset:{sb + mi*2048}")
        return r
    def frag_loads(g):
        for x in frag_ops(g): e(x)
    def mf(g, ops):
        fb = 16 + 16*(g % 3)
        ms = []
        for mi in range(2):
            x = fb+4*mi
            ms.append(f"v_mfma_f32_32x32x16_bf16 v[{G0+16*mi}:{G0+16*mi+15}], v[{fb+8}:{fb+11}], v[{x}:{x+3}], v[{G0+16*mi}:{G0+16*mi+15}]")
            ms.append(f"v_mfma_f32_32x32x16_bf16 v[{U0+16*mi}:{U0+16*mi+15}], v[{fb+12}:{fb+15}], v[{x}:{x+3}], v[{U0+16*mi}:{U0+16*mi+15}]")
        grp = [ops[0:2], ops[2:4], ops[4:5], ops[5:6]]
        for i in range(4):
            e(ms[i])
            for x in grp[i]: e(x)
    e("v_lshrrev_b32 v3, 5, v1")
    e("v_and_b32 v4, 31, v1")
    e("v_lshlrev_b32 v4, 4, v4")
    e("v_lshl_add_u32 v4, v3, 10, v4")
    e("s_lshl_b32 s46, s77, 2")
    e("s_add_u32 s46, s46, s47")
    e(f"s_mul_i32 s46, s46, {27*8192}")
    e("s_lshl_b32 s49, s76, 13")
    e("s_add_u32 s46, s46, s49")
    e("s_lshl_b32 s49, s48, 12")
    e("s_add_u32 s46, s46, s49")
    q(e, 1)
    e("s_barrier")
    q(e, 2)
    if DIAG: e("s_memrealtime s[66:67]\ns_memtime s[68:69]\ns_waitcnt lgkmcnt(0)")
    frag_loads(0); frag_loads(1)
    for g in range(2*NT):
        ops = []
        if g + 2 < 2*NT:
            if g & 1 == 0: bar(e, (g+2)//2)
            ops = frag_ops(g+2)
        e(f"s_waitcnt lgkmcnt({6*min(1, 2*NT-1-g)})")
        mf(g, ops)
    q(e, 3)
    if DIAG: e("s_memrealtime s[70:71]\ns_memtime s[72:73]\ns_waitcnt lgkmcnt(0)")
    gb = NT
    if C1_E >= gb: e("s_barrier"); gb += 1
    e("s_nop 15")
    for mi in range(2):
        for pi in range(2):
            o = 16 + 4*(2*mi+pi)
            for ii in range(2):
                i = 2*pi + ii
                g = G0+16*mi+4*i; u = U0+16*mi+4*i
                for pr in range(2):
                    e(f"v_cvt_pk_bf16_f32 v40, v{g+2*pr}, v{g+2*pr+1}")
                    e(f"v_cvt_pk_bf16_f32 v41, v{u+2*pr}, v{u+2*pr+1}")
                    e("v_lshlrev_b32 v42, 16, v40")
                    e("v_and_b32 v43, 0xffff0000, v40")
                    e("v_lshlrev_b32 v44, 16, v41")
                    e("v_and_b32 v45, 0xffff0000, v41")
                    e("v_mul_f32 v42, v42, v44")
                    e("v_mul_f32 v43, v43, v45")
                    e(f"v_cvt_pk_bf16_f32 v{o+2*ii+pr}, v42, v43")
            e("s_nop 1")
            e(f"v_permlane32_swap_b32 v{o}, v{o+2}")
            e(f"v_permlane32_swap_b32 v{o+1}, v{o+3}")
            e("s_nop 1")
            e(f"buffer_store_dwordx4 v[{o}:{o+3}], v4, s[60:63], s46 offen offset:{pi*2048 + mi*512} {ST2H}")
    while C1_E >= gb:
        e("s_barrier"); gb += 1
    q(e, 4)
    if PROF2 or TRACE: e("s_waitcnt vmcnt(0)")
    q(e, 7)
    qdump(e, 12)
    p4dump(e, "P4_G")
    trace_end(e, 1)
    diag_end(e, 1, 3, 77, 0, "DG_2")
    e.label("K2_END")
    e("s_endpgm")
    return e.text()


N_G2 = 256
K3_NS = int(os.environ.get("K3NS", "7"))
K3_STG = 18432
K3_X0 = K3_STG*K3_NS
K3_LDS = K3_X0 + 2*10240
K3_XB = 12
K3R0, K3R1 = [int(x) for x in os.environ.get('K3R', '1,2').split(',')]
K3_XI = int(os.environ.get('K3XI', '0'))
K3_D = int(os.environ.get('K3D', '1'))
PROF5 = os.environ.get("PROF5")
def k3():
    e = E()
    NS = K3_NS; NT = 27; STG = K3_STG
    Y2_L = K3_X0; X_L = K3_X0 + 10240; XN_L = K3_X0 + 20480
    e(f"s_cmp_ge_u32 s2, {N_G2}")
    e("s_cbranch_scc1 K3_END")
    code_touch(e, "k3", 256, "K3_END")
    trace_start(e)
    for i in range(int(os.environ.get("K3NOP", "0"))): e("s_nop 0")
    e("s_load_dwordx2 s[4:5], s[0:1], 0")
    e("s_load_dwordx2 s[10:11], s[0:1], 80")
    e("s_load_dwordx2 s[12:13], s[0:1], 96")
    e("v_lshrrev_b32 v1, 6, v0")
    e("s_nop 0")
    e("v_readfirstlane_b32 s3, v1")
    if "mapc" in X3:
        e("s_and_b32 s15, s2, 3")
        e("s_lshl_b32 s15, s15, 3")
        e("s_lshr_b32 s28, s2, 3")
        e("s_and_b32 s29, s28, 7")
        e("s_add_u32 s15, s15, s29")
        e("s_lshr_b32 s28, s28, 3")
        e("s_and_b32 s29, s2, 4")
        e("s_add_u32 s28, s28, s29")
    else:
        e("s_and_b32 s15, s2, 7")
        e("s_lshl_b32 s15, s15, 2")
        e("s_lshr_b32 s28, s2, 3")
        e("s_and_b32 s29, s28, 3")
        e("s_add_u32 s15, s15, s29")
        e("s_lshr_b32 s28, s28, 2")
    e("s_lshl_b32 s36, s15, 6")
    e("s_mul_i32 s39, s28, 160")
    e("v_and_b32 v1, 63, v0")
    e("s_waitcnt lgkmcnt(0)")
    e("s_cmp_lt_u32 s3, 4")
    e("s_cbranch_scc1 K3_COMP")
    e("s_sub_u32 s3, s3, 4")
    e("v_lshlrev_b32 v2, 4, v1")
    e("s_cmp_ge_u32 s3, 2")
    e("s_cbranch_scc1 K3_XL")
    srd_off(e, 16, 12, 13, WS_H, SZ_H)
    srd_off(e, 20, 12, 13, WS_WP2, D*F*2)
    e("v_lshlrev_b32 v2, 4, v1")
    e("s_lshl_b32 s40, s3, 12")
    e("s_mul_i32 s41, s3, 5120")
    e(f"s_mul_i32 s42, s15, {0 if 'hotA' in X3 else 27*8192}")
    e("s_add_u32 s42, s42, s40")
    e(f"s_mul_i32 s43, s28, {0 if 'hotW' in X3 else 1728*160}")
    e("s_add_u32 s43, s43, s41")
    e("s_add_u32 s41, s41, 8192")
    vq = VQ(e)
    def lst():
        if PROF5:
            e("s_memtime s[88:89]")
            e("s_waitcnt lgkmcnt(0)")
            e("v_cmp_eq_u32 vcc, s81, v1")
            e("v_mov_b32 v21, s88")
            e("v_cndmask_b32 v20, v20, v21, vcc")
            e("s_add_u32 s81, s81, 1")
    e("s_mov_b32 s81, 0")
    lst()
    def dma(t):
        sb = (t % NS)*STG
        e(f"s_add_u32 m0, s40, {sb}")
        e("s_add_u32 s46, s43, 4096")
        for i in range(4):
            e(f"buffer_load_dwordx4 v2, s[16:19], s42 offen offset:{i*1024} lds")
        e(f"s_add_u32 m0, s41, {sb}")
        e("s_add_u32 s42, s42, 8192")
        for i in range(4):
            e(f"buffer_load_dwordx4 v2, s[20:23], s43 offen offset:{i*1024} lds")
        e(f"s_add_u32 m0, s41, {sb + 4096}")
        e("s_add_u32 s43, s43, 10240")
        e(f"buffer_load_dwordx4 v2, s[20:23], s46 offen lds")
        vq.issue(("g", t), 9)
    def extras():
        srd_off(e, 24, 12, 13, WS_T3, SZ_T3)
        srd(e, 52, 4, 5, SZ_SD)
        e("s_lshl_b32 s47, s15, 3")
        e("s_add_u32 s47, s47, s28")
        e(f"s_mul_i32 s47, s47, {0 if 'hotX' in X3 else 10240}")
        e("s_mul_i32 s49, s3, 5120")
        e("s_add_u32 s47, s47, s49")
        e("s_add_u32 s48, s47, 4096")
        e(f"s_add_u32 m0, s49, {Y2_L}")
        e("s_nop 0")
        for i in range(4):
            e(f"buffer_load_dwordx4 v2, s[24:27], s47 offen offset:{i*1024} lds")
        e(f"s_add_u32 m0, s49, {Y2_L + 4096}")
        e("s_nop 0")
        e(f"buffer_load_dwordx4 v2, s[24:27], s48 offen lds")
        for i in range(5):
            e(f"v_add_u32 v3, {64*i}, v1")
            e("v_mul_u32_u24 v4, 6554, v3")
            e("v_lshrrev_b32 v4, 16, v4")
            e("v_mul_u32_u24 v5, 10, v4")
            e("v_sub_u32 v5, v3, v5")
            e("v_mul_u32_u24 v4, 1280, v4")
            e(f"v_lshl_add_u32 v{10+i}, v5, 4, v4")
        e("s_lshl_b32 s48, s3, 5")
        e("s_add_u32 s48, s48, s36")
        e("s_mul_i32 s48, s48, 1280")
        e("s_add_u32 s48, s48, s39")
        for i in range(5):
            e(f"s_add_u32 m0, s49, {X_L + i*1024}")
            e("s_nop 0")
            e(f"buffer_load_dwordx4 v{10+i}, s[52:55], s48 offen lds")
    nxt = 0
    DD = K3_D + 1
    for b in range(NT):
        lim = NS - 1 if b < DD else b - 1 - DD + NS
        lim = min(lim, K3R1*b + K3R0, NT - 1)
        while nxt <= lim:
            dma(nxt); nxt += 1
        vq.wait([("g", b)])
        e("s_barrier")
        lst()
    if PROF5:
        e("s_load_dwordx2 s[84:85], s[0:1], 88")
        e("s_waitcnt lgkmcnt(0)")
        e("s_mov_b32 s86, 256")
        e("s_mov_b32 s87, 0x00020000")
        e(f"s_cmp_lg_u32 s2, {PROF5}")
        e("s_cbranch_scc1 K3_END")
        e("s_cmp_lg_u32 s3, 0")
        e("s_cbranch_scc1 K3_END")
        e("v_lshlrev_b32 v120, 2, v1")
        e("buffer_store_dword v20, v120, s[84:87], 0 offen")
    e("s_endpgm")
    e.label("K3_XL")
    e("s_sub_u32 s3, s3, 2")
    for b in range(K3_XB + 1):
        if b == K3_XI: extras()
        if b == K3_XB: e("s_waitcnt vmcnt(0)")
        e("s_barrier")
    e("s_endpgm")
    e.label("K3_COMP")
    srd(e, 32, 10, 11, SZ_SD)
    e("v_and_b32 v20, 15, v1")
    e("v_lshrrev_b32 v21, 4, v1")
    e("v_and_b32 v22, 1, v21")
    e("s_lshl_b32 s49, s3, 4")
    e("v_add_u32 v23, s49, v20")
    e("v_mul_u32_u24 v2, 160, v23")
    e("v_lshl_add_u32 v2, v21, 3, v2")
    e(f"v_add_u32 v2, {X_L}, v2")
    e("v_add_u32 v24, s36, v23")
    srd_off(e, 40, 12, 13, WS_XN, S*8)
    e("v_lshlrev_b32 v25, 3, v24")
    e("buffer_load_dwordx2 v[14:15], v25, s[40:43], 0 offen")
    e("v_mul_u32_u24 v24, 1280, v24")
    e("v_lshl_add_u32 v24, v21, 3, v24")
    e("v_add_u32 v3, s39, v24")
    e("v_lshlrev_b32 v24, 10, v21")
    e("v_lshl_add_u32 v24, v23, 4, v24")
    e("v_lshl_add_u32 v4, v22, 3, v24")
    e("v_xor_b32 v5, 8, v4")
    e("v_bfe_u32 v24, v1, 2, 2")
    e("v_lshl_add_u32 v24, v21, 3, v24")
    e("v_lshl_add_u32 v25, v22, 2, v24")
    e("v_xor_b32 v26, 1, v22")
    e("v_lshl_add_u32 v26, v26, 2, v24")
    e("v_and_b32 v24, 3, v1")
    e("v_lshlrev_b32 v24, 3, v24")
    e("v_add_u32 v24, 8192, v24")
    e("s_movk_i32 s49, 160")
    e("v_mad_u32_u24 v6, v25, s49, v24")
    e("v_mad_u32_u24 v7, v26, s49, v24")
    for k in range(4):
        e(f"v_add_u32 v{8+k}, {4*STG}, v{4+k}")
    e("v_lshrrev_b32 v12, 2, v1")
    e("v_lshlrev_b32 v12, 7, v12")
    e("v_and_b32 v24, 3, v1")
    e("v_lshl_add_u32 v12, v24, 3, v12")
    e("s_lshl_b32 s49, s3, 5")
    e(f"s_add_u32 s49, s49, {Y2_L}")
    e("v_add_u32 v12, s49, v12")
    ACC = 16; XR, XNR, YR = 36, 46, 56; T = 66; FB = 72
    lq = []
    def wait(tags):
        idx = max((i for i, t in enumerate(lq) if t in tags), default=-1)
        if idx >= 0: e(f"s_waitcnt lgkmcnt({min(len(lq) - 1 - idx, 15)})")
    def put(it):
        if it[0] is None: wait(it[1]); return
        e(it[0])
        if it[1] is not None: lq.append(it[1])
    def frag_ops(t):
        fb = FB + 48*(t % (K3_D+1))
        sl = t % NS
        ab = 4 if sl < 4 else 8
        sb = (sl if sl < 4 else sl - 4)*STG
        r = []
        for kk in range(2):
            for hf in range(2):
                rr = fb + 4*kk + 2*hf
                r.append((f"ds_read_b64 v[{rr}:{rr+1}], v{ab+hf} offset:{sb + kk*4096}", ("f", t, kk)))
            for tt in range(5):
                for hf in range(2):
                    rr = fb + 8 + 20*kk + 4*tt + 2*hf
                    r.append((f"ds_read_b64_tr_b16 v[{rr}:{rr+1}], v{ab+2+hf} offset:{sb + kk*5120 + 32*tt}", ("f", t, kk)))
        return r
    xl = []
    for tt in range(5):
        xl.append((f"ds_read_b64_tr_b16 v[{YR+2*tt}:{YR+2*tt+1}], v12 offset:{2048*tt}", "x"))
        xl.append((f"ds_read_b64 v[{XR+2*tt}:{XR+2*tt+1}], v2 offset:{32*tt}", "x"))
    def amath(i):
        r = [f"v_lshlrev_b32 v{T}, 16, v{XR+i}", f"v_and_b32 v{T+1}, 0xffff0000, v{XR+i}",
             f"v_sub_f32 v{T+2}, v{T}, v14", f"v_sub_f32 v{T+3}, v{T+1}, v14",
             f"v_cvt_pk_bf16_f32 v{T+4}, v{T+2}, v{T+3}",
             f"v_lshlrev_b32 v{T+2}, 16, v{T+4}", f"v_and_b32 v{T+3}, 0xffff0000, v{T+4}",
             f"v_mul_f32 v{T+4}, v{T+2}, v13", f"v_mul_f32 v{T+5}, v{T+3}, v13",
             f"v_fma_f32 v{T+2}, -v{T+4}, v15, v{T+2}", f"v_fma_f32 v{T+3}, -v{T+5}, v15, v{T+3}",
             f"v_fmac_f32 v{T+4}, v{T+2}, v13", f"v_fmac_f32 v{T+5}, v{T+3}, v13",
             f"v_cvt_pk_bf16_f32 v{T+4}, v{T+4}, v{T+5}",
             f"v_lshlrev_b32 v{T+2}, 16, v{T+4}", f"v_and_b32 v{T+3}, 0xffff0000, v{T+4}",
             f"v_lshlrev_b32 v{T+4}, 16, v{YR+i}", f"v_and_b32 v{T+5}, 0xffff0000, v{YR+i}",
             f"v_mul_f32 v{T+2}, v{T+2}, v{T+4}", f"v_mul_f32 v{T+3}, v{T+3}, v{T+5}",
             f"v_cvt_pk_bf16_f32 v{T+4}, v{T+2}, v{T+3}",
             f"v_lshlrev_b32 v{T+2}, 16, v{T+4}", f"v_and_b32 v{T+3}, 0xffff0000, v{T+4}",
             f"v_add_f32 v{T}, v{T}, v{T+2}", f"v_add_f32 v{T+1}, v{T+1}, v{T+3}",
             f"v_cvt_pk_bf16_f32 v{T+4}, v{T}, v{T+1}",
             f"v_lshlrev_b32 v{XR+i}, 16, v{T+4}", f"v_and_b32 v{XNR+i}, 0xffff0000, v{T+4}"]
        return [(x, None) for x in r]
    extra = {t: [] for t in range(NT)}
    tx = K3_XB - K3_D
    extra[tx] = xl
    extra[tx + 1] = [("s_waitcnt vmcnt(0)\nv_rcp_f32 v13, v15", None)]
    extra[tx + 2] = [(None, ["x"])]
    for i in range(10):
        extra[tx + 2 + i] += amath(i)
    for t in range(K3_D):
        e("s_barrier")
        for it in frag_ops(t): put(it)
    for t in range(NT):
        ops = []
        if t + K3_D < NT:
            e("s_barrier")
            ops = frag_ops(t+K3_D)
        ex = list(extra[t])
        fb = FB + 48*(t % (K3_D+1))
        for kk in range(2):
            wait([("f", t, kk)])
            for tt in range(5):
                a = ACC + 4*tt
                w = fb + 8 + 20*kk + 4*tt; h = fb + 4*kk
                c = "0" if (t == 0 and kk == 0) else f"v[{a}:{a+3}]"
                e(f"v_mfma_f32_16x16x32_bf16 v[{a}:{a+3}], v[{w}:{w+3}], v[{h}:{h+3}], {c}")
                left = 10 - (5*kk + tt)
                no = (len(ops) + left - 1)//left
                for it in ops[:no]: put(it)
                ops = ops[no:]
                ne = (len(ex) + left - 1)//left
                for it in ex[:ne]: put(it)
                ex = ex[ne:]
    e("s_nop 7")
    for tt in range(5):
        a = ACC + 4*tt
        for pr in range(2):
            i = 2*tt + pr
            e(f"v_cvt_pk_bf16_f32 v{T}, v{a+2*pr}, v{a+2*pr+1}")
            e(f"v_lshlrev_b32 v{T+1}, 16, v{T}")
            e(f"v_and_b32 v{T+2}, 0xffff0000, v{T}")
            e(f"v_add_f32 v{T+1}, v{XR+i}, v{T+1}")
            e(f"v_add_f32 v{T+2}, v{XNR+i}, v{T+2}")
            e(f"v_cvt_pk_bf16_f32 v{YR+i}, v{T+1}, v{T+2}")
        e(f"buffer_store_dwordx2 v[{YR+2*tt}:{YR+2*tt+1}], v3, s[32:35], 0 offen offset:{32*tt} {ST3}")
    trace_end(e, 2)
    diag_end(e, 2, 6, 77, 0, "DG_3")
    e.label("K3_END")
    e("s_endpgm")
    return e.text()

def build(kernels):
    out = []
    out.append(open("cdna_kernels/%s.s.ref" % NAME).read().split("; Override launch")[0])
    for (name, grid, block, lds, body, vgpr) in kernels:
        out.append(f"; @launch kernel={name} grid=({grid},1,1) block=({block},1,1) lds={lds}\n")
    out.append('.amdgcn_target "amdgcn-amd-amdhsa--gfx950"\n.text\n')
    for (name, grid, block, lds, body, vgpr) in kernels:
        out.append(khead(name))
        out.append(body)
    out.append('.section .rodata,"a"\n')
    for (name, grid, block, lds, body, vgpr) in kernels:
        out.append(".p2align 6\n")
        out.append(kdesc(name, vgpr))
    return "".join(out)

if __name__ == "__main__":
    ks = [("prep_kernel", N_K1, 512, K1_LDS, k1(), 128),
          ("mid_kernel", N_K2, 896, K2_LDS, k2(), 128),
          ("fin_kernel", N_G2, 512, K3_LDS, k3(), 72 + 48*(K3_D+1))]
    open(sys.argv[1] if len(sys.argv) > 1 else "cdna_kernels/%s.s" % NAME, "w").write(build(ks))
```

```python
import sys
NAME = "parallel_sum__ssm_conv_h3__glu_gated_bilinear__prompt"
S, D, F = 2048, 640, 1728
WS_XN  = 0
WS_KVT = 0x280000
WS_H   = 0x500000
WS_Y2T = 0xC00000
WS_XNP = 0xF00000
WS_WP1 = 0x1200000
WS_WP2 = 0x1700000
WS_XCH = 0x1A00000
WS_XP = 0x2800000
WS_T3 = 0x2800000
SZ_T3 = 256*10240
SZ_SD = S*D*2
SZ_H = S*F*2

class E:
    def __init__(self):
        self.l = []
    def __call__(self, s):
        for line in s.strip("\n").split("\n"):
            self.l.append("    " + line.strip() if not line.strip().endswith(":") else line.strip())
    def label(self, n):
        self.l.append(n + ":")
    def text(self):
        return "\n".join(self.l) + "\n"

def srd(e, d, blo, bhi, nbytes):
    e(f"s_mov_b32 s{d}, s{blo}")
    e(f"s_mov_b32 s{d+1}, s{bhi}")
    e(f"s_mov_b32 s{d+2}, {nbytes}")
    e(f"s_mov_b32 s{d+3}, 0x00020000")

def srd_off(e, d, blo, bhi, off, nbytes):
    e(f"s_add_u32 s{d}, s{blo}, {off}")
    e(f"s_addc_u32 s{d+1}, s{bhi}, 0")
    e(f"s_mov_b32 s{d+2}, {nbytes}")
    e(f"s_mov_b32 s{d+3}, 0x00020000")

def kdesc(name, vgpr, sgpr=102):
    acc = (vgpr + 3)//4*4
    return f""".amdhsa_kernel {name}
  .amdhsa_next_free_vgpr {vgpr}
  .amdhsa_next_free_sgpr {sgpr}
  .amdhsa_accum_offset {acc}
  .amdhsa_group_segment_fixed_size 0
  .amdhsa_kernarg_size 104
  .amdhsa_user_sgpr_count 2
  .amdhsa_user_sgpr_kernarg_segment_ptr 1
  .amdhsa_system_sgpr_workgroup_id_x 1
.end_amdhsa_kernel
"""

import os
STAMP = os.environ.get("STAMP")
X3 = os.environ.get("X3", "").split(",")
X2 = os.environ.get("X2", "").split(",")
ST1 = os.environ.get("ST1", "sc1")
ST2H = os.environ.get("ST2H", "sc1")
ST2Y = os.environ.get("ST2Y", "")
ST3 = os.environ.get("ST3", "")
STW = os.environ.get("STW", "sc1")
STX = os.environ.get("STX", "sc1,").split(",")
XOFF = int(os.environ.get("XOFF", "2048"))
FUSE = int(os.environ.get("FUSE", "0"))
SPIN = int(os.environ.get("SPIN", "2000"))
LDSC = os.environ.get("LDSC", "sc1")
PSL = int(os.environ.get("PSL", "4"))
NSL = int(os.environ.get("NSL", "8"))
CWB = int(os.environ.get("CWB", "2"))
DLY = [int(x) for x in os.environ.get("DLY", "0,0,0").split(",")]
def dly(e, n):
    while n > 0:
        e(f"s_sleep {min(n, 127)}"); n -= 127
def stamp(e, idx):
    if not STAMP: return
    e(f"s_memtime s[88:89]")
    e("s_waitcnt lgkmcnt(0)")
    e(f"s_mov_b32 s{90+idx}, s88")
def stamp_dump(e, n, wg):
    if not STAMP: return
    e("s_load_dwordx2 s[84:85], s[0:1], 88")
    e("s_waitcnt lgkmcnt(0)")
    e("s_mov_b32 s86, 256")
    e("s_mov_b32 s87, 0x00020000")
    e(f"s_cmp_lg_u32 s2, {wg}")
    e("s_cbranch_scc1 9f")
    e("s_cmp_lg_u32 s3, 0")
    e("s_cbranch_scc1 9f")
    e("v_mov_b32 v120, 0")
    for i in range(1, n):
        e(f"s_sub_u32 s83, s{90+i}, s90")
        e("v_mov_b32 v121, s83")
        e(f"buffer_store_dword v121, v120, s[84:87], 0 offen offset:{4*i}")
    e("9:")

TRACE = os.environ.get("TRACE")
def trace_start(e):
    diag_start(e)
    if not TRACE: return
    e("s_memrealtime s[96:97]")
    e("s_memtime s[98:99]")
    e("s_mov_b32 s82, s2")
def trace_end(e, kidx, tid=0, restore=False):
    if not TRACE: return
    e("s_waitcnt vmcnt(0) lgkmcnt(0)")
    e("s_memrealtime s[92:93]")
    e("s_memtime s[94:95]")
    e("s_load_dwordx2 s[84:85], s[0:1], 96")
    e("s_getreg_b32 s90, hwreg(HW_REG_HW_ID)")
    e("s_getreg_b32 s91, hwreg(HW_REG_XCC_ID)")
    e("s_waitcnt lgkmcnt(0)")
    e(f"s_add_u32 s84, s84, {(64<<20) + kidx*65536}")
    e("s_addc_u32 s85, s85, 0")
    e("s_mov_b32 s86, 65536")
    e("s_mov_b32 s87, 0x00020000")
    e("s_lshl_b32 s91, s91, 24")
    e("s_and_b32 s90, s90, 0xffffff")
    e("s_or_b32 s90, s90, s91")
    e("s_sub_u32 s94, s94, s98")
    e("v_mov_b32 v124, s96")
    e("v_mov_b32 v125, s92")
    e("v_mov_b32 v126, s90")
    e("v_mov_b32 v127, s94")
    e("s_lshl_b32 s83, s82, 4")
    e("v_mov_b32 v121, s83")
    e(f"v_cmp_eq_u32 vcc, {tid}, v0")
    e("s_and_saveexec_b64 s[80:81], vcc")
    e("s_cbranch_execz 8f")
    e("buffer_store_dwordx4 v[124:127], v121, s[84:87], 0 offen")
    e("s_waitcnt vmcnt(0)")
    e("8:")
    if restore: e("s_mov_b64 exec, -1")

PROF = os.environ.get("PROF")
def pt(e, acc):
    if not PROF: return
    e("s_memtime s[88:89]")
    e("s_waitcnt lgkmcnt(0)")
    e("s_sub_u32 s90, s88, s87")
    e(f"s_add_u32 s{acc}, s{acc}, s90")
    e("s_mov_b32 s87, s88")
def pinit(e):
    if not PROF: return
    for i in range(80, 87): e(f"s_mov_b32 s{i}, 0")
    e("s_memtime s[88:89]")
    e("s_waitcnt lgkmcnt(0)")
    e("s_mov_b32 s87, s88")
def pdump(e, wave_off):
    if not PROF: return
    e("s_load_dwordx2 s[92:93], s[0:1], 88")
    e("s_waitcnt lgkmcnt(0)")
    e("s_mov_b32 s94, 256")
    e("s_mov_b32 s95, 0x00020000")
    e(f"s_cmp_lg_u32 s2, {PROF}")
    e("s_cbranch_scc1 7f")
    e("s_cmp_lg_u32 s3, 0")
    e("s_cbranch_scc1 7f")
    e("v_mov_b32 v120, 0")
    for i in range(7):
        e(f"v_mov_b32 v121, s{80+i}")
        e(f"buffer_store_dword v121, v120, s[92:95], 0 offen offset:{wave_off + 4*i}")
    e("s_waitcnt vmcnt(0)")
    e("7:")

PROF2 = os.environ.get("PROF2")
def q(e, idx, wv=0):
    if not PROF2: return
    e("s_memtime s[88:89]")
    e("s_waitcnt lgkmcnt(0)")
    e(f"s_mov_b32 s{90+idx}, s88")
def qdump(e, n, wv=0):
    if not PROF2 or os.environ.get("PROFF"): return
    e("s_load_dwordx2 s[84:85], s[0:1], 88")
    e("s_waitcnt lgkmcnt(0)")
    e("s_mov_b32 s86, 256")
    e("s_mov_b32 s87, 0x00020000")
    e(f"s_cmp_lg_u32 s2, {PROF2}")
    e("s_cbranch_scc1 6f")
    e(f"s_cmp_lg_u32 s3, {wv}")
    e("s_cbranch_scc1 6f")
    e(f"v_mov_b32 v120, {64 if wv else 0}")
    for i in range(1, n):
        e(f"s_sub_u32 s83, s{90+i}, s90")
        e("v_mov_b32 v121, s83")
        e(f"buffer_store_dword v121, v120, s[84:87], 0 offen offset:{4*i}")
    e("6:")

PROF4 = os.environ.get("PROF4")
P4_REGS = [50,52,54,56,58,72,74,76,78,80,82,84,86]
P4_LO = int(os.environ.get('P4LO', '4'))
def bar(e, b):
    k = b - P4_LO
    if PROF4 and 0 <= k < 6:
        e(f"s_memtime s[{P4_REGS[2*k]}:{P4_REGS[2*k]+1}]")
    e("s_barrier")
    if PROF4 and 0 <= k < 6:
        e(f"s_memtime s[{P4_REGS[2*k+1]}:{P4_REGS[2*k+1]+1}]")
def p4dump(e, lab):
    if not PROF4: return
    e("s_load_dwordx2 s[92:93], s[0:1], 88")
    e("s_waitcnt lgkmcnt(0)")
    e("s_mov_b32 s94, 4096")
    e("s_mov_b32 s95, 0x00020000")
    e(f"s_cmp_lg_u32 s2, {PROF4}")
    e(f"s_cbranch_scc1 {lab}")
    e("v_lshrrev_b32 v120, 6, v0")
    e("v_lshlrev_b32 v120, 6, v120")
    for i in range(12):
        e(f"v_mov_b32 v121, s{P4_REGS[i]}")
        e(f"buffer_store_dword v121, v120, s[92:95], 0 offen offset:{512 + 4*i}")
    e.label(lab)

def code_touch(e, tag, sub, endlab, startlab=None):
    if "noct" in X2: return
    e("s_getpc_b64 s[60:61]")
    e.label(f"CT_{tag}")
    st = f"CT_{tag}"
    if startlab:
        e(f"s_add_u32 s60, s60, {startlab}-CT_{tag}")
        e("s_addc_u32 s61, s61, 0")
        st = startlab
    if sub: e(f"v_subrev_u32 v126, {sub}, v0")
    src = "v126" if sub else "v0"
    e(f"v_cmp_gt_u32 vcc, ({endlab}-{st})/64, {src}")
    e(f"v_lshlrev_b32 v126, 6, {src}")
    e("s_and_saveexec_b64 s[62:63], vcc")
    e("global_load_dword v127, v126, s[60:61]")
    e("s_mov_b64 exec, s[62:63]")

DIAG = os.environ.get("DIAG")
def diag_start(e):
    if not DIAG: return
    e("s_memrealtime s[96:97]")
    e("s_memtime s[98:99]")
def diag_end(e, kidx, slot, wg, tid, lab, wait=True):
    if not DIAG: return
    e(f"s_cmp_lg_u32 s2, {wg}")
    e(f"s_cbranch_scc1 {lab}")
    if wait: e("s_waitcnt vmcnt(0) lgkmcnt(0)")
    e("s_memrealtime s[92:93]")
    e("s_memtime s[94:95]")
    e("s_load_dwordx2 s[84:85], s[0:1], 88")
    e("s_waitcnt lgkmcnt(0)")
    e(f"s_add_u32 s84, s84, {512*(2-kidx)}")
    e("s_addc_u32 s85, s85, 0")
    e("s_mov_b32 s86, 256")
    e("s_mov_b32 s87, 0x00020000")
    e("s_sub_u32 s94, s94, s98")
    e("s_and_b32 s96, s96, 0xffffff")
    e("s_and_b32 s92, s92, 0xffffff")
    e("v_mov_b32 v124, s96")
    e("v_mov_b32 v125, s92")
    e("v_mov_b32 v126, s94")
    e("v_mov_b32 v121, 0")
    e(f"v_cmp_eq_u32 vcc, {tid}, v0")
    e("s_and_saveexec_b64 s[80:81], vcc")
    e(f"buffer_store_dwordx3 v[124:126], v121, s[84:87], 0 offen offset:{4*slot}")
    if kidx == 1:
        e("s_and_b32 s66, s66, 0xffffff")
        e("s_and_b32 s70, s70, 0xffffff")
        e("s_sub_u32 s68, s68, s98")
        e("s_sub_u32 s72, s72, s98")
        e("v_mov_b32 v116, s66")
        e("v_mov_b32 v117, s68")
        e("v_mov_b32 v118, s70")
        e("v_mov_b32 v119, s72")
        e(f"buffer_store_dwordx4 v[116:119], v121, s[84:87], 0 offen offset:36")
    e.label(lab)

def st(e, r):
    if TRACE: e(f"s_memrealtime s[{r}:{r+1}]")
def st_dump(e, kidx, regs, tid):
    if not TRACE: return
    e("s_load_dwordx2 s[84:85], s[0:1], 96")
    e("s_waitcnt lgkmcnt(0)")
    e(f"s_add_u32 s84, s84, {(64<<20) + kidx*65536}")
    e("s_addc_u32 s85, s85, 0")
    e("s_mov_b32 s86, 65536")
    e("s_mov_b32 s87, 0x00020000")
    for i, r in enumerate(regs): e(f"v_mov_b32 v{124+i}, s{r}")
    e("s_lshl_b32 s83, s82, 4")
    e("v_mov_b32 v123, s83")
    e(f"v_cmp_eq_u32 vcc, {tid}, v0")
    e("s_and_saveexec_b64 s[80:81], vcc")
    e("buffer_store_dwordx4 v[124:127], v123, s[84:87], 0 offen")
    e("s_mov_b64 exec, -1")

def khead(name):
    return f""".globl {name}
.p2align 8
.type {name},@function
{name}:
"""

N_KV = 160
N_LN = 64
N_TC = 32
TWS = int(os.environ.get("TWS", "6"))
N_K1 = N_KV+N_LN+N_TC
K1_LDS = int(os.environ.get("K1LDS", str(128*144 + 256)))
WS_FL = 0x3000000
FL_KV = 65536
SZ_FL = FL_KV + 1280*128
def dbg_srd(e):
    e("s_load_dwordx2 s[88:89], s[0:1], 88")
    e("s_waitcnt lgkmcnt(0)")
    e("s_mov_b32 s90, 256")
    e("s_mov_b32 s91, 0x00020000")
def nonce_issue(e, vt):
    e(f"buffer_load_dwordx2 v[{vt}:{vt+1}], off, s[88:91], 0 sc1")
def nonce_get(e, lab, vt, issued=False):
    e("s_mov_b32 s41, 0")
    if issued: e(f"s_branch {lab}_W")
    e.label(lab)
    nonce_issue(e, vt)
    e.label(lab + "_W")
    e("s_waitcnt vmcnt(0)")
    e(f"v_readfirstlane_b32 s100, v{vt}")
    e(f"v_readfirstlane_b32 s101, v{vt+1}")
    e("s_cmp_lg_u32 s100, 0")
    e(f"s_cbranch_scc1 {lab}_D")
    e(f"s_sleep {NSL}")
    e("s_add_u32 s41, s41, 1")
    e(f"s_cmp_lt_u32 s41, {SPIN}")
    e(f"s_cbranch_scc1 {lab}")
    e.label(lab + "_D")
def flag_set(e, vt):
    srd_off(e, 44, 12, 13, WS_FL, SZ_FL)
    e(f"v_mov_b32 v{vt}, s100")
    e(f"v_mov_b32 v{vt+1}, s101")
    e("s_mov_b64 exec, 1")
    e(f"buffer_store_dwordx2 v[{vt}:{vt+1}], off, s[44:47], s40 sc1")
    e("s_mov_b64 exec, -1")

def k1():
    e = E()
    KVL = KV_LDS if FUSE else 0
    if not FUSE:
        e(f"s_cmp_ge_u32 s2, {N_K1}")
        e("s_cbranch_scc1 K1_END")
        code_touch(e, "k1", 0, "K1_END")
        trace_start(e)
        e(f"s_cmp_ge_u32 s2, {N_KV+N_LN}")
        e("s_cbranch_scc1 K1_TC")
    else:
        e("s_cmp_eq_u32 s3, 7")
        e("s_cbranch_scc1 K1_TC")
        e("s_load_dwordx2 s[88:89], s[0:1], 88")
    e("s_load_dwordx4 s[4:7], s[0:1], 0")
    e("s_load_dwordx4 s[8:11], s[0:1], 16")
    e("s_load_dwordx2 s[12:13], s[0:1], 96")
    if FUSE:
        e("s_mov_b32 s90, 256")
        e("s_mov_b32 s91, 0x00020000")
        e("s_cmp_lt_u32 s3, 5")
        e("s_cbranch_scc1 K1_KV")
        e("s_setprio 3")
        e("s_lshr_b32 s14, s2, 1")
        e("s_and_b32 s15, s2, 1")
        e("s_lshl_b32 s15, s15, 7")
        e("v_subrev_u32 v80, 320, v0")
        e("v_add_u32 v80, s15, v80")
        e("s_lshl_b32 s40, s2, 1")
        e("s_add_u32 s40, s40, s3")
        e("s_sub_u32 s40, s40, 5")
        e("s_lshl_b32 s40, s40, 7")
    else:
        e(f"s_cmp_lt_u32 s2, {N_KV}")
        e("s_cbranch_scc1 K1_KV")
        e("v_lshrrev_b32 v1, 8, v0")
        e(f"s_sub_u32 s14, s2, {N_KV}")
        e("v_readfirstlane_b32 s15, v1")
        e("s_lshl_b32 s14, s14, 1")
        e("v_and_b32 v80, 255, v0")
        e("s_add_u32 s14, s14, s15")
    e("s_waitcnt lgkmcnt(0)")
    srd(e, 16, 4, 5, SZ_SD)
    srd_off(e, 20, 12, 13, WS_XN, S*8)
    e("s_lshl_b32 s3, s14, 4")
    e("v_lshrrev_b32 v1, 4, v80")
    e("v_add_u32 v1, s3, v1")
    e("v_mul_u32_u24 v1, 1280, v1")
    e("v_and_b32 v2, 15, v80")
    e("v_lshlrev_b32 v2, 4, v2")
    e("v_add_u32 v1, v1, v2")
    for j in range(5):
        e(f"buffer_load_dwordx4 v[{4+4*j}:{7+4*j}], v1, s[16:19], 0 offen offset:{256*j}")
    NX = 0
    if FUSE: nonce_issue(e, 82); NX = 1
    e("v_lshrrev_b32 v72, 4, v80")
    e("v_add_u32 v72, s3, v72")
    e("v_lshlrev_b32 v72, 3, v72")
    e("v_and_b32 v73, 15, v80")
    srd_off(e, 28, 12, 13, WS_XNP, SZ_SD)
    e("v_lshrrev_b32 v1, 4, v80")
    e("v_and_b32 v2, 15, v80")
    e("v_lshrrev_b32 v3, 2, v1")
    e("v_and_b32 v74, 3, v1")
    e("v_and_b32 v75, 3, v2")
    e("v_lshl_add_u32 v74, v74, 2, v75")
    e("v_xor_b32 v74, v74, v3")
    e("v_lshlrev_b32 v74, 4, v74")
    e("v_lshl_add_u32 v74, v3, 8, v74")
    e("v_lshrrev_b32 v2, 2, v2")
    e("v_lshl_add_u32 v74, v2, 14, v74")
    e("s_lshr_b32 s25, s14, 4")
    e("s_mul_i32 s25, s25, 327680")
    e("s_and_b32 s26, s14, 15")
    e("s_lshl_b32 s26, s26, 10")
    e("s_add_u32 s25, s25, s26")
    e("s_mov_b32 s24, 0x3acccccd")
    e("v_cmp_eq_u32 vcc, 0, v73")
    for j in range(5):
        e(f"s_waitcnt vmcnt({4-j+NX})")
        for i in range(4*j, 4*j+4):
            e(f"v_lshlrev_b32 v{32+2*i}, 16, v{4+i}")
            e(f"v_and_b32 v{33+2*i}, 0xffff0000, v{4+i}")
        for i in range(4*j, 4*j+4):
            if i == 0: continue
            if i == 1: e("v_pk_add_f32 v[24:25], v[32:33], v[34:35]")
            else: e(f"v_pk_add_f32 v[24:25], v[24:25], v[{32+2*i}:{33+2*i}]")
    if FUSE: st(e, 48)
    e("v_add_f32 v24, v24, v25")
    def red16(r):
        for sh in (8, 4, 2, 1):
            e("s_nop 1")
            e(f"v_add_f32_dpp v{r}, v{r}, v{r} row_ror:{sh} row_mask:0xf bank_mask:0xf")
    red16(24)
    e("v_mul_f32 v24, s24, v24")
    e("v_mov_b32 v25, v24")
    for i in range(20):
        t = 26 + 2*(i & 1)
        e(f"v_pk_add_f32 v[{t}:{t+1}], v[{32+2*i}:{33+2*i}], v[24:25] neg_lo:[0,1] neg_hi:[0,1]")
        if i == 0: e(f"v_pk_mul_f32 v[30:31], v[{t}:{t+1}], v[{t}:{t+1}]")
        else: e(f"v_pk_fma_f32 v[30:31], v[{t}:{t+1}], v[{t}:{t+1}], v[30:31]")
    e("v_add_f32 v25, v30, v31")
    red16(25)
    e("v_mul_f32 v25, s24, v25")
    e("v_cvt_pk_bf16_f32 v26, v24, v25")
    e("v_and_b32 v27, 0xffff0000, v26")
    e("v_lshlrev_b32 v26, 16, v26")
    e("v_add_f32 v27, 0x3727c5ac, v27")
    e("v_cvt_pk_bf16_f32 v27, v27, v27")
    e("v_lshlrev_b32 v27, 16, v27")
    e("v_sqrt_f32 v27, v27")
    e("s_nop 0")
    e("v_cvt_pk_bf16_f32 v27, v27, v27")
    e("v_lshlrev_b32 v27, 16, v27")
    e("v_rcp_f32 v28, v27")
    e("s_and_saveexec_b64 s[36:37], vcc")
    e("buffer_store_dwordx2 v[26:27], v72, s[20:23], 0 offen")
    e("s_mov_b64 exec, s[36:37]")
    e("v_mov_b32 v24, v26")
    e("v_mov_b32 v25, v26")
    e("v_mov_b32 v76, v27")
    e("v_mov_b32 v77, v27")
    e("v_mov_b32 v29, v28")
    for i2 in range(0, 20, 2):
        ops = [[], []]
        for u in range(2):
            i = i2 + u
            a, b = 32+2*i, 33+2*i
            t = 30 if u == 0 else 78
            c = 2 + u
            ops[u] = [f"v_pk_add_f32 v[{a}:{b}], v[{a}:{b}], v[24:25] neg_lo:[0,1] neg_hi:[0,1]",
                      f"v_cvt_pk_bf16_f32 v{c}, v{a}, v{b}",
                      f"v_lshlrev_b32 v{a}, 16, v{c}",
                      f"v_and_b32 v{b}, 0xffff0000, v{c}",
                      f"v_pk_mul_f32 v[{t}:{t+1}], v[{a}:{b}], v[28:29]",
                      f"v_pk_fma_f32 v[{a}:{b}], v[{t}:{t+1}], v[76:77], v[{a}:{b}] neg_lo:[1,0,0] neg_hi:[1,0,0]",
                      f"v_pk_fma_f32 v[{t}:{t+1}], v[{a}:{b}], v[28:29], v[{t}:{t+1}]",
                      f"v_cvt_pk_bf16_f32 v{4+i}, v{t}, v{t+1}"]
        for x, y in zip(ops[0], ops[1]):
            e(x); e(y)
        if i2 & 3 == 2:
            j = i2 >> 2
            e(f"buffer_store_dwordx4 v[{4+4*j}:{7+4*j}], v74, s[28:31], s25 offen {ST1}")
            e("s_add_u32 s25, s25, 65536")
    if FUSE:
        st(e, 50)
        nonce_get(e, "NG_LN", 82, True)
        st(e, 52)
        flag_set(e, 82)
        e("s_setprio 0")
        if TRACE: e("s_waitcnt vmcnt(0)")
        st(e, 54)
        st_dump(e, 7, [48, 50, 52, 54], 320)
        e("s_branch K2_START")
        e.label("K1_TC")
        e("s_lshr_b32 s14, s2, 3")
        e("s_cmp_lg_u32 s14, 9")
        e("s_cbranch_scc1 K2_START")
        for i in range(4):
            code_touch(e, f"k1b{i}", 448 - 64*i, "K3_END", "fin_kernel")
        e("s_waitcnt vmcnt(0)")
        e("s_branch K2_START")
    else:
      trace_end(e, 3)
      e("s_endpgm")
      e.label("K1_TC")
      k1_tc(e)
    k1_kv(e, KVL)
    return e.text()

def k1_tc(e):
    if "noct1" not in X2: code_touch(e, "k1b", 0, "K3_END", "mid_kernel")
    e("s_load_dwordx2 s[4:5], s[0:1], 32")
    e("s_load_dwordx4 s[8:11], s[0:1], 56")
    e(f"s_sub_u32 s3, s2, {N_KV+N_LN}")
    e(f"s_lshl_b32 s6, s3, {9 + TWS}")
    e("s_mul_i32 s3, s3, 81920")
    e("v_lshlrev_b32 v1, 4, v0")
    e(f"v_lshlrev_b32 v2, {TWS}, v0")
    e("s_waitcnt lgkmcnt(0)")
    srd(e, 16, 4, 5, SZ_SD)
    srd(e, 20, 8, 9, D*F*2)
    srd(e, 24, 10, 11, D*F*2)
    if "tw" in X2:
        n = -(-D*F*2 // (16384 << TWS))
        for i in range(n):
            e(f"buffer_load_dword v{50+2*i}, v2, s[20:23], s6 offen")
            e(f"buffer_load_dword v{51+2*i}, v2, s[24:27], s6 offen")
            e(f"s_add_u32 s6, s6, {16384 << TWS}")
    for i in range(10):
        e(f"buffer_load_dwordx4 v[{4+4*i}:{7+4*i}], v1, s[16:19], s3 offen")
        e("s_add_u32 s3, s3, 8192")
    e("s_waitcnt vmcnt(0)")
    for x in os.environ.get("K1SLEEP", "").split(","):
        if x: e(f"s_sleep {x}")
    trace_end(e, 3)
    e("s_endpgm")

def k1_kv(e, KVL):
    NCH = 80 if FUSE else 128
    e.label("K1_KV")
    if FUSE:
        e("s_lshr_b32 s15, s2, 3")
        e("s_and_b32 s14, s15, 3")
        e("s_lshl_b32 s14, s14, 3")
        e("s_and_b32 s32, s2, 7")
        e("s_add_u32 s14, s14, s32")
        e("s_lshr_b32 s15, s15, 2")
        e("v_mul_u32_u24 v2, 6554, v0")
        e("v_lshrrev_b32 v2, 16, v2")
        e("v_mul_u32_u24 v1, 10, v2")
        e("v_sub_u32 v1, v0, v1")
        e("s_mul_i32 s40, s15, 5")
        e("s_add_u32 s40, s40, s3")
        e("s_lshl_b32 s40, s40, 5")
        e("s_add_u32 s40, s40, s14")
        e("s_lshl_b32 s40, s40, 7")
        e(f"s_add_u32 s40, s40, {FL_KV}")
    else:
        e("s_mul_hi_u32 s14, s2, 0x33333334")
        e("s_mul_i32 s15, s14, 5")
        e("s_sub_u32 s15, s2, s15")
        e("v_and_b32 v1, 15, v0")
        e("v_lshrrev_b32 v2, 4, v0")
    e("s_lshl_b32 s32, s14, 6")
    e("v_lshlrev_b32 v3, 1, v2")
    e("v_add_u32 v3, s32, v3")
    e("v_mul_u32_u24 v4, 1280, v3")
    e(f"s_mul_i32 s33, s15, {2*NCH}")
    e("v_lshlrev_b32 v5, 4, v1")
    e("v_add_u32 v5, s33, v5")
    e("v_add_u32 v4, v4, v5")
    e("v_subrev_u32 v6, 3840, v4")
    e("v_subrev_u32 v10, 2560, v4")
    e("v_subrev_u32 v11, 1280, v4")
    e("v_lshlrev_b32 v7, 2, v5")
    e("s_waitcnt lgkmcnt(0)")
    srd(e, 16, 6, 7, SZ_SD)
    srd(e, 20, 8, 9, SZ_SD)
    srd(e, 24, 10, 11, D*4*2)
    srd_off(e, 28, 12, 13, WS_KVT, SZ_SD)
    for j in range(4):
        e(f"buffer_load_dwordx4 v[{60+4*j}:{63+4*j}], v7, s[24:27], 0 offen offset:{16*j}")
    e("buffer_load_dwordx4 v[16:19], v6, s[16:19], 0 offen")
    e("buffer_load_dwordx4 v[20:23], v10, s[16:19], 0 offen")
    e("buffer_load_dwordx4 v[24:27], v11, s[16:19], 0 offen")
    e("buffer_load_dwordx4 v[28:31], v4, s[16:19], 0 offen")
    e("buffer_load_dwordx4 v[32:35], v4, s[16:19], 0 offen offset:1280")
    for r in range(2):
        e(f"buffer_load_dwordx4 v[{44+4*r}:{47+4*r}], v4, s[20:23], 0 offen offset:{1280*r}")
    if FUSE: nonce_issue(e, 120)
    e("s_mov_b32 s34, 0x05040100")
    e("s_mov_b32 s35, 0x07060302")
    e("v_mul_u32_u24 v8, 1168, v1")
    e("v_lshrrev_b32 v9, 2, v2")
    e("v_lshl_add_u32 v8, v9, 4, v8")
    e("v_and_b32 v9, 3, v2")
    e("v_xor_b32 v9, 3, v9")
    e("v_lshl_add_u32 v8, v9, 2, v8")
    if KVL: e(f"v_add_u32 v8, {KVL}, v8")
    e("v_lshrrev_b32 v12, 3, v0")
    e("v_and_b32 v13, 7, v0")
    e("v_mul_u32_u24 v14, 144, v12")
    e("v_lshrrev_b32 v15, 3, v12")
    e("v_add_u32 v15, v15, v13")
    e("v_lshl_add_u32 v14, v15, 4, v14")
    if KVL: e(f"v_add_u32 v14, {KVL}, v14")
    e(f"s_mul_i32 s33, s15, {NCH}")
    e("v_add_u32 v15, s33, v12")
    e("v_lshlrev_b32 v15, 12, v15")
    e("s_lshl_b32 s32, s14, 7")
    e("v_lshl_add_u32 v15, v13, 4, v15")
    e(f"s_add_u32 s33, s32, {NCH//2*4096}")
    e(f"s_waitcnt vmcnt({8 if FUSE else 7})")
    for p in range(4):
        for h in range(2):
            c = 2*p+h
            e(f"v_lshlrev_b32 v{76+8*p+h}, 16, v{60+2*c}")
            e(f"v_and_b32 v{78+8*p+h}, 0xffff0000, v{60+2*c}")
            e(f"v_lshlrev_b32 v{80+8*p+h}, 16, v{61+2*c}")
            e(f"v_and_b32 v{82+8*p+h}, 0xffff0000, v{61+2*c}")
    e(f"s_waitcnt vmcnt({1 if FUSE else 0})")
    if FUSE: st(e, 48)
    for p in range(4):
        W = 76 + 8*p
        for r in range(5):
            e(f"v_lshlrev_b32 v{60+2*r}, 16, v{16+4*r+p}")
            e(f"v_and_b32 v{61+2*r}, 0xffff0000, v{16+4*r+p}")
        ch = [[], []]
        for i in range(2):
            A = 108 + 6*i; T = A + 2; C = A + 4
            o = ch[i]
            for t in range(4):
                r = i + t
                w = 3 - t
                o.append(f"v_pk_mul_f32 v[{T}:{T+1}], v[{60+2*r}:{61+2*r}], v[{W+2*w}:{W+2*w+1}]")
                o.append(f"v_cvt_pk_bf16_f32 v{C}, v{T}, v{T+1}")
                if t == 0:
                    o.append(f"v_lshlrev_b32 v{A}, 16, v{C}")
                    o.append(f"v_and_b32 v{A+1}, 0xffff0000, v{C}")
                else:
                    o.append(f"v_lshlrev_b32 v{T}, 16, v{C}")
                    o.append(f"v_and_b32 v{T+1}, 0xffff0000, v{C}")
                    o.append(f"v_pk_add_f32 v[{A}:{A+1}], v[{A}:{A+1}], v[{T}:{T+1}]")
                    o.append(f"v_cvt_pk_bf16_f32 v{C}, v{A}, v{A+1}")
                    o.append(f"v_lshlrev_b32 v{A}, 16, v{C}")
                    o.append(f"v_and_b32 v{A+1}, 0xffff0000, v{C}")
            o.append(f"v_lshlrev_b32 v{T}, 16, v{44+4*i+p}")
            o.append(f"v_and_b32 v{T+1}, 0xffff0000, v{44+4*i+p}")
            o.append(f"v_pk_mul_f32 v[{A}:{A+1}], v[{A}:{A+1}], v[{T}:{T+1}]")
            o.append(f"v_cvt_pk_bf16_f32 v{C}, v{A}, v{A+1}")
        for x, y in zip(ch[0], ch[1]):
            e(x); e(y)
        e("v_perm_b32 v70, v112, v118, s34")
        e(f"ds_write_b32 v8, v70 offset:{(2*p)*144}")
        e("v_perm_b32 v71, v112, v118, s35")
        e(f"ds_write_b32 v8, v71 offset:{(2*p+1)*144}")
    e("s_waitcnt lgkmcnt(0)")
    if FUSE:
        e("v_mov_b32 v1, 1")
        e(f"v_mov_b32 v2, {LCNT}")
        e("s_mov_b64 exec, 1")
        e("ds_add_u32 v2, v1")
        e("s_mov_b64 exec, -1")
        e("s_mov_b32 s41, 0")
        e.label("KV_SP")
        e("ds_read_b32 v3, v2")
        e("s_add_u32 s41, s41, 1")
        e("s_waitcnt lgkmcnt(0)")
        e("v_readfirstlane_b32 s42, v3")
        e("s_cmp_ge_u32 s41, 100000")
        e("s_cbranch_scc1 KV_SPD")
        e("s_cmp_lt_u32 s42, 5")
        e("s_cbranch_scc1 KV_SP")
        e.label("KV_SPD")
    else:
        e("s_barrier")
    e("ds_read_b128 v[16:19], v14")
    e(f"ds_read_b128 v[20:23], v14 offset:{NCH//2*144 + NCH//16*16}")
    e("s_waitcnt lgkmcnt(1)")
    e(f"buffer_store_dwordx4 v[16:19], v15, s[28:31], s32 offen {ST1}")
    e("s_waitcnt lgkmcnt(0)")
    e(f"buffer_store_dwordx4 v[20:23], v15, s[28:31], s33 offen {ST1}")
    if FUSE:
        st(e, 50)
        nonce_get(e, "NG_KV", 120, True)
        st(e, 52)
        flag_set(e, 120)
        if TRACE: e("s_waitcnt vmcnt(0)")
        st(e, 54)
        st_dump(e, 3, [48, 50, 52, 54], 0)
        e("s_branch K2_START")
        return
    trace_end(e, 3)
    diag_end(e, 0, 0, 150, 0, "DG_1")
    e.label("K1_END")
    e("s_endpgm")


N_K2 = 256
COPY = 4288
KVSZ = 33*144
CP_OFF = 2*KVSZ
SC_OFF = CP_OFF + 8*COPY
CV_SZ = SC_OFF
K2_NS = 4
K2_STG = 24576
CV_A = K2_NS*K2_STG
K2_LDS = max(CV_A + CV_SZ, 3*CV_SZ)
KV_LDS = K2_LDS
LCNT = KV_LDS + K1_LDS
if FUSE: K2_LDS = LCNT + 64
PB0 = 2 if FUSE else 1
LB0 = 2
RPB = 6
CDL = int(os.environ.get("CDL", "0"))
PACE = [int(x) for x in os.environ.get("PACE", "").split(",") if x]
if os.environ.get("CS"):
    exec(os.environ["CS"])
C1_E = PB0 + 16

class VQ:
    def __init__(self, e): self.q = []; self.e = e
    def issue(self, tag, n): self.q += [tag]*n
    def wait(self, tags):
        idx = max([i for i, t in enumerate(self.q) if t in tags], default=-1)
        if idx < 0: return
        n = len(self.q) - 1 - idx
        self.e(f"s_waitcnt vmcnt({min(n, 63)})")
        self.q = self.q[idx+1:]

def write_copies(e, d, lab, ro):
    e(f"ds_write_b128 v117, v[{d}:{d+3}] offset:{ro}")
    for i in range(4):
        e(f"v_alignbit_b32 v{16+i}, v{d+i+1}, v{d+i}, 16")
    e(f"ds_write_b128 v117, v[16:19] offset:{ro + COPY}")
    for i in range(4):
        e(f"v_mov_b32 v{20+i}, v{d+i+1}")
    e(f"ds_write_b128 v117, v[20:23] offset:{ro + 2*COPY}")
    for i in range(4):
        e(f"v_alignbit_b32 v{24+i}, v{d+i+2}, v{d+i+1}, 16")
    e(f"ds_write_b128 v117, v[24:27] offset:{ro + 3*COPY}")
    e("s_cmp_eq_u32 s39, 0")
    e(f"s_cbranch_scc0 {lab}")
    e("v_mov_b32 v28, 0")
    e(f"v_lshlrev_b32 v29, 16, v{d}")
    e("v_mov_b32 v32, 0")
    e(f"v_mov_b32 v33, v{d}")
    e("v_mov_b32 v34, v29")
    e("v_mov_b32 v35, v16")
    e("s_mov_b64 exec, 1")
    e(f"ds_write_b64 v117, v[28:29] offset:{ro + COPY - 8}")
    e(f"ds_write_b64 v117, v[32:33] offset:{ro + 2*COPY - 8}")
    e(f"ds_write_b64 v117, v[34:35] offset:{ro + 3*COPY - 8}")
    e("s_mov_b64 exec, -1")
    e.label(lab)

def conv_main(e):
    ACCS = [16, 112]; FL, FH, BB = 32, 56, 80
    lq = []
    def wait(tags):
        idx = max((i for i, t in enumerate(lq) if t in tags), default=-1)
        if idx >= 0: e(f"s_waitcnt lgkmcnt({min(len(lq) - 1 - idx, 15)})")
    def put(it):
        if it[0] is None: wait(it[1]); return
        e(it[0])
        for _ in range(it[2] if len(it) > 2 else 1):
            if it[1] is not None: lq.append(it[1])
    def lda(F):
        c, f = divmod(F, 17)
        sl = F % 6
        r = []
        for (R, va) in ((FL, 8), (FH, 9)):
            o = 4*COPY*c + 64*f
            r.append((f"ds_read_b64 v[{R+4*sl}:{R+4*sl+1}], v{va} offset:{o}", ("a", F)))
            r.append((f"ds_read_b64 v[{R+4*sl+2}:{R+4*sl+3}], v{va} offset:{o+8}", ("a", F)))
        return r
    def ldb(P):
        c, p = divmod(P, 16)
        st = p >> 1; kk = 1 - (p & 1)
        bb = BB + 8*(P & 3)
        pre = ""
        if p & 1 == 0:
            pre = f"v_subrev_u32 v12, {144*st}, v10\nv_max_i32 v3, v12, v11\n"
        return [(pre + f"ds_read_b128 v[{bb}:{bb+3}], v3 offset:{KVSZ*c + 64*kk}", ("b", P)),
                (f"ds_read_b128 v[{bb+4}:{bb+7}], v12 offset:{KVSZ*c + 16*144 + 64*kk}", ("b", P))]
    def dterm_ld(c):
        return [(f"ds_read_b64 v[{4+2*h}:{5+2*h}], v13 offset:{KVSZ*c + 16*144*h}", ("k", c)) for h in range(2)]
    def dterm(c, T):
        sch = 65 if c == 0 else 69
        r = [(f"s_and_b32 s29, s{sch}, 1\ns_lshl_b32 s29, s29, 4\ns_lshr_b32 s29, s{70+c}, s29\ns_lshl_b32 s29, s29, 16", None), (None, [("k", c)])]
        for h in range(2):
            k0, k1 = 4+2*h, 5+2*h
            r += [(f"v_and_b32 v{T}, 0xffff0000, v{k1}", None), (f"v_lshlrev_b32 v{T+1}, 16, v{k1}", None),
                  (f"v_and_b32 v{T+2}, 0xffff0000, v{k0}", None), (f"v_lshlrev_b32 v{T+3}, 16, v{k0}", None)]
            r += [(f"v_mul_f32 v{T+j}, s29, v{T+j}", None) for j in range(4)]
            r += [(f"v_cvt_pk_bf16_f32 v{k0}, v{T}, v{T+1}", None), (f"v_cvt_pk_bf16_f32 v{k1}, v{T+2}, v{T+3}", None)]
        return r
    def exch(c):
        A = ACCS[c]
        t = ["s_cmp_eq_u32 s38, 0", f"s_cbranch_scc1 CX0_{c}"]
        t += [f"buffer_store_dwordx4 v[{A+4*h}:{A+4*h+3}], v14, s[60:63], 0 offen offset:{XOFF*c + 1024*h} {STX[c]}" for h in range(2)]
        t += [f"v_mov_b32 v{A+i}, v{A+8+i}" for i in range(8)]
        t += [f"s_branch CX1_{c}", f"CX0_{c}:"]
        t += [f"buffer_store_dwordx4 v[{A+8+4*h}:{A+8+4*h+3}], v14, s[60:63], 0 offen offset:{XOFF*c + 1024*h} {STX[c]}" for h in range(2)]
        t += [f"CX1_{c}:"]
        return [("\n".join(t), None)]
    def xread(c):
        A = ACCS[c]
        return [(f"buffer_load_dwordx4 v[{A+8+4*h}:{A+11+4*h}], v15, s[60:63], 0 offen offset:{XOFF*c + 1024*h}", None) for h in range(2)]
    def fin(c, h):
        sch = 65 if c == 0 else 69
        o = ACCS[c] + 4*h; p = ACCS[c] + 8 + 4*h
        r = [("s_waitcnt vmcnt(0)", None)] if h == 0 else []
        r += [(f"v_add_f32 v{o+j}, v{o+j}, v{p+j}", None) for j in range(4)]
        r += [(f"v_cvt_pk_bf16_f32 v{p}, v{o}, v{o+1}", None), (f"v_cvt_pk_bf16_f32 v{p+1}, v{o+2}, v{o+3}", None)]
        r += [(f"v_lshlrev_b32 v{o}, 16, v{p}", None), (f"v_and_b32 v{o+1}, 0xffff0000, v{p}", None),
              (f"v_lshlrev_b32 v{o+2}, 16, v{p+1}", None), (f"v_and_b32 v{o+3}, 0xffff0000, v{p+1}", None)]
        for k in range(2):
            r += [(f"v_lshlrev_b32 v{p+2}, 16, v{4+2*h+k}", None), (f"v_and_b32 v{p+3}, 0xffff0000, v{4+2*h+k}", None),
                  (f"v_add_f32 v{o+2*k}, v{o+2*k}, v{p+2}", None), (f"v_add_f32 v{o+2*k+1}, v{o+2*k+1}, v{p+3}", None)]
        r += [(f"v_cvt_pk_bf16_f32 v{p}, v{o}, v{o+1}", None), (f"v_cvt_pk_bf16_f32 v{p+1}, v{o+2}, v{o+3}", None)]
        r += [(f"s_lshl_b32 s48, s{sch}, 7\ns_add_u32 s48, s48, {16*81920*h}\nbuffer_store_dwordx2 v[{p}:{p+1}], v2, s[24:27], s48 offen {ST2Y}", None)]
        return r
    extra = {P: [] for P in range(32)}
    tail = {P: [] for P in range(32)}
    tail[16] = exch(0)
    tail[19] = [("s_waitcnt vmcnt(0)", None)]
    extra[20] = xread(0)
    extra[24] = fin(0, 0)
    extra[25] = fin(0, 1)
    tail[25] = [("s_cmp_ge_u32 s69, 640\ns_cbranch_scc1 K2_END", None)]
    extra[26] = dterm_ld(1)
    d1 = dterm(1, 16)
    extra[27] = d1[:12]; extra[28] = d1[12:]
    bcur = PB0 if FUSE else 0
    while bcur < PB0:
        bar(e, bcur); bcur += 1
    for it in dterm_ld(0) + lda(0) + lda(1) + ldb(0) + lda(2) + ldb(1) + lda(3) + ldb(2) + dterm(0, 16): put(it)
    nfa = 4; nfb = 3
    for P in range(32):
        c, p = divmod(P, 16)
        if P & 1 == 0:
            bar(e, bcur); bcur += 1
        if P == 0: e("s_setprio 3")
        F0 = 17*c + p
        ops = []
        while nfa <= F0 + 4 and nfa < 34:
            ops += lda(nfa); nfa += 1
        while nfb <= P + 3 and nfb < 32:
            ops += ldb(nfb); nfb += 1
        ops = extra[P][:0] + ops
        ex = list(extra[P])
        wait([("a", F0), ("a", F0+1), ("b", P)])
        bb = BB + 8*(P & 3)
        A = ACCS[c]
        mfs = []
        for mu in range(2):
            fl = FL + 4*((F0+mu) % 6)
            a0 = A + 8*mu; a1 = a0 + 4
            c0 = "0" if p == 0 else f"v[{a0}:{a0+3}]"
            c1 = "0" if p == 0 else f"v[{a1}:{a1+3}]"
            mfs.append(f"v_mfma_f32_16x16x32_bf16 v[{a0}:{a0+3}], v[{fl}:{fl+3}], v[{bb}:{bb+3}], {c0}")
            mfs.append(f"v_mfma_f32_16x16x32_bf16 v[{a1}:{a1+3}], v[{fl}:{fl+3}], v[{bb+4}:{bb+7}], {c1}")
        for mu in range(2):
            fh = FH + 4*((F0+mu) % 6)
            a1 = A + 8*mu + 4
            mfs.append(f"v_mfma_f32_16x16x32_bf16 v[{a1}:{a1+3}], v[{fh}:{fh+3}], v[{bb}:{bb+3}], v[{a1}:{a1+3}]")
        for i in range(6):
            if not ("cnm" in X2 or ("cn2" in X2 and i in (0, 2))): e(mfs[i])
            no = (len(ops) + 5 - i) // (6 - i)
            for it in ops[:no]: put(it)
            ops = ops[no:]
            ne = (len(ex) + 5 - i) // (6 - i)
            for it in ex[:ne]: put(it)
            ex = ex[ne:]
        for it in tail[P]: put(it)
        if P == 15: q(e, 8, 8)
    q(e, 10, 8)
    e("s_setprio 0")
    e("s_nop 7")
    if "gx1" in X2:
        for it in exch(1): put(it)
        bar(e, bcur); bcur += 1
        e("s_waitcnt vmcnt(0)")
        bar(e, bcur); bcur += 1
        for it in xread(1): put(it)
        while bcur < 20:
            bar(e, bcur); bcur += 1
        for it in fin(1, 0) + fin(1, 1): put(it)
        return
    A = ACCS[1]
    bar(e, bcur); bcur += 1
    e("s_lshl_b32 s44, s39, 11")
    e(f"s_add_u32 s45, s66, {CP_OFF}")
    e("s_add_u32 s44, s44, s45")
    e("v_lshl_add_u32 v32, v1, 4, s44")
    e("s_xor_b32 s44, s39, 2")
    e("s_lshl_b32 s44, s44, 11")
    e("s_add_u32 s44, s44, s45")
    e("v_lshl_add_u32 v33, v1, 4, s44")
    e("s_cmp_eq_u32 s38, 0")
    e("s_cbranch_scc1 CX0_1")
    for h in range(2): e(f"ds_write_b128 v32, v[{A+4*h}:{A+4*h+3}] offset:{1024*h}")
    for i in range(8): e(f"v_mov_b32 v{A+i}, v{A+8+i}")
    e("s_branch CX1_1")
    e.label("CX0_1")
    for h in range(2): e(f"ds_write_b128 v32, v[{A+8+4*h}:{A+8+4*h+3}] offset:{1024*h}")
    e.label("CX1_1")
    e("s_waitcnt lgkmcnt(0)")
    bar(e, bcur); bcur += 1
    for h in range(2): e(f"ds_read_b128 v[{A+8+4*h}:{A+11+4*h}], v33 offset:{1024*h}")
    while bcur < 20 and not FUSE:
        bar(e, bcur); bcur += 1
    e("s_waitcnt lgkmcnt(0)")
    for it in fin(1, 0)[1:] + fin(1, 1): put(it)

def k2():
    e = E()
    NS = K2_NS; STG = K2_STG; NT = 20
    e(f"s_cmp_ge_u32 s2, {N_K2}")
    e("s_cbranch_scc1 K2_END")
    code_touch(e, "k2", 512, "K2_END")
    trace_start(e)
    if FUSE:
        e("v_lshrrev_b32 v1, 6, v0")
        e("v_mov_b32 v2, 0")
        e("v_lshlrev_b32 v4, 2, v0")
        e("v_readfirstlane_b32 s3, v1")
        e(f"v_add_u32 v4, {LCNT}, v4")
        e("s_cmp_lg_u32 s3, 0")
        e("s_cbranch_scc1 K2_B0")
        e("s_mov_b64 exec, 0xffff")
        e("ds_write_b32 v4, v2")
        e("s_mov_b64 exec, -1")
        e("s_waitcnt lgkmcnt(0)")
        e.label("K2_B0")
        e("s_lshl_b32 s14, s2, 4")
        e("s_add_u32 s14, s14, s3")
        e("s_cmp_lg_u32 s14, 7")
        e("s_cbranch_scc1 K2_BS")
        e("s_memrealtime s[100:101]")
        dbg_srd(e)
        e("s_or_b32 s100, s100, 1")
        e("v_mov_b32 v2, s100")
        e("v_mov_b32 v3, s101")
        e("s_mov_b64 exec, 1")
        e("buffer_store_dwordx2 v[2:3], off, s[88:91], 0 sc1")
        e("s_mov_b64 exec, -1")
        e.label("K2_BS")
        e("s_barrier")
        e("s_cmp_lt_u32 s3, 8")
        e("s_cbranch_scc1 K1_START")
        e.label("K2_START")
        e("s_load_dwordx2 s[88:89], s[0:1], 88")
    e("s_load_dwordx4 s[4:7], s[0:1], 32")
    e("s_load_dwordx2 s[12:13], s[0:1], 96")
    e("s_load_dwordx4 s[8:11], s[0:1], 56")
    e("s_load_dwordx2 s[50:51], s[0:1], 72")
    e("v_lshrrev_b32 v1, 6, v0")
    e("s_nop 0")
    e("v_readfirstlane_b32 s3, v1")
    e("v_and_b32 v1, 63, v0")
    e("v_lshlrev_b32 v2, 4, v1")
    e("s_and_b32 s14, s2, 7")
    e("s_lshr_b32 s15, s2, 3")
    if "map2" in X2:
        e("s_mul_i32 s32, s14, 27")
        e("s_add_u32 s65, s32, s15")
        e("s_lshl_b32 s65, s65, 1")
        e("s_add_u32 s69, s65, 1")
        e(f"s_mov_b32 s66, {CV_A}")
        e("s_cmp_lt_u32 s15, 27")
        e("s_cselect_b32 s64, 1, 0")
        e("s_cbranch_scc1 K2_R")
        e("s_mul_i32 s32, s14, 5")
        e("s_add_u32 s32, s32, s15")
        e("s_add_u32 s65, s32, 405")
        e("s_add_u32 s69, s65, 120")
        e("s_mov_b32 s66, 0")
        e.label("K2_R")
        e("s_mov_b32 s76, s15")
        e("s_mov_b32 s77, s14")
    else:
        e("s_lshr_b32 s28, s14, 2")
        e("s_lshl_b32 s29, s28, 1")
        e("s_sub_u32 s29, 28, s29")
        e("s_and_b32 s31, s14, 3")
        e("s_mul_i32 s32, s31, s29")
        e("s_mul_i32 s33, s28, 112")
        e("s_add_u32 s32, s32, s33")
        e("s_add_u32 s65, s32, s15")
        e("s_lshl_b32 s65, s65, 1")
        e("s_add_u32 s69, s65, 1")
        e(f"s_mov_b32 s66, {CV_A}")
        e("s_cmp_lt_u32 s15, s29")
        e("s_cselect_b32 s64, 1, 0")
        e("s_cbranch_scc1 K2_R")
        e("s_sub_u32 s32, 32, s29")
        e("s_mul_i32 s32, s32, s31")
        e("s_lshl_b32 s33, s28, 4")
        e("s_add_u32 s32, s32, s33")
        e("s_add_u32 s32, s32, s15")
        e("s_sub_u32 s32, s32, s29")
        e("s_add_u32 s65, s32, 432")
        e("s_add_u32 s69, s65, 120")
        e("s_mov_b32 s66, 0")
        e.label("K2_R")
        e("s_mul_i32 s76, s28, 14")
        e("s_lshr_b32 s33, s15, 1")
        e("s_add_u32 s76, s76, s33")
        e("s_lshl_b32 s77, s31, 1")
        e("s_and_b32 s33, s15, 1")
        e("s_add_u32 s77, s77, s33")
    e("s_waitcnt lgkmcnt(0)")
    srd(e, 16, 4, 5, SZ_SD)
    if FUSE:
        e("s_mov_b32 s90, 256")
        e("s_mov_b32 s91, 0x00020000")
    e("s_cmp_lt_u32 s3, 12")
    e("s_cbranch_scc1 K2_CW")
    e("s_sub_u32 s3, s3, 12")
    e("s_cmp_eq_u32 s64, 0")
    e("s_cbranch_scc1 K2_RP")
    srd_off(e, 52, 12, 13, WS_XNP, SZ_SD)
    e("s_cmp_eq_u32 s3, 0")
    e("s_cselect_b32 s56, s8, s10")
    e("s_cselect_b32 s57, s9, s11")
    e(f"s_mov_b32 s58, {D*F*2}")
    e("s_mov_b32 s59, 0x00020000")
    e("v_lshrrev_b32 v3, 3, v1")
    e("v_and_b32 v4, 7, v1")
    e("v_bfe_u32 v5, v3, 1, 1")
    e("v_lshlrev_b32 v5, 2, v5")
    e("v_xor_b32 v4, v4, v5")
    e("v_mul_u32_u24 v3, 3456, v3")
    e("v_lshl_add_u32 v3, v4, 4, v3")
    for i in range(1, 4):
        e(f"v_add_u32 v{3+i}, {i*(8*3456-1024)}, v3")
    e("s_lshl_b32 s72, s3, 13")
    e("s_lshl_b32 s73, s3, 12")
    e("s_mul_i32 s74, s77, 327680")
    e("s_add_u32 s74, s74, s72")
    e("s_lshl_b32 s75, s76, 7")
    e("s_add_u32 s73, s73, 16384")
    ASC = LDSC if FUSE else ""
    def g1_dma(a=True, w=True):
        if a:
            e("s_mov_b32 m0, s72")
            e("s_add_u32 s34, s74, 4096")
            for i in range(4):
                e(f"buffer_load_dwordx4 v2, s[52:55], s74 offen offset:{i*1024} {ASC} lds")
            e("s_add_u32 m0, s72, 4096")
            e("s_add_u32 s74, s74, 16384")
            for i in range(4):
                e(f"buffer_load_dwordx4 v2, s[52:55], s34 offen offset:{i*1024} {ASC} lds")
            e(f"s_add_u32 s72, s72, {STG}")
        if w:
            e("s_mov_b32 m0, s73")
            e("s_nop 0")
            for i in range(4):
                e(f"buffer_load_dwordx4 v{3+i}, s[56:59], s75 offen offset:{i*1024} lds")
            e(f"s_add_u32 s75, s75, {32*3456}")
            e(f"s_add_u32 s73, s73, {STG}")
    def lst():
        if PROF2:
            e("s_memtime s[88:89]")
            e("s_memrealtime s[90:91]")
            e("s_waitcnt lgkmcnt(0)")
            e("v_cmp_eq_u32 vcc, s81, v1")
            e("v_mov_b32 v21, s88")
            e("v_cndmask_b32 v20, v20, v21, vcc")
            e("v_mov_b32 v21, s90")
            e("v_cndmask_b32 v22, v22, v21, vcc")
            e("s_add_u32 s81, s81, 1")
    if FUSE:
        dly(e, DLY[0])
        for i in range(3): g1_dma(False, True)
        srd_off(e, 44, 12, 13, WS_FL, SZ_FL)
        e("v_lshlrev_b32 v8, 7, v1")
        e("s_lshl_b32 s40, s77, 13")
        nonce_get(e, "NG_L", 10)
        e("s_mov_b32 s41, 0")
        e.label("PL_LN")
        e("buffer_load_dwordx2 v[10:11], v8, s[44:47], s40 offen sc1")
        e("s_waitcnt vmcnt(0)")
        e("v_cmp_ne_u64 vcc, s[100:101], v[10:11]")
        e("s_cmp_eq_u64 vcc, 0")
        e("s_cbranch_scc1 PL_LN_D")
        e("s_mov_b64 exec, vcc")
        e(f"s_sleep {PSL}")
        e("s_add_u32 s41, s41, 1")
        e(f"s_cmp_lt_u32 s41, {SPIN}")
        e("s_cbranch_scc1 PL_LN")
        e.label("PL_LN_D")
        e("s_mov_b64 exec, -1")
        e("v_mov_b32 v10, 1")
        e(f"v_mov_b32 v11, {LCNT + 4}")
        e("ds_write_b32 v11, v10")
        trace_end(e, 4, 768, True)
        g1_dma(True, False); g1_dma(True, False)
        e("s_waitcnt vmcnt(8)")
        e("s_barrier")
        g1_dma(True, False)
        e("s_waitcnt vmcnt(8)")
        e("s_barrier")
        g1_dma()
        e(f"s_sub_u32 s72, s72, {NS*STG}")
        e(f"s_sub_u32 s73, s73, {NS*STG}")
        e(f"s_mov_b32 s79, {NS}")
        e(f"s_mov_b32 s80, {NS*STG}")
    else:
      e("s_mov_b32 s81, 0")
      lst()
      e("s_mov_b32 s79, 0")
      e(f"s_mov_b32 s80, {NS*STG}")
      e.label("K2_LP")
      g1_dma()
      e("s_add_u32 s79, s79, 1")
      e(f"s_cmp_lg_u32 s79, {LB0}")
      e("s_cbranch_scc1 K2_LP2")
      lst()
      e(f"s_waitcnt vmcnt({12*(LB0-1)})")
      e("s_barrier")
      lst()
      e.label("K2_LP2")
      e(f"s_cmp_lt_u32 s79, {NS-1}")
      e("s_cbranch_scc1 K2_LP")
    if PACE: e(f"s_mov_b32 s78, {PACE[0]}")
    e.label("K2_LGL")
    if PACE:
        e(f"s_cmp_ge_u32 s79, {NS - 1 + PACE[2]}")
        e("s_cbranch_scc1 K2_PE")
        e("s_lshr_b32 s33, s78, 2")
        e.label("K2_PL")
        e("s_sleep 1")
        e("s_sub_u32 s33, s33, 1")
        e("s_cmp_lg_u32 s33, 0")
        e("s_cbranch_scc1 K2_PL")
        e(f"s_sub_u32 s78, s78, {PACE[1]}")
        e.label("K2_PE")
    e(f"s_waitcnt vmcnt({12*(NS-3)})")
    e("s_barrier")
    lst()
    g1_dma()
    e("s_cmp_ge_u32 s72, s80")
    e("s_cselect_b32 s33, s80, 0")
    e("s_sub_u32 s72, s72, s33")
    e("s_sub_u32 s73, s73, s33")
    e("s_add_u32 s79, s79, 1")
    if os.environ.get("K2SL"):
        sl = [int(x) for x in os.environ['K2SL'].split(",")]
        if len(sl) == 1: e(f"s_sleep {sl[0]}")
        else:
            e(f"s_sub_u32 s33, s79, {sl[1]}")
            e(f"s_cmp_ge_u32 s33, {sl[2]-sl[1]}")
            e("s_cbranch_scc1 K2_NSL")
            e(f"s_sleep {sl[0]}")
            e.label("K2_NSL")
    e(f"s_cmp_lt_u32 s79, {NT}")
    e("s_cbranch_scc1 K2_LGL")
    for b in range(NT-NS+2, (max(NT, C1_E+1) if PROF2 else NT)):
        e(f"s_waitcnt vmcnt({12*max(NT-1-b, 0)})")
        e("s_barrier")
        lst()
    if PROF2:
        e("s_load_dwordx2 s[84:85], s[0:1], 88")
        e("s_waitcnt lgkmcnt(0)")
        e("s_mov_b32 s86, 256")
        e("s_mov_b32 s87, 0x00020000")
        e(f"s_cmp_lg_u32 s2, {PROF2}")
        e("s_cbranch_scc1 K2_END")
        e("s_cmp_lg_u32 s3, 0")
        e("s_cbranch_scc1 K2_END")
        e("v_lshlrev_b32 v120, 2, v1")
        e("buffer_store_dword v20, v120, s[84:87], 0 offen offset:128")
        e("v_cmp_gt_u32 vcc, 32, v1")
        e("s_and_saveexec_b64 s[92:93], vcc")
        e("buffer_store_dword v22, v120, s[84:87], 0 offen")
    e("s_endpgm")
    e.label("K2_RP")
    srd(e, 52, 50, 51, D*F*2)
    srd_off(e, 56, 12, 13, WS_WP2, D*F*2)
    e("s_sub_u32 s28, s65, 432")
    e("s_lshl_b32 s28, s28, 1")
    e("s_add_u32 s28, s28, s3")
    e("s_mul_hi_u32 s29, s28, 0x1999999a")
    e("s_mul_i32 s30, s29, 10")
    e("s_sub_u32 s30, s28, s30")
    e("s_mul_i32 s30, s30, 1728")
    e("s_mul_i32 s29, s29, 160")
    e("s_mul_i32 s28, s28, 27648")
    e("s_mov_b32 s31, 0xcccccccd")
    e("v_add_u32 v3, s30, v1")
    if FUSE: dly(e, DLY[2])
    for i in range(27):
        e(f"v_add_u32 v4, {64*i}, v3")
        e("v_mul_hi_u32 v5, v4, s31")
        e("v_lshrrev_b32 v5, 3, v5")
        e("v_mul_u32_u24 v6, 10, v5")
        e("v_sub_u32 v6, v4, v6")
        e("v_mul_u32_u24 v5, 1280, v5")
        e("v_lshl_add_u32 v5, v6, 4, v5")
        e(f"buffer_load_dwordx4 v[{8+4*i}:{11+4*i}], v5, s[52:55], s29 offen")
    for i in range(RPB):
        if i == 1 and CDL: e(f"s_sleep {CDL}")
        e("s_barrier")
    e("s_waitcnt vmcnt(0)")
    for i in range(27):
        e(f"buffer_store_dwordx4 v[{8+4*i}:{11+4*i}], v2, s[56:59], s28 offen offset:{(i&3)*1024} {STW}")
        if i & 3 == 3: e("s_add_u32 s28, s28, 4096")
    e("s_endpgm")
    e.label("K2_CW")
    e("s_cmp_lt_u32 s3, 8")
    e("s_cselect_b32 s33, s64, 0")
    e("s_cmp_eq_u32 s33, 1")
    e("s_cbranch_scc1 K2_G")
    srd_off(e, 20, 12, 13, WS_KVT, SZ_SD)
    srd_off(e, 24, 12, 13, WS_T3, SZ_T3)
    q(e, 0, 8)
    e("s_and_b32 s39, s3, 3")
    e("s_lshr_b32 s38, s3, 2")
    e("s_cmp_eq_u32 s64, 1")
    e("s_cselect_b32 s38, 0, s38")
    e("s_mul_i32 s33, s38, 40")
    e("s_add_u32 s65, s65, s33")
    e("s_add_u32 s69, s69, s33")
    e(f"s_mul_i32 s33, s38, {CV_SZ}")
    e("s_add_u32 s66, s66, s33")
    e("s_lshr_b32 s38, s39, 1")
    e("s_min_u32 s68, s69, 639")
    e("s_lshr_b32 s28, s65, 1")
    e("s_lshl_b32 s28, s28, 2")
    e("s_load_dword s70, s[6:7], s28")
    e("s_lshr_b32 s28, s68, 1")
    e("s_lshl_b32 s28, s28, 2")
    e("s_load_dword s71, s[6:7], s28")
    e("s_lshl_b32 s32, s65, 12")
    e("s_lshl_b32 s33, s68, 12")
    e("v_lshl_add_u32 v16, s39, 6, v1")
    e("v_lshlrev_b32 v12, 4, v16")
    if FUSE and DLY[1]:
        e("s_cmp_lt_u32 s3, 8")
        e("s_cbranch_scc1 K2_ND")
        dly(e, DLY[1])
        e.label("K2_ND")
    e("buffer_load_dwordx4 v[104:107], v12, s[16:19], s32 offen")
    e("buffer_load_dwordx2 v[108:109], v12, s[16:19], s32 offen offset:16")
    if not FUSE: e("buffer_load_dwordx4 v[4:7], v12, s[20:23], s32 offen")
    e("buffer_load_dwordx4 v[120:123], v12, s[16:19], s33 offen")
    e("buffer_load_dwordx2 v[124:125], v12, s[16:19], s33 offen offset:16")
    if not FUSE: e("buffer_load_dwordx4 v[112:115], v12, s[20:23], s33 offen")
    if FUSE:
        e("s_mov_b32 s58, s32")
        e("s_mov_b32 s59, s33")
        e("v_mov_b32 v119, v12")
    e(f"s_add_u32 s34, s66, {CP_OFF + 128}")
    e("v_add_u32 v117, s34, v12")
    for i in range(4):
        e(f"v_mov_b32 v{28+i}, 0")
    e("v_lshrrev_b32 v21, 3, v1")
    e(f"v_mul_u32_u24 v20, {COPY}, v21")
    e("v_and_b32 v21, 7, v1")
    e("v_lshl_add_u32 v20, v21, 4, v20")
    e(f"s_add_u32 s34, s66, {CP_OFF}")
    e("v_add_u32 v20, s34, v20")
    e("v_and_b32 v22, 15, v1")
    e("v_bfe_u32 v21, v1, 4, 1")
    e(f"v_mul_u32_u24 v21, {KVSZ}, v21")
    e("v_lshl_add_u32 v21, v22, 4, v21")
    e("v_add_u32 v21, s66, v21")
    e("v_cmp_gt_u32 vcc, 9, v22")
    e("s_mov_b32 vcc_hi, 0")
    e("s_cmp_eq_u32 s39, 0")
    e("s_cbranch_scc0 CF_0")
    e("ds_write_b128 v20, v[28:31]")
    e("s_and_saveexec_b64 s[36:37], vcc")
    e("ds_write_b128 v21, v[28:31]")
    e("s_mov_b64 exec, s[36:37]")
    e.label("CF_0")
    e("v_lshrrev_b32 v118, 3, v16")
    e("v_mul_u32_u24 v118, 144, v118")
    e("v_and_b32 v26, 7, v16")
    e("v_lshl_add_u32 v118, v26, 4, v118")
    e("s_add_u32 s34, s66, 144")
    e("v_add_u32 v118, s34, v118")
    e("v_and_b32 v40, 15, v1")
    e("v_lshrrev_b32 v41, 4, v1")
    e("v_add_u32 v16, 1, v40")
    e("v_and_b32 v16, 3, v16")
    e(f"v_mul_u32_u24 v8, {COPY - 2}, v16")
    e("v_lshl_add_u32 v8, v40, 1, v8")
    e("v_lshlrev_b32 v17, 4, v41")
    e("v_sub_u32 v8, v8, v17")
    e("s_lshl_b32 s41, s38, 10")
    e("s_and_b32 s42, s39, 1")
    e("s_lshl_b32 s42, s42, 5")
    e("s_add_u32 s42, s42, s41")
    e("s_add_u32 s42, s42, s66")
    e(f"s_add_u32 s42, s42, {CP_OFF + 2*(64-7) - 64}")
    e("v_add_u32 v8, s42, v8")
    e("v_add_u32 v9, 2048, v8")
    e("v_mul_u32_u24 v10, 144, v40")
    e("v_lshlrev_b32 v11, 4, v41")
    e("v_add_u32 v11, s66, v11")
    e("v_add_u32 v10, v10, v11")
    e("s_mul_i32 s43, s38, 1152")
    e("s_sub_u32 s43, 144, s43")
    e("v_add_u32 v10, s43, v10")
    e("s_mul_i32 s44, s2, 12")
    e("s_add_u32 s44, s44, s3")
    e("s_xor_b32 s45, s44, 2")
    e("s_lshl_b32 s44, s44, 12")
    e("s_lshl_b32 s45, s45, 12")
    e("v_add_u32 v14, s44, v2")
    e("v_add_u32 v15, s45, v2")
    e("v_mul_u32_u24 v13, 144, v40")
    e("v_lshrrev_b32 v42, 1, v41")
    e("v_lshl_add_u32 v13, v42, 4, v13")
    e("v_and_b32 v42, 1, v41")
    e("v_lshlrev_b32 v42, 3, v42")
    e("v_xor_b32 v42, 8, v42")
    e("v_add_u32 v13, v13, v42")
    e("s_lshl_b32 s46, s39, 5")
    e("s_add_u32 s47, s46, s66")
    e("s_add_u32 s47, s47, 144")
    e("v_add_u32 v13, s47, v13")
    e("v_mul_u32_u24 v2, 81920, v40")
    e("v_lshl_add_u32 v2, v41, 3, v2")
    e("v_add_u32 v2, s46, v2")
    if FUSE:
        e("s_waitcnt vmcnt(2)")
        write_copies(e, 104, "CF_1", 0)
        e("s_waitcnt vmcnt(0)")
        write_copies(e, 120, "CF_2", 4*COPY)
        srd_off(e, 52, 12, 13, WS_FL, SZ_FL)
        for (sc, sd) in ((65, 28), (68, 29)):
            e(f"s_mul_i32 s30, s{sc}, 52429")
            e("s_lshr_b32 s30, s30, 22")
            e("s_mul_i32 s31, s30, 80")
            e(f"s_sub_u32 s31, s{sc}, s31")
            e("s_cmp_ge_u32 s31, 40")
            e("s_cselect_b32 s34, 40, 0")
            e("s_sub_u32 s31, s31, s34")
            e("s_lshr_b32 s31, s31, 3")
            e("s_mul_i32 s30, s30, 5")
            e("s_add_u32 s30, s30, s31")
            e("s_lshl_b32 s30, s30, 2")
            e("s_add_u32 s30, s30, s39")
            e(f"s_lshl_b32 s{sd}, s30, 10")
        e("v_mov_b32 v16, s28")
        e("v_mov_b32 v17, s29")
        e("v_cmp_gt_u32 vcc, 8, v1")
        e("v_cndmask_b32 v16, v17, v16, vcc")
        e("v_and_b32 v17, 7, v1")
        e("v_lshl_add_u32 v16, v17, 7, v16")
        e(f"v_mov_b32 v21, {LCNT + 4}")
        e("s_lshr_b32 s34, s3, 2")
        e("s_lshl_b32 s34, s34, 4")
        e(f"s_add_u32 s34, s34, {LCNT + 16}")
        e("v_mov_b32 v22, s34")
        e("s_lshl_b32 s35, s39, 2")
        e("v_add_u32 v23, s35, v22")
        e(f"s_mov_b32 s40, {FL_KV}")
        nonce_get(e, "NG_C", 18)
        e("s_mov_b32 s41, 0")
        e("s_mov_b32 s43, 0")
        e("s_mov_b64 exec, 0xffff")
        e.label("CP_A")
        e("buffer_load_dwordx2 v[18:19], v16, s[52:55], s40 offen sc1")
        e("s_waitcnt vmcnt(0)")
        e("ds_read_b32 v20, v21")
        e("v_cmp_ne_u64 vcc, s[100:101], v[18:19]")
        e("s_waitcnt lgkmcnt(0)")
        e("v_readfirstlane_b32 s42, v20")
        e("s_cmp_eq_u64 vcc, 0")
        e("s_cbranch_scc1 CP_R")
        e("s_mov_b64 exec, vcc")
        e("s_cmp_lg_u32 s42, 0")
        e("s_cbranch_scc1 CP_B")
        e(f"s_sleep {PSL}")
        e("s_add_u32 s41, s41, 1")
        e(f"s_cmp_lt_u32 s41, {SPIN}")
        e("s_cbranch_scc1 CP_A")
        e("s_branch CP_R")
        e.label("CP_B")
        e("buffer_load_dwordx2 v[18:19], v16, s[52:55], s40 offen sc1")
        e("s_barrier")
        e("s_add_u32 s43, s43, 1")
        e("s_waitcnt vmcnt(0)")
        e("v_cmp_ne_u64 vcc, s[100:101], v[18:19]")
        e("s_cmp_eq_u64 vcc, 0")
        e("s_cbranch_scc1 CP_R")
        e("s_mov_b64 exec, vcc")
        e("s_add_u32 s41, s41, 1")
        e(f"s_cmp_lt_u32 s41, {SPIN}")
        e("s_cbranch_scc1 CP_B")
        e.label("CP_R")
        e("s_mov_b64 exec, -1")
        trace_end(e, 5, 512, True)
        e(f"buffer_load_dwordx4 v[4:7], v119, s[20:23], s58 offen {LDSC}")
        e(f"buffer_load_dwordx4 v[112:115], v119, s[20:23], s59 offen {LDSC}")
        e("s_cmp_eq_u32 s42, 0")
        e("s_cbranch_scc1 CP_W")
        for i in range(CWB):
            e("s_barrier")
        e(f"s_add_u32 s43, s43, {CWB}")
        e.label("CP_W")
        e("s_add_u32 s42, s43, 1")
        e("v_mov_b32 v20, s42")
        e("s_waitcnt vmcnt(1)")
        e("ds_write_b128 v118, v[4:7]")
        e("s_waitcnt vmcnt(0)")
        e(f"ds_write_b128 v118, v[112:115] offset:{KVSZ}")
        e("ds_write_b32 v23, v20")
        e("s_waitcnt lgkmcnt(0)")
        e("s_mov_b32 s41, 0")
        e.label("CP_C")
        e("s_barrier")
        e("s_add_u32 s43, s43, 1")
        e("ds_read_b128 v[24:27], v22")
        e("s_add_u32 s41, s41, 1")
        e("s_waitcnt lgkmcnt(0)")
        for i in range(4): e(f"v_subrev_u32 v{24+i}, 1, v{24+i}")
        e("v_max_u32 v24, v24, v25")
        e("v_max_u32 v26, v26, v27")
        e("v_max_u32 v24, v24, v26")
        e("s_nop 0")
        e("v_readfirstlane_b32 s42, v24")
        e(f"s_cmp_ge_u32 s41, {4*SPIN}")
        e("s_cbranch_scc1 CP_D")
        e("s_cmp_ge_u32 s42, s43")
        e("s_cbranch_scc1 CP_C")
        e.label("CP_D")
        if TRACE: e("s_mov_b32 s67, s43")
    else:
      e("s_waitcnt vmcnt(4)")
      write_copies(e, 104, "CF_1", 0)
      e("s_waitcnt vmcnt(3)")
      e("ds_write_b128 v118, v[4:7]")
      e("s_waitcnt vmcnt(1)")
      write_copies(e, 120, "CF_2", 4*COPY)
      e("s_waitcnt vmcnt(0)")
      e(f"ds_write_b128 v118, v[112:115] offset:{KVSZ}")
      e("s_waitcnt lgkmcnt(0)")
    srd_off(e, 60, 12, 13, WS_XCH, 256*12*4096)
    q(e, 5, 8)
    conv_main(e)
    q(e, 11, 8)
    if PROF2 or TRACE: e("s_waitcnt vmcnt(0)")
    q(e, 7, 8)
    qdump(e, 12, 8)
    p4dump(e, "P4_C")
    trace_end(e, 0, 512)
    e("s_endpgm")
    e.label("K2_G")
    q(e, 0)
    srd_off(e, 60, 12, 13, WS_H, SZ_H)
    e("s_lshr_b32 s47, s3, 1")
    e("s_and_b32 s48, s3, 1")
    e("v_and_b32 v4, 31, v1")
    e("v_lshrrev_b32 v3, 5, v1")
    e("s_lshl_b32 s49, s47, 6")
    e("v_add_u32 v4, s49, v4")
    e("v_lshrrev_b32 v7, 2, v4")
    e("v_and_b32 v5, 3, v4")
    e("v_lshl_add_u32 v5, v5, 2, v3")
    e("v_and_b32 v6, 3, v7")
    e("v_xor_b32 v5, v5, v6")
    e("v_lshlrev_b32 v5, 4, v5")
    e("v_lshl_add_u32 v12, v7, 8, v5")
    e("v_xor_b32 v13, 32, v12")
    e("v_lshrrev_b32 v8, 4, v1")
    e("v_bfe_u32 v3, v1, 2, 2")
    e("v_and_b32 v4, 3, v1")
    e("v_lshrrev_b32 v5, 1, v8")
    e("v_lshl_add_u32 v5, v5, 3, v3")
    e("v_lshlrev_b32 v5, 7, v5")
    e("v_and_b32 v6, 1, v8")
    e("v_lshlrev_b32 v6, 1, v6")
    e("v_lshrrev_b32 v7, 1, v4")
    e("v_add_u32 v6, v6, v7")
    e("s_lshl_b32 s49, s48, 2")
    e("v_add_u32 v6, s49, v6")
    e("v_bfe_u32 v7, v3, 1, 1")
    e("v_lshlrev_b32 v7, 2, v7")
    e("v_xor_b32 v6, v6, v7")
    e("v_lshl_add_u32 v5, v6, 4, v5")
    e("v_and_b32 v7, 1, v4")
    e("v_lshl_add_u32 v5, v7, 3, v5")
    e("v_add_u32 v14, 16384, v5")
    G0, U0 = 64, 96
    for i in range(64):
        e(f"v_mov_b32 v{64+i}, 0")
    e("v_add_u32 v9, 0x10000, v12")
    e("v_add_u32 v10, 0x10000, v13")
    e("v_add_u32 v11, 0x10000, v14")
    def frag_ops(g):
        if "nofr" in X2: return []
        t = g >> 1; ks = g & 1; fb = 16 + 16*(g % 3)
        sb = (t % NS)*STG
        hi64 = sb >= 65536
        if hi64: sb -= 65536
        xa = (9 if hi64 else 12) + ks; wa = 11 if hi64 else 14
        r = []
        for mat in range(2):
            for hi in range(2):
                rr = fb + 8 + 4*mat + 2*hi
                r.append(f"ds_read_b64_tr_b16 v[{rr}:{rr+1}], v{wa} offset:{sb + mat*4096 + ks*2048 + hi*512}")
        for mi in range(2):
            r.append(f"ds_read_b128 v[{fb+4*mi}:{fb+4*mi+3}], v{xa} offset:{sb + mi*2048}")
        return r
    def frag_loads(g):
        for x in frag_ops(g): e(x)
    def mf(g, ops):
        fb = 16 + 16*(g % 3)
        ms = []
        for mi in range(2):
            x = fb+4*mi
            ms.append(f"v_mfma_f32_32x32x16_bf16 v[{G0+16*mi}:{G0+16*mi+15}], v[{fb+8}:{fb+11}], v[{x}:{x+3}], v[{G0+16*mi}:{G0+16*mi+15}]")
            ms.append(f"v_mfma_f32_32x32x16_bf16 v[{U0+16*mi}:{U0+16*mi+15}], v[{fb+12}:{fb+15}], v[{x}:{x+3}], v[{U0+16*mi}:{U0+16*mi+15}]")
        grp = [ops[0:2], ops[2:4], ops[4:5], ops[5:6]]
        for i in range(4):
            e(ms[i])
            for x in grp[i]: e(x)
    e("v_lshrrev_b32 v3, 5, v1")
    e("v_and_b32 v4, 31, v1")
    e("v_lshlrev_b32 v4, 4, v4")
    e("v_lshl_add_u32 v4, v3, 10, v4")
    e("s_lshl_b32 s46, s77, 2")
    e("s_add_u32 s46, s46, s47")
    e(f"s_mul_i32 s46, s46, {27*8192}")
    e("s_lshl_b32 s49, s76, 13")
    e("s_add_u32 s46, s46, s49")
    e("s_lshl_b32 s49, s48, 12")
    e("s_add_u32 s46, s46, s49")
    q(e, 1)
    e("s_barrier")
    if FUSE and TRACE:
        trace_end(e, 6, 0, True)
        for i in range(120, 128): e(f"v_mov_b32 v{i}, 0")
    q(e, 2)
    if DIAG: e("s_memrealtime s[66:67]\ns_memtime s[68:69]\ns_waitcnt lgkmcnt(0)")
    frag_loads(0); frag_loads(1)
    for g in range(2*NT):
        ops = []
        if g + 2 < 2*NT:
            if g & 1 == 0: bar(e, (g+2)//2)
            ops = frag_ops(g+2)
        e(f"s_waitcnt lgkmcnt({6*min(1, 2*NT-1-g)})")
        mf(g, ops)
    q(e, 3)
    if DIAG: e("s_memrealtime s[70:71]\ns_memtime s[72:73]\ns_waitcnt lgkmcnt(0)")
    gb = NT
    if C1_E >= gb: e("s_barrier"); gb += 1
    e("s_nop 15")
    for mi in range(2):
        for pi in range(2):
            o = 16 + 4*(2*mi+pi)
            for ii in range(2):
                i = 2*pi + ii
                g = G0+16*mi+4*i; u = U0+16*mi+4*i
                for pr in range(2):
                    e(f"v_cvt_pk_bf16_f32 v40, v{g+2*pr}, v{g+2*pr+1}")
                    e(f"v_cvt_pk_bf16_f32 v41, v{u+2*pr}, v{u+2*pr+1}")
                    e("v_lshlrev_b32 v42, 16, v40")
                    e("v_and_b32 v43, 0xffff0000, v40")
                    e("v_lshlrev_b32 v44, 16, v41")
                    e("v_and_b32 v45, 0xffff0000, v41")
                    e("v_mul_f32 v42, v42, v44")
                    e("v_mul_f32 v43, v43, v45")
                    e(f"v_cvt_pk_bf16_f32 v{o+2*ii+pr}, v42, v43")
            e("s_nop 1")
            e(f"v_permlane32_swap_b32 v{o}, v{o+2}")
            e(f"v_permlane32_swap_b32 v{o+1}, v{o+3}")
            e("s_nop 1")
            e(f"buffer_store_dwordx4 v[{o}:{o+3}], v4, s[60:63], s46 offen offset:{pi*2048 + mi*512} {ST2H}")
    while C1_E >= gb:
        e("s_barrier"); gb += 1
    q(e, 4)
    if PROF2 or TRACE: e("s_waitcnt vmcnt(0)")
    q(e, 7)
    qdump(e, 12)
    p4dump(e, "P4_G")
    trace_end(e, 1)
    diag_end(e, 1, 3, 77, 0, "DG_2")
    e("s_endpgm")
    if FUSE:
        e.label("K1_START")
        e.l += k1().rstrip("\n").split("\n")
    e.label("K2_END")
    e("s_endpgm")
    return e.text()


N_G2 = 256
K3_NS = int(os.environ.get("K3NS", "7"))
K3_STG = 18432
K3_X0 = K3_STG*K3_NS
K3_LDS = K3_X0 + 2*10240
K3_XB = 12
K3R0, K3R1 = [int(x) for x in os.environ.get('K3R', '1,2').split(',')]
K3_XI = int(os.environ.get('K3XI', '0'))
K3_D = int(os.environ.get('K3D', '1'))
PROF5 = os.environ.get("PROF5")
def k3():
    e = E()
    NS = K3_NS; NT = 27; STG = K3_STG
    Y2_L = K3_X0; X_L = K3_X0 + 10240; XN_L = K3_X0 + 20480
    e(f"s_cmp_ge_u32 s2, {N_G2}")
    e("s_cbranch_scc1 K3_END")
    code_touch(e, "k3", 256, "K3_END")
    trace_start(e)
    for i in range(int(os.environ.get("K3NOP", "0"))): e("s_nop 0")
    e("s_load_dwordx2 s[4:5], s[0:1], 0")
    e("s_load_dwordx2 s[10:11], s[0:1], 80")
    e("s_load_dwordx2 s[12:13], s[0:1], 96")
    e("v_lshrrev_b32 v1, 6, v0")
    e("s_nop 0")
    e("v_readfirstlane_b32 s3, v1")
    if "mapc" in X3:
        e("s_and_b32 s15, s2, 3")
        e("s_lshl_b32 s15, s15, 3")
        e("s_lshr_b32 s28, s2, 3")
        e("s_and_b32 s29, s28, 7")
        e("s_add_u32 s15, s15, s29")
        e("s_lshr_b32 s28, s28, 3")
        e("s_and_b32 s29, s2, 4")
        e("s_add_u32 s28, s28, s29")
    else:
        e("s_and_b32 s15, s2, 7")
        e("s_lshl_b32 s15, s15, 2")
        e("s_lshr_b32 s28, s2, 3")
        e("s_and_b32 s29, s28, 3")
        e("s_add_u32 s15, s15, s29")
        e("s_lshr_b32 s28, s28, 2")
    e("s_lshl_b32 s36, s15, 6")
    e("s_mul_i32 s39, s28, 160")
    e("v_and_b32 v1, 63, v0")
    e("s_waitcnt lgkmcnt(0)")
    e("s_cmp_lt_u32 s3, 4")
    e("s_cbranch_scc1 K3_COMP")
    e("s_sub_u32 s3, s3, 4")
    e("v_lshlrev_b32 v2, 4, v1")
    e("s_cmp_ge_u32 s3, 2")
    e("s_cbranch_scc1 K3_XL")
    srd_off(e, 16, 12, 13, WS_H, SZ_H)
    srd_off(e, 20, 12, 13, WS_WP2, D*F*2)
    e("v_lshlrev_b32 v2, 4, v1")
    e("s_lshl_b32 s40, s3, 12")
    e("s_mul_i32 s41, s3, 5120")
    e(f"s_mul_i32 s42, s15, {0 if 'hotA' in X3 else 27*8192}")
    e("s_add_u32 s42, s42, s40")
    e(f"s_mul_i32 s43, s28, {0 if 'hotW' in X3 else 1728*160}")
    e("s_add_u32 s43, s43, s41")
    e("s_add_u32 s41, s41, 8192")
    vq = VQ(e)
    def lst():
        if PROF5:
            e("s_memtime s[88:89]")
            e("s_waitcnt lgkmcnt(0)")
            e("v_cmp_eq_u32 vcc, s81, v1")
            e("v_mov_b32 v21, s88")
            e("v_cndmask_b32 v20, v20, v21, vcc")
            e("s_add_u32 s81, s81, 1")
    e("s_mov_b32 s81, 0")
    lst()
    def dma(t):
        sb = (t % NS)*STG
        e(f"s_add_u32 m0, s40, {sb}")
        e("s_add_u32 s46, s43, 4096")
        for i in range(4):
            e(f"buffer_load_dwordx4 v2, s[16:19], s42 offen offset:{i*1024} lds")
        e(f"s_add_u32 m0, s41, {sb}")
        e("s_add_u32 s42, s42, 8192")
        for i in range(4):
            e(f"buffer_load_dwordx4 v2, s[20:23], s43 offen offset:{i*1024} lds")
        e(f"s_add_u32 m0, s41, {sb + 4096}")
        e("s_add_u32 s43, s43, 10240")
        e(f"buffer_load_dwordx4 v2, s[20:23], s46 offen lds")
        vq.issue(("g", t), 9)
    def extras():
        srd_off(e, 24, 12, 13, WS_T3, SZ_T3)
        srd(e, 52, 4, 5, SZ_SD)
        e("s_lshl_b32 s47, s15, 3")
        e("s_add_u32 s47, s47, s28")
        e(f"s_mul_i32 s47, s47, {0 if 'hotX' in X3 else 10240}")
        e("s_mul_i32 s49, s3, 5120")
        e("s_add_u32 s47, s47, s49")
        e("s_add_u32 s48, s47, 4096")
        e(f"s_add_u32 m0, s49, {Y2_L}")
        e("s_nop 0")
        for i in range(4):
            e(f"buffer_load_dwordx4 v2, s[24:27], s47 offen offset:{i*1024} lds")
        e(f"s_add_u32 m0, s49, {Y2_L + 4096}")
        e("s_nop 0")
        e(f"buffer_load_dwordx4 v2, s[24:27], s48 offen lds")
        for i in range(5):
            e(f"v_add_u32 v3, {64*i}, v1")
            e("v_mul_u32_u24 v4, 6554, v3")
            e("v_lshrrev_b32 v4, 16, v4")
            e("v_mul_u32_u24 v5, 10, v4")
            e("v_sub_u32 v5, v3, v5")
            e("v_mul_u32_u24 v4, 1280, v4")
            e(f"v_lshl_add_u32 v{10+i}, v5, 4, v4")
        e("s_lshl_b32 s48, s3, 5")
        e("s_add_u32 s48, s48, s36")
        e("s_mul_i32 s48, s48, 1280")
        e("s_add_u32 s48, s48, s39")
        for i in range(5):
            e(f"s_add_u32 m0, s49, {X_L + i*1024}")
            e("s_nop 0")
            e(f"buffer_load_dwordx4 v{10+i}, s[52:55], s48 offen lds")
    nxt = 0
    DD = K3_D + 1
    for b in range(NT):
        lim = NS - 1 if b < DD else b - 1 - DD + NS
        lim = min(lim, K3R1*b + K3R0, NT - 1)
        while nxt <= lim:
            dma(nxt); nxt += 1
        vq.wait([("g", b)])
        e("s_barrier")
        lst()
    if PROF5:
        e("s_load_dwordx2 s[84:85], s[0:1], 88")
        e("s_waitcnt lgkmcnt(0)")
        e("s_mov_b32 s86, 256")
        e("s_mov_b32 s87, 0x00020000")
        e(f"s_cmp_lg_u32 s2, {PROF5}")
        e("s_cbranch_scc1 K3_END")
        e("s_cmp_lg_u32 s3, 0")
        e("s_cbranch_scc1 K3_END")
        e("v_lshlrev_b32 v120, 2, v1")
        e("buffer_store_dword v20, v120, s[84:87], 0 offen")
    e("s_endpgm")
    e.label("K3_XL")
    e("s_sub_u32 s3, s3, 2")
    for b in range(K3_XB + 1):
        if b == K3_XI: extras()
        if b == K3_XB: e("s_waitcnt vmcnt(0)")
        e("s_barrier")
    e("s_endpgm")
    e.label("K3_COMP")
    srd(e, 32, 10, 11, SZ_SD)
    e("v_and_b32 v20, 15, v1")
    e("v_lshrrev_b32 v21, 4, v1")
    e("v_and_b32 v22, 1, v21")
    e("s_lshl_b32 s49, s3, 4")
    e("v_add_u32 v23, s49, v20")
    e("v_mul_u32_u24 v2, 160, v23")
    e("v_lshl_add_u32 v2, v21, 3, v2")
    e(f"v_add_u32 v2, {X_L}, v2")
    e("v_add_u32 v24, s36, v23")
    srd_off(e, 40, 12, 13, WS_XN, S*8)
    e("v_lshlrev_b32 v25, 3, v24")
    e("buffer_load_dwordx2 v[14:15], v25, s[40:43], 0 offen")
    e("v_mul_u32_u24 v24, 1280, v24")
    e("v_lshl_add_u32 v24, v21, 3, v24")
    e("v_add_u32 v3, s39, v24")
    e("v_lshlrev_b32 v24, 10, v21")
    e("v_lshl_add_u32 v24, v23, 4, v24")
    e("v_lshl_add_u32 v4, v22, 3, v24")
    e("v_xor_b32 v5, 8, v4")
    e("v_bfe_u32 v24, v1, 2, 2")
    e("v_lshl_add_u32 v24, v21, 3, v24")
    e("v_lshl_add_u32 v25, v22, 2, v24")
    e("v_xor_b32 v26, 1, v22")
    e("v_lshl_add_u32 v26, v26, 2, v24")
    e("v_and_b32 v24, 3, v1")
    e("v_lshlrev_b32 v24, 3, v24")
    e("v_add_u32 v24, 8192, v24")
    e("s_movk_i32 s49, 160")
    e("v_mad_u32_u24 v6, v25, s49, v24")
    e("v_mad_u32_u24 v7, v26, s49, v24")
    for k in range(4):
        e(f"v_add_u32 v{8+k}, {4*STG}, v{4+k}")
    e("v_lshrrev_b32 v12, 2, v1")
    e("v_lshlrev_b32 v12, 7, v12")
    e("v_and_b32 v24, 3, v1")
    e("v_lshl_add_u32 v12, v24, 3, v12")
    e("s_lshl_b32 s49, s3, 5")
    e(f"s_add_u32 s49, s49, {Y2_L}")
    e("v_add_u32 v12, s49, v12")
    ACC = 16; XR, XNR, YR = 36, 46, 56; T = 66; FB = 72
    lq = []
    def wait(tags):
        idx = max((i for i, t in enumerate(lq) if t in tags), default=-1)
        if idx >= 0: e(f"s_waitcnt lgkmcnt({min(len(lq) - 1 - idx, 15)})")
    def put(it):
        if it[0] is None: wait(it[1]); return
        e(it[0])
        if it[1] is not None: lq.append(it[1])
    def frag_ops(t):
        fb = FB + 48*(t % (K3_D+1))
        sl = t % NS
        ab = 4 if sl < 4 else 8
        sb = (sl if sl < 4 else sl - 4)*STG
        r = []
        for kk in range(2):
            for hf in range(2):
                rr = fb + 4*kk + 2*hf
                r.append((f"ds_read_b64 v[{rr}:{rr+1}], v{ab+hf} offset:{sb + kk*4096}", ("f", t, kk)))
            for tt in range(5):
                for hf in range(2):
                    rr = fb + 8 + 20*kk + 4*tt + 2*hf
                    r.append((f"ds_read_b64_tr_b16 v[{rr}:{rr+1}], v{ab+2+hf} offset:{sb + kk*5120 + 32*tt}", ("f", t, kk)))
        return r
    xl = []
    for tt in range(5):
        xl.append((f"ds_read_b64_tr_b16 v[{YR+2*tt}:{YR+2*tt+1}], v12 offset:{2048*tt}", "x"))
        xl.append((f"ds_read_b64 v[{XR+2*tt}:{XR+2*tt+1}], v2 offset:{32*tt}", "x"))
    def amath(i):
        r = [f"v_lshlrev_b32 v{T}, 16, v{XR+i}", f"v_and_b32 v{T+1}, 0xffff0000, v{XR+i}",
             f"v_sub_f32 v{T+2}, v{T}, v14", f"v_sub_f32 v{T+3}, v{T+1}, v14",
             f"v_cvt_pk_bf16_f32 v{T+4}, v{T+2}, v{T+3}",
             f"v_lshlrev_b32 v{T+2}, 16, v{T+4}", f"v_and_b32 v{T+3}, 0xffff0000, v{T+4}",
             f"v_mul_f32 v{T+4}, v{T+2}, v13", f"v_mul_f32 v{T+5}, v{T+3}, v13",
             f"v_fma_f32 v{T+2}, -v{T+4}, v15, v{T+2}", f"v_fma_f32 v{T+3}, -v{T+5}, v15, v{T+3}",
             f"v_fmac_f32 v{T+4}, v{T+2}, v13", f"v_fmac_f32 v{T+5}, v{T+3}, v13",
             f"v_cvt_pk_bf16_f32 v{T+4}, v{T+4}, v{T+5}",
             f"v_lshlrev_b32 v{T+2}, 16, v{T+4}", f"v_and_b32 v{T+3}, 0xffff0000, v{T+4}",
             f"v_lshlrev_b32 v{T+4}, 16, v{YR+i}", f"v_and_b32 v{T+5}, 0xffff0000, v{YR+i}",
             f"v_mul_f32 v{T+2}, v{T+2}, v{T+4}", f"v_mul_f32 v{T+3}, v{T+3}, v{T+5}",
             f"v_cvt_pk_bf16_f32 v{T+4}, v{T+2}, v{T+3}",
             f"v_lshlrev_b32 v{T+2}, 16, v{T+4}", f"v_and_b32 v{T+3}, 0xffff0000, v{T+4}",
             f"v_add_f32 v{T}, v{T}, v{T+2}", f"v_add_f32 v{T+1}, v{T+1}, v{T+3}",
             f"v_cvt_pk_bf16_f32 v{T+4}, v{T}, v{T+1}",
             f"v_lshlrev_b32 v{XR+i}, 16, v{T+4}", f"v_and_b32 v{XNR+i}, 0xffff0000, v{T+4}"]
        return [(x, None) for x in r]
    extra = {t: [] for t in range(NT)}
    tx = K3_XB - K3_D
    extra[tx] = xl
    extra[tx + 1] = [("s_waitcnt vmcnt(0)\nv_rcp_f32 v13, v15", None)]
    extra[tx + 2] = [(None, ["x"])]
    for i in range(10):
        extra[tx + 2 + i] += amath(i)
    for t in range(K3_D):
        e("s_barrier")
        for it in frag_ops(t): put(it)
    for t in range(NT):
        ops = []
        if t + K3_D < NT:
            e("s_barrier")
            ops = frag_ops(t+K3_D)
        ex = list(extra[t])
        fb = FB + 48*(t % (K3_D+1))
        for kk in range(2):
            wait([("f", t, kk)])
            for tt in range(5):
                a = ACC + 4*tt
                w = fb + 8 + 20*kk + 4*tt; h = fb + 4*kk
                c = "0" if (t == 0 and kk == 0) else f"v[{a}:{a+3}]"
                e(f"v_mfma_f32_16x16x32_bf16 v[{a}:{a+3}], v[{w}:{w+3}], v[{h}:{h+3}], {c}")
                left = 10 - (5*kk + tt)
                no = (len(ops) + left - 1)//left
                for it in ops[:no]: put(it)
                ops = ops[no:]
                ne = (len(ex) + left - 1)//left
                for it in ex[:ne]: put(it)
                ex = ex[ne:]
    e("s_nop 7")
    for tt in range(5):
        a = ACC + 4*tt
        for pr in range(2):
            i = 2*tt + pr
            e(f"v_cvt_pk_bf16_f32 v{T}, v{a+2*pr}, v{a+2*pr+1}")
            e(f"v_lshlrev_b32 v{T+1}, 16, v{T}")
            e(f"v_and_b32 v{T+2}, 0xffff0000, v{T}")
            e(f"v_add_f32 v{T+1}, v{XR+i}, v{T+1}")
            e(f"v_add_f32 v{T+2}, v{XNR+i}, v{T+2}")
            e(f"v_cvt_pk_bf16_f32 v{YR+i}, v{T+1}, v{T+2}")
        e(f"buffer_store_dwordx2 v[{YR+2*tt}:{YR+2*tt+1}], v3, s[32:35], 0 offen offset:{32*tt} {ST3}")
    trace_end(e, 2)
    diag_end(e, 2, 6, 77, 0, "DG_3")
    e.label("K3_END")
    e("s_endpgm")
    return e.text()

def build(kernels):
    out = []
    out.append(open("cdna_kernels/%s.s.ref" % NAME).read().split("; Override launch")[0])
    for (name, grid, block, lds, body, vgpr) in kernels:
        out.append(f"; @launch kernel={name} grid=({grid},1,1) block=({block},1,1) lds={lds}\n")
    out.append('.amdgcn_target "amdgcn-amd-amdhsa--gfx950"\n.text\n')
    for (name, grid, block, lds, body, vgpr) in kernels:
        out.append(khead(name))
        out.append(body)
    out.append('.section .rodata,"a"\n')
    for (name, grid, block, lds, body, vgpr) in kernels:
        out.append(".p2align 6\n")
        out.append(kdesc(name, vgpr))
    return "".join(out)

if __name__ == "__main__":
    ks = ([] if FUSE else [("prep_kernel", N_K1, 512, K1_LDS, k1(), 128)]) + [
          ("mid_kernel", N_K2, 896, K2_LDS, k2(), 128),
          ("fin_kernel", N_G2, 512, K3_LDS, k3(), 72 + 48*(K3_D+1))]
    open(sys.argv[1] if len(sys.argv) > 1 else "cdna_kernels/%s.s" % NAME, "w").write(build(ks))
```

```python
import sys
NAME = "parallel_sum__ssm_conv_h3__glu_gated_bilinear__prompt"
S, D, F = 2048, 640, 1728
WS_XN  = 0
WS_KVT = 0x280000
WS_H   = 0x500000
WS_Y2T = 0xC00000
WS_XNP = 0xF00000
WS_WP1 = 0x1200000
WS_WP2 = 0x1700000
WS_XCH = 0x1A00000
WS_XP = 0x2800000
WS_T3 = 0x2800000
SZ_T3 = 256*10240
SZ_SD = S*D*2
SZ_H = S*F*2

class E:
    def __init__(self):
        self.l = []
    def __call__(self, s):
        for line in s.strip("\n").split("\n"):
            self.l.append("    " + line.strip() if not line.strip().endswith(":") else line.strip())
    def label(self, n):
        self.l.append(n + ":")
    def text(self):
        return "\n".join(self.l) + "\n"

def srd(e, d, blo, bhi, nbytes):
    e(f"s_mov_b32 s{d}, s{blo}")
    e(f"s_mov_b32 s{d+1}, s{bhi}")
    e(f"s_mov_b32 s{d+2}, {nbytes}")
    e(f"s_mov_b32 s{d+3}, 0x00020000")

def srd_off(e, d, blo, bhi, off, nbytes):
    e(f"s_add_u32 s{d}, s{blo}, {off}")
    e(f"s_addc_u32 s{d+1}, s{bhi}, 0")
    e(f"s_mov_b32 s{d+2}, {nbytes}")
    e(f"s_mov_b32 s{d+3}, 0x00020000")

def kdesc(name, vgpr, sgpr=102):
    acc = (vgpr + 3)//4*4
    return f""".amdhsa_kernel {name}
  .amdhsa_next_free_vgpr {vgpr}
  .amdhsa_next_free_sgpr {sgpr}
  .amdhsa_accum_offset {acc}
  .amdhsa_group_segment_fixed_size 0
  .amdhsa_kernarg_size 104
  .amdhsa_user_sgpr_count 2
  .amdhsa_user_sgpr_kernarg_segment_ptr 1
  .amdhsa_system_sgpr_workgroup_id_x 1
.end_amdhsa_kernel
"""

import os
STAMP = os.environ.get("STAMP")
X3 = os.environ.get("X3", "").split(",")
X2 = os.environ.get("X2", "").split(",")
ST1 = os.environ.get("ST1", "sc1")
ST2H = os.environ.get("ST2H", "sc1")
ST2Y = os.environ.get("ST2Y", "")
ST3 = os.environ.get("ST3", "")
STW = os.environ.get("STW", "sc1")
STX = os.environ.get("STX", "sc1,").split(",")
XOFF = int(os.environ.get("XOFF", "2048"))
FUSE = int(os.environ.get("FUSE", "0"))
SPIN = int(os.environ.get("SPIN", "2000"))
LDSC = os.environ.get("LDSC", "sc1")
PSL = int(os.environ.get("PSL", "4"))
NSL = int(os.environ.get("NSL", "8"))
DRY = os.environ.get("DRY", "").split(",")
CWB = int(os.environ.get("CWB", "2"))
DLY = [int(x) for x in os.environ.get("DLY", "0,0,0,0").split(",")] + [0]
def dly(e, n):
    while n > 0:
        e(f"s_sleep {min(n, 127)}"); n -= 127
def stamp(e, idx):
    if not STAMP: return
    e(f"s_memtime s[88:89]")
    e("s_waitcnt lgkmcnt(0)")
    e(f"s_mov_b32 s{90+idx}, s88")
def stamp_dump(e, n, wg):
    if not STAMP: return
    e("s_load_dwordx2 s[84:85], s[0:1], 88")
    e("s_waitcnt lgkmcnt(0)")
    e("s_mov_b32 s86, 256")
    e("s_mov_b32 s87, 0x00020000")
    e(f"s_cmp_lg_u32 s2, {wg}")
    e("s_cbranch_scc1 9f")
    e("s_cmp_lg_u32 s3, 0")
    e("s_cbranch_scc1 9f")
    e("v_mov_b32 v120, 0")
    for i in range(1, n):
        e(f"s_sub_u32 s83, s{90+i}, s90")
        e("v_mov_b32 v121, s83")
        e(f"buffer_store_dword v121, v120, s[84:87], 0 offen offset:{4*i}")
    e("9:")

TRACE = os.environ.get("TRACE")
def trace_start(e):
    diag_start(e)
    if not TRACE: return
    e("s_memrealtime s[96:97]")
    e("s_memtime s[98:99]")
    e("s_mov_b32 s82, s2")
def trace_end(e, kidx, tid=0, restore=False):
    if not TRACE: return
    e("s_waitcnt vmcnt(0) lgkmcnt(0)")
    e("s_memrealtime s[92:93]")
    e("s_memtime s[94:95]")
    e("s_load_dwordx2 s[84:85], s[0:1], 96")
    e("s_getreg_b32 s90, hwreg(HW_REG_HW_ID)")
    e("s_getreg_b32 s91, hwreg(HW_REG_XCC_ID)")
    e("s_waitcnt lgkmcnt(0)")
    e(f"s_add_u32 s84, s84, {(64<<20) + kidx*65536}")
    e("s_addc_u32 s85, s85, 0")
    e("s_mov_b32 s86, 65536")
    e("s_mov_b32 s87, 0x00020000")
    e("s_lshl_b32 s91, s91, 24")
    e("s_and_b32 s90, s90, 0xffffff")
    e("s_or_b32 s90, s90, s91")
    e("s_sub_u32 s94, s94, s98")
    e("v_mov_b32 v124, s96")
    e("v_mov_b32 v125, s92")
    e("v_mov_b32 v126, s90")
    e("v_mov_b32 v127, s94")
    e("s_lshl_b32 s83, s82, 4")
    e("v_mov_b32 v121, s83")
    e(f"v_cmp_eq_u32 vcc, {tid}, v0")
    e("s_and_saveexec_b64 s[80:81], vcc")
    e("s_cbranch_execz 8f")
    e("buffer_store_dwordx4 v[124:127], v121, s[84:87], 0 offen")
    e("s_waitcnt vmcnt(0)")
    e("8:")
    if restore: e("s_mov_b64 exec, -1")

PROF = os.environ.get("PROF")
def pt(e, acc):
    if not PROF: return
    e("s_memtime s[88:89]")
    e("s_waitcnt lgkmcnt(0)")
    e("s_sub_u32 s90, s88, s87")
    e(f"s_add_u32 s{acc}, s{acc}, s90")
    e("s_mov_b32 s87, s88")
def pinit(e):
    if not PROF: return
    for i in range(80, 87): e(f"s_mov_b32 s{i}, 0")
    e("s_memtime s[88:89]")
    e("s_waitcnt lgkmcnt(0)")
    e("s_mov_b32 s87, s88")
def pdump(e, wave_off):
    if not PROF: return
    e("s_load_dwordx2 s[92:93], s[0:1], 88")
    e("s_waitcnt lgkmcnt(0)")
    e("s_mov_b32 s94, 256")
    e("s_mov_b32 s95, 0x00020000")
    e(f"s_cmp_lg_u32 s2, {PROF}")
    e("s_cbranch_scc1 7f")
    e("s_cmp_lg_u32 s3, 0")
    e("s_cbranch_scc1 7f")
    e("v_mov_b32 v120, 0")
    for i in range(7):
        e(f"v_mov_b32 v121, s{80+i}")
        e(f"buffer_store_dword v121, v120, s[92:95], 0 offen offset:{wave_off + 4*i}")
    e("s_waitcnt vmcnt(0)")
    e("7:")

PROF2 = os.environ.get("PROF2")
def q(e, idx, wv=0):
    if not PROF2: return
    e("s_memtime s[88:89]")
    e("s_waitcnt lgkmcnt(0)")
    e(f"s_mov_b32 s{90+idx}, s88")
def qdump(e, n, wv=0):
    if not PROF2 or os.environ.get("PROFF"): return
    e("s_load_dwordx2 s[84:85], s[0:1], 88")
    e("s_waitcnt lgkmcnt(0)")
    e("s_mov_b32 s86, 256")
    e("s_mov_b32 s87, 0x00020000")
    e(f"s_cmp_lg_u32 s2, {PROF2}")
    e("s_cbranch_scc1 6f")
    e(f"s_cmp_lg_u32 s3, {wv}")
    e("s_cbranch_scc1 6f")
    e(f"v_mov_b32 v120, {64 if wv else 0}")
    for i in range(1, n):
        e(f"s_sub_u32 s83, s{90+i}, s90")
        e("v_mov_b32 v121, s83")
        e(f"buffer_store_dword v121, v120, s[84:87], 0 offen offset:{4*i}")
    e("6:")

PROF4 = os.environ.get("PROF4")
P4_REGS = [50,52,54,56,58,72,74,76,78,80,82,84,86]
P4_LO = int(os.environ.get('P4LO', '4'))
def bar(e, b):
    k = b - P4_LO
    if PROF4 and 0 <= k < 6:
        e(f"s_memtime s[{P4_REGS[2*k]}:{P4_REGS[2*k]+1}]")
    e("s_barrier")
    if PROF4 and 0 <= k < 6:
        e(f"s_memtime s[{P4_REGS[2*k+1]}:{P4_REGS[2*k+1]+1}]")
def p4dump(e, lab):
    if not PROF4: return
    e("s_load_dwordx2 s[92:93], s[0:1], 88")
    e("s_waitcnt lgkmcnt(0)")
    e("s_mov_b32 s94, 4096")
    e("s_mov_b32 s95, 0x00020000")
    e(f"s_cmp_lg_u32 s2, {PROF4}")
    e(f"s_cbranch_scc1 {lab}")
    e("v_lshrrev_b32 v120, 6, v0")
    e("v_lshlrev_b32 v120, 6, v120")
    for i in range(12):
        e(f"v_mov_b32 v121, s{P4_REGS[i]}")
        e(f"buffer_store_dword v121, v120, s[92:95], 0 offen offset:{512 + 4*i}")
    e.label(lab)

def code_touch(e, tag, sub, endlab, startlab=None):
    if "noct" in X2: return
    e("s_getpc_b64 s[60:61]")
    e.label(f"CT_{tag}")
    st = f"CT_{tag}"
    if startlab:
        e(f"s_add_u32 s60, s60, {startlab}-CT_{tag}")
        e("s_addc_u32 s61, s61, 0")
        st = startlab
    if sub: e(f"v_subrev_u32 v126, {sub}, v0")
    src = "v126" if sub else "v0"
    e(f"v_cmp_gt_u32 vcc, ({endlab}-{st})/64, {src}")
    e(f"v_lshlrev_b32 v126, 6, {src}")
    e("s_and_saveexec_b64 s[62:63], vcc")
    e("global_load_dword v127, v126, s[60:61]")
    e("s_mov_b64 exec, s[62:63]")

DIAG = os.environ.get("DIAG")
def diag_start(e):
    if not DIAG: return
    e("s_memrealtime s[96:97]")
    e("s_memtime s[98:99]")
def diag_end(e, kidx, slot, wg, tid, lab, wait=True):
    if not DIAG: return
    e(f"s_cmp_lg_u32 s2, {wg}")
    e(f"s_cbranch_scc1 {lab}")
    if wait: e("s_waitcnt vmcnt(0) lgkmcnt(0)")
    e("s_memrealtime s[92:93]")
    e("s_memtime s[94:95]")
    e("s_load_dwordx2 s[84:85], s[0:1], 88")
    e("s_waitcnt lgkmcnt(0)")
    e(f"s_add_u32 s84, s84, {512*(2-kidx)}")
    e("s_addc_u32 s85, s85, 0")
    e("s_mov_b32 s86, 256")
    e("s_mov_b32 s87, 0x00020000")
    e("s_sub_u32 s94, s94, s98")
    e("s_and_b32 s96, s96, 0xffffff")
    e("s_and_b32 s92, s92, 0xffffff")
    e("v_mov_b32 v124, s96")
    e("v_mov_b32 v125, s92")
    e("v_mov_b32 v126, s94")
    e("v_mov_b32 v121, 0")
    e(f"v_cmp_eq_u32 vcc, {tid}, v0")
    e("s_and_saveexec_b64 s[80:81], vcc")
    e(f"buffer_store_dwordx3 v[124:126], v121, s[84:87], 0 offen offset:{4*slot}")
    if kidx == 1:
        e("s_and_b32 s66, s66, 0xffffff")
        e("s_and_b32 s70, s70, 0xffffff")
        e("s_sub_u32 s68, s68, s98")
        e("s_sub_u32 s72, s72, s98")
        e("v_mov_b32 v116, s66")
        e("v_mov_b32 v117, s68")
        e("v_mov_b32 v118, s70")
        e("v_mov_b32 v119, s72")
        e(f"buffer_store_dwordx4 v[116:119], v121, s[84:87], 0 offen offset:36")
    e.label(lab)

CYC = os.environ.get("CYC")
def st(e, r):
    if TRACE: e(f"s_mem{'' if CYC else 'real'}time s[{r}:{r+1}]")
def st_dump(e, kidx, regs, tid):
    if not TRACE: return
    e("s_load_dwordx2 s[84:85], s[0:1], 96")
    e("s_waitcnt lgkmcnt(0)")
    e(f"s_add_u32 s84, s84, {(64<<20) + kidx*65536}")
    e("s_addc_u32 s85, s85, 0")
    e("s_mov_b32 s86, 65536")
    e("s_mov_b32 s87, 0x00020000")
    for i, r in enumerate(regs): e(f"v_mov_b32 v{124+i}, s{r}")
    e("s_lshl_b32 s83, s82, 4")
    e("v_mov_b32 v123, s83")
    e(f"v_cmp_eq_u32 vcc, {tid}, v0")
    e("s_and_saveexec_b64 s[80:81], vcc")
    e("buffer_store_dwordx4 v[124:127], v123, s[84:87], 0 offen")
    e("s_mov_b64 exec, -1")

def khead(name):
    return f""".globl {name}
.p2align 8
.type {name},@function
{name}:
"""

N_KV = 160
N_LN = 64
N_TC = 32
TWS = int(os.environ.get("TWS", "6"))
N_K1 = N_KV+N_LN+N_TC
K1_LDS = int(os.environ.get("K1LDS", str(128*144 + 256)))
WS_FL = 0x3000000
FL_KV = 65536
SZ_FL = FL_KV + 1280*128
def dbg_srd(e):
    e("s_load_dwordx2 s[88:89], s[0:1], 88")
    e("s_waitcnt lgkmcnt(0)")
    e("s_mov_b32 s90, 256")
    e("s_mov_b32 s91, 0x00020000")
def nonce_issue(e, vt):
    e(f"buffer_load_dwordx2 v[{vt}:{vt+1}], off, s[88:91], 0 sc1")
def nonce_get(e, lab, vt, issued=False):
    e("s_mov_b32 s41, 0")
    if issued: e(f"s_branch {lab}_W")
    e.label(lab)
    nonce_issue(e, vt)
    e.label(lab + "_W")
    e("s_waitcnt vmcnt(0)")
    e(f"v_readfirstlane_b32 s100, v{vt}")
    e(f"v_readfirstlane_b32 s101, v{vt+1}")
    e("s_cmp_lg_u32 s100, 0")
    e(f"s_cbranch_scc1 {lab}_D")
    e(f"s_sleep {NSL}")
    e("s_add_u32 s41, s41, 1")
    e(f"s_cmp_lt_u32 s41, {SPIN}")
    e(f"s_cbranch_scc1 {lab}")
    e.label(lab + "_D")
def flag_set(e, vt):
    srd_off(e, 44, 12, 13, WS_FL, SZ_FL)
    e(f"v_mov_b32 v{vt}, s100")
    e(f"v_mov_b32 v{vt+1}, s101")
    e("s_mov_b64 exec, 1")
    e(f"buffer_store_dwordx2 v[{vt}:{vt+1}], off, s[44:47], s40 sc1")
    e("s_mov_b64 exec, -1")

def k1():
    e = E()
    KVL = KV_LDS if FUSE else 0
    if not FUSE:
        e(f"s_cmp_ge_u32 s2, {N_K1}")
        e("s_cbranch_scc1 K1_END")
        code_touch(e, "k1", 0, "K1_END")
        trace_start(e)
        e(f"s_cmp_ge_u32 s2, {N_KV+N_LN}")
        e("s_cbranch_scc1 K1_TC")
    else:
        e("s_cmp_eq_u32 s3, 7")
        e("s_cbranch_scc1 K1_TC")
        e("s_load_dwordx2 s[88:89], s[0:1], 88")
    e("s_load_dwordx4 s[4:7], s[0:1], 0")
    e("s_load_dwordx4 s[8:11], s[0:1], 16")
    e("s_load_dwordx2 s[12:13], s[0:1], 96")
    if FUSE:
        e("s_mov_b32 s90, 256")
        e("s_mov_b32 s91, 0x00020000")
        e("s_cmp_lt_u32 s3, 5")
        e("s_cbranch_scc1 K1_KV")
        e("s_setprio 3")
        e("s_lshr_b32 s14, s2, 1")
        e("s_and_b32 s15, s2, 1")
        e("s_lshl_b32 s15, s15, 7")
        e("v_subrev_u32 v80, 320, v0")
        e("v_add_u32 v80, s15, v80")
        e("s_lshl_b32 s40, s2, 1")
        e("s_add_u32 s40, s40, s3")
        e("s_sub_u32 s40, s40, 5")
        e("s_lshl_b32 s40, s40, 7")
    else:
        e(f"s_cmp_lt_u32 s2, {N_KV}")
        e("s_cbranch_scc1 K1_KV")
        e("v_lshrrev_b32 v1, 8, v0")
        e(f"s_sub_u32 s14, s2, {N_KV}")
        e("v_readfirstlane_b32 s15, v1")
        e("s_lshl_b32 s14, s14, 1")
        e("v_and_b32 v80, 255, v0")
        e("s_add_u32 s14, s14, s15")
    e("s_waitcnt lgkmcnt(0)")
    srd(e, 16, 4, 5, SZ_SD)
    srd_off(e, 20, 12, 13, WS_XN, S*8)
    e("s_lshl_b32 s3, s14, 4")
    e("v_lshrrev_b32 v1, 4, v80")
    e("v_add_u32 v1, s3, v1")
    e("v_mul_u32_u24 v1, 1280, v1")
    e("v_and_b32 v2, 15, v80")
    e("v_lshlrev_b32 v2, 4, v2")
    e("v_add_u32 v1, v1, v2")
    for j in range(5):
        e(f"buffer_load_dwordx4 v[{4+4*j}:{7+4*j}], v1, s[16:19], 0 offen offset:{256*j}")
    NX = 0
    if FUSE: nonce_issue(e, 82); NX = 1
    e("v_lshrrev_b32 v72, 4, v80")
    e("v_add_u32 v72, s3, v72")
    e("v_lshlrev_b32 v72, 3, v72")
    e("v_and_b32 v73, 15, v80")
    srd_off(e, 28, 12, 13, WS_XNP, SZ_SD)
    e("v_lshrrev_b32 v1, 4, v80")
    e("v_and_b32 v2, 15, v80")
    e("v_lshrrev_b32 v3, 2, v1")
    e("v_and_b32 v74, 3, v1")
    e("v_and_b32 v75, 3, v2")
    e("v_lshl_add_u32 v74, v74, 2, v75")
    e("v_xor_b32 v74, v74, v3")
    e("v_lshlrev_b32 v74, 4, v74")
    e("v_lshl_add_u32 v74, v3, 8, v74")
    e("v_lshrrev_b32 v2, 2, v2")
    e("v_lshl_add_u32 v74, v2, 14, v74")
    e("s_lshr_b32 s25, s14, 4")
    e("s_mul_i32 s25, s25, 327680")
    e("s_and_b32 s26, s14, 15")
    e("s_lshl_b32 s26, s26, 10")
    e("s_add_u32 s25, s25, s26")
    e("s_mov_b32 s24, 0x3acccccd")
    e("v_cmp_eq_u32 vcc, 0, v73")
    DL = "ln" in DRY
    if DL:
        e("s_mov_b32 s27, s25")
        e("s_mov_b64 exec, 0")
        e.label("LN_BLK")
    for j in range(5):
        if not DL: e(f"s_waitcnt vmcnt({4-j+NX})")
        for i in range(4*j, 4*j+4):
            e(f"v_lshlrev_b32 v{32+2*i}, 16, v{4+i}")
            e(f"v_and_b32 v{33+2*i}, 0xffff0000, v{4+i}")
        for i in range(4*j, 4*j+4):
            if i == 0: continue
            if i == 1: e("v_pk_add_f32 v[24:25], v[32:33], v[34:35]")
            else: e(f"v_pk_add_f32 v[24:25], v[24:25], v[{32+2*i}:{33+2*i}]")
    if FUSE and not DL: st(e, 48)
    e("v_add_f32 v24, v24, v25")
    def red16(r):
        for sh in (8, 4, 2, 1):
            e("s_nop 1")
            e(f"v_add_f32_dpp v{r}, v{r}, v{r} row_ror:{sh} row_mask:0xf bank_mask:0xf")
    red16(24)
    e("v_mul_f32 v24, s24, v24")
    e("v_mov_b32 v25, v24")
    for i in range(20):
        t = 26 + 2*(i & 1)
        e(f"v_pk_add_f32 v[{t}:{t+1}], v[{32+2*i}:{33+2*i}], v[24:25] neg_lo:[0,1] neg_hi:[0,1]")
        if i == 0: e(f"v_pk_mul_f32 v[30:31], v[{t}:{t+1}], v[{t}:{t+1}]")
        else: e(f"v_pk_fma_f32 v[30:31], v[{t}:{t+1}], v[{t}:{t+1}], v[30:31]")
    e("v_add_f32 v25, v30, v31")
    red16(25)
    e("v_mul_f32 v25, s24, v25")
    e("v_cvt_pk_bf16_f32 v26, v24, v25")
    e("v_and_b32 v27, 0xffff0000, v26")
    e("v_lshlrev_b32 v26, 16, v26")
    e("v_add_f32 v27, 0x3727c5ac, v27")
    e("v_cvt_pk_bf16_f32 v27, v27, v27")
    e("v_lshlrev_b32 v27, 16, v27")
    e("v_sqrt_f32 v27, v27")
    e("s_nop 0")
    e("v_cvt_pk_bf16_f32 v27, v27, v27")
    e("v_lshlrev_b32 v27, 16, v27")
    e("v_rcp_f32 v28, v27")
    e("s_and_saveexec_b64 s[36:37], vcc")
    e("buffer_store_dwordx2 v[26:27], v72, s[20:23], 0 offen")
    e("s_mov_b64 exec, s[36:37]")
    e("v_mov_b32 v24, v26")
    e("v_mov_b32 v25, v26")
    e("v_mov_b32 v76, v27")
    e("v_mov_b32 v77, v27")
    e("v_mov_b32 v29, v28")
    for i2 in range(0, 20, 2):
        ops = [[], []]
        for u in range(2):
            i = i2 + u
            a, b = 32+2*i, 33+2*i
            t = 30 if u == 0 else 78
            c = 2 + u
            ops[u] = [f"v_pk_add_f32 v[{a}:{b}], v[{a}:{b}], v[24:25] neg_lo:[0,1] neg_hi:[0,1]",
                      f"v_cvt_pk_bf16_f32 v{c}, v{a}, v{b}",
                      f"v_lshlrev_b32 v{a}, 16, v{c}",
                      f"v_and_b32 v{b}, 0xffff0000, v{c}",
                      f"v_pk_mul_f32 v[{t}:{t+1}], v[{a}:{b}], v[28:29]",
                      f"v_pk_fma_f32 v[{a}:{b}], v[{t}:{t+1}], v[76:77], v[{a}:{b}] neg_lo:[1,0,0] neg_hi:[1,0,0]",
                      f"v_pk_fma_f32 v[{t}:{t+1}], v[{a}:{b}], v[28:29], v[{t}:{t+1}]",
                      f"v_cvt_pk_bf16_f32 v{4+i}, v{t}, v{t+1}"]
        for x, y in zip(ops[0], ops[1]):
            e(x); e(y)
        if i2 & 3 == 2:
            j = i2 >> 2
            e(f"buffer_store_dwordx4 v[{4+4*j}:{7+4*j}], v74, s[28:31], s25 offen {ST1}")
            e("s_add_u32 s25, s25, 65536")
    if DL:
        e("s_cbranch_execnz LN_DONE")
        e("s_mov_b32 s25, s27")
        e("s_mov_b64 exec, -1")
        e(f"s_waitcnt vmcnt({NX})")
        if FUSE: st(e, 48)
        e("s_branch LN_BLK")
        e.label("LN_DONE")
    if FUSE:
        st(e, 50)
        nonce_get(e, "NG_LN", 82, True)
        st(e, 52)
        flag_set(e, 82)
        e("s_setprio 0")
        if TRACE: e("s_waitcnt vmcnt(0)")
        st(e, 54)
        st_dump(e, 7, [48, 50, 52, 54], 320)
        e("s_branch K2_START")
        e.label("K1_TC")
        e("s_lshr_b32 s14, s2, 3")
        e("s_cmp_lg_u32 s14, 9")
        e("s_cbranch_scc1 K2_START")
        for i in range(4):
            code_touch(e, f"k1b{i}", 448 - 64*i, "K3_END", "fin_kernel")
        e("s_waitcnt vmcnt(0)")
        e("s_branch K2_START")
    else:
      trace_end(e, 3)
      e("s_endpgm")
      e.label("K1_TC")
      k1_tc(e)
    k1_kv(e, KVL)
    return e.text()

def k1_tc(e):
    if "noct1" not in X2: code_touch(e, "k1b", 0, "K3_END", "mid_kernel")
    e("s_load_dwordx2 s[4:5], s[0:1], 32")
    e("s_load_dwordx4 s[8:11], s[0:1], 56")
    e(f"s_sub_u32 s3, s2, {N_KV+N_LN}")
    e(f"s_lshl_b32 s6, s3, {9 + TWS}")
    e("s_mul_i32 s3, s3, 81920")
    e("v_lshlrev_b32 v1, 4, v0")
    e(f"v_lshlrev_b32 v2, {TWS}, v0")
    e("s_waitcnt lgkmcnt(0)")
    srd(e, 16, 4, 5, SZ_SD)
    srd(e, 20, 8, 9, D*F*2)
    srd(e, 24, 10, 11, D*F*2)
    if "tw" in X2:
        n = -(-D*F*2 // (16384 << TWS))
        for i in range(n):
            e(f"buffer_load_dword v{50+2*i}, v2, s[20:23], s6 offen")
            e(f"buffer_load_dword v{51+2*i}, v2, s[24:27], s6 offen")
            e(f"s_add_u32 s6, s6, {16384 << TWS}")
    for i in range(10):
        e(f"buffer_load_dwordx4 v[{4+4*i}:{7+4*i}], v1, s[16:19], s3 offen")
        e("s_add_u32 s3, s3, 8192")
    e("s_waitcnt vmcnt(0)")
    for x in os.environ.get("K1SLEEP", "").split(","):
        if x: e(f"s_sleep {x}")
    trace_end(e, 3)
    e("s_endpgm")

def k1_kv(e, KVL):
    NCH = 80 if FUSE else 128
    e.label("K1_KV")
    if FUSE:
        e("s_lshr_b32 s15, s2, 3")
        e("s_and_b32 s14, s15, 3")
        e("s_lshl_b32 s14, s14, 3")
        e("s_and_b32 s32, s2, 7")
        e("s_add_u32 s14, s14, s32")
        e("s_lshr_b32 s15, s15, 2")
        e("v_mul_u32_u24 v2, 6554, v0")
        e("v_lshrrev_b32 v2, 16, v2")
        e("v_mul_u32_u24 v1, 10, v2")
        e("v_sub_u32 v1, v0, v1")
        e("s_mul_i32 s40, s15, 5")
        e("s_add_u32 s40, s40, s3")
        e("s_lshl_b32 s40, s40, 5")
        e("s_add_u32 s40, s40, s14")
        e("s_lshl_b32 s40, s40, 7")
        e(f"s_add_u32 s40, s40, {FL_KV}")
    else:
        e("s_mul_hi_u32 s14, s2, 0x33333334")
        e("s_mul_i32 s15, s14, 5")
        e("s_sub_u32 s15, s2, s15")
        e("v_and_b32 v1, 15, v0")
        e("v_lshrrev_b32 v2, 4, v0")
    e("s_lshl_b32 s32, s14, 6")
    e("v_lshlrev_b32 v3, 1, v2")
    e("v_add_u32 v3, s32, v3")
    e("v_mul_u32_u24 v4, 1280, v3")
    e(f"s_mul_i32 s33, s15, {2*NCH}")
    e("v_lshlrev_b32 v5, 4, v1")
    e("v_add_u32 v5, s33, v5")
    e("v_add_u32 v4, v4, v5")
    e("v_subrev_u32 v6, 3840, v4")
    e("v_subrev_u32 v10, 2560, v4")
    e("v_subrev_u32 v11, 1280, v4")
    e("v_lshlrev_b32 v7, 2, v5")
    e("s_waitcnt lgkmcnt(0)")
    srd(e, 16, 6, 7, SZ_SD)
    srd(e, 20, 8, 9, SZ_SD)
    srd(e, 24, 10, 11, D*4*2)
    srd_off(e, 28, 12, 13, WS_KVT, SZ_SD)
    if FUSE: dly(e, DLY[3])
    for j in range(4):
        e(f"buffer_load_dwordx4 v[{60+4*j}:{63+4*j}], v7, s[24:27], 0 offen offset:{16*j}")
    e("buffer_load_dwordx4 v[16:19], v6, s[16:19], 0 offen")
    e("buffer_load_dwordx4 v[20:23], v10, s[16:19], 0 offen")
    e("buffer_load_dwordx4 v[24:27], v11, s[16:19], 0 offen")
    e("buffer_load_dwordx4 v[28:31], v4, s[16:19], 0 offen")
    e("buffer_load_dwordx4 v[32:35], v4, s[16:19], 0 offen offset:1280")
    for r in range(2):
        e(f"buffer_load_dwordx4 v[{44+4*r}:{47+4*r}], v4, s[20:23], 0 offen offset:{1280*r}")
    if FUSE: nonce_issue(e, 120)
    e("s_mov_b32 s34, 0x05040100")
    e("s_mov_b32 s35, 0x07060302")
    e("v_mul_u32_u24 v8, 1168, v1")
    e("v_lshrrev_b32 v9, 2, v2")
    e("v_lshl_add_u32 v8, v9, 4, v8")
    e("v_and_b32 v9, 3, v2")
    e("v_xor_b32 v9, 3, v9")
    e("v_lshl_add_u32 v8, v9, 2, v8")
    if KVL: e(f"v_add_u32 v8, {KVL}, v8")
    e("v_lshrrev_b32 v12, 3, v0")
    e("v_and_b32 v13, 7, v0")
    e("v_mul_u32_u24 v14, 144, v12")
    e("v_lshrrev_b32 v15, 3, v12")
    e("v_add_u32 v15, v15, v13")
    e("v_lshl_add_u32 v14, v15, 4, v14")
    if KVL: e(f"v_add_u32 v14, {KVL}, v14")
    e(f"s_mul_i32 s33, s15, {NCH}")
    e("v_add_u32 v15, s33, v12")
    e("v_lshlrev_b32 v15, 12, v15")
    e("s_lshl_b32 s32, s14, 7")
    e("v_lshl_add_u32 v15, v13, 4, v15")
    e(f"s_add_u32 s33, s32, {NCH//2*4096}")
    DK = "kv" in DRY
    if DK:
        e("s_mov_b64 exec, 0")
        e.label("KV_BLK")
    else: e(f"s_waitcnt vmcnt({8 if FUSE else 7})")
    for p in range(4):
        for h in range(2):
            c = 2*p+h
            e(f"v_lshlrev_b32 v{76+8*p+h}, 16, v{60+2*c}")
            e(f"v_and_b32 v{78+8*p+h}, 0xffff0000, v{60+2*c}")
            e(f"v_lshlrev_b32 v{80+8*p+h}, 16, v{61+2*c}")
            e(f"v_and_b32 v{82+8*p+h}, 0xffff0000, v{61+2*c}")
    if not DK:
        e(f"s_waitcnt vmcnt({1 if FUSE else 0})")
        if FUSE: st(e, 48)
    for p in range(4):
        W = 76 + 8*p
        for r in range(5):
            e(f"v_lshlrev_b32 v{60+2*r}, 16, v{16+4*r+p}")
            e(f"v_and_b32 v{61+2*r}, 0xffff0000, v{16+4*r+p}")
        ch = [[], []]
        for i in range(2):
            A = 108 + 6*i; T = A + 2; C = A + 4
            o = ch[i]
            for t in range(4):
                r = i + t
                w = 3 - t
                o.append(f"v_pk_mul_f32 v[{T}:{T+1}], v[{60+2*r}:{61+2*r}], v[{W+2*w}:{W+2*w+1}]")
                o.append(f"v_cvt_pk_bf16_f32 v{C}, v{T}, v{T+1}")
                if t == 0:
                    o.append(f"v_lshlrev_b32 v{A}, 16, v{C}")
                    o.append(f"v_and_b32 v{A+1}, 0xffff0000, v{C}")
                else:
                    o.append(f"v_lshlrev_b32 v{T}, 16, v{C}")
                    o.append(f"v_and_b32 v{T+1}, 0xffff0000, v{C}")
                    o.append(f"v_pk_add_f32 v[{A}:{A+1}], v[{A}:{A+1}], v[{T}:{T+1}]")
                    o.append(f"v_cvt_pk_bf16_f32 v{C}, v{A}, v{A+1}")
                    o.append(f"v_lshlrev_b32 v{A}, 16, v{C}")
                    o.append(f"v_and_b32 v{A+1}, 0xffff0000, v{C}")
            o.append(f"v_lshlrev_b32 v{T}, 16, v{44+4*i+p}")
            o.append(f"v_and_b32 v{T+1}, 0xffff0000, v{44+4*i+p}")
            o.append(f"v_pk_mul_f32 v[{A}:{A+1}], v[{A}:{A+1}], v[{T}:{T+1}]")
            o.append(f"v_cvt_pk_bf16_f32 v{C}, v{A}, v{A+1}")
        for x, y in zip(ch[0], ch[1]):
            e(x); e(y)
        e("v_perm_b32 v70, v112, v118, s34")
        e(f"ds_write_b32 v8, v70 offset:{(2*p)*144}")
        e("v_perm_b32 v71, v112, v118, s35")
        e(f"ds_write_b32 v8, v71 offset:{(2*p+1)*144}")
    if DK:
        e("s_cbranch_execnz KV_DONE")
        e("s_mov_b64 exec, -1")
        e(f"s_waitcnt vmcnt({1 if FUSE else 0})")
        if FUSE: st(e, 48)
        e("s_branch KV_BLK")
        e.label("KV_DONE")
    e("s_waitcnt lgkmcnt(0)")
    if FUSE:
        e("v_mov_b32 v1, 1")
        e(f"v_mov_b32 v2, {LCNT}")
        e("s_mov_b64 exec, 1")
        e("ds_add_u32 v2, v1")
        e("s_mov_b64 exec, -1")
        e("s_mov_b32 s41, 0")
        e.label("KV_SP")
        e("ds_read_b32 v3, v2")
        e("s_add_u32 s41, s41, 1")
        e("s_waitcnt lgkmcnt(0)")
        e("v_readfirstlane_b32 s42, v3")
        e("s_cmp_ge_u32 s41, 100000")
        e("s_cbranch_scc1 KV_SPD")
        e("s_cmp_lt_u32 s42, 5")
        e("s_cbranch_scc1 KV_SP")
        e.label("KV_SPD")
    else:
        e("s_barrier")
    e("ds_read_b128 v[16:19], v14")
    e(f"ds_read_b128 v[20:23], v14 offset:{NCH//2*144 + NCH//16*16}")
    e("s_waitcnt lgkmcnt(1)")
    e(f"buffer_store_dwordx4 v[16:19], v15, s[28:31], s32 offen {ST1}")
    e("s_waitcnt lgkmcnt(0)")
    e(f"buffer_store_dwordx4 v[20:23], v15, s[28:31], s33 offen {ST1}")
    if FUSE:
        st(e, 50)
        nonce_get(e, "NG_KV", 120, True)
        st(e, 52)
        flag_set(e, 120)
        if TRACE: e("s_waitcnt vmcnt(0)")
        st(e, 54)
        st_dump(e, 3, [48, 50, 52, 54], 0)
        e("s_branch K2_START")
        return
    trace_end(e, 3)
    diag_end(e, 0, 0, 150, 0, "DG_1")
    e.label("K1_END")
    e("s_endpgm")


N_K2 = 256
COPY = 4288
CONV2 = int(os.environ.get("CONV2", "0"))
NBM = int(os.environ.get("NBM", "10"))
KVSZ = 4608 if CONV2 else 33*144
CP_OFF = 2*KVSZ
SC_OFF = CP_OFF + 8*COPY
CV_SZ = SC_OFF
K2_NS = 4
K2_STG = 24576
CV_A = K2_NS*K2_STG
K2_LDS = max(CV_A + CV_SZ, 3*CV_SZ)
KV_LDS = K2_LDS
LCNT = KV_LDS + K1_LDS
if FUSE: K2_LDS = LCNT + 64
PB0 = 2 if FUSE else 1
LB0 = 2
RPB = 6
CDL = int(os.environ.get("CDL", "0"))
PACE = [int(x) for x in os.environ.get("PACE", "").split(",") if x]
if os.environ.get("CS"):
    exec(os.environ["CS"])
C1_E = PB0 + 16

class VQ:
    def __init__(self, e): self.q = []; self.e = e
    def issue(self, tag, n): self.q += [tag]*n
    def wait(self, tags):
        idx = max([i for i, t in enumerate(self.q) if t in tags], default=-1)
        if idx < 0: return
        n = len(self.q) - 1 - idx
        self.e(f"s_waitcnt vmcnt({min(n, 63)})")
        self.q = self.q[idx+1:]

def write_copies(e, d, lab, ro):
    e(f"ds_write_b128 v117, v[{d}:{d+3}] offset:{ro}")
    for i in range(4):
        e(f"v_alignbit_b32 v{16+i}, v{d+i+1}, v{d+i}, 16")
    e(f"ds_write_b128 v117, v[16:19] offset:{ro + COPY}")
    for i in range(4):
        e(f"v_mov_b32 v{20+i}, v{d+i+1}")
    e(f"ds_write_b128 v117, v[20:23] offset:{ro + 2*COPY}")
    for i in range(4):
        e(f"v_alignbit_b32 v{24+i}, v{d+i+2}, v{d+i+1}, 16")
    e(f"ds_write_b128 v117, v[24:27] offset:{ro + 3*COPY}")
    e("s_cmp_eq_u32 s39, 0")
    e(f"s_cbranch_scc0 {lab}")
    e("v_mov_b32 v28, 0")
    e(f"v_lshlrev_b32 v29, 16, v{d}")
    e("v_mov_b32 v32, 0")
    e(f"v_mov_b32 v33, v{d}")
    e("v_mov_b32 v34, v29")
    e("v_mov_b32 v35, v16")
    e("s_mov_b64 exec, 1")
    e(f"ds_write_b64 v117, v[28:29] offset:{ro + COPY - 8}")
    e(f"ds_write_b64 v117, v[32:33] offset:{ro + 2*COPY - 8}")
    e(f"ds_write_b64 v117, v[34:35] offset:{ro + 3*COPY - 8}")
    e("s_mov_b64 exec, -1")
    e.label(lab)

def conv_main(e):
    ACCS = [16, 112]; FL, FH, BB = 32, 56, 80
    lq = []
    def wait(tags):
        idx = max((i for i, t in enumerate(lq) if t in tags), default=-1)
        if idx >= 0: e(f"s_waitcnt lgkmcnt({min(len(lq) - 1 - idx, 15)})")
    def put(it):
        if it[0] is None: wait(it[1]); return
        e(it[0])
        for _ in range(it[2] if len(it) > 2 else 1):
            if it[1] is not None: lq.append(it[1])
    def lda(F):
        c, f = divmod(F, 17)
        sl = F % 6
        r = []
        for (R, va) in ((FL, 8), (FH, 9)):
            o = 4*COPY*c + 64*f
            r.append((f"ds_read_b64 v[{R+4*sl}:{R+4*sl+1}], v{va} offset:{o}", ("a", F)))
            r.append((f"ds_read_b64 v[{R+4*sl+2}:{R+4*sl+3}], v{va} offset:{o+8}", ("a", F)))
        return r
    def ldb(P):
        c, p = divmod(P, 16)
        st = p >> 1; kk = 1 - (p & 1)
        bb = BB + 8*(P & 3)
        pre = ""
        if p & 1 == 0:
            pre = f"v_subrev_u32 v12, {144*st}, v10\nv_max_i32 v3, v12, v11\n"
        return [(pre + f"ds_read_b128 v[{bb}:{bb+3}], v3 offset:{KVSZ*c + 64*kk}", ("b", P)),
                (f"ds_read_b128 v[{bb+4}:{bb+7}], v12 offset:{KVSZ*c + 16*144 + 64*kk}", ("b", P))]
    def dterm_ld(c):
        return [(f"ds_read_b64 v[{4+2*h}:{5+2*h}], v13 offset:{KVSZ*c + 16*144*h}", ("k", c)) for h in range(2)]
    def dterm(c, T):
        sch = 65 if c == 0 else 69
        r = [(f"s_and_b32 s29, s{sch}, 1\ns_lshl_b32 s29, s29, 4\ns_lshr_b32 s29, s{70+c}, s29\ns_lshl_b32 s29, s29, 16", None), (None, [("k", c)])]
        for h in range(2):
            k0, k1 = 4+2*h, 5+2*h
            r += [(f"v_and_b32 v{T}, 0xffff0000, v{k1}", None), (f"v_lshlrev_b32 v{T+1}, 16, v{k1}", None),
                  (f"v_and_b32 v{T+2}, 0xffff0000, v{k0}", None), (f"v_lshlrev_b32 v{T+3}, 16, v{k0}", None)]
            r += [(f"v_mul_f32 v{T+j}, s29, v{T+j}", None) for j in range(4)]
            r += [(f"v_cvt_pk_bf16_f32 v{k0}, v{T}, v{T+1}", None), (f"v_cvt_pk_bf16_f32 v{k1}, v{T+2}, v{T+3}", None)]
        return r
    def exch(c):
        A = ACCS[c]
        t = ["s_cmp_eq_u32 s38, 0", f"s_cbranch_scc1 CX0_{c}"]
        t += [f"buffer_store_dwordx4 v[{A+4*h}:{A+4*h+3}], v14, s[60:63], 0 offen offset:{XOFF*c + 1024*h} {STX[c]}" for h in range(2)]
        t += [f"v_mov_b32 v{A+i}, v{A+8+i}" for i in range(8)]
        t += [f"s_branch CX1_{c}", f"CX0_{c}:"]
        t += [f"buffer_store_dwordx4 v[{A+8+4*h}:{A+8+4*h+3}], v14, s[60:63], 0 offen offset:{XOFF*c + 1024*h} {STX[c]}" for h in range(2)]
        t += [f"CX1_{c}:"]
        return [("\n".join(t), None)]
    def xread(c):
        A = ACCS[c]
        return [(f"buffer_load_dwordx4 v[{A+8+4*h}:{A+11+4*h}], v15, s[60:63], 0 offen offset:{XOFF*c + 1024*h}", None) for h in range(2)]
    def fin(c, h):
        sch = 65 if c == 0 else 69
        o = ACCS[c] + 4*h; p = ACCS[c] + 8 + 4*h
        r = [("s_waitcnt vmcnt(0)", None)] if h == 0 else []
        r += [(f"v_add_f32 v{o+j}, v{o+j}, v{p+j}", None) for j in range(4)]
        r += [(f"v_cvt_pk_bf16_f32 v{p}, v{o}, v{o+1}", None), (f"v_cvt_pk_bf16_f32 v{p+1}, v{o+2}, v{o+3}", None)]
        r += [(f"v_lshlrev_b32 v{o}, 16, v{p}", None), (f"v_and_b32 v{o+1}, 0xffff0000, v{p}", None),
              (f"v_lshlrev_b32 v{o+2}, 16, v{p+1}", None), (f"v_and_b32 v{o+3}, 0xffff0000, v{p+1}", None)]
        for k in range(2):
            r += [(f"v_lshlrev_b32 v{p+2}, 16, v{4+2*h+k}", None), (f"v_and_b32 v{p+3}, 0xffff0000, v{4+2*h+k}", None),
                  (f"v_add_f32 v{o+2*k}, v{o+2*k}, v{p+2}", None), (f"v_add_f32 v{o+2*k+1}, v{o+2*k+1}, v{p+3}", None)]
        r += [(f"v_cvt_pk_bf16_f32 v{p}, v{o}, v{o+1}", None), (f"v_cvt_pk_bf16_f32 v{p+1}, v{o+2}, v{o+3}", None)]
        r += [(f"s_lshl_b32 s48, s{sch}, 7\ns_add_u32 s48, s48, {16*81920*h}\nbuffer_store_dwordx2 v[{p}:{p+1}], v2, s[24:27], s48 offen {ST2Y}", None)]
        return r
    extra = {P: [] for P in range(32)}
    tail = {P: [] for P in range(32)}
    tail[16] = exch(0)
    tail[19] = [("s_waitcnt vmcnt(0)", None)]
    extra[20] = xread(0)
    extra[24] = fin(0, 0)
    extra[25] = fin(0, 1)
    tail[25] = [("s_cmp_ge_u32 s69, 640\ns_cbranch_scc1 K2_END", None)]
    extra[26] = dterm_ld(1)
    d1 = dterm(1, 16)
    extra[27] = d1[:12]; extra[28] = d1[12:]
    bcur = PB0 if FUSE else 0
    while bcur < PB0:
        bar(e, bcur); bcur += 1
    for it in dterm_ld(0) + lda(0) + lda(1) + ldb(0) + lda(2) + ldb(1) + lda(3) + ldb(2) + dterm(0, 16): put(it)
    nfa = 4; nfb = 3
    for P in range(32):
        c, p = divmod(P, 16)
        if P & 1 == 0:
            bar(e, bcur); bcur += 1
        if P == 0: e("s_setprio 3")
        F0 = 17*c + p
        ops = []
        while nfa <= F0 + 4 and nfa < 34:
            ops += lda(nfa); nfa += 1
        while nfb <= P + 3 and nfb < 32:
            ops += ldb(nfb); nfb += 1
        ops = extra[P][:0] + ops
        ex = list(extra[P])
        wait([("a", F0), ("a", F0+1), ("b", P)])
        bb = BB + 8*(P & 3)
        A = ACCS[c]
        mfs = []
        for mu in range(2):
            fl = FL + 4*((F0+mu) % 6)
            a0 = A + 8*mu; a1 = a0 + 4
            c0 = "0" if p == 0 else f"v[{a0}:{a0+3}]"
            c1 = "0" if p == 0 else f"v[{a1}:{a1+3}]"
            mfs.append(f"v_mfma_f32_16x16x32_bf16 v[{a0}:{a0+3}], v[{fl}:{fl+3}], v[{bb}:{bb+3}], {c0}")
            mfs.append(f"v_mfma_f32_16x16x32_bf16 v[{a1}:{a1+3}], v[{fl}:{fl+3}], v[{bb+4}:{bb+7}], {c1}")
        for mu in range(2):
            fh = FH + 4*((F0+mu) % 6)
            a1 = A + 8*mu + 4
            mfs.append(f"v_mfma_f32_16x16x32_bf16 v[{a1}:{a1+3}], v[{fh}:{fh+3}], v[{bb}:{bb+3}], v[{a1}:{a1+3}]")
        for i in range(6):
            if not ("cnm" in X2 or ("cn2" in X2 and i in (0, 2))): e(mfs[i])
            no = (len(ops) + 5 - i) // (6 - i)
            for it in ops[:no]: put(it)
            ops = ops[no:]
            ne = (len(ex) + 5 - i) // (6 - i)
            for it in ex[:ne]: put(it)
            ex = ex[ne:]
        for it in tail[P]: put(it)
        if P == 15: q(e, 8, 8)
    q(e, 10, 8)
    e("s_setprio 0")
    e("s_nop 7")
    if "gx1" in X2:
        for it in exch(1): put(it)
        bar(e, bcur); bcur += 1
        e("s_waitcnt vmcnt(0)")
        bar(e, bcur); bcur += 1
        for it in xread(1): put(it)
        while bcur < 20:
            bar(e, bcur); bcur += 1
        for it in fin(1, 0) + fin(1, 1): put(it)
        return
    A = ACCS[1]
    bar(e, bcur); bcur += 1
    e("s_lshl_b32 s44, s39, 11")
    e(f"s_add_u32 s45, s66, {CP_OFF}")
    e("s_add_u32 s44, s44, s45")
    e("v_lshl_add_u32 v32, v1, 4, s44")
    e("s_xor_b32 s44, s39, 2")
    e("s_lshl_b32 s44, s44, 11")
    e("s_add_u32 s44, s44, s45")
    e("v_lshl_add_u32 v33, v1, 4, s44")
    e("s_cmp_eq_u32 s38, 0")
    e("s_cbranch_scc1 CX0_1")
    for h in range(2): e(f"ds_write_b128 v32, v[{A+4*h}:{A+4*h+3}] offset:{1024*h}")
    for i in range(8): e(f"v_mov_b32 v{A+i}, v{A+8+i}")
    e("s_branch CX1_1")
    e.label("CX0_1")
    for h in range(2): e(f"ds_write_b128 v32, v[{A+8+4*h}:{A+8+4*h+3}] offset:{1024*h}")
    e.label("CX1_1")
    e("s_waitcnt lgkmcnt(0)")
    bar(e, bcur); bcur += 1
    for h in range(2): e(f"ds_read_b128 v[{A+8+4*h}:{A+11+4*h}], v33 offset:{1024*h}")
    while bcur < 20 and not FUSE:
        bar(e, bcur); bcur += 1
    e("s_waitcnt lgkmcnt(0)")
    for it in fin(1, 0)[1:] + fin(1, 1): put(it)

def conv_main2(e):
    ACC = 16; HB = [48, 80]; AB = 112
    lq = []
    def wait(tags):
        idx = max((i for i, t in enumerate(lq) if t in tags), default=-1)
        if idx >= 0: e(f"s_waitcnt lgkmcnt({min(len(lq) - 1 - idx, 15)})")
    def put(it):
        if it[0] is None: wait(it[1]); return
        e(it[0])
        if it[1] is not None: lq.append(it[1])
    def lda(u):
        rr, q = divmod(u, 8); b = AB + 4*(u % 3); o = 512*q + 64*rr
        return [(f"ds_read_b64 v[{b}:{b+1}], v8 offset:{o}", ("a", u)), (f"ds_read_b64 v[{b+2}:{b+3}], v8 offset:{o+8}", ("a", u))]
    def ldb(rr, d):
        b = HB[rr & 1] + 4*d
        return [(f"ds_read_b128 v[{b}:{b+3}], v10 offset:{512*d + 64*(3-rr)}", ("b", rr, d))]
    if not FUSE:
        for i in range(PB0): e("s_barrier")
    e("s_cmp_eq_u32 s38, 0")
    e("s_cselect_b32 s48, s65, s69")
    e("s_cselect_b32 s29, s70, s71")
    e("s_cmp_ge_u32 s48, 640")
    e("s_cbranch_scc1 K2_END")
    e("s_and_b32 s28, s48, 1")
    e("s_lshl_b32 s28, s28, 4")
    e("s_lshr_b32 s29, s29, s28")
    e("s_lshl_b32 s29, s29, 16")
    e("s_lshl_b32 s48, s48, 7")
    e(f"s_mul_i32 s28, s49, {16*81920}")
    e("s_add_u32 s48, s48, s28")
    for it in lda(0) + ldb(0, 0) + ldb(0, 1) + lda(1) + [x for d in range(2, 8) for x in ldb(0, d)]: put(it)
    e("s_setprio 3")
    nm = 0
    DT = HB[0]
    for rr in range(4):
        for q in range(8):
            u = 8*rr + q
            ops = []
            if u + 2 < 32: ops += lda(u + 2)
            if rr < 3:
                for d in {0: (0, 1), 1: (2, 3), 2: (4,), 3: (5,), 4: (6,), 5: (7,)}.get(q, ()): ops += ldb(rr + 1, d)
            ex = []
            if rr == 3:
                if q == 0: ops += [(f"ds_read_b64 v[{DT+2*t}:{DT+2*t+1}], v13 offset:{512*t}", "k") for t in range(4)]
                if 1 <= q <= 4:
                    t = q - 1; k0, k1 = DT+2*t, DT+2*t+1; T = DT + 8
                    if q == 1: ex.append((None, ["k"]))
                    ex += [(f"v_and_b32 v{T}, 0xffff0000, v{k1}", None), (f"v_lshlrev_b32 v{T+1}, 16, v{k1}", None),
                           (f"v_and_b32 v{T+2}, 0xffff0000, v{k0}", None), (f"v_lshlrev_b32 v{T+3}, 16, v{k0}", None)]
                    ex += [(f"v_mul_f32 v{T+j}, s29, v{T+j}", None) for j in range(4)]
                    ex += [(f"v_cvt_pk_bf16_f32 v{k0}, v{T}, v{T+1}", None), (f"v_cvt_pk_bf16_f32 v{k1}, v{T+2}, v{T+3}", None)]
            n = 8 - q
            ds = list(range(n))
            if q >= 5: ds = ds[::-1]
            a = AB + 4*(u % 3)
            for i, d in enumerate(ds):
                if nm % NBM == 0: e("s_barrier")
                nm += 1
                wait([("a", u), ("b", rr, d)])
                t = ACC + 4*(q + d); b = HB[rr & 1] + 4*d
                c = "0" if u == 0 else f"v[{t}:{t+3}]"
                e(f"v_mfma_f32_16x16x32_bf16 v[{t}:{t+3}], v[{a}:{a+3}], v[{b}:{b+3}], {c}")
                left = n - i
                no = (len(ops) + left - 1)//left
                for it in ops[:no]: put(it)
                ops = ops[no:]
                ne = (len(ex) + left - 1)//left
                for it in ex[:ne]: put(it)
                ex = ex[ne:]
    e("s_setprio 0")
    e("s_barrier")
    e("s_nop 7")
    e("s_cmp_eq_u32 s49, 0")
    e("s_cbranch_scc1 C2_X")
    for i in range(16): e(f"v_swap_b32 v{ACC+i}, v{ACC+16+i}")
    e.label("C2_X")
    e("s_nop 1")
    for t in range(4): e(f"ds_write_b128 v14, v[{ACC+16+4*t}:{ACC+19+4*t}] offset:{1024*t}")
    e("s_waitcnt lgkmcnt(0)")
    e("s_barrier")
    for t in range(4): e(f"ds_read_b128 v[{ACC+16+4*t}:{ACC+19+4*t}], v15 offset:{1024*t}")
    for t in range(4):
        o = ACC + 4*t; p = ACC + 16 + 4*t
        e(f"s_waitcnt lgkmcnt({3-t})")
        for j in range(4): e(f"v_add_f32 v{o+j}, v{o+j}, v{p+j}")
        e(f"v_cvt_pk_bf16_f32 v{p}, v{o}, v{o+1}"); e(f"v_cvt_pk_bf16_f32 v{p+1}, v{o+2}, v{o+3}")
        e(f"v_lshlrev_b32 v{o}, 16, v{p}"); e(f"v_and_b32 v{o+1}, 0xffff0000, v{p}")
        e(f"v_lshlrev_b32 v{o+2}, 16, v{p+1}"); e(f"v_and_b32 v{o+3}, 0xffff0000, v{p+1}")
        for k in range(2):
            e(f"v_lshlrev_b32 v{p+2}, 16, v{DT+2*t+k}"); e(f"v_and_b32 v{p+3}, 0xffff0000, v{DT+2*t+k}")
            e(f"v_add_f32 v{o+2*k}, v{o+2*k}, v{p+2}"); e(f"v_add_f32 v{o+2*k+1}, v{o+2*k+1}, v{p+3}")
        e(f"v_cvt_pk_bf16_f32 v{p}, v{o}, v{o+1}"); e(f"v_cvt_pk_bf16_f32 v{p+1}, v{o+2}, v{o+3}")
        e(f"buffer_store_dwordx2 v[{p}:{p+1}], v2, s[24:27], s48 offen {ST2Y}")
        e(f"s_add_u32 s48, s48, {4*81920}")

def k2():
    e = E()
    NS = K2_NS; STG = K2_STG; NT = 20
    e(f"s_cmp_ge_u32 s2, {N_K2}")
    e("s_cbranch_scc1 K2_END")
    code_touch(e, "k2", 512, "K2_END")
    trace_start(e)
    if FUSE:
        e("v_lshrrev_b32 v1, 6, v0")
        e("v_mov_b32 v2, 0")
        e("v_lshlrev_b32 v4, 2, v0")
        e("v_readfirstlane_b32 s3, v1")
        e(f"v_add_u32 v4, {LCNT}, v4")
        e("s_cmp_lg_u32 s3, 0")
        e("s_cbranch_scc1 K2_B0")
        e("s_mov_b64 exec, 0xffff")
        e("ds_write_b32 v4, v2")
        e("s_mov_b64 exec, -1")
        e("s_waitcnt lgkmcnt(0)")
        e.label("K2_B0")
        e("s_lshl_b32 s14, s2, 4")
        e("s_add_u32 s14, s14, s3")
        e("s_cmp_lg_u32 s14, 7")
        e("s_cbranch_scc1 K2_BS")
        e("s_memrealtime s[100:101]")
        dbg_srd(e)
        e("s_or_b32 s100, s100, 1")
        e("v_mov_b32 v2, s100")
        e("v_mov_b32 v3, s101")
        e("s_mov_b64 exec, 1")
        e("buffer_store_dwordx2 v[2:3], off, s[88:91], 0 sc1")
        e("s_mov_b64 exec, -1")
        e.label("K2_BS")
        e("s_barrier")
        e("s_cmp_lt_u32 s3, 8")
        e("s_cbranch_scc1 K1_START")
        e.label("K2_START")
        e("s_load_dwordx2 s[88:89], s[0:1], 88")
    e("s_load_dwordx4 s[4:7], s[0:1], 32")
    e("s_load_dwordx2 s[12:13], s[0:1], 96")
    e("s_load_dwordx4 s[8:11], s[0:1], 56")
    e("s_load_dwordx2 s[50:51], s[0:1], 72")
    e("v_lshrrev_b32 v1, 6, v0")
    e("s_nop 0")
    e("v_readfirstlane_b32 s3, v1")
    e("v_and_b32 v1, 63, v0")
    e("v_lshlrev_b32 v2, 4, v1")
    e("s_and_b32 s14, s2, 7")
    e("s_lshr_b32 s15, s2, 3")
    if "map2" in X2:
        e("s_mul_i32 s32, s14, 27")
        e("s_add_u32 s65, s32, s15")
        e("s_lshl_b32 s65, s65, 1")
        e("s_add_u32 s69, s65, 1")
        e(f"s_mov_b32 s66, {CV_A}")
        e("s_cmp_lt_u32 s15, 27")
        e("s_cselect_b32 s64, 1, 0")
        e("s_cbranch_scc1 K2_R")
        e("s_mul_i32 s32, s14, 5")
        e("s_add_u32 s32, s32, s15")
        e("s_add_u32 s65, s32, 405")
        e("s_add_u32 s69, s65, 120")
        e("s_mov_b32 s66, 0")
        e.label("K2_R")
        e("s_mov_b32 s76, s15")
        e("s_mov_b32 s77, s14")
    else:
        e("s_lshr_b32 s28, s14, 2")
        e("s_lshl_b32 s29, s28, 1")
        e("s_sub_u32 s29, 28, s29")
        e("s_and_b32 s31, s14, 3")
        e("s_mul_i32 s32, s31, s29")
        e("s_mul_i32 s33, s28, 112")
        e("s_add_u32 s32, s32, s33")
        e("s_add_u32 s65, s32, s15")
        e("s_lshl_b32 s65, s65, 1")
        e("s_add_u32 s69, s65, 1")
        e(f"s_mov_b32 s66, {CV_A}")
        e("s_cmp_lt_u32 s15, s29")
        e("s_cselect_b32 s64, 1, 0")
        e("s_cbranch_scc1 K2_R")
        e("s_sub_u32 s32, 32, s29")
        e("s_mul_i32 s32, s32, s31")
        e("s_lshl_b32 s33, s28, 4")
        e("s_add_u32 s32, s32, s33")
        e("s_add_u32 s32, s32, s15")
        e("s_sub_u32 s32, s32, s29")
        e("s_add_u32 s65, s32, 432")
        e("s_add_u32 s69, s65, 120")
        e("s_mov_b32 s66, 0")
        e.label("K2_R")
        e("s_mul_i32 s76, s28, 14")
        e("s_lshr_b32 s33, s15, 1")
        e("s_add_u32 s76, s76, s33")
        e("s_lshl_b32 s77, s31, 1")
        e("s_and_b32 s33, s15, 1")
        e("s_add_u32 s77, s77, s33")
    e("s_waitcnt lgkmcnt(0)")
    srd(e, 16, 4, 5, SZ_SD)
    if FUSE:
        e("s_mov_b32 s90, 256")
        e("s_mov_b32 s91, 0x00020000")
    e("s_cmp_lt_u32 s3, 12")
    e("s_cbranch_scc1 K2_CW")
    e("s_sub_u32 s3, s3, 12")
    e("s_cmp_eq_u32 s64, 0")
    e("s_cbranch_scc1 K2_RP")
    srd_off(e, 52, 12, 13, WS_XNP, SZ_SD)
    e("s_cmp_eq_u32 s3, 0")
    e("s_cselect_b32 s56, s8, s10")
    e("s_cselect_b32 s57, s9, s11")
    e(f"s_mov_b32 s58, {D*F*2}")
    e("s_mov_b32 s59, 0x00020000")
    e("v_lshrrev_b32 v3, 3, v1")
    e("v_and_b32 v4, 7, v1")
    e("v_bfe_u32 v5, v3, 1, 1")
    e("v_lshlrev_b32 v5, 2, v5")
    e("v_xor_b32 v4, v4, v5")
    e("v_mul_u32_u24 v3, 3456, v3")
    e("v_lshl_add_u32 v3, v4, 4, v3")
    for i in range(1, 4):
        e(f"v_add_u32 v{3+i}, {i*(8*3456-1024)}, v3")
    e("s_lshl_b32 s72, s3, 13")
    e("s_lshl_b32 s73, s3, 12")
    e("s_mul_i32 s74, s77, 327680")
    e("s_add_u32 s74, s74, s72")
    e("s_lshl_b32 s75, s76, 7")
    e("s_add_u32 s73, s73, 16384")
    ASC = LDSC if FUSE else ""
    def g1_dma(a=True, w=True):
        if a:
            e("s_mov_b32 m0, s72")
            e("s_add_u32 s34, s74, 4096")
            for i in range(4):
                e(f"buffer_load_dwordx4 v2, s[52:55], s74 offen offset:{i*1024} {ASC} lds")
            e("s_add_u32 m0, s72, 4096")
            e("s_add_u32 s74, s74, 16384")
            for i in range(4):
                e(f"buffer_load_dwordx4 v2, s[52:55], s34 offen offset:{i*1024} {ASC} lds")
            e(f"s_add_u32 s72, s72, {STG}")
        if w:
            e("s_mov_b32 m0, s73")
            e("s_nop 0")
            for i in range(4):
                e(f"buffer_load_dwordx4 v{3+i}, s[56:59], s75 offen offset:{i*1024} lds")
            e(f"s_add_u32 s75, s75, {32*3456}")
            e(f"s_add_u32 s73, s73, {STG}")
    def lst():
        if PROF2:
            e("s_memtime s[88:89]")
            e("s_memrealtime s[90:91]")
            e("s_waitcnt lgkmcnt(0)")
            e("v_cmp_eq_u32 vcc, s81, v1")
            e("v_mov_b32 v21, s88")
            e("v_cndmask_b32 v20, v20, v21, vcc")
            e("v_mov_b32 v21, s90")
            e("v_cndmask_b32 v22, v22, v21, vcc")
            e("s_add_u32 s81, s81, 1")
    if FUSE:
        dly(e, DLY[0])
        for i in range(3): g1_dma(False, True)
        srd_off(e, 44, 12, 13, WS_FL, SZ_FL)
        e("v_lshlrev_b32 v8, 7, v1")
        e("s_lshl_b32 s40, s77, 13")
        nonce_get(e, "NG_L", 10)
        e("s_mov_b32 s41, 0")
        e.label("PL_LN")
        e("buffer_load_dwordx2 v[10:11], v8, s[44:47], s40 offen sc1")
        e("s_waitcnt vmcnt(0)")
        e("v_cmp_ne_u64 vcc, s[100:101], v[10:11]")
        e("s_cmp_eq_u64 vcc, 0")
        e("s_cbranch_scc1 PL_LN_D")
        e("s_mov_b64 exec, vcc")
        e(f"s_sleep {PSL}")
        e("s_add_u32 s41, s41, 1")
        e(f"s_cmp_lt_u32 s41, {SPIN}")
        e("s_cbranch_scc1 PL_LN")
        e.label("PL_LN_D")
        e("s_mov_b64 exec, -1")
        e("v_mov_b32 v10, 1")
        e(f"v_mov_b32 v11, {LCNT + 4}")
        e("ds_write_b32 v11, v10")
        trace_end(e, 4, 768, True)
        g1_dma(True, False); g1_dma(True, False)
        e("s_waitcnt vmcnt(8)")
        e("s_barrier")
        g1_dma(True, False)
        e("s_waitcnt vmcnt(8)")
        e("s_barrier")
        g1_dma()
        e(f"s_sub_u32 s72, s72, {NS*STG}")
        e(f"s_sub_u32 s73, s73, {NS*STG}")
        e(f"s_mov_b32 s79, {NS}")
        e(f"s_mov_b32 s80, {NS*STG}")
    else:
      e("s_mov_b32 s81, 0")
      lst()
      e("s_mov_b32 s79, 0")
      e(f"s_mov_b32 s80, {NS*STG}")
      e.label("K2_LP")
      g1_dma()
      e("s_add_u32 s79, s79, 1")
      e(f"s_cmp_lg_u32 s79, {LB0}")
      e("s_cbranch_scc1 K2_LP2")
      lst()
      e(f"s_waitcnt vmcnt({12*(LB0-1)})")
      e("s_barrier")
      lst()
      e.label("K2_LP2")
      e(f"s_cmp_lt_u32 s79, {NS-1}")
      e("s_cbranch_scc1 K2_LP")
    if PACE: e(f"s_mov_b32 s78, {PACE[0]}")
    e.label("K2_LGL")
    if PACE:
        e(f"s_cmp_ge_u32 s79, {NS - 1 + PACE[2]}")
        e("s_cbranch_scc1 K2_PE")
        e("s_lshr_b32 s33, s78, 2")
        e.label("K2_PL")
        e("s_sleep 1")
        e("s_sub_u32 s33, s33, 1")
        e("s_cmp_lg_u32 s33, 0")
        e("s_cbranch_scc1 K2_PL")
        e(f"s_sub_u32 s78, s78, {PACE[1]}")
        e.label("K2_PE")
    e(f"s_waitcnt vmcnt({12*(NS-3)})")
    e("s_barrier")
    lst()
    g1_dma()
    e("s_cmp_ge_u32 s72, s80")
    e("s_cselect_b32 s33, s80, 0")
    e("s_sub_u32 s72, s72, s33")
    e("s_sub_u32 s73, s73, s33")
    e("s_add_u32 s79, s79, 1")
    if os.environ.get("K2SL"):
        sl = [int(x) for x in os.environ['K2SL'].split(",")]
        if len(sl) == 1: e(f"s_sleep {sl[0]}")
        else:
            e(f"s_sub_u32 s33, s79, {sl[1]}")
            e(f"s_cmp_ge_u32 s33, {sl[2]-sl[1]}")
            e("s_cbranch_scc1 K2_NSL")
            e(f"s_sleep {sl[0]}")
            e.label("K2_NSL")
    e(f"s_cmp_lt_u32 s79, {NT}")
    e("s_cbranch_scc1 K2_LGL")
    for b in range(NT-NS+2, (max(NT, C1_E+1) if PROF2 else NT)):
        e(f"s_waitcnt vmcnt({12*max(NT-1-b, 0)})")
        e("s_barrier")
        lst()
    if PROF2:
        e("s_load_dwordx2 s[84:85], s[0:1], 88")
        e("s_waitcnt lgkmcnt(0)")
        e("s_mov_b32 s86, 256")
        e("s_mov_b32 s87, 0x00020000")
        e(f"s_cmp_lg_u32 s2, {PROF2}")
        e("s_cbranch_scc1 K2_END")
        e("s_cmp_lg_u32 s3, 0")
        e("s_cbranch_scc1 K2_END")
        e("v_lshlrev_b32 v120, 2, v1")
        e("buffer_store_dword v20, v120, s[84:87], 0 offen offset:128")
        e("v_cmp_gt_u32 vcc, 32, v1")
        e("s_and_saveexec_b64 s[92:93], vcc")
        e("buffer_store_dword v22, v120, s[84:87], 0 offen")
    if "ge" in DRY:
        srd_off(e, 60, 12, 13, WS_H, SZ_H)
        e("s_mov_b32 s46, 0")
        e("s_mov_b64 exec, 0")
        e("s_branch G_EPI")
    e("s_endpgm")
    e.label("K2_RP")
    srd(e, 52, 50, 51, D*F*2)
    srd_off(e, 56, 12, 13, WS_WP2, D*F*2)
    e("s_sub_u32 s28, s65, 432")
    e("s_lshl_b32 s28, s28, 1")
    e("s_add_u32 s28, s28, s3")
    e("s_mul_hi_u32 s29, s28, 0x1999999a")
    e("s_mul_i32 s30, s29, 10")
    e("s_sub_u32 s30, s28, s30")
    e("s_mul_i32 s30, s30, 1728")
    e("s_mul_i32 s29, s29, 160")
    e("s_mul_i32 s28, s28, 27648")
    e("s_mov_b32 s31, 0xcccccccd")
    e("v_add_u32 v3, s30, v1")
    if FUSE: dly(e, DLY[2])
    for i in range(27):
        e(f"v_add_u32 v4, {64*i}, v3")
        e("v_mul_hi_u32 v5, v4, s31")
        e("v_lshrrev_b32 v5, 3, v5")
        e("v_mul_u32_u24 v6, 10, v5")
        e("v_sub_u32 v6, v4, v6")
        e("v_mul_u32_u24 v5, 1280, v5")
        e("v_lshl_add_u32 v5, v6, 4, v5")
        e(f"buffer_load_dwordx4 v[{8+4*i}:{11+4*i}], v5, s[52:55], s29 offen")
    for i in range(RPB):
        if i == 1 and CDL: e(f"s_sleep {CDL}")
        e("s_barrier")
    e("s_waitcnt vmcnt(0)")
    for i in range(27):
        e(f"buffer_store_dwordx4 v[{8+4*i}:{11+4*i}], v2, s[56:59], s28 offen offset:{(i&3)*1024} {STW}")
        if i & 3 == 3: e("s_add_u32 s28, s28, 4096")
    e("s_endpgm")
    e.label("K2_CW")
    e("s_cmp_lt_u32 s3, 8")
    e("s_cselect_b32 s33, s64, 0")
    e("s_cmp_eq_u32 s33, 1")
    e("s_cbranch_scc1 K2_G")
    srd_off(e, 20, 12, 13, WS_KVT, SZ_SD)
    srd_off(e, 24, 12, 13, WS_T3, SZ_T3)
    q(e, 0, 8)
    e("s_and_b32 s39, s3, 3")
    e("s_lshr_b32 s38, s3, 2")
    e("s_cmp_eq_u32 s64, 1")
    e("s_cselect_b32 s38, 0, s38")
    e("s_mul_i32 s33, s38, 40")
    e("s_add_u32 s65, s65, s33")
    e("s_add_u32 s69, s69, s33")
    e(f"s_mul_i32 s33, s38, {CV_SZ}")
    e("s_add_u32 s66, s66, s33")
    e("s_lshr_b32 s38, s39, 1")
    e("s_min_u32 s68, s69, 639")
    e("s_lshr_b32 s28, s65, 1")
    e("s_lshl_b32 s28, s28, 2")
    e("s_load_dword s70, s[6:7], s28")
    e("s_lshr_b32 s28, s68, 1")
    e("s_lshl_b32 s28, s28, 2")
    e("s_load_dword s71, s[6:7], s28")
    e("s_lshl_b32 s32, s65, 12")
    e("s_lshl_b32 s33, s68, 12")
    e("v_lshl_add_u32 v16, s39, 6, v1")
    e("v_lshlrev_b32 v12, 4, v16")
    if FUSE and DLY[1]:
        e("s_cmp_lt_u32 s3, 8")
        e("s_cbranch_scc1 K2_ND")
        dly(e, DLY[1])
        e.label("K2_ND")
    e("buffer_load_dwordx4 v[104:107], v12, s[16:19], s32 offen")
    e("buffer_load_dwordx2 v[108:109], v12, s[16:19], s32 offen offset:16")
    if not FUSE: e("buffer_load_dwordx4 v[4:7], v12, s[20:23], s32 offen")
    e("buffer_load_dwordx4 v[120:123], v12, s[16:19], s33 offen")
    e("buffer_load_dwordx2 v[124:125], v12, s[16:19], s33 offen offset:16")
    if not FUSE: e("buffer_load_dwordx4 v[112:115], v12, s[20:23], s33 offen")
    if FUSE:
        e("s_mov_b32 s58, s32")
        e("s_mov_b32 s59, s33")
        e("v_mov_b32 v119, v12")
    e(f"s_add_u32 s34, s66, {CP_OFF + 128}")
    e("v_add_u32 v117, s34, v12")
    for i in range(4):
        e(f"v_mov_b32 v{28+i}, 0")
    e("v_lshrrev_b32 v21, 3, v1")
    e(f"v_mul_u32_u24 v20, {COPY}, v21")
    e("v_and_b32 v21, 7, v1")
    e("v_lshl_add_u32 v20, v21, 4, v20")
    e(f"s_add_u32 s34, s66, {CP_OFF}")
    e("v_add_u32 v20, s34, v20")
    if CONV2:
        e("v_and_b32 v22, 31, v1")
        e("v_lshrrev_b32 v21, 5, v1")
        e(f"v_mul_u32_u24 v21, {KVSZ}, v21")
        e("v_lshl_add_u32 v21, v22, 4, v21")
        e("v_add_u32 v21, s66, v21")
        e("s_mov_b64 vcc, -1")
    else:
        e("v_and_b32 v22, 15, v1")
        e("v_bfe_u32 v21, v1, 4, 1")
        e(f"v_mul_u32_u24 v21, {KVSZ}, v21")
        e("v_lshl_add_u32 v21, v22, 4, v21")
        e("v_add_u32 v21, s66, v21")
        e("v_cmp_gt_u32 vcc, 9, v22")
        e("s_mov_b32 vcc_hi, 0")
    e("s_cmp_eq_u32 s39, 0")
    e("s_cbranch_scc0 CF_0")
    e("ds_write_b128 v20, v[28:31]")
    e("s_and_saveexec_b64 s[36:37], vcc")
    e("ds_write_b128 v21, v[28:31]")
    e("s_mov_b64 exec, s[36:37]")
    e.label("CF_0")
    if CONV2:
        e("s_add_u32 s34, s66, 512")
        e("v_add_u32 v118, s34, v12")
        e("v_and_b32 v40, 15, v1")
        e("v_lshrrev_b32 v41, 4, v1")
        e("v_add_u32 v16, 1, v40")
        e("v_and_b32 v16, 3, v16")
        e(f"v_mul_u32_u24 v8, {COPY - 2}, v16")
        e("v_lshl_add_u32 v8, v40, 1, v8")
        e("v_lshl_add_u32 v8, v41, 4, v8")
        e("s_and_b32 s37, s39, 1")
        e("s_lshl_b32 s41, s37, 8")
        e(f"s_mul_i32 s42, s38, {4*COPY}")
        e("s_add_u32 s42, s42, s66")
        e(f"s_add_u32 s42, s42, {CP_OFF}")
        e("s_add_u32 s43, s42, s41")
        e("s_add_u32 s43, s43, 98")
        e("v_add_u32 v8, s43, v8")
        e("s_lshl_b32 s43, s37, 12")
        e("s_add_u32 s44, s42, s43")
        e("v_add_u32 v14, s44, v2")
        e("s_xor_b32 s43, s43, 4096")
        e("s_add_u32 s44, s42, s43")
        e("v_add_u32 v15, s44, v2")
        e(f"s_mul_i32 s42, s38, {KVSZ}")
        e("s_add_u32 s42, s42, s66")
        e("v_lshlrev_b32 v10, 5, v40")
        e("v_lshlrev_b32 v11, 4, v41")
        e("v_sub_u32 v10, v10, v11")
        e("s_sub_u32 s43, s42, s41")
        e("s_add_u32 s43, s43, 336")
        e("v_add_u32 v10, s43, v10")
        e("v_lshlrev_b32 v13, 5, v40")
        e("v_lshrrev_b32 v42, 1, v41")
        e("v_lshl_add_u32 v13, v42, 4, v13")
        e("v_and_b32 v42, 1, v41")
        e("v_lshlrev_b32 v42, 3, v42")
        e("v_xor_b32 v42, 8, v42")
        e("v_add_u32 v13, v13, v42")
        e("s_lshl_b32 s43, s37, 11")
        e("s_add_u32 s43, s43, s42")
        e("s_add_u32 s43, s43, 512")
        e("v_add_u32 v13, s43, v13")
        e("v_lshrrev_b32 v42, 2, v40")
        e("v_mul_u32_u24 v2, 81920, v42")
        e("v_and_b32 v42, 3, v40")
        e("v_lshl_add_u32 v2, v42, 5, v2")
        e("v_lshl_add_u32 v2, v41, 3, v2")
        e("s_mov_b32 s49, s37")
    else:
        e("v_lshrrev_b32 v118, 3, v16")
        e("v_mul_u32_u24 v118, 144, v118")
        e("v_and_b32 v26, 7, v16")
        e("v_lshl_add_u32 v118, v26, 4, v118")
        e("s_add_u32 s34, s66, 144")
        e("v_add_u32 v118, s34, v118")
        e("v_and_b32 v40, 15, v1")
        e("v_lshrrev_b32 v41, 4, v1")
        e("v_add_u32 v16, 1, v40")
        e("v_and_b32 v16, 3, v16")
        e(f"v_mul_u32_u24 v8, {COPY - 2}, v16")
        e("v_lshl_add_u32 v8, v40, 1, v8")
        e("v_lshlrev_b32 v17, 4, v41")
        e("v_sub_u32 v8, v8, v17")
        e("s_lshl_b32 s41, s38, 10")
        e("s_and_b32 s42, s39, 1")
        e("s_lshl_b32 s42, s42, 5")
        e("s_add_u32 s42, s42, s41")
        e("s_add_u32 s42, s42, s66")
        e(f"s_add_u32 s42, s42, {CP_OFF + 2*(64-7) - 64}")
        e("v_add_u32 v8, s42, v8")
        e("v_add_u32 v9, 2048, v8")
        e("v_mul_u32_u24 v10, 144, v40")
        e("v_lshlrev_b32 v11, 4, v41")
        e("v_add_u32 v11, s66, v11")
        e("v_add_u32 v10, v10, v11")
        e("s_mul_i32 s43, s38, 1152")
        e("s_sub_u32 s43, 144, s43")
        e("v_add_u32 v10, s43, v10")
        e("s_mul_i32 s44, s2, 12")
        e("s_add_u32 s44, s44, s3")
        e("s_xor_b32 s45, s44, 2")
        e("s_lshl_b32 s44, s44, 12")
        e("s_lshl_b32 s45, s45, 12")
        e("v_add_u32 v14, s44, v2")
        e("v_add_u32 v15, s45, v2")
        e("v_mul_u32_u24 v13, 144, v40")
        e("v_lshrrev_b32 v42, 1, v41")
        e("v_lshl_add_u32 v13, v42, 4, v13")
        e("v_and_b32 v42, 1, v41")
        e("v_lshlrev_b32 v42, 3, v42")
        e("v_xor_b32 v42, 8, v42")
        e("v_add_u32 v13, v13, v42")
        e("s_lshl_b32 s46, s39, 5")
        e("s_add_u32 s47, s46, s66")
        e("s_add_u32 s47, s47, 144")
        e("v_add_u32 v13, s47, v13")
        e("v_mul_u32_u24 v2, 81920, v40")
        e("v_lshl_add_u32 v2, v41, 3, v2")
        e("v_add_u32 v2, s46, v2")
    if FUSE:
        e("s_waitcnt vmcnt(2)")
        write_copies(e, 104, "CF_1", 0)
        e("s_waitcnt vmcnt(0)")
        write_copies(e, 120, "CF_2", 4*COPY)
        srd_off(e, 52, 12, 13, WS_FL, SZ_FL)
        for (sc, sd) in ((65, 28), (68, 29)):
            e(f"s_mul_i32 s30, s{sc}, 52429")
            e("s_lshr_b32 s30, s30, 22")
            e("s_mul_i32 s31, s30, 80")
            e(f"s_sub_u32 s31, s{sc}, s31")
            e("s_cmp_ge_u32 s31, 40")
            e("s_cselect_b32 s34, 40, 0")
            e("s_sub_u32 s31, s31, s34")
            e("s_lshr_b32 s31, s31, 3")
            e("s_mul_i32 s30, s30, 5")
            e("s_add_u32 s30, s30, s31")
            e("s_lshl_b32 s30, s30, 2")
            e("s_add_u32 s30, s30, s39")
            e(f"s_lshl_b32 s{sd}, s30, 10")
        e("v_mov_b32 v16, s28")
        e("v_mov_b32 v17, s29")
        e("v_cmp_gt_u32 vcc, 8, v1")
        e("v_cndmask_b32 v16, v17, v16, vcc")
        e("v_and_b32 v17, 7, v1")
        e("v_lshl_add_u32 v16, v17, 7, v16")
        e(f"v_mov_b32 v21, {LCNT + 4}")
        e("s_lshr_b32 s34, s3, 2")
        e("s_lshl_b32 s34, s34, 4")
        e(f"s_add_u32 s34, s34, {LCNT + 16}")
        e("v_mov_b32 v22, s34")
        e("s_lshl_b32 s35, s39, 2")
        e("v_add_u32 v23, s35, v22")
        e(f"s_mov_b32 s40, {FL_KV}")
        nonce_get(e, "NG_C", 18)
        e("s_mov_b32 s41, 0")
        e("s_mov_b32 s43, 0")
        e("s_mov_b64 exec, 0xffff")
        e.label("CP_A")
        e("buffer_load_dwordx2 v[18:19], v16, s[52:55], s40 offen sc1")
        e("s_waitcnt vmcnt(0)")
        e("ds_read_b32 v20, v21")
        e("v_cmp_ne_u64 vcc, s[100:101], v[18:19]")
        e("s_waitcnt lgkmcnt(0)")
        e("v_readfirstlane_b32 s42, v20")
        e("s_cmp_eq_u64 vcc, 0")
        e("s_cbranch_scc1 CP_R")
        e("s_mov_b64 exec, vcc")
        e("s_cmp_lg_u32 s42, 0")
        e("s_cbranch_scc1 CP_B")
        e(f"s_sleep {PSL}")
        e("s_add_u32 s41, s41, 1")
        e(f"s_cmp_lt_u32 s41, {SPIN}")
        e("s_cbranch_scc1 CP_A")
        e("s_branch CP_R")
        e.label("CP_B")
        e("buffer_load_dwordx2 v[18:19], v16, s[52:55], s40 offen sc1")
        e("s_barrier")
        e("s_add_u32 s43, s43, 1")
        e("s_waitcnt vmcnt(0)")
        e("v_cmp_ne_u64 vcc, s[100:101], v[18:19]")
        e("s_cmp_eq_u64 vcc, 0")
        e("s_cbranch_scc1 CP_R")
        e("s_mov_b64 exec, vcc")
        e("s_add_u32 s41, s41, 1")
        e(f"s_cmp_lt_u32 s41, {SPIN}")
        e("s_cbranch_scc1 CP_B")
        e.label("CP_R")
        e("s_mov_b64 exec, -1")
        trace_end(e, 5, 512, True)
        e(f"buffer_load_dwordx4 v[4:7], v119, s[20:23], s58 offen {LDSC}")
        e(f"buffer_load_dwordx4 v[112:115], v119, s[20:23], s59 offen {LDSC}")
        e("s_cmp_eq_u32 s42, 0")
        e("s_cbranch_scc1 CP_W")
        for i in range(CWB):
            e("s_barrier")
        e(f"s_add_u32 s43, s43, {CWB}")
        e.label("CP_W")
        e("s_add_u32 s42, s43, 1")
        e("v_mov_b32 v20, s42")
        e("s_waitcnt vmcnt(1)")
        e("ds_write_b128 v118, v[4:7]")
        e("s_waitcnt vmcnt(0)")
        e(f"ds_write_b128 v118, v[112:115] offset:{KVSZ}")
        e("ds_write_b32 v23, v20")
        e("s_waitcnt lgkmcnt(0)")
        e("s_mov_b32 s41, 0")
        e.label("CP_C")
        e("s_barrier")
        e("s_add_u32 s43, s43, 1")
        e("ds_read_b128 v[24:27], v22")
        e("s_add_u32 s41, s41, 1")
        e("s_waitcnt lgkmcnt(0)")
        for i in range(4): e(f"v_subrev_u32 v{24+i}, 1, v{24+i}")
        e("v_max_u32 v24, v24, v25")
        e("v_max_u32 v26, v26, v27")
        e("v_max_u32 v24, v24, v26")
        e("s_nop 0")
        e("v_readfirstlane_b32 s42, v24")
        e(f"s_cmp_ge_u32 s41, {4*SPIN}")
        e("s_cbranch_scc1 CP_D")
        e("s_cmp_ge_u32 s42, s43")
        e("s_cbranch_scc1 CP_C")
        e.label("CP_D")
        if TRACE: e("s_mov_b32 s67, s43")
    else:
      e("s_waitcnt vmcnt(4)")
      write_copies(e, 104, "CF_1", 0)
      e("s_waitcnt vmcnt(3)")
      e("ds_write_b128 v118, v[4:7]")
      e("s_waitcnt vmcnt(1)")
      write_copies(e, 120, "CF_2", 4*COPY)
      e("s_waitcnt vmcnt(0)")
      e(f"ds_write_b128 v118, v[112:115] offset:{KVSZ}")
      e("s_waitcnt lgkmcnt(0)")
    srd_off(e, 60, 12, 13, WS_XCH, 256*12*4096)
    q(e, 5, 8)
    if CONV2: conv_main2(e)
    else: conv_main(e)
    q(e, 11, 8)
    if PROF2 or TRACE: e("s_waitcnt vmcnt(0)")
    q(e, 7, 8)
    qdump(e, 12, 8)
    p4dump(e, "P4_C")
    trace_end(e, 0, 512)
    e("s_endpgm")
    e.label("K2_G")
    q(e, 0)
    srd_off(e, 60, 12, 13, WS_H, SZ_H)
    e("s_lshr_b32 s47, s3, 1")
    e("s_and_b32 s48, s3, 1")
    e("v_and_b32 v4, 31, v1")
    e("v_lshrrev_b32 v3, 5, v1")
    e("s_lshl_b32 s49, s47, 6")
    e("v_add_u32 v4, s49, v4")
    e("v_lshrrev_b32 v7, 2, v4")
    e("v_and_b32 v5, 3, v4")
    e("v_lshl_add_u32 v5, v5, 2, v3")
    e("v_and_b32 v6, 3, v7")
    e("v_xor_b32 v5, v5, v6")
    e("v_lshlrev_b32 v5, 4, v5")
    e("v_lshl_add_u32 v12, v7, 8, v5")
    e("v_xor_b32 v13, 32, v12")
    e("v_lshrrev_b32 v8, 4, v1")
    e("v_bfe_u32 v3, v1, 2, 2")
    e("v_and_b32 v4, 3, v1")
    e("v_lshrrev_b32 v5, 1, v8")
    e("v_lshl_add_u32 v5, v5, 3, v3")
    e("v_lshlrev_b32 v5, 7, v5")
    e("v_and_b32 v6, 1, v8")
    e("v_lshlrev_b32 v6, 1, v6")
    e("v_lshrrev_b32 v7, 1, v4")
    e("v_add_u32 v6, v6, v7")
    e("s_lshl_b32 s49, s48, 2")
    e("v_add_u32 v6, s49, v6")
    e("v_bfe_u32 v7, v3, 1, 1")
    e("v_lshlrev_b32 v7, 2, v7")
    e("v_xor_b32 v6, v6, v7")
    e("v_lshl_add_u32 v5, v6, 4, v5")
    e("v_and_b32 v7, 1, v4")
    e("v_lshl_add_u32 v5, v7, 3, v5")
    e("v_add_u32 v14, 16384, v5")
    G0, U0 = 64, 96
    for i in range(64):
        e(f"v_mov_b32 v{64+i}, 0")
    e("v_add_u32 v9, 0x10000, v12")
    e("v_add_u32 v10, 0x10000, v13")
    e("v_add_u32 v11, 0x10000, v14")
    def frag_ops(g):
        if "nofr" in X2: return []
        t = g >> 1; ks = g & 1; fb = 16 + 16*(g % 3)
        sb = (t % NS)*STG
        hi64 = sb >= 65536
        if hi64: sb -= 65536
        xa = (9 if hi64 else 12) + ks; wa = 11 if hi64 else 14
        r = []
        for mat in range(2):
            for hi in range(2):
                rr = fb + 8 + 4*mat + 2*hi
                r.append(f"ds_read_b64_tr_b16 v[{rr}:{rr+1}], v{wa} offset:{sb + mat*4096 + ks*2048 + hi*512}")
        for mi in range(2):
            r.append(f"ds_read_b128 v[{fb+4*mi}:{fb+4*mi+3}], v{xa} offset:{sb + mi*2048}")
        return r
    def frag_loads(g):
        for x in frag_ops(g): e(x)
    def mf(g, ops):
        fb = 16 + 16*(g % 3)
        ms = []
        for mi in range(2):
            x = fb+4*mi
            ms.append(f"v_mfma_f32_32x32x16_bf16 v[{G0+16*mi}:{G0+16*mi+15}], v[{fb+8}:{fb+11}], v[{x}:{x+3}], v[{G0+16*mi}:{G0+16*mi+15}]")
            ms.append(f"v_mfma_f32_32x32x16_bf16 v[{U0+16*mi}:{U0+16*mi+15}], v[{fb+12}:{fb+15}], v[{x}:{x+3}], v[{U0+16*mi}:{U0+16*mi+15}]")
        grp = [ops[0:2], ops[2:4], ops[4:5], ops[5:6]]
        for i in range(4):
            e(ms[i])
            for x in grp[i]: e(x)
    e("v_lshrrev_b32 v3, 5, v1")
    e("v_and_b32 v4, 31, v1")
    e("v_lshlrev_b32 v4, 4, v4")
    e("v_lshl_add_u32 v4, v3, 10, v4")
    e("s_lshl_b32 s46, s77, 2")
    e("s_add_u32 s46, s46, s47")
    e(f"s_mul_i32 s46, s46, {27*8192}")
    e("s_lshl_b32 s49, s76, 13")
    e("s_add_u32 s46, s46, s49")
    e("s_lshl_b32 s49, s48, 12")
    e("s_add_u32 s46, s46, s49")
    q(e, 1)
    e("s_barrier")
    if FUSE and TRACE:
        trace_end(e, 6, 0, True)
        for i in range(120, 128): e(f"v_mov_b32 v{i}, 0")
    q(e, 2)
    if DIAG: e("s_memrealtime s[66:67]\ns_memtime s[68:69]\ns_waitcnt lgkmcnt(0)")
    frag_loads(0); frag_loads(1)
    for g in range(2*NT):
        ops = []
        if g + 2 < 2*NT:
            if g & 1 == 0: bar(e, (g+2)//2)
            ops = frag_ops(g+2)
        e(f"s_waitcnt lgkmcnt({6*min(1, 2*NT-1-g)})")
        mf(g, ops)
    q(e, 3)
    if DIAG: e("s_memrealtime s[70:71]\ns_memtime s[72:73]\ns_waitcnt lgkmcnt(0)")
    gb = NT
    if C1_E >= gb: e("s_barrier"); gb += 1
    e("s_nop 15")
    e.label("G_EPI")
    for mi in range(2):
        for pi in range(2):
            o = 16 + 4*(2*mi+pi)
            for ii in range(2):
                i = 2*pi + ii
                g = G0+16*mi+4*i; u = U0+16*mi+4*i
                for pr in range(2):
                    e(f"v_cvt_pk_bf16_f32 v40, v{g+2*pr}, v{g+2*pr+1}")
                    e(f"v_cvt_pk_bf16_f32 v41, v{u+2*pr}, v{u+2*pr+1}")
                    e("v_lshlrev_b32 v42, 16, v40")
                    e("v_and_b32 v43, 0xffff0000, v40")
                    e("v_lshlrev_b32 v44, 16, v41")
                    e("v_and_b32 v45, 0xffff0000, v41")
                    e("v_mul_f32 v42, v42, v44")
                    e("v_mul_f32 v43, v43, v45")
                    e(f"v_cvt_pk_bf16_f32 v{o+2*ii+pr}, v42, v43")
            e("s_nop 1")
            e(f"v_permlane32_swap_b32 v{o}, v{o+2}")
            e(f"v_permlane32_swap_b32 v{o+1}, v{o+3}")
            e("s_nop 1")
            e(f"buffer_store_dwordx4 v[{o}:{o+3}], v4, s[60:63], s46 offen offset:{pi*2048 + mi*512} {ST2H}")
    while C1_E >= gb:
        e("s_barrier"); gb += 1
    if "ge" in DRY: e("s_cbranch_execz K2_END")
    q(e, 4)
    if PROF2 or TRACE: e("s_waitcnt vmcnt(0)")
    q(e, 7)
    qdump(e, 12)
    p4dump(e, "P4_G")
    trace_end(e, 1)
    diag_end(e, 1, 3, 77, 0, "DG_2")
    e("s_endpgm")
    if FUSE:
        e.label("K1_START")
        e.l += k1().rstrip("\n").split("\n")
    e.label("K2_END")
    e("s_endpgm")
    return e.text()


N_G2 = 256
K3_NS = int(os.environ.get("K3NS", "7"))
K3_STG = 18432
K3_X0 = K3_STG*K3_NS
K3_LDS = K3_X0 + 2*10240
K3_XB = 12
K3R0, K3R1 = [int(x) for x in os.environ.get('K3R', '1,2').split(',')]
K3_XI = int(os.environ.get('K3XI', '0'))
K3_D = int(os.environ.get('K3D', '1'))
PROF5 = os.environ.get("PROF5")
def k3():
    e = E()
    NS = K3_NS; NT = 27; STG = K3_STG
    Y2_L = K3_X0; X_L = K3_X0 + 10240; XN_L = K3_X0 + 20480
    e(f"s_cmp_ge_u32 s2, {N_G2}")
    e("s_cbranch_scc1 K3_END")
    code_touch(e, "k3", 256, "K3_END")
    trace_start(e)
    for i in range(int(os.environ.get("K3NOP", "0"))): e("s_nop 0")
    e("s_load_dwordx2 s[4:5], s[0:1], 0")
    e("s_load_dwordx2 s[10:11], s[0:1], 80")
    e("s_load_dwordx2 s[12:13], s[0:1], 96")
    e("v_lshrrev_b32 v1, 6, v0")
    e("s_nop 0")
    e("v_readfirstlane_b32 s3, v1")
    if "mapc" in X3:
        e("s_and_b32 s15, s2, 3")
        e("s_lshl_b32 s15, s15, 3")
        e("s_lshr_b32 s28, s2, 3")
        e("s_and_b32 s29, s28, 7")
        e("s_add_u32 s15, s15, s29")
        e("s_lshr_b32 s28, s28, 3")
        e("s_and_b32 s29, s2, 4")
        e("s_add_u32 s28, s28, s29")
    else:
        e("s_and_b32 s15, s2, 7")
        e("s_lshl_b32 s15, s15, 2")
        e("s_lshr_b32 s28, s2, 3")
        e("s_and_b32 s29, s28, 3")
        e("s_add_u32 s15, s15, s29")
        e("s_lshr_b32 s28, s28, 2")
    e("s_lshl_b32 s36, s15, 6")
    e("s_mul_i32 s39, s28, 160")
    e("v_and_b32 v1, 63, v0")
    e("s_waitcnt lgkmcnt(0)")
    e("s_cmp_lt_u32 s3, 4")
    e("s_cbranch_scc1 K3_COMP")
    e("s_sub_u32 s3, s3, 4")
    e("v_lshlrev_b32 v2, 4, v1")
    e("s_cmp_ge_u32 s3, 2")
    e("s_cbranch_scc1 K3_XL")
    srd_off(e, 16, 12, 13, WS_H, SZ_H)
    srd_off(e, 20, 12, 13, WS_WP2, D*F*2)
    e("v_lshlrev_b32 v2, 4, v1")
    e("s_lshl_b32 s40, s3, 12")
    e("s_mul_i32 s41, s3, 5120")
    e(f"s_mul_i32 s42, s15, {0 if 'hotA' in X3 else 27*8192}")
    e("s_add_u32 s42, s42, s40")
    e(f"s_mul_i32 s43, s28, {0 if 'hotW' in X3 else 1728*160}")
    e("s_add_u32 s43, s43, s41")
    e("s_add_u32 s41, s41, 8192")
    vq = VQ(e)
    def lst():
        if PROF5:
            e("s_memtime s[88:89]")
            e("s_waitcnt lgkmcnt(0)")
            e("v_cmp_eq_u32 vcc, s81, v1")
            e("v_mov_b32 v21, s88")
            e("v_cndmask_b32 v20, v20, v21, vcc")
            e("s_add_u32 s81, s81, 1")
    e("s_mov_b32 s81, 0")
    lst()
    def dma(t):
        sb = (t % NS)*STG
        e(f"s_add_u32 m0, s40, {sb}")
        e("s_add_u32 s46, s43, 4096")
        for i in range(4):
            e(f"buffer_load_dwordx4 v2, s[16:19], s42 offen offset:{i*1024} lds")
        e(f"s_add_u32 m0, s41, {sb}")
        e("s_add_u32 s42, s42, 8192")
        for i in range(4):
            e(f"buffer_load_dwordx4 v2, s[20:23], s43 offen offset:{i*1024} lds")
        e(f"s_add_u32 m0, s41, {sb + 4096}")
        e("s_add_u32 s43, s43, 10240")
        e(f"buffer_load_dwordx4 v2, s[20:23], s46 offen lds")
        vq.issue(("g", t), 9)
    def extras():
        srd_off(e, 24, 12, 13, WS_T3, SZ_T3)
        srd(e, 52, 4, 5, SZ_SD)
        e("s_lshl_b32 s47, s15, 3")
        e("s_add_u32 s47, s47, s28")
        e(f"s_mul_i32 s47, s47, {0 if 'hotX' in X3 else 10240}")
        e("s_mul_i32 s49, s3, 5120")
        e("s_add_u32 s47, s47, s49")
        e("s_add_u32 s48, s47, 4096")
        e(f"s_add_u32 m0, s49, {Y2_L}")
        e("s_nop 0")
        for i in range(4):
            e(f"buffer_load_dwordx4 v2, s[24:27], s47 offen offset:{i*1024} lds")
        e(f"s_add_u32 m0, s49, {Y2_L + 4096}")
        e("s_nop 0")
        e(f"buffer_load_dwordx4 v2, s[24:27], s48 offen lds")
        for i in range(5):
            e(f"v_add_u32 v3, {64*i}, v1")
            e("v_mul_u32_u24 v4, 6554, v3")
            e("v_lshrrev_b32 v4, 16, v4")
            e("v_mul_u32_u24 v5, 10, v4")
            e("v_sub_u32 v5, v3, v5")
            e("v_mul_u32_u24 v4, 1280, v4")
            e(f"v_lshl_add_u32 v{10+i}, v5, 4, v4")
        e("s_lshl_b32 s48, s3, 5")
        e("s_add_u32 s48, s48, s36")
        e("s_mul_i32 s48, s48, 1280")
        e("s_add_u32 s48, s48, s39")
        for i in range(5):
            e(f"s_add_u32 m0, s49, {X_L + i*1024}")
            e("s_nop 0")
            e(f"buffer_load_dwordx4 v{10+i}, s[52:55], s48 offen lds")
    nxt = 0
    DD = K3_D + 1
    for b in range(NT):
        lim = NS - 1 if b < DD else b - 1 - DD + NS
        lim = min(lim, K3R1*b + K3R0, NT - 1)
        while nxt <= lim:
            dma(nxt); nxt += 1
        vq.wait([("g", b)])
        e("s_barrier")
        lst()
    if PROF5:
        e("s_load_dwordx2 s[84:85], s[0:1], 88")
        e("s_waitcnt lgkmcnt(0)")
        e("s_mov_b32 s86, 256")
        e("s_mov_b32 s87, 0x00020000")
        e(f"s_cmp_lg_u32 s2, {PROF5}")
        e("s_cbranch_scc1 K3_END")
        e("s_cmp_lg_u32 s3, 0")
        e("s_cbranch_scc1 K3_END")
        e("v_lshlrev_b32 v120, 2, v1")
        e("buffer_store_dword v20, v120, s[84:87], 0 offen")
    e("s_endpgm")
    e.label("K3_XL")
    e("s_sub_u32 s3, s3, 2")
    for b in range(K3_XB + 1):
        if b == K3_XI: extras()
        if b == K3_XB: e("s_waitcnt vmcnt(0)")
        e("s_barrier")
    if "k3" in DRY:
        srd(e, 32, 10, 11, SZ_SD)
        e("s_mov_b64 exec, 0")
        e("s_branch K3_EPI")
    e("s_endpgm")
    e.label("K3_COMP")
    srd(e, 32, 10, 11, SZ_SD)
    e("v_and_b32 v20, 15, v1")
    e("v_lshrrev_b32 v21, 4, v1")
    e("v_and_b32 v22, 1, v21")
    e("s_lshl_b32 s49, s3, 4")
    e("v_add_u32 v23, s49, v20")
    e("v_mul_u32_u24 v2, 160, v23")
    e("v_lshl_add_u32 v2, v21, 3, v2")
    e(f"v_add_u32 v2, {X_L}, v2")
    e("v_add_u32 v24, s36, v23")
    srd_off(e, 40, 12, 13, WS_XN, S*8)
    e("v_lshlrev_b32 v25, 3, v24")
    e("buffer_load_dwordx2 v[14:15], v25, s[40:43], 0 offen")
    e("v_mul_u32_u24 v24, 1280, v24")
    e("v_lshl_add_u32 v24, v21, 3, v24")
    e("v_add_u32 v3, s39, v24")
    e("v_lshlrev_b32 v24, 10, v21")
    e("v_lshl_add_u32 v24, v23, 4, v24")
    e("v_lshl_add_u32 v4, v22, 3, v24")
    e("v_xor_b32 v5, 8, v4")
    e("v_bfe_u32 v24, v1, 2, 2")
    e("v_lshl_add_u32 v24, v21, 3, v24")
    e("v_lshl_add_u32 v25, v22, 2, v24")
    e("v_xor_b32 v26, 1, v22")
    e("v_lshl_add_u32 v26, v26, 2, v24")
    e("v_and_b32 v24, 3, v1")
    e("v_lshlrev_b32 v24, 3, v24")
    e("v_add_u32 v24, 8192, v24")
    e("s_movk_i32 s49, 160")
    e("v_mad_u32_u24 v6, v25, s49, v24")
    e("v_mad_u32_u24 v7, v26, s49, v24")
    for k in range(4):
        e(f"v_add_u32 v{8+k}, {4*STG}, v{4+k}")
    e("v_lshrrev_b32 v12, 2, v1")
    e("v_lshlrev_b32 v12, 7, v12")
    e("v_and_b32 v24, 3, v1")
    e("v_lshl_add_u32 v12, v24, 3, v12")
    e("s_lshl_b32 s49, s3, 5")
    e(f"s_add_u32 s49, s49, {Y2_L}")
    e("v_add_u32 v12, s49, v12")
    ACC = 16; XR, XNR, YR = 36, 46, 56; T = 66; FB = 72
    lq = []
    def wait(tags):
        idx = max((i for i, t in enumerate(lq) if t in tags), default=-1)
        if idx >= 0: e(f"s_waitcnt lgkmcnt({min(len(lq) - 1 - idx, 15)})")
    def put(it):
        if it[0] is None: wait(it[1]); return
        e(it[0])
        if it[1] is not None: lq.append(it[1])
    def frag_ops(t):
        fb = FB + 48*(t % (K3_D+1))
        sl = t % NS
        ab = 4 if sl < 4 else 8
        sb = (sl if sl < 4 else sl - 4)*STG
        r = []
        for kk in range(2):
            for hf in range(2):
                rr = fb + 4*kk + 2*hf
                r.append((f"ds_read_b64 v[{rr}:{rr+1}], v{ab+hf} offset:{sb + kk*4096}", ("f", t, kk)))
            for tt in range(5):
                for hf in range(2):
                    rr = fb + 8 + 20*kk + 4*tt + 2*hf
                    r.append((f"ds_read_b64_tr_b16 v[{rr}:{rr+1}], v{ab+2+hf} offset:{sb + kk*5120 + 32*tt}", ("f", t, kk)))
        return r
    xl = []
    for tt in range(5):
        xl.append((f"ds_read_b64_tr_b16 v[{YR+2*tt}:{YR+2*tt+1}], v12 offset:{2048*tt}", "x"))
        xl.append((f"ds_read_b64 v[{XR+2*tt}:{XR+2*tt+1}], v2 offset:{32*tt}", "x"))
    def amath(i):
        r = [f"v_lshlrev_b32 v{T}, 16, v{XR+i}", f"v_and_b32 v{T+1}, 0xffff0000, v{XR+i}",
             f"v_sub_f32 v{T+2}, v{T}, v14", f"v_sub_f32 v{T+3}, v{T+1}, v14",
             f"v_cvt_pk_bf16_f32 v{T+4}, v{T+2}, v{T+3}",
             f"v_lshlrev_b32 v{T+2}, 16, v{T+4}", f"v_and_b32 v{T+3}, 0xffff0000, v{T+4}",
             f"v_mul_f32 v{T+4}, v{T+2}, v13", f"v_mul_f32 v{T+5}, v{T+3}, v13",
             f"v_fma_f32 v{T+2}, -v{T+4}, v15, v{T+2}", f"v_fma_f32 v{T+3}, -v{T+5}, v15, v{T+3}",
             f"v_fmac_f32 v{T+4}, v{T+2}, v13", f"v_fmac_f32 v{T+5}, v{T+3}, v13",
             f"v_cvt_pk_bf16_f32 v{T+4}, v{T+4}, v{T+5}",
             f"v_lshlrev_b32 v{T+2}, 16, v{T+4}", f"v_and_b32 v{T+3}, 0xffff0000, v{T+4}",
             f"v_lshlrev_b32 v{T+4}, 16, v{YR+i}", f"v_and_b32 v{T+5}, 0xffff0000, v{YR+i}",
             f"v_mul_f32 v{T+2}, v{T+2}, v{T+4}", f"v_mul_f32 v{T+3}, v{T+3}, v{T+5}",
             f"v_cvt_pk_bf16_f32 v{T+4}, v{T+2}, v{T+3}",
             f"v_lshlrev_b32 v{T+2}, 16, v{T+4}", f"v_and_b32 v{T+3}, 0xffff0000, v{T+4}",
             f"v_add_f32 v{T}, v{T}, v{T+2}", f"v_add_f32 v{T+1}, v{T+1}, v{T+3}",
             f"v_cvt_pk_bf16_f32 v{T+4}, v{T}, v{T+1}",
             f"v_lshlrev_b32 v{XR+i}, 16, v{T+4}", f"v_and_b32 v{XNR+i}, 0xffff0000, v{T+4}"]
        return [(x, None) for x in r]
    extra = {t: [] for t in range(NT)}
    tx = K3_XB - K3_D
    extra[tx] = xl
    extra[tx + 1] = [("s_waitcnt vmcnt(0)\nv_rcp_f32 v13, v15", None)]
    extra[tx + 2] = [(None, ["x"])]
    for i in range(10):
        extra[tx + 2 + i] += amath(i)
    for t in range(K3_D):
        e("s_barrier")
        for it in frag_ops(t): put(it)
    for t in range(NT):
        ops = []
        if t + K3_D < NT:
            e("s_barrier")
            ops = frag_ops(t+K3_D)
        ex = list(extra[t])
        fb = FB + 48*(t % (K3_D+1))
        for kk in range(2):
            wait([("f", t, kk)])
            for tt in range(5):
                a = ACC + 4*tt
                w = fb + 8 + 20*kk + 4*tt; h = fb + 4*kk
                c = "0" if (t == 0 and kk == 0) else f"v[{a}:{a+3}]"
                e(f"v_mfma_f32_16x16x32_bf16 v[{a}:{a+3}], v[{w}:{w+3}], v[{h}:{h+3}], {c}")
                left = 10 - (5*kk + tt)
                no = (len(ops) + left - 1)//left
                for it in ops[:no]: put(it)
                ops = ops[no:]
                ne = (len(ex) + left - 1)//left
                for it in ex[:ne]: put(it)
                ex = ex[ne:]
    e("s_nop 7")
    e.label("K3_EPI")
    for tt in range(5):
        a = ACC + 4*tt
        for pr in range(2):
            i = 2*tt + pr
            e(f"v_cvt_pk_bf16_f32 v{T}, v{a+2*pr}, v{a+2*pr+1}")
            e(f"v_lshlrev_b32 v{T+1}, 16, v{T}")
            e(f"v_and_b32 v{T+2}, 0xffff0000, v{T}")
            e(f"v_add_f32 v{T+1}, v{XR+i}, v{T+1}")
            e(f"v_add_f32 v{T+2}, v{XNR+i}, v{T+2}")
            e(f"v_cvt_pk_bf16_f32 v{YR+i}, v{T+1}, v{T+2}")
        e(f"buffer_store_dwordx2 v[{YR+2*tt}:{YR+2*tt+1}], v3, s[32:35], 0 offen offset:{32*tt} {ST3}")
    if "k3" in DRY: e("s_cbranch_execz K3_END")
    trace_end(e, 2)
    diag_end(e, 2, 6, 77, 0, "DG_3")
    e.label("K3_END")
    e("s_endpgm")
    return e.text()

def build(kernels):
    out = []
    out.append(open("cdna_kernels/%s.s.ref" % NAME).read().split("; Override launch")[0])
    for (name, grid, block, lds, body, vgpr) in kernels:
        out.append(f"; @launch kernel={name} grid=({grid},1,1) block=({block},1,1) lds={lds}\n")
    out.append('.amdgcn_target "amdgcn-amd-amdhsa--gfx950"\n.text\n')
    for (name, grid, block, lds, body, vgpr) in kernels:
        out.append(khead(name))
        out.append(body)
    out.append('.section .rodata,"a"\n')
    for (name, grid, block, lds, body, vgpr) in kernels:
        out.append(".p2align 6\n")
        out.append(kdesc(name, vgpr))
    return "".join(out)

if __name__ == "__main__":
    ks = ([] if FUSE else [("prep_kernel", N_K1, 512, K1_LDS, k1(), 128)]) + [
          ("mid_kernel", N_K2, 896, K2_LDS, k2(), 128),
          ("fin_kernel", N_G2, 512, K3_LDS, k3(), 72 + 48*(K3_D+1))]
    open(sys.argv[1] if len(sys.argv) > 1 else "cdna_kernels/%s.s" % NAME, "w").write(build(ks))
```

```python
import sys
NAME = "parallel_sum__ssm_conv_h3__glu_gated_bilinear__prompt"
S, D, F = 2048, 640, 1728
WS_XN  = 0
WS_KVT = 0x280000
WS_H   = 0x500000
WS_Y2T = 0xC00000
WS_XNP = 0xF00000
WS_WP1 = 0x1200000
WS_WP2 = 0x1700000
WS_XCH = 0x1A00000
WS_XP = 0x2800000
WS_T3 = 0x2800000
SZ_T3 = 256*10240
SZ_SD = S*D*2
SZ_H = S*F*2

class E:
    def __init__(self):
        self.l = []
    def __call__(self, s):
        for line in s.strip("\n").split("\n"):
            self.l.append("    " + line.strip() if not line.strip().endswith(":") else line.strip())
    def label(self, n):
        self.l.append(n + ":")
    def text(self):
        return "\n".join(self.l) + "\n"

def srd(e, d, blo, bhi, nbytes):
    e(f"s_mov_b32 s{d}, s{blo}")
    e(f"s_mov_b32 s{d+1}, s{bhi}")
    e(f"s_mov_b32 s{d+2}, {nbytes}")
    e(f"s_mov_b32 s{d+3}, 0x00020000")

def srd_off(e, d, blo, bhi, off, nbytes):
    e(f"s_add_u32 s{d}, s{blo}, {off}")
    e(f"s_addc_u32 s{d+1}, s{bhi}, 0")
    e(f"s_mov_b32 s{d+2}, {nbytes}")
    e(f"s_mov_b32 s{d+3}, 0x00020000")

def kdesc(name, vgpr, sgpr=102):
    acc = (vgpr + 3)//4*4
    return f""".amdhsa_kernel {name}
  .amdhsa_next_free_vgpr {vgpr}
  .amdhsa_next_free_sgpr {sgpr}
  .amdhsa_accum_offset {acc}
  .amdhsa_group_segment_fixed_size 0
  .amdhsa_kernarg_size 104
  .amdhsa_user_sgpr_count 2
  .amdhsa_user_sgpr_kernarg_segment_ptr 1
  .amdhsa_system_sgpr_workgroup_id_x 1
.end_amdhsa_kernel
"""

import os
STAMP = os.environ.get("STAMP")
X3 = os.environ.get("X3", "").split(",")
X2 = os.environ.get("X2", "").split(",")
ST1 = os.environ.get("ST1", "sc1")
ST2H = os.environ.get("ST2H", "sc1")
ST2Y = os.environ.get("ST2Y", "")
ST3 = os.environ.get("ST3", "")
STW = os.environ.get("STW", "sc1")
STX = os.environ.get("STX", "sc1,").split(",")
XOFF = int(os.environ.get("XOFF", "2048"))
FUSE = int(os.environ.get("FUSE", "0"))
SPIN = int(os.environ.get("SPIN", "100000"))
LDSC = os.environ.get("LDSC", "sc1")
PSL = int(os.environ.get("PSL", "4"))
NSL = int(os.environ.get("NSL", "8"))
DRY = os.environ.get("DRY", "").split(",")
WT = int(os.environ.get("WT", "0"))
CWB = int(os.environ.get("CWB", "2"))
DLY = [int(x) for x in os.environ.get("DLY", "0,0,0,0").split(",")] + [0]
def dly(e, n):
    while n > 0:
        e(f"s_sleep {min(n, 127)}"); n -= 127
def stamp(e, idx):
    if not STAMP: return
    e(f"s_memtime s[88:89]")
    e("s_waitcnt lgkmcnt(0)")
    e(f"s_mov_b32 s{90+idx}, s88")
def stamp_dump(e, n, wg):
    if not STAMP: return
    e("s_load_dwordx2 s[84:85], s[0:1], 88")
    e("s_waitcnt lgkmcnt(0)")
    e("s_mov_b32 s86, 256")
    e("s_mov_b32 s87, 0x00020000")
    e(f"s_cmp_lg_u32 s2, {wg}")
    e("s_cbranch_scc1 9f")
    e("s_cmp_lg_u32 s3, 0")
    e("s_cbranch_scc1 9f")
    e("v_mov_b32 v120, 0")
    for i in range(1, n):
        e(f"s_sub_u32 s83, s{90+i}, s90")
        e("v_mov_b32 v121, s83")
        e(f"buffer_store_dword v121, v120, s[84:87], 0 offen offset:{4*i}")
    e("9:")

TRACE = os.environ.get("TRACE")
def trace_start(e):
    diag_start(e)
    if not TRACE: return
    e("s_memrealtime s[96:97]")
    e("s_memtime s[98:99]")
    e("s_mov_b32 s82, s2")
def trace_end(e, kidx, tid=0, restore=False):
    if not TRACE: return
    e("s_waitcnt vmcnt(0) lgkmcnt(0)")
    e("s_memrealtime s[92:93]")
    e("s_memtime s[94:95]")
    e("s_load_dwordx2 s[84:85], s[0:1], 96")
    e("s_getreg_b32 s90, hwreg(HW_REG_HW_ID)")
    e("s_getreg_b32 s91, hwreg(HW_REG_XCC_ID)")
    e("s_waitcnt lgkmcnt(0)")
    e(f"s_add_u32 s84, s84, {(64<<20) + kidx*65536}")
    e("s_addc_u32 s85, s85, 0")
    e("s_mov_b32 s86, 65536")
    e("s_mov_b32 s87, 0x00020000")
    e("s_lshl_b32 s91, s91, 24")
    e("s_and_b32 s90, s90, 0xffffff")
    e("s_or_b32 s90, s90, s91")
    e("s_sub_u32 s94, s94, s98")
    e("v_mov_b32 v124, s96")
    e("v_mov_b32 v125, s92")
    e("v_mov_b32 v126, s90")
    e("v_mov_b32 v127, s94")
    e("s_lshl_b32 s83, s82, 4")
    e("v_mov_b32 v121, s83")
    e(f"v_cmp_eq_u32 vcc, {tid}, v0")
    e("s_and_saveexec_b64 s[80:81], vcc")
    e("s_cbranch_execz 8f")
    e("buffer_store_dwordx4 v[124:127], v121, s[84:87], 0 offen")
    e("s_waitcnt vmcnt(0)")
    e("8:")
    if restore: e("s_mov_b64 exec, -1")

PROF = os.environ.get("PROF")
def pt(e, acc):
    if not PROF: return
    e("s_memtime s[88:89]")
    e("s_waitcnt lgkmcnt(0)")
    e("s_sub_u32 s90, s88, s87")
    e(f"s_add_u32 s{acc}, s{acc}, s90")
    e("s_mov_b32 s87, s88")
def pinit(e):
    if not PROF: return
    for i in range(80, 87): e(f"s_mov_b32 s{i}, 0")
    e("s_memtime s[88:89]")
    e("s_waitcnt lgkmcnt(0)")
    e("s_mov_b32 s87, s88")
def pdump(e, wave_off):
    if not PROF: return
    e("s_load_dwordx2 s[92:93], s[0:1], 88")
    e("s_waitcnt lgkmcnt(0)")
    e("s_mov_b32 s94, 256")
    e("s_mov_b32 s95, 0x00020000")
    e(f"s_cmp_lg_u32 s2, {PROF}")
    e("s_cbranch_scc1 7f")
    e("s_cmp_lg_u32 s3, 0")
    e("s_cbranch_scc1 7f")
    e("v_mov_b32 v120, 0")
    for i in range(7):
        e(f"v_mov_b32 v121, s{80+i}")
        e(f"buffer_store_dword v121, v120, s[92:95], 0 offen offset:{wave_off + 4*i}")
    e("s_waitcnt vmcnt(0)")
    e("7:")

PROF2 = os.environ.get("PROF2")
def q(e, idx, wv=0):
    if not PROF2: return
    e("s_memtime s[88:89]")
    e("s_waitcnt lgkmcnt(0)")
    e(f"s_mov_b32 s{90+idx}, s88")
def qdump(e, n, wv=0):
    if not PROF2 or os.environ.get("PROFF"): return
    e("s_load_dwordx2 s[84:85], s[0:1], 88")
    e("s_waitcnt lgkmcnt(0)")
    e("s_mov_b32 s86, 256")
    e("s_mov_b32 s87, 0x00020000")
    e(f"s_cmp_lg_u32 s2, {PROF2}")
    e("s_cbranch_scc1 6f")
    e(f"s_cmp_lg_u32 s3, {wv}")
    e("s_cbranch_scc1 6f")
    e(f"v_mov_b32 v120, {64 if wv else 0}")
    for i in range(1, n):
        e(f"s_sub_u32 s83, s{90+i}, s90")
        e("v_mov_b32 v121, s83")
        e(f"buffer_store_dword v121, v120, s[84:87], 0 offen offset:{4*i}")
    e("6:")

PROF4 = os.environ.get("PROF4")
P4_REGS = [50,52,54,56,58,72,74,76,78,80,82,84,86]
P4_LO = int(os.environ.get('P4LO', '4'))
def bar(e, b):
    k = b - P4_LO
    if PROF4 and 0 <= k < 6:
        e(f"s_memtime s[{P4_REGS[2*k]}:{P4_REGS[2*k]+1}]")
    e("s_barrier")
    if PROF4 and 0 <= k < 6:
        e(f"s_memtime s[{P4_REGS[2*k+1]}:{P4_REGS[2*k+1]+1}]")
def p4dump(e, lab):
    if not PROF4: return
    e("s_load_dwordx2 s[92:93], s[0:1], 88")
    e("s_waitcnt lgkmcnt(0)")
    e("s_mov_b32 s94, 4096")
    e("s_mov_b32 s95, 0x00020000")
    e(f"s_cmp_lg_u32 s2, {PROF4}")
    e(f"s_cbranch_scc1 {lab}")
    e("v_lshrrev_b32 v120, 6, v0")
    e("v_lshlrev_b32 v120, 6, v120")
    for i in range(12):
        e(f"v_mov_b32 v121, s{P4_REGS[i]}")
        e(f"buffer_store_dword v121, v120, s[92:95], 0 offen offset:{512 + 4*i}")
    e.label(lab)

def code_touch(e, tag, sub, endlab, startlab=None):
    if "noct" in X2: return
    e("s_getpc_b64 s[60:61]")
    e.label(f"CT_{tag}")
    st = f"CT_{tag}"
    if startlab:
        e(f"s_add_u32 s60, s60, {startlab}-CT_{tag}")
        e("s_addc_u32 s61, s61, 0")
        st = startlab
    if sub: e(f"v_subrev_u32 v126, {sub}, v0")
    src = "v126" if sub else "v0"
    e(f"v_cmp_gt_u32 vcc, ({endlab}-{st})/64, {src}")
    e(f"v_lshlrev_b32 v126, 6, {src}")
    e("s_and_saveexec_b64 s[62:63], vcc")
    e("global_load_dword v127, v126, s[60:61]")
    e("s_mov_b64 exec, s[62:63]")

DIAG = os.environ.get("DIAG")
def diag_start(e):
    if not DIAG: return
    e("s_memrealtime s[96:97]")
    e("s_memtime s[98:99]")
def diag_end(e, kidx, slot, wg, tid, lab, wait=True):
    if not DIAG: return
    e(f"s_cmp_lg_u32 s2, {wg}")
    e(f"s_cbranch_scc1 {lab}")
    if wait: e("s_waitcnt vmcnt(0) lgkmcnt(0)")
    e("s_memrealtime s[92:93]")
    e("s_memtime s[94:95]")
    e("s_load_dwordx2 s[84:85], s[0:1], 88")
    e("s_waitcnt lgkmcnt(0)")
    e(f"s_add_u32 s84, s84, {512*(2-kidx)}")
    e("s_addc_u32 s85, s85, 0")
    e("s_mov_b32 s86, 256")
    e("s_mov_b32 s87, 0x00020000")
    e("s_sub_u32 s94, s94, s98")
    e("s_and_b32 s96, s96, 0xffffff")
    e("s_and_b32 s92, s92, 0xffffff")
    e("v_mov_b32 v124, s96")
    e("v_mov_b32 v125, s92")
    e("v_mov_b32 v126, s94")
    e("v_mov_b32 v121, 0")
    e(f"v_cmp_eq_u32 vcc, {tid}, v0")
    e("s_and_saveexec_b64 s[80:81], vcc")
    e(f"buffer_store_dwordx3 v[124:126], v121, s[84:87], 0 offen offset:{4*slot}")
    if kidx == 1:
        e("s_and_b32 s66, s66, 0xffffff")
        e("s_and_b32 s70, s70, 0xffffff")
        e("s_sub_u32 s68, s68, s98")
        e("s_sub_u32 s72, s72, s98")
        e("v_mov_b32 v116, s66")
        e("v_mov_b32 v117, s68")
        e("v_mov_b32 v118, s70")
        e("v_mov_b32 v119, s72")
        e(f"buffer_store_dwordx4 v[116:119], v121, s[84:87], 0 offen offset:36")
    e.label(lab)

CYC = os.environ.get("CYC")
def st(e, r):
    if TRACE: e(f"s_mem{'' if CYC else 'real'}time s[{r}:{r+1}]")
def st_dump(e, kidx, regs, tid):
    if not TRACE: return
    e("s_load_dwordx2 s[84:85], s[0:1], 96")
    e("s_waitcnt lgkmcnt(0)")
    e(f"s_add_u32 s84, s84, {(64<<20) + kidx*65536}")
    e("s_addc_u32 s85, s85, 0")
    e("s_mov_b32 s86, 65536")
    e("s_mov_b32 s87, 0x00020000")
    for i, r in enumerate(regs): e(f"v_mov_b32 v{124+i}, s{r}")
    e("s_lshl_b32 s83, s82, 4")
    e("v_mov_b32 v123, s83")
    e(f"v_cmp_eq_u32 vcc, {tid}, v0")
    e("s_and_saveexec_b64 s[80:81], vcc")
    e("buffer_store_dwordx4 v[124:127], v123, s[84:87], 0 offen")
    e("s_mov_b64 exec, -1")

def khead(name):
    return f""".globl {name}
.p2align 8
.type {name},@function
{name}:
"""

N_KV = 160
N_LN = 64
N_TC = 32
TWS = int(os.environ.get("TWS", "6"))
N_K1 = N_KV+N_LN+N_TC
K1_LDS = int(os.environ.get("K1LDS", str(128*144 + 256)))
WS_FL = 0x3000000
FL_KV = 65536
SZ_FL = FL_KV + 1280*128
def dbg_srd(e):
    e("s_load_dwordx2 s[88:89], s[0:1], 88")
    e("s_waitcnt lgkmcnt(0)")
    e("s_mov_b32 s90, 256")
    e("s_mov_b32 s91, 0x00020000")
def nonce_issue(e, vt):
    e(f"buffer_load_dwordx2 v[{vt}:{vt+1}], off, s[88:91], 0 sc1")
def nonce_get(e, lab, vt, issued=False):
    e("s_mov_b32 s41, 0")
    if issued: e(f"s_branch {lab}_W")
    e.label(lab)
    nonce_issue(e, vt)
    e.label(lab + "_W")
    e("s_waitcnt vmcnt(0)")
    e(f"v_readfirstlane_b32 s100, v{vt}")
    e(f"v_readfirstlane_b32 s101, v{vt+1}")
    e("s_cmp_lg_u32 s100, 0")
    e(f"s_cbranch_scc1 {lab}_D")
    e(f"s_sleep {NSL}")
    e("s_add_u32 s41, s41, 1")
    e(f"s_cmp_lt_u32 s41, {SPIN}")
    e(f"s_cbranch_scc1 {lab}")
    e.label(lab + "_D")
def flag_set(e, vt):
    srd_off(e, 44, 12, 13, WS_FL, SZ_FL)
    e(f"v_mov_b32 v{vt}, s100")
    e(f"v_mov_b32 v{vt+1}, s101")
    e("s_mov_b64 exec, 1")
    e(f"buffer_store_dwordx2 v[{vt}:{vt+1}], off, s[44:47], s40 sc1")
    e("s_mov_b64 exec, -1")

def k1():
    e = E()
    KVL = KV_LDS if FUSE else 0
    if not FUSE:
        e(f"s_cmp_ge_u32 s2, {N_K1}")
        e("s_cbranch_scc1 K1_END")
        code_touch(e, "k1", 0, "K1_END")
        trace_start(e)
        e(f"s_cmp_ge_u32 s2, {N_KV+N_LN}")
        e("s_cbranch_scc1 K1_TC")
    else:
        e("s_cmp_eq_u32 s3, 7")
        e("s_cbranch_scc1 K1_TC")
        e("s_load_dwordx2 s[88:89], s[0:1], 88")
    e("s_load_dwordx4 s[4:7], s[0:1], 0")
    e("s_load_dwordx4 s[8:11], s[0:1], 16")
    e("s_load_dwordx2 s[12:13], s[0:1], 96")
    if FUSE:
        e("s_mov_b32 s90, 256")
        e("s_mov_b32 s91, 0x00020000")
        e("s_cmp_lt_u32 s3, 5")
        e("s_cbranch_scc1 K1_KV")
        e("s_setprio 3")
        e("s_lshr_b32 s14, s2, 1")
        e("s_and_b32 s15, s2, 1")
        e("s_lshl_b32 s15, s15, 7")
        e("v_subrev_u32 v80, 320, v0")
        e("v_add_u32 v80, s15, v80")
        e("s_lshl_b32 s40, s2, 1")
        e("s_add_u32 s40, s40, s3")
        e("s_sub_u32 s40, s40, 5")
        e("s_lshl_b32 s40, s40, 7")
    else:
        e(f"s_cmp_lt_u32 s2, {N_KV}")
        e("s_cbranch_scc1 K1_KV")
        e("v_lshrrev_b32 v1, 8, v0")
        e(f"s_sub_u32 s14, s2, {N_KV}")
        e("v_readfirstlane_b32 s15, v1")
        e("s_lshl_b32 s14, s14, 1")
        e("v_and_b32 v80, 255, v0")
        e("s_add_u32 s14, s14, s15")
    e("s_waitcnt lgkmcnt(0)")
    srd(e, 16, 4, 5, SZ_SD)
    srd_off(e, 20, 12, 13, WS_XN, S*8)
    e("s_lshl_b32 s3, s14, 4")
    e("v_lshrrev_b32 v1, 4, v80")
    e("v_add_u32 v1, s3, v1")
    e("v_mul_u32_u24 v1, 1280, v1")
    e("v_and_b32 v2, 15, v80")
    e("v_lshlrev_b32 v2, 4, v2")
    e("v_add_u32 v1, v1, v2")
    for j in range(5):
        e(f"buffer_load_dwordx4 v[{4+4*j}:{7+4*j}], v1, s[16:19], 0 offen offset:{256*j}")
    NX = 0
    if FUSE: nonce_issue(e, 82); NX = 1
    e("v_lshrrev_b32 v72, 4, v80")
    e("v_add_u32 v72, s3, v72")
    e("v_lshlrev_b32 v72, 3, v72")
    e("v_and_b32 v73, 15, v80")
    srd_off(e, 28, 12, 13, WS_XNP, SZ_SD)
    e("v_lshrrev_b32 v1, 4, v80")
    e("v_and_b32 v2, 15, v80")
    e("v_lshrrev_b32 v3, 2, v1")
    e("v_and_b32 v74, 3, v1")
    e("v_and_b32 v75, 3, v2")
    e("v_lshl_add_u32 v74, v74, 2, v75")
    e("v_xor_b32 v74, v74, v3")
    e("v_lshlrev_b32 v74, 4, v74")
    e("v_lshl_add_u32 v74, v3, 8, v74")
    e("v_lshrrev_b32 v2, 2, v2")
    e("v_lshl_add_u32 v74, v2, 14, v74")
    e("s_lshr_b32 s25, s14, 4")
    e("s_mul_i32 s25, s25, 327680")
    e("s_and_b32 s26, s14, 15")
    e("s_lshl_b32 s26, s26, 10")
    e("s_add_u32 s25, s25, s26")
    e("s_mov_b32 s24, 0x3acccccd")
    e("v_cmp_eq_u32 vcc, 0, v73")
    DL = "ln" in DRY
    if DL:
        e("s_mov_b32 s27, s25")
        e("s_mov_b64 exec, 0")
        e.label("LN_BLK")
    for j in range(5):
        if not DL: e(f"s_waitcnt vmcnt({4-j+NX})")
        for i in range(4*j, 4*j+4):
            e(f"v_lshlrev_b32 v{32+2*i}, 16, v{4+i}")
            e(f"v_and_b32 v{33+2*i}, 0xffff0000, v{4+i}")
        for i in range(4*j, 4*j+4):
            if i == 0: continue
            if i == 1: e("v_pk_add_f32 v[24:25], v[32:33], v[34:35]")
            else: e(f"v_pk_add_f32 v[24:25], v[24:25], v[{32+2*i}:{33+2*i}]")
    if FUSE and not DL: st(e, 48)
    e("v_add_f32 v24, v24, v25")
    def red16(r):
        for sh in (8, 4, 2, 1):
            e("s_nop 1")
            e(f"v_add_f32_dpp v{r}, v{r}, v{r} row_ror:{sh} row_mask:0xf bank_mask:0xf")
    red16(24)
    e("v_mul_f32 v24, s24, v24")
    e("v_mov_b32 v25, v24")
    for i in range(20):
        t = 26 + 2*(i & 1)
        e(f"v_pk_add_f32 v[{t}:{t+1}], v[{32+2*i}:{33+2*i}], v[24:25] neg_lo:[0,1] neg_hi:[0,1]")
        if i == 0: e(f"v_pk_mul_f32 v[30:31], v[{t}:{t+1}], v[{t}:{t+1}]")
        else: e(f"v_pk_fma_f32 v[30:31], v[{t}:{t+1}], v[{t}:{t+1}], v[30:31]")
    e("v_add_f32 v25, v30, v31")
    red16(25)
    e("v_mul_f32 v25, s24, v25")
    e("v_cvt_pk_bf16_f32 v26, v24, v25")
    e("v_and_b32 v27, 0xffff0000, v26")
    e("v_lshlrev_b32 v26, 16, v26")
    e("v_add_f32 v27, 0x3727c5ac, v27")
    e("v_cvt_pk_bf16_f32 v27, v27, v27")
    e("v_lshlrev_b32 v27, 16, v27")
    e("v_sqrt_f32 v27, v27")
    e("s_nop 0")
    e("v_cvt_pk_bf16_f32 v27, v27, v27")
    e("v_lshlrev_b32 v27, 16, v27")
    e("v_rcp_f32 v28, v27")
    e("s_and_saveexec_b64 s[36:37], vcc")
    e("buffer_store_dwordx2 v[26:27], v72, s[20:23], 0 offen")
    e("s_mov_b64 exec, s[36:37]")
    e("v_mov_b32 v24, v26")
    e("v_mov_b32 v25, v26")
    e("v_mov_b32 v76, v27")
    e("v_mov_b32 v77, v27")
    e("v_mov_b32 v29, v28")
    for i2 in range(0, 20, 2):
        ops = [[], []]
        for u in range(2):
            i = i2 + u
            a, b = 32+2*i, 33+2*i
            t = 30 if u == 0 else 78
            c = 2 + u
            ops[u] = [f"v_pk_add_f32 v[{a}:{b}], v[{a}:{b}], v[24:25] neg_lo:[0,1] neg_hi:[0,1]",
                      f"v_cvt_pk_bf16_f32 v{c}, v{a}, v{b}",
                      f"v_lshlrev_b32 v{a}, 16, v{c}",
                      f"v_and_b32 v{b}, 0xffff0000, v{c}",
                      f"v_pk_mul_f32 v[{t}:{t+1}], v[{a}:{b}], v[28:29]",
                      f"v_pk_fma_f32 v[{a}:{b}], v[{t}:{t+1}], v[76:77], v[{a}:{b}] neg_lo:[1,0,0] neg_hi:[1,0,0]",
                      f"v_pk_fma_f32 v[{t}:{t+1}], v[{a}:{b}], v[28:29], v[{t}:{t+1}]",
                      f"v_cvt_pk_bf16_f32 v{4+i}, v{t}, v{t+1}"]
        for x, y in zip(ops[0], ops[1]):
            e(x); e(y)
        if i2 & 3 == 2:
            j = i2 >> 2
            e(f"buffer_store_dwordx4 v[{4+4*j}:{7+4*j}], v74, s[28:31], s25 offen {ST1}")
            e("s_add_u32 s25, s25, 65536")
    if DL:
        e("s_cbranch_execnz LN_DONE")
        e("s_mov_b32 s25, s27")
        e("s_mov_b64 exec, -1")
        e(f"s_waitcnt vmcnt({NX})")
        if FUSE: st(e, 48)
        e("s_branch LN_BLK")
        e.label("LN_DONE")
    if FUSE:
        st(e, 50)
        nonce_get(e, "NG_LN", 82, True)
        st(e, 52)
        flag_set(e, 82)
        e("s_setprio 0")
        if TRACE: e("s_waitcnt vmcnt(0)")
        st(e, 54)
        st_dump(e, 7, [48, 50, 52, 54], 320)
        e("s_branch K2_START")
        e.label("K1_TC")
        if WT:
            e("s_load_dwordx4 s[8:11], s[0:1], 56")
            e("v_and_b32 v1, 63, v0")
            e("v_lshlrev_b32 v1, 6, v1")
            e("s_mul_i32 s14, s2, 8640")
            e("s_waitcnt lgkmcnt(0)")
            srd(e, 20, 8, 9, D*F*2)
            srd(e, 24, 10, 11, D*F*2)
            dly(e, WT)
            for i in range(3):
                e(f"buffer_load_dword v{4+2*i}, v1, s[20:23], s14 offen")
                e(f"buffer_load_dword v{5+2*i}, v1, s[24:27], s14 offen")
                e("s_add_u32 s14, s14, 4096")
            e("s_waitcnt vmcnt(0)")
        e("s_lshr_b32 s14, s2, 3")
        e("s_cmp_lg_u32 s14, 9")
        e("s_cbranch_scc1 K2_START")
        for i in range(4):
            code_touch(e, f"k1b{i}", 448 - 64*i, "K3_END", "fin_kernel")
        e("s_waitcnt vmcnt(0)")
        e("s_branch K2_START")
    else:
      trace_end(e, 3)
      e("s_endpgm")
      e.label("K1_TC")
      k1_tc(e)
    k1_kv(e, KVL)
    return e.text()

def k1_tc(e):
    if "noct1" not in X2: code_touch(e, "k1b", 0, "K3_END", "mid_kernel")
    e("s_load_dwordx2 s[4:5], s[0:1], 32")
    e("s_load_dwordx4 s[8:11], s[0:1], 56")
    e(f"s_sub_u32 s3, s2, {N_KV+N_LN}")
    e(f"s_lshl_b32 s6, s3, {9 + TWS}")
    e("s_mul_i32 s3, s3, 81920")
    e("v_lshlrev_b32 v1, 4, v0")
    e(f"v_lshlrev_b32 v2, {TWS}, v0")
    e("s_waitcnt lgkmcnt(0)")
    srd(e, 16, 4, 5, SZ_SD)
    srd(e, 20, 8, 9, D*F*2)
    srd(e, 24, 10, 11, D*F*2)
    if "tw" in X2:
        n = -(-D*F*2 // (16384 << TWS))
        for i in range(n):
            e(f"buffer_load_dword v{50+2*i}, v2, s[20:23], s6 offen")
            e(f"buffer_load_dword v{51+2*i}, v2, s[24:27], s6 offen")
            e(f"s_add_u32 s6, s6, {16384 << TWS}")
    for i in range(10):
        e(f"buffer_load_dwordx4 v[{4+4*i}:{7+4*i}], v1, s[16:19], s3 offen")
        e("s_add_u32 s3, s3, 8192")
    e("s_waitcnt vmcnt(0)")
    for x in os.environ.get("K1SLEEP", "").split(","):
        if x: e(f"s_sleep {x}")
    trace_end(e, 3)
    e("s_endpgm")

def k1_kv(e, KVL):
    NCH = 80 if FUSE else 128
    e.label("K1_KV")
    if FUSE:
        e("s_lshr_b32 s15, s2, 3")
        e("s_and_b32 s14, s15, 3")
        e("s_lshl_b32 s14, s14, 3")
        e("s_and_b32 s32, s2, 7")
        e("s_add_u32 s14, s14, s32")
        e("s_lshr_b32 s15, s15, 2")
        e("v_mul_u32_u24 v2, 6554, v0")
        e("v_lshrrev_b32 v2, 16, v2")
        e("v_mul_u32_u24 v1, 10, v2")
        e("v_sub_u32 v1, v0, v1")
        e("s_mul_i32 s40, s15, 5")
        e("s_add_u32 s40, s40, s3")
        e("s_lshl_b32 s40, s40, 5")
        e("s_add_u32 s40, s40, s14")
        e("s_lshl_b32 s40, s40, 7")
        e(f"s_add_u32 s40, s40, {FL_KV}")
    else:
        e("s_mul_hi_u32 s14, s2, 0x33333334")
        e("s_mul_i32 s15, s14, 5")
        e("s_sub_u32 s15, s2, s15")
        e("v_and_b32 v1, 15, v0")
        e("v_lshrrev_b32 v2, 4, v0")
    e("s_lshl_b32 s32, s14, 6")
    e("v_lshlrev_b32 v3, 1, v2")
    e("v_add_u32 v3, s32, v3")
    e("v_mul_u32_u24 v4, 1280, v3")
    e(f"s_mul_i32 s33, s15, {2*NCH}")
    e("v_lshlrev_b32 v5, 4, v1")
    e("v_add_u32 v5, s33, v5")
    e("v_add_u32 v4, v4, v5")
    e("v_subrev_u32 v6, 3840, v4")
    e("v_subrev_u32 v10, 2560, v4")
    e("v_subrev_u32 v11, 1280, v4")
    e("v_lshlrev_b32 v7, 2, v5")
    e("s_waitcnt lgkmcnt(0)")
    srd(e, 16, 6, 7, SZ_SD)
    srd(e, 20, 8, 9, SZ_SD)
    srd(e, 24, 10, 11, D*4*2)
    srd_off(e, 28, 12, 13, WS_KVT, SZ_SD)
    if FUSE: dly(e, DLY[3])
    for j in range(4):
        e(f"buffer_load_dwordx4 v[{60+4*j}:{63+4*j}], v7, s[24:27], 0 offen offset:{16*j}")
    e("buffer_load_dwordx4 v[16:19], v6, s[16:19], 0 offen")
    e("buffer_load_dwordx4 v[20:23], v10, s[16:19], 0 offen")
    e("buffer_load_dwordx4 v[24:27], v11, s[16:19], 0 offen")
    e("buffer_load_dwordx4 v[28:31], v4, s[16:19], 0 offen")
    e("buffer_load_dwordx4 v[32:35], v4, s[16:19], 0 offen offset:1280")
    for r in range(2):
        e(f"buffer_load_dwordx4 v[{44+4*r}:{47+4*r}], v4, s[20:23], 0 offen offset:{1280*r}")
    if FUSE: nonce_issue(e, 120)
    e("s_mov_b32 s34, 0x05040100")
    e("s_mov_b32 s35, 0x07060302")
    e("v_mul_u32_u24 v8, 1168, v1")
    e("v_lshrrev_b32 v9, 2, v2")
    e("v_lshl_add_u32 v8, v9, 4, v8")
    e("v_and_b32 v9, 3, v2")
    e("v_xor_b32 v9, 3, v9")
    e("v_lshl_add_u32 v8, v9, 2, v8")
    if KVL: e(f"v_add_u32 v8, {KVL}, v8")
    e("v_lshrrev_b32 v12, 3, v0")
    e("v_and_b32 v13, 7, v0")
    e("v_mul_u32_u24 v14, 144, v12")
    e("v_lshrrev_b32 v15, 3, v12")
    e("v_add_u32 v15, v15, v13")
    e("v_lshl_add_u32 v14, v15, 4, v14")
    if KVL: e(f"v_add_u32 v14, {KVL}, v14")
    e(f"s_mul_i32 s33, s15, {NCH}")
    e("v_add_u32 v15, s33, v12")
    e("v_lshlrev_b32 v15, 12, v15")
    e("s_lshl_b32 s32, s14, 7")
    e("v_lshl_add_u32 v15, v13, 4, v15")
    e(f"s_add_u32 s33, s32, {NCH//2*4096}")
    DK = "kv" in DRY
    if DK:
        e("s_mov_b64 exec, 0")
        e.label("KV_BLK")
    else: e(f"s_waitcnt vmcnt({8 if FUSE else 7})")
    for p in range(4):
        for h in range(2):
            c = 2*p+h
            e(f"v_lshlrev_b32 v{76+8*p+h}, 16, v{60+2*c}")
            e(f"v_and_b32 v{78+8*p+h}, 0xffff0000, v{60+2*c}")
            e(f"v_lshlrev_b32 v{80+8*p+h}, 16, v{61+2*c}")
            e(f"v_and_b32 v{82+8*p+h}, 0xffff0000, v{61+2*c}")
    if not DK:
        e(f"s_waitcnt vmcnt({1 if FUSE else 0})")
        if FUSE: st(e, 48)
    for p in range(4):
        W = 76 + 8*p
        for r in range(5):
            e(f"v_lshlrev_b32 v{60+2*r}, 16, v{16+4*r+p}")
            e(f"v_and_b32 v{61+2*r}, 0xffff0000, v{16+4*r+p}")
        ch = [[], []]
        for i in range(2):
            A = 108 + 6*i; T = A + 2; C = A + 4
            o = ch[i]
            for t in range(4):
                r = i + t
                w = 3 - t
                o.append(f"v_pk_mul_f32 v[{T}:{T+1}], v[{60+2*r}:{61+2*r}], v[{W+2*w}:{W+2*w+1}]")
                o.append(f"v_cvt_pk_bf16_f32 v{C}, v{T}, v{T+1}")
                if t == 0:
                    o.append(f"v_lshlrev_b32 v{A}, 16, v{C}")
                    o.append(f"v_and_b32 v{A+1}, 0xffff0000, v{C}")
                else:
                    o.append(f"v_lshlrev_b32 v{T}, 16, v{C}")
                    o.append(f"v_and_b32 v{T+1}, 0xffff0000, v{C}")
                    o.append(f"v_pk_add_f32 v[{A}:{A+1}], v[{A}:{A+1}], v[{T}:{T+1}]")
                    o.append(f"v_cvt_pk_bf16_f32 v{C}, v{A}, v{A+1}")
                    o.append(f"v_lshlrev_b32 v{A}, 16, v{C}")
                    o.append(f"v_and_b32 v{A+1}, 0xffff0000, v{C}")
            o.append(f"v_lshlrev_b32 v{T}, 16, v{44+4*i+p}")
            o.append(f"v_and_b32 v{T+1}, 0xffff0000, v{44+4*i+p}")
            o.append(f"v_pk_mul_f32 v[{A}:{A+1}], v[{A}:{A+1}], v[{T}:{T+1}]")
            o.append(f"v_cvt_pk_bf16_f32 v{C}, v{A}, v{A+1}")
        for x, y in zip(ch[0], ch[1]):
            e(x); e(y)
        e("v_perm_b32 v70, v112, v118, s34")
        e(f"ds_write_b32 v8, v70 offset:{(2*p)*144}")
        e("v_perm_b32 v71, v112, v118, s35")
        e(f"ds_write_b32 v8, v71 offset:{(2*p+1)*144}")
    if DK:
        e("s_cbranch_execnz KV_DONE")
        e("s_mov_b64 exec, -1")
        e(f"s_waitcnt vmcnt({1 if FUSE else 0})")
        if FUSE: st(e, 48)
        e("s_branch KV_BLK")
        e.label("KV_DONE")
    e("s_waitcnt lgkmcnt(0)")
    if FUSE:
        e("v_mov_b32 v1, 1")
        e(f"v_mov_b32 v2, {LCNT}")
        e("s_mov_b64 exec, 1")
        e("ds_add_u32 v2, v1")
        e("s_mov_b64 exec, -1")
        e("s_mov_b32 s41, 0")
        e.label("KV_SP")
        e("ds_read_b32 v3, v2")
        e("s_add_u32 s41, s41, 1")
        e("s_waitcnt lgkmcnt(0)")
        e("v_readfirstlane_b32 s42, v3")
        e("s_cmp_ge_u32 s41, 100000")
        e("s_cbranch_scc1 KV_SPD")
        e("s_cmp_lt_u32 s42, 5")
        e("s_cbranch_scc1 KV_SP")
        e.label("KV_SPD")
    else:
        e("s_barrier")
    e("ds_read_b128 v[16:19], v14")
    e(f"ds_read_b128 v[20:23], v14 offset:{NCH//2*144 + NCH//16*16}")
    e("s_waitcnt lgkmcnt(1)")
    e(f"buffer_store_dwordx4 v[16:19], v15, s[28:31], s32 offen {ST1}")
    e("s_waitcnt lgkmcnt(0)")
    e(f"buffer_store_dwordx4 v[20:23], v15, s[28:31], s33 offen {ST1}")
    if FUSE:
        st(e, 50)
        nonce_get(e, "NG_KV", 120, True)
        st(e, 52)
        flag_set(e, 120)
        if TRACE: e("s_waitcnt vmcnt(0)")
        st(e, 54)
        st_dump(e, 3, [48, 50, 52, 54], 0)
        e("s_branch K2_START")
        return
    trace_end(e, 3)
    diag_end(e, 0, 0, 150, 0, "DG_1")
    e.label("K1_END")
    e("s_endpgm")


N_K2 = 256
COPY = 4288
CONV2 = int(os.environ.get("CONV2", "0"))
NBM = int(os.environ.get("NBM", "10"))
KVSZ = 4608 if CONV2 else 33*144
CP_OFF = 2*KVSZ
SC_OFF = CP_OFF + 8*COPY
CV_SZ = SC_OFF
K2_NS = 4
K2_STG = 24576
CV_A = K2_NS*K2_STG
K2_LDS = max(CV_A + CV_SZ, 3*CV_SZ)
KV_LDS = K2_LDS
LCNT = KV_LDS + K1_LDS
if FUSE: K2_LDS = LCNT + 64
PB0 = 2 if FUSE else 1
LB0 = 2
RPB = 6
CDL = int(os.environ.get("CDL", "0"))
PACE = [int(x) for x in os.environ.get("PACE", "").split(",") if x]
if os.environ.get("CS"):
    exec(os.environ["CS"])
C1_E = PB0 + 16

class VQ:
    def __init__(self, e): self.q = []; self.e = e
    def issue(self, tag, n): self.q += [tag]*n
    def wait(self, tags):
        idx = max([i for i, t in enumerate(self.q) if t in tags], default=-1)
        if idx < 0: return
        n = len(self.q) - 1 - idx
        self.e(f"s_waitcnt vmcnt({min(n, 63)})")
        self.q = self.q[idx+1:]

def write_copies(e, d, lab, ro):
    e(f"ds_write_b128 v117, v[{d}:{d+3}] offset:{ro}")
    for i in range(4):
        e(f"v_alignbit_b32 v{16+i}, v{d+i+1}, v{d+i}, 16")
    e(f"ds_write_b128 v117, v[16:19] offset:{ro + COPY}")
    for i in range(4):
        e(f"v_mov_b32 v{20+i}, v{d+i+1}")
    e(f"ds_write_b128 v117, v[20:23] offset:{ro + 2*COPY}")
    for i in range(4):
        e(f"v_alignbit_b32 v{24+i}, v{d+i+2}, v{d+i+1}, 16")
    e(f"ds_write_b128 v117, v[24:27] offset:{ro + 3*COPY}")
    e("s_cmp_eq_u32 s39, 0")
    e(f"s_cbranch_scc0 {lab}")
    e("v_mov_b32 v28, 0")
    e(f"v_lshlrev_b32 v29, 16, v{d}")
    e("v_mov_b32 v32, 0")
    e(f"v_mov_b32 v33, v{d}")
    e("v_mov_b32 v34, v29")
    e("v_mov_b32 v35, v16")
    e("s_mov_b64 exec, 1")
    e(f"ds_write_b64 v117, v[28:29] offset:{ro + COPY - 8}")
    e(f"ds_write_b64 v117, v[32:33] offset:{ro + 2*COPY - 8}")
    e(f"ds_write_b64 v117, v[34:35] offset:{ro + 3*COPY - 8}")
    e("s_mov_b64 exec, -1")
    e.label(lab)

def conv_main(e):
    ACCS = [16, 112]; FL, FH, BB = 32, 56, 80
    lq = []
    def wait(tags):
        idx = max((i for i, t in enumerate(lq) if t in tags), default=-1)
        if idx >= 0: e(f"s_waitcnt lgkmcnt({min(len(lq) - 1 - idx, 15)})")
    def put(it):
        if it[0] is None: wait(it[1]); return
        e(it[0])
        for _ in range(it[2] if len(it) > 2 else 1):
            if it[1] is not None: lq.append(it[1])
    def lda(F):
        c, f = divmod(F, 17)
        sl = F % 6
        r = []
        for (R, va) in ((FL, 8), (FH, 9)):
            o = 4*COPY*c + 64*f
            r.append((f"ds_read_b64 v[{R+4*sl}:{R+4*sl+1}], v{va} offset:{o}", ("a", F)))
            r.append((f"ds_read_b64 v[{R+4*sl+2}:{R+4*sl+3}], v{va} offset:{o+8}", ("a", F)))
        return r
    def ldb(P):
        c, p = divmod(P, 16)
        st = p >> 1; kk = 1 - (p & 1)
        bb = BB + 8*(P & 3)
        pre = ""
        if p & 1 == 0:
            pre = f"v_subrev_u32 v12, {144*st}, v10\nv_max_i32 v3, v12, v11\n"
        return [(pre + f"ds_read_b128 v[{bb}:{bb+3}], v3 offset:{KVSZ*c + 64*kk}", ("b", P)),
                (f"ds_read_b128 v[{bb+4}:{bb+7}], v12 offset:{KVSZ*c + 16*144 + 64*kk}", ("b", P))]
    def dterm_ld(c):
        return [(f"ds_read_b64 v[{4+2*h}:{5+2*h}], v13 offset:{KVSZ*c + 16*144*h}", ("k", c)) for h in range(2)]
    def dterm(c, T):
        sch = 65 if c == 0 else 69
        r = [(f"s_and_b32 s29, s{sch}, 1\ns_lshl_b32 s29, s29, 4\ns_lshr_b32 s29, s{70+c}, s29\ns_lshl_b32 s29, s29, 16", None), (None, [("k", c)])]
        for h in range(2):
            k0, k1 = 4+2*h, 5+2*h
            r += [(f"v_and_b32 v{T}, 0xffff0000, v{k1}", None), (f"v_lshlrev_b32 v{T+1}, 16, v{k1}", None),
                  (f"v_and_b32 v{T+2}, 0xffff0000, v{k0}", None), (f"v_lshlrev_b32 v{T+3}, 16, v{k0}", None)]
            r += [(f"v_mul_f32 v{T+j}, s29, v{T+j}", None) for j in range(4)]
            r += [(f"v_cvt_pk_bf16_f32 v{k0}, v{T}, v{T+1}", None), (f"v_cvt_pk_bf16_f32 v{k1}, v{T+2}, v{T+3}", None)]
        return r
    def exch(c):
        A = ACCS[c]
        t = ["s_cmp_eq_u32 s38, 0", f"s_cbranch_scc1 CX0_{c}"]
        t += [f"buffer_store_dwordx4 v[{A+4*h}:{A+4*h+3}], v14, s[60:63], 0 offen offset:{XOFF*c + 1024*h} {STX[c]}" for h in range(2)]
        t += [f"v_mov_b32 v{A+i}, v{A+8+i}" for i in range(8)]
        t += [f"s_branch CX1_{c}", f"CX0_{c}:"]
        t += [f"buffer_store_dwordx4 v[{A+8+4*h}:{A+8+4*h+3}], v14, s[60:63], 0 offen offset:{XOFF*c + 1024*h} {STX[c]}" for h in range(2)]
        t += [f"CX1_{c}:"]
        return [("\n".join(t), None)]
    def xread(c):
        A = ACCS[c]
        return [(f"buffer_load_dwordx4 v[{A+8+4*h}:{A+11+4*h}], v15, s[60:63], 0 offen offset:{XOFF*c + 1024*h}", None) for h in range(2)]
    def fin(c, h):
        sch = 65 if c == 0 else 69
        o = ACCS[c] + 4*h; p = ACCS[c] + 8 + 4*h
        r = [("s_waitcnt vmcnt(0)", None)] if h == 0 else []
        r += [(f"v_add_f32 v{o+j}, v{o+j}, v{p+j}", None) for j in range(4)]
        r += [(f"v_cvt_pk_bf16_f32 v{p}, v{o}, v{o+1}", None), (f"v_cvt_pk_bf16_f32 v{p+1}, v{o+2}, v{o+3}", None)]
        r += [(f"v_lshlrev_b32 v{o}, 16, v{p}", None), (f"v_and_b32 v{o+1}, 0xffff0000, v{p}", None),
              (f"v_lshlrev_b32 v{o+2}, 16, v{p+1}", None), (f"v_and_b32 v{o+3}, 0xffff0000, v{p+1}", None)]
        for k in range(2):
            r += [(f"v_lshlrev_b32 v{p+2}, 16, v{4+2*h+k}", None), (f"v_and_b32 v{p+3}, 0xffff0000, v{4+2*h+k}", None),
                  (f"v_add_f32 v{o+2*k}, v{o+2*k}, v{p+2}", None), (f"v_add_f32 v{o+2*k+1}, v{o+2*k+1}, v{p+3}", None)]
        r += [(f"v_cvt_pk_bf16_f32 v{p}, v{o}, v{o+1}", None), (f"v_cvt_pk_bf16_f32 v{p+1}, v{o+2}, v{o+3}", None)]
        r += [(f"s_lshl_b32 s48, s{sch}, 7\ns_add_u32 s48, s48, {16*81920*h}\nbuffer_store_dwordx2 v[{p}:{p+1}], v2, s[24:27], s48 offen {ST2Y}", None)]
        return r
    extra = {P: [] for P in range(32)}
    tail = {P: [] for P in range(32)}
    tail[16] = exch(0)
    tail[19] = [("s_waitcnt vmcnt(0)", None)]
    extra[20] = xread(0)
    extra[24] = fin(0, 0)
    extra[25] = fin(0, 1)
    tail[25] = [("s_cmp_ge_u32 s69, 640\ns_cbranch_scc1 K2_END", None)]
    extra[26] = dterm_ld(1)
    d1 = dterm(1, 16)
    extra[27] = d1[:12]; extra[28] = d1[12:]
    bcur = PB0 if FUSE else 0
    while bcur < PB0:
        bar(e, bcur); bcur += 1
    for it in dterm_ld(0) + lda(0) + lda(1) + ldb(0) + lda(2) + ldb(1) + lda(3) + ldb(2) + dterm(0, 16): put(it)
    nfa = 4; nfb = 3
    for P in range(32):
        c, p = divmod(P, 16)
        if P & 1 == 0:
            bar(e, bcur); bcur += 1
        if P == 0: e("s_setprio 3")
        F0 = 17*c + p
        ops = []
        while nfa <= F0 + 4 and nfa < 34:
            ops += lda(nfa); nfa += 1
        while nfb <= P + 3 and nfb < 32:
            ops += ldb(nfb); nfb += 1
        ops = extra[P][:0] + ops
        ex = list(extra[P])
        wait([("a", F0), ("a", F0+1), ("b", P)])
        bb = BB + 8*(P & 3)
        A = ACCS[c]
        mfs = []
        for mu in range(2):
            fl = FL + 4*((F0+mu) % 6)
            a0 = A + 8*mu; a1 = a0 + 4
            c0 = "0" if p == 0 else f"v[{a0}:{a0+3}]"
            c1 = "0" if p == 0 else f"v[{a1}:{a1+3}]"
            mfs.append(f"v_mfma_f32_16x16x32_bf16 v[{a0}:{a0+3}], v[{fl}:{fl+3}], v[{bb}:{bb+3}], {c0}")
            mfs.append(f"v_mfma_f32_16x16x32_bf16 v[{a1}:{a1+3}], v[{fl}:{fl+3}], v[{bb+4}:{bb+7}], {c1}")
        for mu in range(2):
            fh = FH + 4*((F0+mu) % 6)
            a1 = A + 8*mu + 4
            mfs.append(f"v_mfma_f32_16x16x32_bf16 v[{a1}:{a1+3}], v[{fh}:{fh+3}], v[{bb}:{bb+3}], v[{a1}:{a1+3}]")
        for i in range(6):
            if not ("cnm" in X2 or ("cn2" in X2 and i in (0, 2))): e(mfs[i])
            no = (len(ops) + 5 - i) // (6 - i)
            for it in ops[:no]: put(it)
            ops = ops[no:]
            ne = (len(ex) + 5 - i) // (6 - i)
            for it in ex[:ne]: put(it)
            ex = ex[ne:]
        for it in tail[P]: put(it)
        if P == 15: q(e, 8, 8)
    q(e, 10, 8)
    e("s_setprio 0")
    e("s_nop 7")
    if "gx1" in X2:
        for it in exch(1): put(it)
        bar(e, bcur); bcur += 1
        e("s_waitcnt vmcnt(0)")
        bar(e, bcur); bcur += 1
        for it in xread(1): put(it)
        while bcur < 20:
            bar(e, bcur); bcur += 1
        for it in fin(1, 0) + fin(1, 1): put(it)
        return
    A = ACCS[1]
    bar(e, bcur); bcur += 1
    e("s_lshl_b32 s44, s39, 11")
    e(f"s_add_u32 s45, s66, {CP_OFF}")
    e("s_add_u32 s44, s44, s45")
    e("v_lshl_add_u32 v32, v1, 4, s44")
    e("s_xor_b32 s44, s39, 2")
    e("s_lshl_b32 s44, s44, 11")
    e("s_add_u32 s44, s44, s45")
    e("v_lshl_add_u32 v33, v1, 4, s44")
    e("s_cmp_eq_u32 s38, 0")
    e("s_cbranch_scc1 CX0_1")
    for h in range(2): e(f"ds_write_b128 v32, v[{A+4*h}:{A+4*h+3}] offset:{1024*h}")
    for i in range(8): e(f"v_mov_b32 v{A+i}, v{A+8+i}")
    e("s_branch CX1_1")
    e.label("CX0_1")
    for h in range(2): e(f"ds_write_b128 v32, v[{A+8+4*h}:{A+8+4*h+3}] offset:{1024*h}")
    e.label("CX1_1")
    e("s_waitcnt lgkmcnt(0)")
    bar(e, bcur); bcur += 1
    for h in range(2): e(f"ds_read_b128 v[{A+8+4*h}:{A+11+4*h}], v33 offset:{1024*h}")
    while bcur < 20 and not FUSE:
        bar(e, bcur); bcur += 1
    e("s_waitcnt lgkmcnt(0)")
    for it in fin(1, 0)[1:] + fin(1, 1): put(it)

def conv_main2(e):
    ACC = 16; HB = [48, 80]; AB = 112
    lq = []
    def wait(tags):
        idx = max((i for i, t in enumerate(lq) if t in tags), default=-1)
        if idx >= 0: e(f"s_waitcnt lgkmcnt({min(len(lq) - 1 - idx, 15)})")
    def put(it):
        if it[0] is None: wait(it[1]); return
        e(it[0])
        if it[1] is not None: lq.append(it[1])
    def lda(u):
        rr, q = divmod(u, 8); b = AB + 4*(u % 3); o = 512*q + 64*rr
        return [(f"ds_read_b64 v[{b}:{b+1}], v8 offset:{o}", ("a", u)), (f"ds_read_b64 v[{b+2}:{b+3}], v8 offset:{o+8}", ("a", u))]
    def ldb(rr, d):
        b = HB[rr & 1] + 4*d
        return [(f"ds_read_b128 v[{b}:{b+3}], v10 offset:{512*d + 64*(3-rr)}", ("b", rr, d))]
    if not FUSE:
        for i in range(PB0): e("s_barrier")
    e("s_cmp_eq_u32 s38, 0")
    e("s_cselect_b32 s48, s65, s69")
    e("s_cselect_b32 s29, s70, s71")
    e("s_cmp_ge_u32 s48, 640")
    e("s_cbranch_scc1 K2_END")
    e("s_and_b32 s28, s48, 1")
    e("s_lshl_b32 s28, s28, 4")
    e("s_lshr_b32 s29, s29, s28")
    e("s_lshl_b32 s29, s29, 16")
    e("s_lshl_b32 s48, s48, 7")
    e(f"s_mul_i32 s28, s49, {16*81920}")
    e("s_add_u32 s48, s48, s28")
    for it in lda(0) + ldb(0, 0) + ldb(0, 1) + lda(1) + [x for d in range(2, 8) for x in ldb(0, d)]: put(it)
    e("s_setprio 3")
    nm = 0
    DT = HB[0]
    for rr in range(4):
        for q in range(8):
            u = 8*rr + q
            ops = []
            if u + 2 < 32: ops += lda(u + 2)
            if rr < 3:
                for d in {0: (0, 1), 1: (2, 3), 2: (4,), 3: (5,), 4: (6,), 5: (7,)}.get(q, ()): ops += ldb(rr + 1, d)
            ex = []
            if rr == 3:
                if q == 0: ops += [(f"ds_read_b64 v[{DT+2*t}:{DT+2*t+1}], v13 offset:{512*t}", "k") for t in range(4)]
                if 1 <= q <= 4:
                    t = q - 1; k0, k1 = DT+2*t, DT+2*t+1; T = DT + 8
                    if q == 1: ex.append((None, ["k"]))
                    ex += [(f"v_and_b32 v{T}, 0xffff0000, v{k1}", None), (f"v_lshlrev_b32 v{T+1}, 16, v{k1}", None),
                           (f"v_and_b32 v{T+2}, 0xffff0000, v{k0}", None), (f"v_lshlrev_b32 v{T+3}, 16, v{k0}", None)]
                    ex += [(f"v_mul_f32 v{T+j}, s29, v{T+j}", None) for j in range(4)]
                    ex += [(f"v_cvt_pk_bf16_f32 v{k0}, v{T}, v{T+1}", None), (f"v_cvt_pk_bf16_f32 v{k1}, v{T+2}, v{T+3}", None)]
            n = 8 - q
            ds = list(range(n))
            if q >= 5: ds = ds[::-1]
            a = AB + 4*(u % 3)
            for i, d in enumerate(ds):
                if nm % NBM == 0: e("s_barrier")
                nm += 1
                wait([("a", u), ("b", rr, d)])
                t = ACC + 4*(q + d); b = HB[rr & 1] + 4*d
                c = "0" if u == 0 else f"v[{t}:{t+3}]"
                e(f"v_mfma_f32_16x16x32_bf16 v[{t}:{t+3}], v[{a}:{a+3}], v[{b}:{b+3}], {c}")
                left = n - i
                no = (len(ops) + left - 1)//left
                for it in ops[:no]: put(it)
                ops = ops[no:]
                ne = (len(ex) + left - 1)//left
                for it in ex[:ne]: put(it)
                ex = ex[ne:]
    e("s_setprio 0")
    e("s_barrier")
    e("s_nop 7")
    e("s_cmp_eq_u32 s49, 0")
    e("s_cbranch_scc1 C2_X")
    for i in range(16): e(f"v_swap_b32 v{ACC+i}, v{ACC+16+i}")
    e.label("C2_X")
    e("s_nop 1")
    for t in range(4): e(f"ds_write_b128 v14, v[{ACC+16+4*t}:{ACC+19+4*t}] offset:{1024*t}")
    e("s_waitcnt lgkmcnt(0)")
    e("s_barrier")
    for t in range(4): e(f"ds_read_b128 v[{ACC+16+4*t}:{ACC+19+4*t}], v15 offset:{1024*t}")
    for t in range(4):
        o = ACC + 4*t; p = ACC + 16 + 4*t
        e(f"s_waitcnt lgkmcnt({3-t})")
        for j in range(4): e(f"v_add_f32 v{o+j}, v{o+j}, v{p+j}")
        e(f"v_cvt_pk_bf16_f32 v{p}, v{o}, v{o+1}"); e(f"v_cvt_pk_bf16_f32 v{p+1}, v{o+2}, v{o+3}")
        e(f"v_lshlrev_b32 v{o}, 16, v{p}"); e(f"v_and_b32 v{o+1}, 0xffff0000, v{p}")
        e(f"v_lshlrev_b32 v{o+2}, 16, v{p+1}"); e(f"v_and_b32 v{o+3}, 0xffff0000, v{p+1}")
        for k in range(2):
            e(f"v_lshlrev_b32 v{p+2}, 16, v{DT+2*t+k}"); e(f"v_and_b32 v{p+3}, 0xffff0000, v{DT+2*t+k}")
            e(f"v_add_f32 v{o+2*k}, v{o+2*k}, v{p+2}"); e(f"v_add_f32 v{o+2*k+1}, v{o+2*k+1}, v{p+3}")
        e(f"v_cvt_pk_bf16_f32 v{p}, v{o}, v{o+1}"); e(f"v_cvt_pk_bf16_f32 v{p+1}, v{o+2}, v{o+3}")
        e(f"buffer_store_dwordx2 v[{p}:{p+1}], v2, s[24:27], s48 offen {ST2Y}")
        e(f"s_add_u32 s48, s48, {4*81920}")

def k2():
    e = E()
    NS = K2_NS; STG = K2_STG; NT = 20
    e(f"s_cmp_ge_u32 s2, {N_K2}")
    e("s_cbranch_scc1 K2_END")
    code_touch(e, "k2", 512, "K2_END")
    trace_start(e)
    if FUSE:
        e("v_lshrrev_b32 v1, 6, v0")
        e("v_mov_b32 v2, 0")
        e("v_lshlrev_b32 v4, 2, v0")
        e("v_readfirstlane_b32 s3, v1")
        e(f"v_add_u32 v4, {LCNT}, v4")
        e("s_cmp_lg_u32 s3, 0")
        e("s_cbranch_scc1 K2_B0")
        e("s_mov_b64 exec, 0xffff")
        e("ds_write_b32 v4, v2")
        e("s_mov_b64 exec, -1")
        e("s_waitcnt lgkmcnt(0)")
        e.label("K2_B0")
        e("s_lshl_b32 s14, s2, 4")
        e("s_add_u32 s14, s14, s3")
        e("s_cmp_lg_u32 s14, 7")
        e("s_cbranch_scc1 K2_BS")
        e("s_memrealtime s[100:101]")
        dbg_srd(e)
        e("s_or_b32 s100, s100, 1")
        e("v_mov_b32 v2, s100")
        e("v_mov_b32 v3, s101")
        e("s_mov_b64 exec, 1")
        e("buffer_store_dwordx2 v[2:3], off, s[88:91], 0 sc1")
        e("s_mov_b64 exec, -1")
        e.label("K2_BS")
        e("s_barrier")
        e("s_cmp_lt_u32 s3, 8")
        e("s_cbranch_scc1 K1_START")
        e.label("K2_START")
        e("s_load_dwordx2 s[88:89], s[0:1], 88")
    e("s_load_dwordx4 s[4:7], s[0:1], 32")
    e("s_load_dwordx2 s[12:13], s[0:1], 96")
    e("s_load_dwordx4 s[8:11], s[0:1], 56")
    e("s_load_dwordx2 s[50:51], s[0:1], 72")
    e("v_lshrrev_b32 v1, 6, v0")
    e("s_nop 0")
    e("v_readfirstlane_b32 s3, v1")
    e("v_and_b32 v1, 63, v0")
    e("v_lshlrev_b32 v2, 4, v1")
    e("s_and_b32 s14, s2, 7")
    e("s_lshr_b32 s15, s2, 3")
    if "map2" in X2:
        e("s_mul_i32 s32, s14, 27")
        e("s_add_u32 s65, s32, s15")
        e("s_lshl_b32 s65, s65, 1")
        e("s_add_u32 s69, s65, 1")
        e(f"s_mov_b32 s66, {CV_A}")
        e("s_cmp_lt_u32 s15, 27")
        e("s_cselect_b32 s64, 1, 0")
        e("s_cbranch_scc1 K2_R")
        e("s_mul_i32 s32, s14, 5")
        e("s_add_u32 s32, s32, s15")
        e("s_add_u32 s65, s32, 405")
        e("s_add_u32 s69, s65, 120")
        e("s_mov_b32 s66, 0")
        e.label("K2_R")
        e("s_mov_b32 s76, s15")
        e("s_mov_b32 s77, s14")
    else:
        e("s_lshr_b32 s28, s14, 2")
        e("s_lshl_b32 s29, s28, 1")
        e("s_sub_u32 s29, 28, s29")
        e("s_and_b32 s31, s14, 3")
        e("s_mul_i32 s32, s31, s29")
        e("s_mul_i32 s33, s28, 112")
        e("s_add_u32 s32, s32, s33")
        e("s_add_u32 s65, s32, s15")
        e("s_lshl_b32 s65, s65, 1")
        e("s_add_u32 s69, s65, 1")
        e(f"s_mov_b32 s66, {CV_A}")
        e("s_cmp_lt_u32 s15, s29")
        e("s_cselect_b32 s64, 1, 0")
        e("s_cbranch_scc1 K2_R")
        e("s_sub_u32 s32, 32, s29")
        e("s_mul_i32 s32, s32, s31")
        e("s_lshl_b32 s33, s28, 4")
        e("s_add_u32 s32, s32, s33")
        e("s_add_u32 s32, s32, s15")
        e("s_sub_u32 s32, s32, s29")
        e("s_add_u32 s65, s32, 432")
        e("s_add_u32 s69, s65, 120")
        e("s_mov_b32 s66, 0")
        e.label("K2_R")
        e("s_mul_i32 s76, s28, 14")
        e("s_lshr_b32 s33, s15, 1")
        e("s_add_u32 s76, s76, s33")
        e("s_lshl_b32 s77, s31, 1")
        e("s_and_b32 s33, s15, 1")
        e("s_add_u32 s77, s77, s33")
    e("s_waitcnt lgkmcnt(0)")
    srd(e, 16, 4, 5, SZ_SD)
    if FUSE:
        e("s_mov_b32 s90, 256")
        e("s_mov_b32 s91, 0x00020000")
    e("s_cmp_lt_u32 s3, 12")
    e("s_cbranch_scc1 K2_CW")
    e("s_sub_u32 s3, s3, 12")
    e("s_cmp_eq_u32 s64, 0")
    e("s_cbranch_scc1 K2_RP")
    srd_off(e, 52, 12, 13, WS_XNP, SZ_SD)
    e("s_cmp_eq_u32 s3, 0")
    e("s_cselect_b32 s56, s8, s10")
    e("s_cselect_b32 s57, s9, s11")
    e(f"s_mov_b32 s58, {D*F*2}")
    e("s_mov_b32 s59, 0x00020000")
    e("v_lshrrev_b32 v3, 3, v1")
    e("v_and_b32 v4, 7, v1")
    e("v_bfe_u32 v5, v3, 1, 1")
    e("v_lshlrev_b32 v5, 2, v5")
    e("v_xor_b32 v4, v4, v5")
    e("v_mul_u32_u24 v3, 3456, v3")
    e("v_lshl_add_u32 v3, v4, 4, v3")
    for i in range(1, 4):
        e(f"v_add_u32 v{3+i}, {i*(8*3456-1024)}, v3")
    e("s_lshl_b32 s72, s3, 13")
    e("s_lshl_b32 s73, s3, 12")
    e("s_mul_i32 s74, s77, 327680")
    e("s_add_u32 s74, s74, s72")
    e("s_lshl_b32 s75, s76, 7")
    e("s_add_u32 s73, s73, 16384")
    ASC = LDSC if FUSE else ""
    def g1_dma(a=True, w=True):
        if a:
            e("s_mov_b32 m0, s72")
            e("s_add_u32 s34, s74, 4096")
            for i in range(4):
                e(f"buffer_load_dwordx4 v2, s[52:55], s74 offen offset:{i*1024} {ASC} lds")
            e("s_add_u32 m0, s72, 4096")
            e("s_add_u32 s74, s74, 16384")
            for i in range(4):
                e(f"buffer_load_dwordx4 v2, s[52:55], s34 offen offset:{i*1024} {ASC} lds")
            e(f"s_add_u32 s72, s72, {STG}")
        if w:
            e("s_mov_b32 m0, s73")
            e("s_nop 0")
            for i in range(4):
                e(f"buffer_load_dwordx4 v{3+i}, s[56:59], s75 offen offset:{i*1024} lds")
            e(f"s_add_u32 s75, s75, {32*3456}")
            e(f"s_add_u32 s73, s73, {STG}")
    def lst():
        if PROF2:
            e("s_memtime s[88:89]")
            e("s_memrealtime s[90:91]")
            e("s_waitcnt lgkmcnt(0)")
            e("v_cmp_eq_u32 vcc, s81, v1")
            e("v_mov_b32 v21, s88")
            e("v_cndmask_b32 v20, v20, v21, vcc")
            e("v_mov_b32 v21, s90")
            e("v_cndmask_b32 v22, v22, v21, vcc")
            e("s_add_u32 s81, s81, 1")
    if FUSE:
        dly(e, DLY[0])
        for i in range(3): g1_dma(False, True)
        srd_off(e, 44, 12, 13, WS_FL, SZ_FL)
        e("v_lshlrev_b32 v8, 7, v1")
        e("s_lshl_b32 s40, s77, 13")
        nonce_get(e, "NG_L", 10)
        e("s_mov_b32 s41, 0")
        e.label("PL_LN")
        e("buffer_load_dwordx2 v[10:11], v8, s[44:47], s40 offen sc1")
        e("s_waitcnt vmcnt(0)")
        e("v_cmp_ne_u64 vcc, s[100:101], v[10:11]")
        e("s_cmp_eq_u64 vcc, 0")
        e("s_cbranch_scc1 PL_LN_D")
        e("s_mov_b64 exec, vcc")
        e(f"s_sleep {PSL}")
        e("s_add_u32 s41, s41, 1")
        e(f"s_cmp_lt_u32 s41, {SPIN}")
        e("s_cbranch_scc1 PL_LN")
        e.label("PL_LN_D")
        e("s_mov_b64 exec, -1")
        e("v_mov_b32 v10, 1")
        e(f"v_mov_b32 v11, {LCNT + 4}")
        e("ds_write_b32 v11, v10")
        trace_end(e, 4, 768, True)
        g1_dma(True, False); g1_dma(True, False)
        e("s_waitcnt vmcnt(8)")
        e("s_barrier")
        g1_dma(True, False)
        e("s_waitcnt vmcnt(8)")
        e("s_barrier")
        g1_dma()
        e(f"s_sub_u32 s72, s72, {NS*STG}")
        e(f"s_sub_u32 s73, s73, {NS*STG}")
        e(f"s_mov_b32 s79, {NS}")
        e(f"s_mov_b32 s80, {NS*STG}")
    else:
      e("s_mov_b32 s81, 0")
      lst()
      e("s_mov_b32 s79, 0")
      e(f"s_mov_b32 s80, {NS*STG}")
      e.label("K2_LP")
      g1_dma()
      e("s_add_u32 s79, s79, 1")
      e(f"s_cmp_lg_u32 s79, {LB0}")
      e("s_cbranch_scc1 K2_LP2")
      lst()
      e(f"s_waitcnt vmcnt({12*(LB0-1)})")
      e("s_barrier")
      lst()
      e.label("K2_LP2")
      e(f"s_cmp_lt_u32 s79, {NS-1}")
      e("s_cbranch_scc1 K2_LP")
    if PACE: e(f"s_mov_b32 s78, {PACE[0]}")
    e.label("K2_LGL")
    if PACE:
        e(f"s_cmp_ge_u32 s79, {NS - 1 + PACE[2]}")
        e("s_cbranch_scc1 K2_PE")
        e("s_lshr_b32 s33, s78, 2")
        e.label("K2_PL")
        e("s_sleep 1")
        e("s_sub_u32 s33, s33, 1")
        e("s_cmp_lg_u32 s33, 0")
        e("s_cbranch_scc1 K2_PL")
        e(f"s_sub_u32 s78, s78, {PACE[1]}")
        e.label("K2_PE")
    e(f"s_waitcnt vmcnt({12*(NS-3)})")
    e("s_barrier")
    lst()
    g1_dma()
    e("s_cmp_ge_u32 s72, s80")
    e("s_cselect_b32 s33, s80, 0")
    e("s_sub_u32 s72, s72, s33")
    e("s_sub_u32 s73, s73, s33")
    e("s_add_u32 s79, s79, 1")
    if os.environ.get("K2SL"):
        sl = [int(x) for x in os.environ['K2SL'].split(",")]
        if len(sl) == 1: e(f"s_sleep {sl[0]}")
        else:
            e(f"s_sub_u32 s33, s79, {sl[1]}")
            e(f"s_cmp_ge_u32 s33, {sl[2]-sl[1]}")
            e("s_cbranch_scc1 K2_NSL")
            e(f"s_sleep {sl[0]}")
            e.label("K2_NSL")
    e(f"s_cmp_lt_u32 s79, {NT}")
    e("s_cbranch_scc1 K2_LGL")
    for b in range(NT-NS+2, (max(NT, C1_E+1) if PROF2 else NT)):
        e(f"s_waitcnt vmcnt({12*max(NT-1-b, 0)})")
        e("s_barrier")
        lst()
    if PROF2:
        e("s_load_dwordx2 s[84:85], s[0:1], 88")
        e("s_waitcnt lgkmcnt(0)")
        e("s_mov_b32 s86, 256")
        e("s_mov_b32 s87, 0x00020000")
        e(f"s_cmp_lg_u32 s2, {PROF2}")
        e("s_cbranch_scc1 K2_END")
        e("s_cmp_lg_u32 s3, 0")
        e("s_cbranch_scc1 K2_END")
        e("v_lshlrev_b32 v120, 2, v1")
        e("buffer_store_dword v20, v120, s[84:87], 0 offen offset:128")
        e("v_cmp_gt_u32 vcc, 32, v1")
        e("s_and_saveexec_b64 s[92:93], vcc")
        e("buffer_store_dword v22, v120, s[84:87], 0 offen")
    if "ge" in DRY:
        srd_off(e, 60, 12, 13, WS_H, SZ_H)
        e("s_mov_b32 s46, 0")
        e("s_mov_b64 exec, 0")
        e("s_branch G_EPI")
    e("s_endpgm")
    e.label("K2_RP")
    srd(e, 52, 50, 51, D*F*2)
    srd_off(e, 56, 12, 13, WS_WP2, D*F*2)
    e("s_sub_u32 s28, s65, 432")
    e("s_lshl_b32 s28, s28, 1")
    e("s_add_u32 s28, s28, s3")
    e("s_mul_hi_u32 s29, s28, 0x1999999a")
    e("s_mul_i32 s30, s29, 10")
    e("s_sub_u32 s30, s28, s30")
    e("s_mul_i32 s30, s30, 1728")
    e("s_mul_i32 s29, s29, 160")
    e("s_mul_i32 s28, s28, 27648")
    e("s_mov_b32 s31, 0xcccccccd")
    e("v_add_u32 v3, s30, v1")
    if FUSE: dly(e, DLY[2])
    for i in range(27):
        e(f"v_add_u32 v4, {64*i}, v3")
        e("v_mul_hi_u32 v5, v4, s31")
        e("v_lshrrev_b32 v5, 3, v5")
        e("v_mul_u32_u24 v6, 10, v5")
        e("v_sub_u32 v6, v4, v6")
        e("v_mul_u32_u24 v5, 1280, v5")
        e("v_lshl_add_u32 v5, v6, 4, v5")
        e(f"buffer_load_dwordx4 v[{8+4*i}:{11+4*i}], v5, s[52:55], s29 offen")
    for i in range(RPB):
        if i == 1 and CDL: e(f"s_sleep {CDL}")
        e("s_barrier")
    e("s_waitcnt vmcnt(0)")
    for i in range(27):
        e(f"buffer_store_dwordx4 v[{8+4*i}:{11+4*i}], v2, s[56:59], s28 offen offset:{(i&3)*1024} {STW}")
        if i & 3 == 3: e("s_add_u32 s28, s28, 4096")
    e("s_endpgm")
    e.label("K2_CW")
    e("s_cmp_lt_u32 s3, 8")
    e("s_cselect_b32 s33, s64, 0")
    e("s_cmp_eq_u32 s33, 1")
    e("s_cbranch_scc1 K2_G")
    srd_off(e, 20, 12, 13, WS_KVT, SZ_SD)
    srd_off(e, 24, 12, 13, WS_T3, SZ_T3)
    q(e, 0, 8)
    e("s_and_b32 s39, s3, 3")
    e("s_lshr_b32 s38, s3, 2")
    e("s_cmp_eq_u32 s64, 1")
    e("s_cselect_b32 s38, 0, s38")
    e("s_mul_i32 s33, s38, 40")
    e("s_add_u32 s65, s65, s33")
    e("s_add_u32 s69, s69, s33")
    e(f"s_mul_i32 s33, s38, {CV_SZ}")
    e("s_add_u32 s66, s66, s33")
    e("s_lshr_b32 s38, s39, 1")
    e("s_min_u32 s68, s69, 639")
    e("s_lshr_b32 s28, s65, 1")
    e("s_lshl_b32 s28, s28, 2")
    e("s_load_dword s70, s[6:7], s28")
    e("s_lshr_b32 s28, s68, 1")
    e("s_lshl_b32 s28, s28, 2")
    e("s_load_dword s71, s[6:7], s28")
    e("s_lshl_b32 s32, s65, 12")
    e("s_lshl_b32 s33, s68, 12")
    e("v_lshl_add_u32 v16, s39, 6, v1")
    e("v_lshlrev_b32 v12, 4, v16")
    if FUSE and DLY[1]:
        e("s_cmp_lt_u32 s3, 8")
        e("s_cbranch_scc1 K2_ND")
        dly(e, DLY[1])
        e.label("K2_ND")
    e("buffer_load_dwordx4 v[104:107], v12, s[16:19], s32 offen")
    e("buffer_load_dwordx2 v[108:109], v12, s[16:19], s32 offen offset:16")
    if not FUSE: e("buffer_load_dwordx4 v[4:7], v12, s[20:23], s32 offen")
    e("buffer_load_dwordx4 v[120:123], v12, s[16:19], s33 offen")
    e("buffer_load_dwordx2 v[124:125], v12, s[16:19], s33 offen offset:16")
    if not FUSE: e("buffer_load_dwordx4 v[112:115], v12, s[20:23], s33 offen")
    if FUSE:
        e("s_mov_b32 s58, s32")
        e("s_mov_b32 s59, s33")
        e("v_mov_b32 v119, v12")
    e(f"s_add_u32 s34, s66, {CP_OFF + 128}")
    e("v_add_u32 v117, s34, v12")
    for i in range(4):
        e(f"v_mov_b32 v{28+i}, 0")
    e("v_lshrrev_b32 v21, 3, v1")
    e(f"v_mul_u32_u24 v20, {COPY}, v21")
    e("v_and_b32 v21, 7, v1")
    e("v_lshl_add_u32 v20, v21, 4, v20")
    e(f"s_add_u32 s34, s66, {CP_OFF}")
    e("v_add_u32 v20, s34, v20")
    if CONV2:
        e("v_and_b32 v22, 31, v1")
        e("v_lshrrev_b32 v21, 5, v1")
        e(f"v_mul_u32_u24 v21, {KVSZ}, v21")
        e("v_lshl_add_u32 v21, v22, 4, v21")
        e("v_add_u32 v21, s66, v21")
        e("s_mov_b64 vcc, -1")
    else:
        e("v_and_b32 v22, 15, v1")
        e("v_bfe_u32 v21, v1, 4, 1")
        e(f"v_mul_u32_u24 v21, {KVSZ}, v21")
        e("v_lshl_add_u32 v21, v22, 4, v21")
        e("v_add_u32 v21, s66, v21")
        e("v_cmp_gt_u32 vcc, 9, v22")
        e("s_mov_b32 vcc_hi, 0")
    e("s_cmp_eq_u32 s39, 0")
    e("s_cbranch_scc0 CF_0")
    e("ds_write_b128 v20, v[28:31]")
    e("s_and_saveexec_b64 s[36:37], vcc")
    e("ds_write_b128 v21, v[28:31]")
    e("s_mov_b64 exec, s[36:37]")
    e.label("CF_0")
    if CONV2:
        e("s_add_u32 s34, s66, 512")
        e("v_add_u32 v118, s34, v12")
        e("v_and_b32 v40, 15, v1")
        e("v_lshrrev_b32 v41, 4, v1")
        e("v_add_u32 v16, 1, v40")
        e("v_and_b32 v16, 3, v16")
        e(f"v_mul_u32_u24 v8, {COPY - 2}, v16")
        e("v_lshl_add_u32 v8, v40, 1, v8")
        e("v_lshl_add_u32 v8, v41, 4, v8")
        e("s_and_b32 s37, s39, 1")
        e("s_lshl_b32 s41, s37, 8")
        e(f"s_mul_i32 s42, s38, {4*COPY}")
        e("s_add_u32 s42, s42, s66")
        e(f"s_add_u32 s42, s42, {CP_OFF}")
        e("s_add_u32 s43, s42, s41")
        e("s_add_u32 s43, s43, 98")
        e("v_add_u32 v8, s43, v8")
        e("s_lshl_b32 s43, s37, 12")
        e("s_add_u32 s44, s42, s43")
        e("v_add_u32 v14, s44, v2")
        e("s_xor_b32 s43, s43, 4096")
        e("s_add_u32 s44, s42, s43")
        e("v_add_u32 v15, s44, v2")
        e(f"s_mul_i32 s42, s38, {KVSZ}")
        e("s_add_u32 s42, s42, s66")
        e("v_lshlrev_b32 v10, 5, v40")
        e("v_lshlrev_b32 v11, 4, v41")
        e("v_sub_u32 v10, v10, v11")
        e("s_sub_u32 s43, s42, s41")
        e("s_add_u32 s43, s43, 336")
        e("v_add_u32 v10, s43, v10")
        e("v_lshlrev_b32 v13, 5, v40")
        e("v_lshrrev_b32 v42, 1, v41")
        e("v_lshl_add_u32 v13, v42, 4, v13")
        e("v_and_b32 v42, 1, v41")
        e("v_lshlrev_b32 v42, 3, v42")
        e("v_xor_b32 v42, 8, v42")
        e("v_add_u32 v13, v13, v42")
        e("s_lshl_b32 s43, s37, 11")
        e("s_add_u32 s43, s43, s42")
        e("s_add_u32 s43, s43, 512")
        e("v_add_u32 v13, s43, v13")
        e("v_lshrrev_b32 v42, 2, v40")
        e("v_mul_u32_u24 v2, 81920, v42")
        e("v_and_b32 v42, 3, v40")
        e("v_lshl_add_u32 v2, v42, 5, v2")
        e("v_lshl_add_u32 v2, v41, 3, v2")
        e("s_mov_b32 s49, s37")
    else:
        e("v_lshrrev_b32 v118, 3, v16")
        e("v_mul_u32_u24 v118, 144, v118")
        e("v_and_b32 v26, 7, v16")
        e("v_lshl_add_u32 v118, v26, 4, v118")
        e("s_add_u32 s34, s66, 144")
        e("v_add_u32 v118, s34, v118")
        e("v_and_b32 v40, 15, v1")
        e("v_lshrrev_b32 v41, 4, v1")
        e("v_add_u32 v16, 1, v40")
        e("v_and_b32 v16, 3, v16")
        e(f"v_mul_u32_u24 v8, {COPY - 2}, v16")
        e("v_lshl_add_u32 v8, v40, 1, v8")
        e("v_lshlrev_b32 v17, 4, v41")
        e("v_sub_u32 v8, v8, v17")
        e("s_lshl_b32 s41, s38, 10")
        e("s_and_b32 s42, s39, 1")
        e("s_lshl_b32 s42, s42, 5")
        e("s_add_u32 s42, s42, s41")
        e("s_add_u32 s42, s42, s66")
        e(f"s_add_u32 s42, s42, {CP_OFF + 2*(64-7) - 64}")
        e("v_add_u32 v8, s42, v8")
        e("v_add_u32 v9, 2048, v8")
        e("v_mul_u32_u24 v10, 144, v40")
        e("v_lshlrev_b32 v11, 4, v41")
        e("v_add_u32 v11, s66, v11")
        e("v_add_u32 v10, v10, v11")
        e("s_mul_i32 s43, s38, 1152")
        e("s_sub_u32 s43, 144, s43")
        e("v_add_u32 v10, s43, v10")
        e("s_mul_i32 s44, s2, 12")
        e("s_add_u32 s44, s44, s3")
        e("s_xor_b32 s45, s44, 2")
        e("s_lshl_b32 s44, s44, 12")
        e("s_lshl_b32 s45, s45, 12")
        e("v_add_u32 v14, s44, v2")
        e("v_add_u32 v15, s45, v2")
        e("v_mul_u32_u24 v13, 144, v40")
        e("v_lshrrev_b32 v42, 1, v41")
        e("v_lshl_add_u32 v13, v42, 4, v13")
        e("v_and_b32 v42, 1, v41")
        e("v_lshlrev_b32 v42, 3, v42")
        e("v_xor_b32 v42, 8, v42")
        e("v_add_u32 v13, v13, v42")
        e("s_lshl_b32 s46, s39, 5")
        e("s_add_u32 s47, s46, s66")
        e("s_add_u32 s47, s47, 144")
        e("v_add_u32 v13, s47, v13")
        e("v_mul_u32_u24 v2, 81920, v40")
        e("v_lshl_add_u32 v2, v41, 3, v2")
        e("v_add_u32 v2, s46, v2")
    if FUSE:
        e("s_waitcnt vmcnt(2)")
        write_copies(e, 104, "CF_1", 0)
        e("s_waitcnt vmcnt(0)")
        write_copies(e, 120, "CF_2", 4*COPY)
        srd_off(e, 52, 12, 13, WS_FL, SZ_FL)
        for (sc, sd) in ((65, 28), (68, 29)):
            e(f"s_mul_i32 s30, s{sc}, 52429")
            e("s_lshr_b32 s30, s30, 22")
            e("s_mul_i32 s31, s30, 80")
            e(f"s_sub_u32 s31, s{sc}, s31")
            e("s_cmp_ge_u32 s31, 40")
            e("s_cselect_b32 s34, 40, 0")
            e("s_sub_u32 s31, s31, s34")
            e("s_lshr_b32 s31, s31, 3")
            e("s_mul_i32 s30, s30, 5")
            e("s_add_u32 s30, s30, s31")
            e("s_lshl_b32 s30, s30, 2")
            e("s_add_u32 s30, s30, s39")
            e(f"s_lshl_b32 s{sd}, s30, 10")
        e("v_mov_b32 v16, s28")
        e("v_mov_b32 v17, s29")
        e("v_cmp_gt_u32 vcc, 8, v1")
        e("v_cndmask_b32 v16, v17, v16, vcc")
        e("v_and_b32 v17, 7, v1")
        e("v_lshl_add_u32 v16, v17, 7, v16")
        e(f"v_mov_b32 v21, {LCNT + 4}")
        e("s_lshr_b32 s34, s3, 2")
        e("s_lshl_b32 s34, s34, 4")
        e(f"s_add_u32 s34, s34, {LCNT + 16}")
        e("v_mov_b32 v22, s34")
        e("s_lshl_b32 s35, s39, 2")
        e("v_add_u32 v23, s35, v22")
        e(f"s_mov_b32 s40, {FL_KV}")
        nonce_get(e, "NG_C", 18)
        e("s_mov_b32 s41, 0")
        e("s_mov_b32 s43, 0")
        e("s_mov_b64 exec, 0xffff")
        e.label("CP_A")
        e("buffer_load_dwordx2 v[18:19], v16, s[52:55], s40 offen sc1")
        e("s_waitcnt vmcnt(0)")
        e("ds_read_b32 v20, v21")
        e("v_cmp_ne_u64 vcc, s[100:101], v[18:19]")
        e("s_waitcnt lgkmcnt(0)")
        e("v_readfirstlane_b32 s42, v20")
        e("s_cmp_eq_u64 vcc, 0")
        e("s_cbranch_scc1 CP_R")
        e("s_mov_b64 exec, vcc")
        e("s_cmp_lg_u32 s42, 0")
        e("s_cbranch_scc1 CP_B")
        e(f"s_sleep {PSL}")
        e("s_add_u32 s41, s41, 1")
        e(f"s_cmp_lt_u32 s41, {SPIN}")
        e("s_cbranch_scc1 CP_A")
        e("s_branch CP_R")
        e.label("CP_B")
        e("buffer_load_dwordx2 v[18:19], v16, s[52:55], s40 offen sc1")
        e("s_barrier")
        e("s_add_u32 s43, s43, 1")
        e("s_waitcnt vmcnt(0)")
        e("v_cmp_ne_u64 vcc, s[100:101], v[18:19]")
        e("s_cmp_eq_u64 vcc, 0")
        e("s_cbranch_scc1 CP_R")
        e("s_mov_b64 exec, vcc")
        e("s_add_u32 s41, s41, 1")
        e(f"s_cmp_lt_u32 s41, {SPIN}")
        e("s_cbranch_scc1 CP_B")
        e.label("CP_R")
        e("s_mov_b64 exec, -1")
        trace_end(e, 5, 512, True)
        e(f"buffer_load_dwordx4 v[4:7], v119, s[20:23], s58 offen {LDSC}")
        e(f"buffer_load_dwordx4 v[112:115], v119, s[20:23], s59 offen {LDSC}")
        e("s_cmp_eq_u32 s42, 0")
        e("s_cbranch_scc1 CP_W")
        for i in range(CWB):
            e("s_barrier")
        e(f"s_add_u32 s43, s43, {CWB}")
        e.label("CP_W")
        e("s_add_u32 s42, s43, 1")
        e("v_mov_b32 v20, s42")
        e("s_waitcnt vmcnt(1)")
        e("ds_write_b128 v118, v[4:7]")
        e("s_waitcnt vmcnt(0)")
        e(f"ds_write_b128 v118, v[112:115] offset:{KVSZ}")
        e("ds_write_b32 v23, v20")
        e("s_waitcnt lgkmcnt(0)")
        e("s_mov_b32 s41, 0")
        e.label("CP_C")
        e("s_barrier")
        e("s_add_u32 s43, s43, 1")
        e("ds_read_b128 v[24:27], v22")
        e("s_add_u32 s41, s41, 1")
        e("s_waitcnt lgkmcnt(0)")
        for i in range(4): e(f"v_subrev_u32 v{24+i}, 1, v{24+i}")
        e("v_max_u32 v24, v24, v25")
        e("v_max_u32 v26, v26, v27")
        e("v_max_u32 v24, v24, v26")
        e("s_nop 0")
        e("v_readfirstlane_b32 s42, v24")
        e(f"s_cmp_ge_u32 s41, {4*SPIN}")
        e("s_cbranch_scc1 CP_D")
        e("s_cmp_ge_u32 s42, s43")
        e("s_cbranch_scc1 CP_C")
        e.label("CP_D")
        if TRACE: e("s_mov_b32 s67, s43")
    else:
      e("s_waitcnt vmcnt(4)")
      write_copies(e, 104, "CF_1", 0)
      e("s_waitcnt vmcnt(3)")
      e("ds_write_b128 v118, v[4:7]")
      e("s_waitcnt vmcnt(1)")
      write_copies(e, 120, "CF_2", 4*COPY)
      e("s_waitcnt vmcnt(0)")
      e(f"ds_write_b128 v118, v[112:115] offset:{KVSZ}")
      e("s_waitcnt lgkmcnt(0)")
    srd_off(e, 60, 12, 13, WS_XCH, 256*12*4096)
    q(e, 5, 8)
    if CONV2: conv_main2(e)
    else: conv_main(e)
    q(e, 11, 8)
    if PROF2 or TRACE: e("s_waitcnt vmcnt(0)")
    q(e, 7, 8)
    qdump(e, 12, 8)
    p4dump(e, "P4_C")
    trace_end(e, 0, 512)
    e("s_endpgm")
    e.label("K2_G")
    q(e, 0)
    srd_off(e, 60, 12, 13, WS_H, SZ_H)
    e("s_lshr_b32 s47, s3, 1")
    e("s_and_b32 s48, s3, 1")
    e("v_and_b32 v4, 31, v1")
    e("v_lshrrev_b32 v3, 5, v1")
    e("s_lshl_b32 s49, s47, 6")
    e("v_add_u32 v4, s49, v4")
    e("v_lshrrev_b32 v7, 2, v4")
    e("v_and_b32 v5, 3, v4")
    e("v_lshl_add_u32 v5, v5, 2, v3")
    e("v_and_b32 v6, 3, v7")
    e("v_xor_b32 v5, v5, v6")
    e("v_lshlrev_b32 v5, 4, v5")
    e("v_lshl_add_u32 v12, v7, 8, v5")
    e("v_xor_b32 v13, 32, v12")
    e("v_lshrrev_b32 v8, 4, v1")
    e("v_bfe_u32 v3, v1, 2, 2")
    e("v_and_b32 v4, 3, v1")
    e("v_lshrrev_b32 v5, 1, v8")
    e("v_lshl_add_u32 v5, v5, 3, v3")
    e("v_lshlrev_b32 v5, 7, v5")
    e("v_and_b32 v6, 1, v8")
    e("v_lshlrev_b32 v6, 1, v6")
    e("v_lshrrev_b32 v7, 1, v4")
    e("v_add_u32 v6, v6, v7")
    e("s_lshl_b32 s49, s48, 2")
    e("v_add_u32 v6, s49, v6")
    e("v_bfe_u32 v7, v3, 1, 1")
    e("v_lshlrev_b32 v7, 2, v7")
    e("v_xor_b32 v6, v6, v7")
    e("v_lshl_add_u32 v5, v6, 4, v5")
    e("v_and_b32 v7, 1, v4")
    e("v_lshl_add_u32 v5, v7, 3, v5")
    e("v_add_u32 v14, 16384, v5")
    G0, U0 = 64, 96
    for i in range(64):
        e(f"v_mov_b32 v{64+i}, 0")
    e("v_add_u32 v9, 0x10000, v12")
    e("v_add_u32 v10, 0x10000, v13")
    e("v_add_u32 v11, 0x10000, v14")
    def frag_ops(g):
        if "nofr" in X2: return []
        t = g >> 1; ks = g & 1; fb = 16 + 16*(g % 3)
        sb = (t % NS)*STG
        hi64 = sb >= 65536
        if hi64: sb -= 65536
        xa = (9 if hi64 else 12) + ks; wa = 11 if hi64 else 14
        r = []
        for mat in range(2):
            for hi in range(2):
                rr = fb + 8 + 4*mat + 2*hi
                r.append(f"ds_read_b64_tr_b16 v[{rr}:{rr+1}], v{wa} offset:{sb + mat*4096 + ks*2048 + hi*512}")
        for mi in range(2):
            r.append(f"ds_read_b128 v[{fb+4*mi}:{fb+4*mi+3}], v{xa} offset:{sb + mi*2048}")
        return r
    def frag_loads(g):
        for x in frag_ops(g): e(x)
    def mf(g, ops):
        fb = 16 + 16*(g % 3)
        ms = []
        for mi in range(2):
            x = fb+4*mi
            ms.append(f"v_mfma_f32_32x32x16_bf16 v[{G0+16*mi}:{G0+16*mi+15}], v[{fb+8}:{fb+11}], v[{x}:{x+3}], v[{G0+16*mi}:{G0+16*mi+15}]")
            ms.append(f"v_mfma_f32_32x32x16_bf16 v[{U0+16*mi}:{U0+16*mi+15}], v[{fb+12}:{fb+15}], v[{x}:{x+3}], v[{U0+16*mi}:{U0+16*mi+15}]")
        grp = [ops[0:2], ops[2:4], ops[4:5], ops[5:6]]
        for i in range(4):
            e(ms[i])
            for x in grp[i]: e(x)
    e("v_lshrrev_b32 v3, 5, v1")
    e("v_and_b32 v4, 31, v1")
    e("v_lshlrev_b32 v4, 4, v4")
    e("v_lshl_add_u32 v4, v3, 10, v4")
    e("s_lshl_b32 s46, s77, 2")
    e("s_add_u32 s46, s46, s47")
    e(f"s_mul_i32 s46, s46, {27*8192}")
    e("s_lshl_b32 s49, s76, 13")
    e("s_add_u32 s46, s46, s49")
    e("s_lshl_b32 s49, s48, 12")
    e("s_add_u32 s46, s46, s49")
    q(e, 1)
    e("s_barrier")
    if FUSE and TRACE:
        trace_end(e, 6, 0, True)
        for i in range(120, 128): e(f"v_mov_b32 v{i}, 0")
    q(e, 2)
    if DIAG: e("s_memrealtime s[66:67]\ns_memtime s[68:69]\ns_waitcnt lgkmcnt(0)")
    frag_loads(0); frag_loads(1)
    for g in range(2*NT):
        ops = []
        if g + 2 < 2*NT:
            if g & 1 == 0: bar(e, (g+2)//2)
            ops = frag_ops(g+2)
        e(f"s_waitcnt lgkmcnt({6*min(1, 2*NT-1-g)})")
        mf(g, ops)
    q(e, 3)
    if DIAG: e("s_memrealtime s[70:71]\ns_memtime s[72:73]\ns_waitcnt lgkmcnt(0)")
    gb = NT
    if C1_E >= gb: e("s_barrier"); gb += 1
    e("s_nop 15")
    e.label("G_EPI")
    for mi in range(2):
        for pi in range(2):
            o = 16 + 4*(2*mi+pi)
            for ii in range(2):
                i = 2*pi + ii
                g = G0+16*mi+4*i; u = U0+16*mi+4*i
                for pr in range(2):
                    e(f"v_cvt_pk_bf16_f32 v40, v{g+2*pr}, v{g+2*pr+1}")
                    e(f"v_cvt_pk_bf16_f32 v41, v{u+2*pr}, v{u+2*pr+1}")
                    e("v_lshlrev_b32 v42, 16, v40")
                    e("v_and_b32 v43, 0xffff0000, v40")
                    e("v_lshlrev_b32 v44, 16, v41")
                    e("v_and_b32 v45, 0xffff0000, v41")
                    e("v_mul_f32 v42, v42, v44")
                    e("v_mul_f32 v43, v43, v45")
                    e(f"v_cvt_pk_bf16_f32 v{o+2*ii+pr}, v42, v43")
            e("s_nop 1")
            e(f"v_permlane32_swap_b32 v{o}, v{o+2}")
            e(f"v_permlane32_swap_b32 v{o+1}, v{o+3}")
            e("s_nop 1")
            e(f"buffer_store_dwordx4 v[{o}:{o+3}], v4, s[60:63], s46 offen offset:{pi*2048 + mi*512} {ST2H}")
    while C1_E >= gb:
        e("s_barrier"); gb += 1
    if "ge" in DRY: e("s_cbranch_execz K2_END")
    q(e, 4)
    if PROF2 or TRACE: e("s_waitcnt vmcnt(0)")
    q(e, 7)
    qdump(e, 12)
    p4dump(e, "P4_G")
    trace_end(e, 1)
    diag_end(e, 1, 3, 77, 0, "DG_2")
    e("s_endpgm")
    if FUSE:
        e.label("K1_START")
        e.l += k1().rstrip("\n").split("\n")
    e.label("K2_END")
    e("s_endpgm")
    return e.text()


N_G2 = 256
K3_NS = int(os.environ.get("K3NS", "7"))
K3_STG = 18432
K3_X0 = K3_STG*K3_NS
K3_LDS = K3_X0 + 2*10240
K3_XB = 12
K3R0, K3R1 = [int(x) for x in os.environ.get('K3R', '1,2').split(',')]
K3_XI = int(os.environ.get('K3XI', '0'))
K3_D = int(os.environ.get('K3D', '1'))
PROF5 = os.environ.get("PROF5")
def k3():
    e = E()
    NS = K3_NS; NT = 27; STG = K3_STG
    Y2_L = K3_X0; X_L = K3_X0 + 10240; XN_L = K3_X0 + 20480
    e(f"s_cmp_ge_u32 s2, {N_G2}")
    e("s_cbranch_scc1 K3_END")
    code_touch(e, "k3", 256, "K3_END")
    trace_start(e)
    for i in range(int(os.environ.get("K3NOP", "0"))): e("s_nop 0")
    e("s_load_dwordx2 s[4:5], s[0:1], 0")
    e("s_load_dwordx2 s[10:11], s[0:1], 80")
    e("s_load_dwordx2 s[12:13], s[0:1], 96")
    e("v_lshrrev_b32 v1, 6, v0")
    e("s_nop 0")
    e("v_readfirstlane_b32 s3, v1")
    if "mapc" in X3:
        e("s_and_b32 s15, s2, 3")
        e("s_lshl_b32 s15, s15, 3")
        e("s_lshr_b32 s28, s2, 3")
        e("s_and_b32 s29, s28, 7")
        e("s_add_u32 s15, s15, s29")
        e("s_lshr_b32 s28, s28, 3")
        e("s_and_b32 s29, s2, 4")
        e("s_add_u32 s28, s28, s29")
    else:
        e("s_and_b32 s15, s2, 7")
        e("s_lshl_b32 s15, s15, 2")
        e("s_lshr_b32 s28, s2, 3")
        e("s_and_b32 s29, s28, 3")
        e("s_add_u32 s15, s15, s29")
        e("s_lshr_b32 s28, s28, 2")
    e("s_lshl_b32 s36, s15, 6")
    e("s_mul_i32 s39, s28, 160")
    e("v_and_b32 v1, 63, v0")
    e("s_waitcnt lgkmcnt(0)")
    e("s_cmp_lt_u32 s3, 4")
    e("s_cbranch_scc1 K3_COMP")
    e("s_sub_u32 s3, s3, 4")
    e("v_lshlrev_b32 v2, 4, v1")
    e("s_cmp_ge_u32 s3, 2")
    e("s_cbranch_scc1 K3_XL")
    srd_off(e, 16, 12, 13, WS_H, SZ_H)
    srd_off(e, 20, 12, 13, WS_WP2, D*F*2)
    e("v_lshlrev_b32 v2, 4, v1")
    e("s_lshl_b32 s40, s3, 12")
    e("s_mul_i32 s41, s3, 5120")
    e(f"s_mul_i32 s42, s15, {0 if 'hotA' in X3 else 27*8192}")
    e("s_add_u32 s42, s42, s40")
    e(f"s_mul_i32 s43, s28, {0 if 'hotW' in X3 else 1728*160}")
    e("s_add_u32 s43, s43, s41")
    e("s_add_u32 s41, s41, 8192")
    vq = VQ(e)
    def lst():
        if PROF5:
            e("s_memtime s[88:89]")
            e("s_waitcnt lgkmcnt(0)")
            e("v_cmp_eq_u32 vcc, s81, v1")
            e("v_mov_b32 v21, s88")
            e("v_cndmask_b32 v20, v20, v21, vcc")
            e("s_add_u32 s81, s81, 1")
    e("s_mov_b32 s81, 0")
    lst()
    def dma(t):
        sb = (t % NS)*STG
        e(f"s_add_u32 m0, s40, {sb}")
        e("s_add_u32 s46, s43, 4096")
        for i in range(4):
            e(f"buffer_load_dwordx4 v2, s[16:19], s42 offen offset:{i*1024} lds")
        e(f"s_add_u32 m0, s41, {sb}")
        e("s_add_u32 s42, s42, 8192")
        for i in range(4):
            e(f"buffer_load_dwordx4 v2, s[20:23], s43 offen offset:{i*1024} lds")
        e(f"s_add_u32 m0, s41, {sb + 4096}")
        e("s_add_u32 s43, s43, 10240")
        e(f"buffer_load_dwordx4 v2, s[20:23], s46 offen lds")
        vq.issue(("g", t), 9)
    def extras():
        srd_off(e, 24, 12, 13, WS_T3, SZ_T3)
        srd(e, 52, 4, 5, SZ_SD)
        e("s_lshl_b32 s47, s15, 3")
        e("s_add_u32 s47, s47, s28")
        e(f"s_mul_i32 s47, s47, {0 if 'hotX' in X3 else 10240}")
        e("s_mul_i32 s49, s3, 5120")
        e("s_add_u32 s47, s47, s49")
        e("s_add_u32 s48, s47, 4096")
        e(f"s_add_u32 m0, s49, {Y2_L}")
        e("s_nop 0")
        for i in range(4):
            e(f"buffer_load_dwordx4 v2, s[24:27], s47 offen offset:{i*1024} lds")
        e(f"s_add_u32 m0, s49, {Y2_L + 4096}")
        e("s_nop 0")
        e(f"buffer_load_dwordx4 v2, s[24:27], s48 offen lds")
        for i in range(5):
            e(f"v_add_u32 v3, {64*i}, v1")
            e("v_mul_u32_u24 v4, 6554, v3")
            e("v_lshrrev_b32 v4, 16, v4")
            e("v_mul_u32_u24 v5, 10, v4")
            e("v_sub_u32 v5, v3, v5")
            e("v_mul_u32_u24 v4, 1280, v4")
            e(f"v_lshl_add_u32 v{10+i}, v5, 4, v4")
        e("s_lshl_b32 s48, s3, 5")
        e("s_add_u32 s48, s48, s36")
        e("s_mul_i32 s48, s48, 1280")
        e("s_add_u32 s48, s48, s39")
        for i in range(5):
            e(f"s_add_u32 m0, s49, {X_L + i*1024}")
            e("s_nop 0")
            e(f"buffer_load_dwordx4 v{10+i}, s[52:55], s48 offen lds")
    nxt = 0
    DD = K3_D + 1
    for b in range(NT):
        lim = NS - 1 if b < DD else b - 1 - DD + NS
        lim = min(lim, K3R1*b + K3R0, NT - 1)
        while nxt <= lim:
            dma(nxt); nxt += 1
        vq.wait([("g", b)])
        e("s_barrier")
        lst()
    if PROF5:
        e("s_load_dwordx2 s[84:85], s[0:1], 88")
        e("s_waitcnt lgkmcnt(0)")
        e("s_mov_b32 s86, 256")
        e("s_mov_b32 s87, 0x00020000")
        e(f"s_cmp_lg_u32 s2, {PROF5}")
        e("s_cbranch_scc1 K3_END")
        e("s_cmp_lg_u32 s3, 0")
        e("s_cbranch_scc1 K3_END")
        e("v_lshlrev_b32 v120, 2, v1")
        e("buffer_store_dword v20, v120, s[84:87], 0 offen")
    e("s_endpgm")
    e.label("K3_XL")
    e("s_sub_u32 s3, s3, 2")
    for b in range(K3_XB + 1):
        if b == K3_XI: extras()
        if b == K3_XB: e("s_waitcnt vmcnt(0)")
        e("s_barrier")
    if "k3" in DRY:
        srd(e, 32, 10, 11, SZ_SD)
        e("s_mov_b64 exec, 0")
        e("s_branch K3_EPI")
    e("s_endpgm")
    e.label("K3_COMP")
    srd(e, 32, 10, 11, SZ_SD)
    e("v_and_b32 v20, 15, v1")
    e("v_lshrrev_b32 v21, 4, v1")
    e("v_and_b32 v22, 1, v21")
    e("s_lshl_b32 s49, s3, 4")
    e("v_add_u32 v23, s49, v20")
    e("v_mul_u32_u24 v2, 160, v23")
    e("v_lshl_add_u32 v2, v21, 3, v2")
    e(f"v_add_u32 v2, {X_L}, v2")
    e("v_add_u32 v24, s36, v23")
    srd_off(e, 40, 12, 13, WS_XN, S*8)
    e("v_lshlrev_b32 v25, 3, v24")
    e("buffer_load_dwordx2 v[14:15], v25, s[40:43], 0 offen")
    e("v_mul_u32_u24 v24, 1280, v24")
    e("v_lshl_add_u32 v24, v21, 3, v24")
    e("v_add_u32 v3, s39, v24")
    e("v_lshlrev_b32 v24, 10, v21")
    e("v_lshl_add_u32 v24, v23, 4, v24")
    e("v_lshl_add_u32 v4, v22, 3, v24")
    e("v_xor_b32 v5, 8, v4")
    e("v_bfe_u32 v24, v1, 2, 2")
    e("v_lshl_add_u32 v24, v21, 3, v24")
    e("v_lshl_add_u32 v25, v22, 2, v24")
    e("v_xor_b32 v26, 1, v22")
    e("v_lshl_add_u32 v26, v26, 2, v24")
    e("v_and_b32 v24, 3, v1")
    e("v_lshlrev_b32 v24, 3, v24")
    e("v_add_u32 v24, 8192, v24")
    e("s_movk_i32 s49, 160")
    e("v_mad_u32_u24 v6, v25, s49, v24")
    e("v_mad_u32_u24 v7, v26, s49, v24")
    for k in range(4):
        e(f"v_add_u32 v{8+k}, {4*STG}, v{4+k}")
    e("v_lshrrev_b32 v12, 2, v1")
    e("v_lshlrev_b32 v12, 7, v12")
    e("v_and_b32 v24, 3, v1")
    e("v_lshl_add_u32 v12, v24, 3, v12")
    e("s_lshl_b32 s49, s3, 5")
    e(f"s_add_u32 s49, s49, {Y2_L}")
    e("v_add_u32 v12, s49, v12")
    ACC = 16; XR, XNR, YR = 36, 46, 56; T = 66; FB = 72
    lq = []
    def wait(tags):
        idx = max((i for i, t in enumerate(lq) if t in tags), default=-1)
        if idx >= 0: e(f"s_waitcnt lgkmcnt({min(len(lq) - 1 - idx, 15)})")
    def put(it):
        if it[0] is None: wait(it[1]); return
        e(it[0])
        if it[1] is not None: lq.append(it[1])
    def frag_ops(t):
        fb = FB + 48*(t % (K3_D+1))
        sl = t % NS
        ab = 4 if sl < 4 else 8
        sb = (sl if sl < 4 else sl - 4)*STG
        r = []
        for kk in range(2):
            for hf in range(2):
                rr = fb + 4*kk + 2*hf
                r.append((f"ds_read_b64 v[{rr}:{rr+1}], v{ab+hf} offset:{sb + kk*4096}", ("f", t, kk)))
            for tt in range(5):
                for hf in range(2):
                    rr = fb + 8 + 20*kk + 4*tt + 2*hf
                    r.append((f"ds_read_b64_tr_b16 v[{rr}:{rr+1}], v{ab+2+hf} offset:{sb + kk*5120 + 32*tt}", ("f", t, kk)))
        return r
    xl = []
    for tt in range(5):
        xl.append((f"ds_read_b64_tr_b16 v[{YR+2*tt}:{YR+2*tt+1}], v12 offset:{2048*tt}", "x"))
        xl.append((f"ds_read_b64 v[{XR+2*tt}:{XR+2*tt+1}], v2 offset:{32*tt}", "x"))
    def amath(i):
        r = [f"v_lshlrev_b32 v{T}, 16, v{XR+i}", f"v_and_b32 v{T+1}, 0xffff0000, v{XR+i}",
             f"v_sub_f32 v{T+2}, v{T}, v14", f"v_sub_f32 v{T+3}, v{T+1}, v14",
             f"v_cvt_pk_bf16_f32 v{T+4}, v{T+2}, v{T+3}",
             f"v_lshlrev_b32 v{T+2}, 16, v{T+4}", f"v_and_b32 v{T+3}, 0xffff0000, v{T+4}",
             f"v_mul_f32 v{T+4}, v{T+2}, v13", f"v_mul_f32 v{T+5}, v{T+3}, v13",
             f"v_fma_f32 v{T+2}, -v{T+4}, v15, v{T+2}", f"v_fma_f32 v{T+3}, -v{T+5}, v15, v{T+3}",
             f"v_fmac_f32 v{T+4}, v{T+2}, v13", f"v_fmac_f32 v{T+5}, v{T+3}, v13",
             f"v_cvt_pk_bf16_f32 v{T+4}, v{T+4}, v{T+5}",
             f"v_lshlrev_b32 v{T+2}, 16, v{T+4}", f"v_and_b32 v{T+3}, 0xffff0000, v{T+4}",
             f"v_lshlrev_b32 v{T+4}, 16, v{YR+i}", f"v_and_b32 v{T+5}, 0xffff0000, v{YR+i}",
             f"v_mul_f32 v{T+2}, v{T+2}, v{T+4}", f"v_mul_f32 v{T+3}, v{T+3}, v{T+5}",
             f"v_cvt_pk_bf16_f32 v{T+4}, v{T+2}, v{T+3}",
             f"v_lshlrev_b32 v{T+2}, 16, v{T+4}", f"v_and_b32 v{T+3}, 0xffff0000, v{T+4}",
             f"v_add_f32 v{T}, v{T}, v{T+2}", f"v_add_f32 v{T+1}, v{T+1}, v{T+3}",
             f"v_cvt_pk_bf16_f32 v{T+4}, v{T}, v{T+1}",
             f"v_lshlrev_b32 v{XR+i}, 16, v{T+4}", f"v_and_b32 v{XNR+i}, 0xffff0000, v{T+4}"]
        return [(x, None) for x in r]
    extra = {t: [] for t in range(NT)}
    tx = K3_XB - K3_D
    extra[tx] = xl
    extra[tx + 1] = [("s_waitcnt vmcnt(0)\nv_rcp_f32 v13, v15", None)]
    extra[tx + 2] = [(None, ["x"])]
    for i in range(10):
        extra[tx + 2 + i] += amath(i)
    for t in range(K3_D):
        e("s_barrier")
        for it in frag_ops(t): put(it)
    for t in range(NT):
        ops = []
        if t + K3_D < NT:
            e("s_barrier")
            ops = frag_ops(t+K3_D)
        ex = list(extra[t])
        fb = FB + 48*(t % (K3_D+1))
        for kk in range(2):
            wait([("f", t, kk)])
            for tt in range(5):
                a = ACC + 4*tt
                w = fb + 8 + 20*kk + 4*tt; h = fb + 4*kk
                c = "0" if (t == 0 and kk == 0) else f"v[{a}:{a+3}]"
                e(f"v_mfma_f32_16x16x32_bf16 v[{a}:{a+3}], v[{w}:{w+3}], v[{h}:{h+3}], {c}")
                left = 10 - (5*kk + tt)
                no = (len(ops) + left - 1)//left
                for it in ops[:no]: put(it)
                ops = ops[no:]
                ne = (len(ex) + left - 1)//left
                for it in ex[:ne]: put(it)
                ex = ex[ne:]
    e("s_nop 7")
    e.label("K3_EPI")
    for tt in range(5):
        a = ACC + 4*tt
        for pr in range(2):
            i = 2*tt + pr
            e(f"v_cvt_pk_bf16_f32 v{T}, v{a+2*pr}, v{a+2*pr+1}")
            e(f"v_lshlrev_b32 v{T+1}, 16, v{T}")
            e(f"v_and_b32 v{T+2}, 0xffff0000, v{T}")
            e(f"v_add_f32 v{T+1}, v{XR+i}, v{T+1}")
            e(f"v_add_f32 v{T+2}, v{XNR+i}, v{T+2}")
            e(f"v_cvt_pk_bf16_f32 v{YR+i}, v{T+1}, v{T+2}")
        e(f"buffer_store_dwordx2 v[{YR+2*tt}:{YR+2*tt+1}], v3, s[32:35], 0 offen offset:{32*tt} {ST3}")
    if "k3" in DRY: e("s_cbranch_execz K3_END")
    trace_end(e, 2)
    diag_end(e, 2, 6, 77, 0, "DG_3")
    e.label("K3_END")
    e("s_endpgm")
    return e.text()

def build(kernels):
    out = []
    out.append(open("cdna_kernels/%s.s.ref" % NAME).read().split("; Override launch")[0])
    for (name, grid, block, lds, body, vgpr) in kernels:
        out.append(f"; @launch kernel={name} grid=({grid},1,1) block=({block},1,1) lds={lds}\n")
    out.append('.amdgcn_target "amdgcn-amd-amdhsa--gfx950"\n.text\n')
    for (name, grid, block, lds, body, vgpr) in kernels:
        out.append(khead(name))
        out.append(body)
    out.append('.section .rodata,"a"\n')
    for (name, grid, block, lds, body, vgpr) in kernels:
        out.append(".p2align 6\n")
        out.append(kdesc(name, vgpr))
    return "".join(out)

if __name__ == "__main__":
    ks = ([] if FUSE else [("prep_kernel", N_K1, 512, K1_LDS, k1(), 128)]) + [
          ("mid_kernel", N_K2, 896, K2_LDS, k2(), 128),
          ("fin_kernel", N_G2, 512, K3_LDS, k3(), 72 + 48*(K3_D+1))]
    open(sys.argv[1] if len(sys.argv) > 1 else "cdna_kernels/%s.s" % NAME, "w").write(build(ks))
```
